```python
import torch

def _softmax(x, axis=-1):
    return torch.softmax(x, dim=axis)
def _gelu(x):
    return torch.nn.functional.gelu(x, approximate="tanh")
def _silu(x):
    return torch.nn.functional.silu(x)
def _sigmoid(x):
    return torch.sigmoid(x)
def _layernorm(x, axis=-1, eps=1e-5):
    m = x.mean(dim=axis, keepdim=True)
    v = x.var(dim=axis, keepdim=True, unbiased=False)
    return (x - m) / torch.sqrt(v + eps)
def _scatter_add(tgt, idx, src, axis=0):
    return tgt.clone().index_add_(axis, idx, src)
def _segment_sum(src, seg, n):
    out = torch.zeros((n,) + src.shape[1:], dtype=src.dtype)
    return out.index_add_(0, seg, src)
def _pad(x, pw):
    flat = tuple(v for pair in reversed(pw) for v in pair)
    return torch.nn.functional.pad(x, flat)

kernel_name = 'interleave_layers__sliding_local_dilated__swiglu_ffn__prompt'

def setup_inputs():

    _w = (lambda a: (lambda t: t.to(torch.bfloat16) if t.is_floating_point() else t)(torch.as_tensor(a)))
    def _A_setup():
        B, S, D = 1, 2048, 1024
        return {
            "x": _w((lambda *s: torch.randn(*s, dtype=torch.bfloat16) * 0.05)(B, S, D)),
            "wqkv": _w((lambda *s: torch.randn(*s, dtype=torch.bfloat16) * 0.05)(D, 3 * D)),
            "wo": _w((lambda *s: torch.randn(*s, dtype=torch.bfloat16) * 0.05)(D, D)),
        }
    _A_in = _A_setup()

    def _B_setup():
        B, S, D, F = 1, 2048, 1024, 3584
        return {
            "x": _w((lambda *s: torch.randn(*s, dtype=torch.bfloat16) * 0.05)(B, S, D)),
            "w_gate": _w((lambda *s: torch.randn(*s, dtype=torch.bfloat16) * 0.05)(D, F)),
            "w_up": _w((lambda *s: torch.randn(*s, dtype=torch.bfloat16) * 0.05)(D, F)),
            "w_down": _w((lambda *s: torch.randn(*s, dtype=torch.bfloat16) * 0.05)(F, D)),
        }
    _B_in = _B_setup()

    return {
        "A_x": _A_in["x"],
        "A_wqkv": _A_in["wqkv"],
        "A_wo": _A_in["wo"],
        "B_x": _B_in["x"],
        "B_w_gate": _B_in["w_gate"],
        "B_w_up": _B_in["w_up"],
        "B_w_down": _B_in["w_down"],
    }

def reference(A_x, A_wqkv, A_wo, B_x, B_w_gate, B_w_up, B_w_down):
    def _A_ref(x, wqkv, wo):
        B, S, D = x.shape
        H = 32; Dh = D // H
        W, dil = 8, 2
        qkv = (lambda x, *d: x.permute(*d))((x @ wqkv).reshape(B, S, 3, H, Dh), 2, 0, 3, 1, 4)
        q, k, v = qkv[0], qkv[1], qkv[2]
        scale = Dh ** -0.5
        pos = torch.arange(S)
        off = torch.arange(W) * dil
        idx = pos[:, None] - off[None, :]
        mask = idx >= 0
        idx_c = torch.where(mask, idx, 0).reshape(-1)
        kg = k[:, :, idx_c, :].reshape(B, H, S, W, Dh)
        vg = v[:, :, idx_c, :].reshape(B, H, S, W, Dh)
        logits = torch.einsum("bhsd,bhswd->bhsw", q, kg) * scale
        logits = torch.where(mask[None, None, :, :], logits, -1e9)
        attn = _softmax(logits, axis=-1)
        o = torch.einsum("bhsw,bhswd->bhsd", attn, vg)
        return (lambda x, *d: x.permute(*d))(o, 0, 2, 1, 3).reshape(B, S, D) @ wo

    def _B_ref(x, w_gate, w_up, w_down):
        g = _silu(x @ w_gate)
        u = x @ w_up
        return (g * u) @ w_down

    x = A_x
    x = x + _A_ref(_layernorm(x, axis=-1), A_wqkv, A_wo)
    x = x + _B_ref(_layernorm(x, axis=-1), B_w_gate, B_w_up, B_w_down)
    x = x + _A_ref(_layernorm(x, axis=-1), A_wqkv, A_wo)
    x = x + _B_ref(_layernorm(x, axis=-1), B_w_gate, B_w_up, B_w_down)
    return x
```

```python
from emit import *
KA_X, KA_WQKV, KA_WO, KA_BX, KA_WG, KA_WU, KA_WD, KA_OUT, KA_DBG, KA_WS = [8*i for i in range(10)]
S, D, F = 2048, 1024, 3584
XF = [0x0000000, 0x0400000, 0x0800000, 0x0C00000]
OF = 0x1000000
HF = 0x1400000
ST = [0x2200000 + i*0x40000 for i in range(4)]
CSQ = 0x2300000
CSG = 0x2304000
DIAG = 0x2400000
WS_BYTES = 268435456
HPITCH = 112*1024
LOG2E = 1.4426950408889634
import struct
def fhex(x): return hex(struct.unpack("<I", struct.pack("<f", x))[0])

def srd(e, s, ptr_s, nbytes):
    e(f"s_mov_b32 s{s}, s{ptr_s}\ns_mov_b32 s{s+1}, s{ptr_s+1}\ns_mov_b32 s{s+2}, {hex(nbytes)}\ns_mov_b32 s{s+3}, 0x20000")

class Diag:
    def __init__(self, on, base_s=80): self.on = on; self.n = 0; self.b = base_s
    def stamp(self, e):
        if not self.on: return
        e(f"s_memtime s[{self.b+2*self.n}:{self.b+2*self.n+1}]"); self.n += 1
        e("s_waitcnt lgkmcnt(0)")
    def real(self, e):
        if not self.on: return
        e(f"s_memrealtime s[{self.b+2*self.n}:{self.b+2*self.n+1}]"); self.n += 1
        e("s_waitcnt lgkmcnt(0)")
    def flush(self, e, srd_ws, slot_s, wave_s, vt):
        if not self.on: return
        e(f"s_lshl_b32 s78, s2, 2\ns_add_u32 s78, s78, s{wave_s}\ns_lshl_b32 s78, s78, 6\ns_lshl_b32 s79, s{slot_s}, 16\ns_add_u32 s78, s78, s79\ns_add_u32 s78, s78, {hex(DIAG)}")
        e(f"v_mov_b32 v{vt}, 0")
        for i in range(self.n):
            e(f"v_mov_b32 v{vt+1}, s{self.b+2*i}")
            e(f"buffer_store_dword v{vt+1}, v{vt}, s[{srd_ws}:{srd_ws+3}], s78 offen offset:{4*i}")
            e("s_nop 0")

def xreduce_g(e, op, regs, tmps):
    for swap in ("v_permlane32_swap_b32", "v_permlane16_swap_b32"):
        for r, t in zip(regs, tmps): e(f"v_mov_b32 v{t}, v{r}")
        if len(regs) < 2: e("s_nop 1")
        else: e("s_nop 0") if len(regs) < 3 else None
        for i, (r, t) in enumerate(zip(regs, tmps)): e(f"{swap} v{r}, v{t}")
        for r, t in zip(regs, tmps): e(f"{op} v{r}, v{r}, v{t}")
```

```python
class E:
    def __init__(self):
        self.L = []
        self.vmq = []; self.vm_done = 0
        self.dsq = []; self.ds_done = 0
        self.marks = {}
    def __call__(self, s):
        for x in s.split("\n"):
            x = x.strip()
            if x: self.L.append(x)
    def vm(self, s, tag=None):
        self.L.append(s); self.vmq.append(tag)
    def ds(self, s, tag=None):
        self.L.append(s); self.dsq.append(tag)
    @staticmethod
    def _need(q, done, tags, cap):
        if tags is None: return None, done
        if tags == 'all':
            last = len(q) - 1
        else:
            if not isinstance(tags, (list, set)): tags = [tags]
            last = -1
            for t in tags:
                idx = [i for i, x in enumerate(q) if x == t]
                assert idx, f"tag {t} never issued"
                last = max(last, idx[-1])
        if last < done: return None, done
        n = len(q) - 1 - last
        n = min(n, cap)
        return n, len(q) - n
    def wait(self, vm=None, ds=None):
        nv, self.vm_done = self._need(self.vmq, self.vm_done, vm, 63)
        nd, self.ds_done = self._need(self.dsq, self.ds_done, ds, 15)
        p = []
        if nv is not None: p.append(f"vmcnt({nv})")
        if nd is not None: p.append(f"lgkmcnt({nd})")
        if p: self.L.append("s_waitcnt " + " ".join(p))
        return bool(p)
    def mark(self, name):
        self.marks[name] = len(self.L)
    def fold(self, names, label, cnt_sgpr):
        pos = [self.marks[n] for n in names]
        n = len(pos) - 1
        bodies = [self.L[pos[i]:pos[i + 1]] for i in range(n)]
        for i in range(1, n):
            if bodies[i] != bodies[0]:
                for a, b in zip(bodies[0], bodies[i]):
                    if a != b:
                        raise AssertionError(f"fold mismatch body {i}: {a!r} vs {b!r}")
                raise AssertionError(f"fold length mismatch body {i}")
        body = list(bodies[0])
        new = [f"s_mov_b32 {cnt_sgpr}, {n}", ".p2align 3", f"{label}:"] + body + [f"s_sub_u32 {cnt_sgpr}, {cnt_sgpr}, 1", f"s_cmp_lg_u32 {cnt_sgpr}, 0", f"s_cbranch_scc1 {label}"]
        delta = len(new) - (pos[-1] - pos[0])
        self.L[pos[0]:pos[-1]] = new
        for k, v in self.marks.items():
            if v >= pos[-1]: self.marks[k] = v + delta
    def text(self):
        return "\n".join(("" if l.endswith(":") or l.startswith(".") else "  ") + l for l in self.L) + "\n"

def vr(a, n=1): return f"v{a}" if n == 1 else f"v[{a}:{a+n-1}]"
def ar(a, n=1): return f"a{a}" if n == 1 else f"a[{a}:{a+n-1}]"
def sr(a, n=1): return f"s{a}" if n == 1 else f"s[{a}:{a+n-1}]"

def kd(name, nvgpr=512, accum=256):
    return f""".p2align 6
.amdhsa_kernel {name}
  .amdhsa_next_free_vgpr {nvgpr}
  .amdhsa_next_free_sgpr 102
  .amdhsa_accum_offset {accum}
  .amdhsa_group_segment_fixed_size 0
  .amdhsa_kernarg_size 80
  .amdhsa_user_sgpr_count 2
  .amdhsa_user_sgpr_kernarg_segment_ptr 1
  .amdhsa_system_sgpr_workgroup_id_x 1
  .amdhsa_float_denorm_mode_32 3
.end_amdhsa_kernel
"""
def entry(name):
    return f".globl {name}\n.p2align 8\n.type {name},@function\n{name}:\n"
```

```python
from common import *
def gen_gu(name, cfg):
    e = E(); dg = Diag(cfg.get('diag', False))
    DW = cfg.get('DW', 3)
    NWB = DW + 1 + cfg.get('xb', 0)
    assert 56 % NWB == 0
    vm_pos = cfg.get('vm_pos', [1, 2, 4, 5, 7, 8, 10, 11])
    sWS, sG, sU = 4, 8, 12
    sWave, sMi, sNj, sOdd, sT, sW, sM0, sCnt = 24, 25, 26, 27, 28, 29, 30, 31
    vW = 224; vOW = 231; vOT = 235; vL = 239
    aT = 0; aWf = 64; aSt = 128
    acc = lambda n, tt: (n*4 + tt)*4
    e(f"{name}:")
    dg.real(e); dg.stamp(e)
    e(f"s_load_dwordx2 s[32:33], s[0:1], {KA_WS}\ns_load_dwordx4 s[36:39], s[0:1], {KA_WG}")
    e(f"v_lshrrev_b32 v1, 6, v0\nv_and_b32 v{vL}, 63, v0\nv_readfirstlane_b32 s{sWave}, v1")
    mb = cfg.get('mbits', 2)
    e(f"s_and_b32 s34, s2, 7\ns_lshr_b32 s35, s2, 3")
    e(f"s_and_b32 s{sMi}, s34, {(8>>mb)-1}\ns_lshl_b32 s{sMi}, s{sMi}, {mb}\ns_and_b32 s43, s35, {(1<<mb)-1}\ns_add_u32 s{sMi}, s{sMi}, s43")
    e(f"s_lshr_b32 s{sNj}, s34, {3-mb}\ns_lshl_b32 s{sNj}, s{sNj}, {5-mb}\ns_lshr_b32 s43, s35, {mb}\ns_add_u32 s{sNj}, s{sNj}, s43")
    e(f"s_and_b32 s{sOdd}, s{sNj}, 1")
    e(f"v_lshrrev_b32 v2, 4, v{vL}\nv_bfe_u32 v3, v{vL}, 1, 3\nv_and_b32 v4, 1, v{vL}\nv_lshlrev_b32 v4, 4, v4")
    e(f"s_mov_b32 s43, {2*F}\nv_mul_u32_u24 v5, s43, v2\nv_add_u32 v5, v5, v4")
    for i in range(4):
        e(f"v_add_u32 v6, {4*(i&1)}, v2\nv_xor_b32 v6, v6, v3\nv_lshl_add_u32 v6, v6, 5, v5\nv_add_u32 v{vOW+i}, {i*4*2*F - 1024*i}, v6")
    for tt in range(4):
        e(f"v_lshlrev_b32 v6, 4, v{vL}\nv_add_u32 v{vOT+tt}, {tt*32768}, v6")
    e(f"s_lshl_b32 s{sT}, s{sMi}, 2\ns_add_u32 s{sT}, s{sT}, s{sWave}\ns_mov_b32 s44, s{sT}\ns_lshl_b32 s{sT}, s{sT}, 17\ns_add_u32 s{sT}, s{sT}, s40")
    e(f"s_mul_i32 s{sW}, s{sNj}, 224\ns_and_b32 s{sW}, s{sW}, 0xffffffc0\ns_mul_i32 s43, s{sWave}, {16*2*F}\ns_add_u32 s{sW}, s{sW}, s43")
    e(f"s_lshl_b32 s{sM0}, s{sWave}, 12")
    e("s_waitcnt lgkmcnt(0)")
    srd(e, sWS, 32, WS_BYTES); srd(e, sG, 36, D*F*2); srd(e, sU, 38, D*F*2)
    NST = 32
    def vm_ops(i):
        ops = []
        st = (i >> 1) + 2; mat = i & 1; j = i + 3
        for q in range(4):
            if st < (2 if cfg.get('no_vmW') else NST//2):
                def f(q=q):
                    if q == 0:
                        e(f"s_add_u32 m0, s{sM0}, {(st & 1)*32768 + mat*16384}")
                        e("s_nop 0")
                    e.vm(f"buffer_load_dwordx4 v{vOW+q}, s[{(sG, sU)[mat]}:{(sG, sU)[mat]+3}], s{sW} offen offset:{1024*q} lds", ('W', st))
                    if q == 3 and mat == 1:
                        e(f"s_add_u32 s{sW}, s{sW}, {64*2*F}")
                        if st & 1: e(f"s_xor_b32 s{sM0}, s{sM0}, 0x10000")
                ops.append(f)
            else: ops.append(None)
            if 0 <= j < (4 if cfg.get('no_vmT') else NST):
                def f(q=q):
                    e.vm(f"buffer_load_dwordx4 {ar(aT + (j&3)*16 + q*4, 4)}, v{vOT+q}, s[{sWS}:{sWS+3}], s{sT} offen offset:{1024*(j&3)}", ('T', j))
                    if q == 3 and (j & 3) == 3: e(f"s_add_u32 s{sT}, s{sT}, 4096")
                ops.append(f)
            else: ops.append(None)
        return ops
    for i in range(-4, 0):
        for f in vm_ops(i):
            if f: f()
    e(f"v_lshrrev_b32 v2, 2, v{vL}\nv_and_b32 v3, 7, v2\nv_and_b32 v4, 3, v{vL}\nv_lshlrev_b32 v4, 3, v4\nv_lshl_add_u32 v4, v2, 8, v4")
    e(f"s_lshl_b32 s43, s{sOdd}, 1\ns_cmp_eq_u32 s{sOdd}, 0\ns_cselect_b32 s45, 6, 1")
    for t in range(7):
        if t < 6: e(f"s_add_u32 s46, s43, {t}\nv_xor_b32 v5, s46, v3")
        else: e(f"v_xor_b32 v5, s45, v3")
        e(f"v_lshl_add_u32 v{vW+t}, v5, 5, v4")
    for r in range(224): e(f"v_mov_b32 v{r}, 0")
    def wread(L):
        i, n = divmod(L, 14)
        if i >= NST or (cfg.get('no_ds') and L >= NWB): return []
        st = i >> 1; ops = []
        def pre():
            if n == 0 and (i & 1) == 0:
                e.wait(vm=('W', min(st,1) if cfg.get('no_vmW') else st)); e("s_barrier")
                if st > 0 and (st & 1) == 0: pass
        for j in range(2):
            def f(j=j):
                if j == 0: pre()
                off = (st & 1)*32768 + (n & 1)*16384 + ((i & 1)*32 + 16*j)*256
                e.ds(f"ds_read_b64_tr_b16 {ar(aWf + (L % NWB)*4 + 2*j, 2)}, v{vW + (n >> 1)} offset:{off}", ('F', L))
                if j == 1 and (i & 3) == 3 and (n & 1) == 1 and not cfg.get('no_vmW'): e(f"v_xor_b32 v{vW + (n >> 1)}, 0x10000, v{vW + (n >> 1)}")
            ops.append(f)
        return ops
    for L in range(DW):
        for f in wread(L): f()
    dg.stamp(e)
    for i in range(NST):
        if i % 4 == 0: e.mark(f"b{i//4}")
        vops = vm_ops(i)
        if i == NST - 3:
            def mk(q):
                def f():
                    if q == 0: e(f"s_lshl_b32 s43, s44, 13\ns_add_u32 s43, s43, s41\nv_lshlrev_b32 v{vOW}, 3, v{vL}\ns_add_u32 s45, s43, 4096")
                    for x in range(2):
                        k = 2*q + x
                        e.vm(f"buffer_load_dwordx2 {ar(aSt + 2*k, 2)}, v{vOW}, s[{sWS}:{sWS+3}], s{43 if k < 8 else 45} offen offset:{(k & 7)*512}", 'ST')
                return f
            vops = [mk(q) for q in range(8)]
        if i == NST - 2:
            def mk(q):
                def f():
                    if q == 0:
                        e(f"s_mul_i32 s43, s{sNj}, 448\ns_add_u32 s43, s43, {CSG}\ns_lshl_b32 s45, s{sOdd}, 6\ns_add_u32 s45, s43, s45\ns_add_u32 s46, s45, {F*4}")
                        e(f"s_cmp_eq_u32 s{sOdd}, 0\ns_cselect_b32 s47, 384, 0\ns_add_u32 s47, s47, s43\ns_add_u32 s48, s47, {F*4}")
                        e(f"v_lshrrev_b32 v{vOW+1}, 4, v{vL}\nv_lshlrev_b32 v{vOW+1}, 4, v{vOW+1}")
                    for m in range(2):
                        so = (45, 46)[m] if q < 6 else (47, 48)[m]
                        e.vm(f"buffer_load_dwordx4 {ar(aSt + 32 + (2*q+m)*4, 4)}, v{vOW+1}, s[{sWS}:{sWS+3}], s{so} offen offset:{64*q if q < 6 else 0}", 'CS')
                return f
            vops = [mk(q) for q in range(7)] + [None]
        for n in range(14):
            L = i*14 + n
            fill = {0: [], 1: [], 2: [], 3: []}
            rd = wread(L + DW)
            if rd: fill[0].append(rd[0]); fill[1].append(rd[1])
            if n in vm_pos:
                f = vops[vm_pos.index(n)]
                if f: fill[2].append(f)
            e.wait(vm=('T', min(i,3) if cfg.get('no_vmT') else i) if n == 0 else None, ds=('F', min(L,NWB-1) if cfg.get('no_ds') else L))
            for ti in range(4):
                tt = 3 - ti if (cfg.get('snake') and n & 1) else ti
                a = vr(acc(n, tt), 4)
                e(f"v_mfma_f32_16x16x32_bf16 {a}, {ar(aWf + (L % NWB)*4, 4)}, {ar(aT + (i&3)*16 + tt*4, 4)}, {a}")
                for f in fill[ti]: f()
    e.mark("b8")
    if cfg.get('fold', True): e.fold([f"b{k}" for k in range(8)], f"L{name}_loop", f"s{sCnt}")
    dg.stamp(e)
    vMu, vC1, vC2 = 240, 244, 248
    t0 = 224
    e.wait(vm='all')
    for tt in range(4):
        for k in range(8): e(f"v_accvgpr_read_b32 v{t0+k}, a{aSt + tt*8 + k}")
        e(f"v_add_f32 v{t0}, v{t0}, v{t0+2}\nv_add_f32 v{t0+1}, v{t0+1}, v{t0+3}\nv_add_f32 v{t0+4}, v{t0+4}, v{t0+6}\nv_add_f32 v{t0+5}, v{t0+5}, v{t0+7}")
        e(f"v_add_f32 v{vMu+tt}, v{t0}, v{t0+4}\nv_add_f32 v{vC2+tt}, v{t0+1}, v{t0+5}")
    xreduce_g(e, "v_add_f32", [vMu+t for t in range(4)] + [vC2+t for t in range(4)], list(range(t0, t0+8)))
    e(f"s_mov_b32 s43, {fhex(1.0/D)}\nv_mov_b32 v{t0}, {fhex(1e-5)}")
    for tt in range(4):
        e(f"v_mul_f32 v{vMu+tt}, {fhex(-1.0/D)}, v{vMu+tt}")
        e(f"v_fma_f32 v{vC2+tt}, v{vC2+tt}, s43, v{t0}")
        e(f"v_fma_f32 v{vC2+tt}, -v{vMu+tt}, v{vMu+tt}, v{vC2+tt}")
        e(f"v_max_f32 v{vC2+tt}, v{vC2+tt}, v{t0}")
        e(f"v_rsq_f32 v{vC1+tt}, v{vC2+tt}")
    e("s_nop 0")
    for tt in range(4): e(f"v_mul_f32 v{vC1+tt}, {fhex(-LOG2E)}, v{vC1+tt}")
    vS1, vS2 = 252, 253
    e(f"v_lshlrev_b32 v{vS1}, 4, v{vL}\nv_and_b32 v{vS2}, 31, v{vL}\nv_lshlrev_b32 v{vS2}, 4, v{vS2}\nv_lshrrev_b32 v{t0}, 5, v{vL}")
    e(f"s_mov_b32 s43, {HPITCH}\nv_mad_u32_u24 v{vS2}, v{t0}, s43, v{vS2}")
    e(f"s_mul_i32 s43, s44, {4*HPITCH}\ns_lshr_b32 s45, s{sNj}, 1\ns_mul_i32 s45, s45, 7168\ns_add_u32 s43, s43, s45\ns_add_u32 s43, s43, {HF}")
    e(f"s_lshl_b32 s45, s{sOdd}, 12\ns_add_u32 s50, s43, s45\ns_lshl_b32 s45, s{sOdd}, 9\ns_add_u32 s54, s43, s45\ns_add_u32 s54, s54, 3072\ns_add_u32 s55, s54, {2*HPITCH}")
    for tt in range(1, 4): e(f"s_add_u32 s{50+tt}, s{50+tt-1}, {HPITCH}")
    st_aux = cfg.get('st_aux', '')
    for t in range(7):
        cg, cu = t0, t0 + 4; tm = t0 + 8
        for k in range(8): e(f"v_accvgpr_read_b32 v{t0+k}, a{aSt + 32 + 8*t + k}")
        for tt in range(4):
            g = acc(2*t, tt); u = acc(2*t+1, tt)
            mu = vMu + tt; mub = mu & ~1; sel = mu & 1
            osel = f"op_sel:[0,{sel},0] op_sel_hi:[1,{sel},1]"
            for h in range(2):
                e(f"v_pk_fma_f32 {vr(g+2*h,2)}, {vr(cg+2*h,2)}, {vr(mub,2)}, {vr(g+2*h,2)} {osel}")
                e(f"v_pk_fma_f32 {vr(u+2*h,2)}, {vr(cu+2*h,2)}, {vr(mub,2)}, {vr(u+2*h,2)} {osel}")
            c1 = (vC1 + tt) & ~1; c2 = (vC2 + tt) & ~1
            for h in range(2):
                e(f"v_pk_mul_f32 {vr(tm+2*h,2)}, {vr(g+2*h,2)}, {vr(c1,2)} op_sel:[0,{sel}] op_sel_hi:[1,{sel}]")
            for r in range(4): e(f"v_exp_f32 v{tm+r}, v{tm+r}")
            for h in range(2): e(f"v_pk_mul_f32 {vr(g+2*h,2)}, {vr(g+2*h,2)}, {vr(u+2*h,2)}")
            for h in range(2):
                e(f"v_pk_fma_f32 {vr(tm+2*h,2)}, {vr(tm+2*h,2)}, {vr(c2,2)}, {vr(c2,2)} op_sel:[0,{sel},{sel}] op_sel_hi:[1,{sel},{sel}]")
            for r in range(4): e(f"v_rcp_f32 v{tm+r}, v{tm+r}")
            e("s_nop 0")
            for h in range(2): e(f"v_pk_mul_f32 {vr(g+2*h,2)}, {vr(g+2*h,2)}, {vr(tm+2*h,2)}")
            if t < 6: dst = acc(2*(t & ~1) + 1, tt) + 2*(t & 1)
            else: dst = acc(13, tt & ~1) + 2*(tt & 1)
            e(f"v_cvt_pk_bf16_f32 v{dst}, v{g}, v{g+1}\nv_cvt_pk_bf16_f32 v{dst+1}, v{g+2}, v{g+3}")
            if t < 6 and (t & 1):
                e.vm(f"buffer_store_dwordx4 {vr(dst-2,4)}, v{vS1}, s[{sWS}:{sWS+3}], s{50+tt} offen offset:{1024*(t>>1)} {st_aux}")
            if t == 6 and (tt & 1):
                e(f"s_nop 1\nv_permlane32_swap_b32 v{dst-2}, v{dst}\nv_permlane32_swap_b32 v{dst-1}, v{dst+1}")
                e.vm(f"buffer_store_dwordx4 {vr(dst-2,4)}, v{vS2}, s[{sWS}:{sWS+3}], s{54 + (tt>>1)} offen {st_aux}")
    dg.stamp(e)
    if dg.on:
        e("s_waitcnt vmcnt(0)"); dg.stamp(e); dg.real(e); dg.flush(e, sWS, 42, sWave, 0)
    e("s_endpgm")
    return e.text()
```

```python
from common import *
from res import stats_epilogue
def gen_prep(name, cfg):
    e = E(); dg = Diag(cfg.get('diag', False))
    sWS, sX, sWt = 4, 8, 12
    sWave = 24; vL = 47
    e(f"{name}:")
    dg.real(e); dg.stamp(e)
    e(f"s_load_dwordx2 s[32:33], s[0:1], {KA_WS}\ns_load_dwordx4 s[36:39], s[0:1], {KA_X}\ns_load_dwordx4 s[68:71], s[0:1], {KA_WG}")
    e(f"v_lshrrev_b32 v1, 6, v0\nv_and_b32 v{vL}, 63, v0\nv_readfirstlane_b32 s{sWave}, v1")
    e(f"s_lshr_b32 s44, s2, 1\ns_and_b32 s45, s2, 1\ns_lshl_b32 s45, s45, 2\ns_add_u32 s45, s45, s{sWave}")
    e(f"v_and_b32 v2, 15, v{vL}\nv_lshlrev_b32 v2, 12, v2\nv_lshrrev_b32 v3, 4, v{vL}\nv_lshl_add_u32 v2, v3, 3, v2\nv_lshlrev_b32 v4, 4, v{vL}")
    e(f"s_and_b32 s43, s44, 63\ns_lshl_b32 s43, s43, 16\ns_lshr_b32 s46, s44, 6\ns_lshl_b32 s46, s46, 11\ns_add_u32 s46, s46, s43\ns_lshl_b32 s43, s45, 8\ns_add_u32 s46, s46, s43")
    e("s_waitcnt lgkmcnt(0)")
    srd(e, sWS, 32, WS_BYTES); srd(e, sX, 36, S*D*2)
    for q in range(8): e.vm(f"buffer_load_dwordx2 {vr(48+2*q,2)}, v2, s[{sX}:{sX+3}], s46 offen offset:{32*q}", 'X')
    e(f"s_mov_b32 s51, 6144\ns_mov_b32 s52, s2\ns_mov_b32 s53, {CSQ}\ns_mov_b32 s{sWt}, s38\ns_mov_b32 s{sWt+1}, s39\ns_mov_b32 s{sWt+2}, {D*3*D*2}\ns_mov_b32 s{sWt+3}, 0x20000")
    e(f"s_cmp_lt_u32 s2, 48\ns_cbranch_scc1 L{name}_sel")
    e(f"s_mov_b32 s51, 7168\ns_sub_u32 s52, s2, 48\ns_mov_b32 s53, {CSG}\ns_mov_b32 s{sWt}, s68\ns_mov_b32 s{sWt+1}, s69\ns_mov_b32 s{sWt+2}, {D*F*2}")
    e(f"s_cmp_lt_u32 s2, 104\ns_cbranch_scc1 L{name}_sel")
    e(f"s_sub_u32 s52, s2, 104\ns_mov_b32 s53, {CSG + F*4}\ns_mov_b32 s{sWt}, s70\ns_mov_b32 s{sWt+1}, s71")
    e(f"L{name}_sel:")
    e(f"s_lshl_b32 s43, s44, 15\ns_lshl_b32 s47, s45, 12\ns_add_u32 s47, s47, s43\ns_add_u32 s47, s47, {XF[0]}")
    e(f"s_lshl_b32 s43, s44, 11\ns_lshl_b32 s50, s45, 8\ns_add_u32 s50, s50, s43\ns_add_u32 s50, s50, {ST[0]}")
    e.wait(vm='X')
    for q in range(4): e.vm(f"buffer_store_dwordx4 {vr(48+4*q,4)}, v4, s[{sWS}:{sWS+3}], s47 offen offset:{1024*q}")
    stats_epilogue(e, lambda tt, p: 48 + (tt*2+p)*4, 2, 2, vL, 64, sWS, 50, tile_stride=128)
    e(f"s_cmp_ge_u32 s2, 160\ns_cbranch_scc1 L{name}_end")
    e(f"v_lshrrev_b32 v2, 3, v{vL}\nv_mul_u32_u24 v2, s51, v2\nv_and_b32 v3, 7, v{vL}\nv_lshl_add_u32 v2, v3, 4, v2")
    e(f"s_lshl_b32 s54, s51, 8\ns_mul_i32 s54, s54, s{sWave}\ns_lshl_b32 s43, s52, 7\ns_add_u32 s54, s54, s43\ns_lshl_b32 s55, s51, 3")
    for q in range(32):
        e.vm(f"buffer_load_dwordx4 {vr(96+4*q,4)}, v2, s[{sWt}:{sWt+3}], s54 offen", ('C', q)); e("s_add_u32 s54, s54, s55")
    for r in range(8): e(f"v_mov_b32 v{8+r}, 0")
    for q in range(32):
        e.wait(vm=('C', q))
        for r in range(4):
            e(f"v_lshlrev_b32 v16, 16, v{96+4*q+r}\nv_and_b32 v17, 0xffff0000, v{96+4*q+r}\nv_pk_add_f32 {vr(8+2*r,2)}, {vr(8+2*r,2)}, v[16:17]")
    xreduce_g(e, "v_add_f32", list(range(8, 16)), list(range(16, 24)))
    e("s_nop 1")
    for r in range(8): e(f"v_add_f32_dpp v{8+r}, v{8+r}, v{8+r} row_ror:8 row_mask:0xf bank_mask:0xf")
    e(f"s_lshl_b32 s43, s{sWave}, 8\nv_lshlrev_b32 v3, 5, v3\nv_add_u32 v3, s43, v3")
    e(f"ds_write_b128 v3, v[8:11]\nds_write_b128 v3, v[12:15] offset:16\ns_waitcnt lgkmcnt(0)\ns_barrier")
    e(f"s_cmp_lg_u32 s{sWave}, 0\ns_cbranch_scc1 L{name}_end")
    e(f"v_lshlrev_b32 v3, 2, v{vL}")
    for w in range(4): e(f"ds_read_b32 v{8+w}, v3 offset:{256*w}")
    e(f"s_lshl_b32 s43, s52, 8\ns_add_u32 s53, s53, s43\ns_waitcnt lgkmcnt(0)\nv_add_f32 v8, v8, v9\nv_add_f32 v10, v10, v11\nv_add_f32 v8, v8, v10")
    e(f"buffer_store_dword v8, v3, s[{sWS}:{sWS+3}], s53 offen")
    e(f"L{name}_end:")
    if dg.on:
        dg.stamp(e); dg.stamp(e); dg.stamp(e)
        e("s_waitcnt vmcnt(0)"); dg.stamp(e); dg.real(e); dg.flush(e, sWS, 42, sWave, 0)
    e("s_endpgm")
    return e.text()
```

```python
from common import *
A_RING, W_RING, HALO = 0, 49152, 49152 + 73728
TAB = HALO + 16384
QKV_LDS = TAB + 4*1024
def gen_qkv(name, cfg):
    e = E(); dg = Diag(cfg.get('diag', False))
    sWS, sWt = 4, 8
    sWave, sMi, sHj, sHalf, sA, sW, sW2, sCnt, sMA, sMW, sInc0, sInc1, sHd = 24, 25, 26, 27, 28, 29, 30, 31, 50, 51, 52, 53, 54
    Q = lambda j, t: (j*4 + t - 1)*4
    Kc = lambda j, t: 32 + (j*5 + t)*4
    V = lambda j, t: 72 + (j*5 + t)*4
    vT, vH, vW, vOA, vOW, vL = 112, 113, 115, 119, 121, 123
    vST = 128
    vCS = 168
    fT = lambda b, t: b*44 + t*4
    fW = lambda b, n: b*44 + 20 + n*4
    e(f"{name}:")
    dg.real(e); dg.stamp(e)
    e(f"s_load_dwordx2 s[32:33], s[0:1], {KA_WS}\ns_load_dwordx2 s[36:37], s[0:1], {KA_WQKV}")
    e(f"v_lshrrev_b32 v1, 6, v0\nv_and_b32 v{vL}, 63, v0\nv_readfirstlane_b32 s{sWave}, v1")
    mb = cfg.get('mbits', 3)
    e(f"s_and_b32 s34, s2, 7\ns_lshr_b32 s35, s2, 3")
    e(f"s_and_b32 s{sMi}, s34, {(16>>mb)-1}\ns_lshl_b32 s{sMi}, s{sMi}, {mb}\ns_and_b32 s43, s35, {(1<<mb)-1}\ns_add_u32 s{sMi}, s{sMi}, s43")
    e(f"s_lshr_b32 s{sHj}, s34, {4-mb}\ns_lshl_b32 s{sHj}, s{sHj}, {5-mb}\ns_lshr_b32 s43, s35, {mb}\ns_add_u32 s{sHj}, s{sHj}, s43")
    e(f"s_lshr_b32 s{sHalf}, s{sWave}, 1\ns_and_b32 s{sHd}, s{sWave}, 1")
    e(f"v_lshlrev_b32 v{vOA}, 4, v{vL}\nv_add_u32 v{vOA+1}, {32768-2048}, v{vOA}")
    e(f"v_lshrrev_b32 v2, 3, v{vL}\nv_bfe_u32 v3, v{vL}, 1, 2\nv_lshrrev_b32 v4, 4, v{vL}\nv_xor_b32 v3, v3, v4\nv_and_b32 v4, 1, v{vL}")
    e(f"v_mul_u32_u24 v2, 6144, v2\nv_lshl_add_u32 v2, v3, 5, v2\nv_lshl_add_u32 v{vOW}, v4, 4, v2\nv_add_u32 v{vOW+1}, {8*6144-1024}, v{vOW}")
    e(f"v_lshrrev_b32 v2, 3, v{vL}\nv_and_b32 v3, 7, v{vL}\nv_lshlrev_b32 v2, 8, v2\nv_lshl_add_u32 v6, v3, 4, v2\nv_add_u32 v6, 128, v6")
    e(f"s_lshl_b32 s44, s{sMi}, 3")
    e(f"s_lshl_b32 s43, s{sWave}, 1\ns_add_u32 s{sA}, s44, s43\ns_lshl_b32 s{sA}, s{sA}, 15\ns_add_u32 s{sA}, s{sA}, s40")
    e(f"s_lshl_b32 s{sW}, s{sHj}, 7\ns_mul_i32 s43, s{sWave}, {16*6144}\ns_add_u32 s{sW}, s{sW}, s43\ns_add_u32 s{sW2}, s{sW}, 4096")
    e(f"s_lshl_b32 s{sMA}, s{sWave}, 12\ns_mul_i32 s{sMW}, s{sWave}, 6144")
    e(f"s_and_b32 s43, s{sMi}, 7\ns_cmp_lg_u32 s43, 0\ns_cselect_b32 s43, 1, 0\ns_sub_u32 s45, s44, s43")
    e(f"s_lshl_b32 s46, s45, 15\ns_add_u32 s46, s46, s40\ns_lshl_b32 s43, s{sWave}, 11\ns_add_u32 s46, s46, s43")
    e(f"s_lshl_b32 s47, s{sWave}, 10\ns_add_u32 s47, s47, {HALO}")
    e("s_waitcnt lgkmcnt(0)")
    srd(e, sWS, 32, WS_BYTES); srd(e, sWt, 36, D*3*D*2)
    NS = 32; NSG = 16
    def dma_ops(s):
        if not 0 <= s < NSG: return [None]*10
        sl = s % 3; ops = []
        def a_op(q):
            def f():
                if q == 0: e(f"s_add_u32 m0, s{sMA}, {A_RING + sl*16384}\ns_nop 0")
                e.vm(f"buffer_load_dwordx4 v{vOA + (q>>1)}, s[{sWS}:{sWS+3}], s{sA} offen offset:{1024*q} lds", ('S', s))
                if q == 3: e(f"s_add_u32 s{sA}, s{sA}, 2048")
            return f
        def w_op(q):
            def f():
                if q in (0, 4): e(f"s_add_u32 m0, s{sMW}, {W_RING + sl*24576 + q*1024}\ns_nop 0")
                e.vm(f"buffer_load_dwordx4 v{vOW + (q&1)}, s[{sWt}:{sWt+3}], s{sW if q < 4 else sW2} offen offset:{1024*(q&3)} lds", ('S', s))
                if q == 3: e(f"s_add_u32 s{sW}, s{sW}, {64*6144}")
                if q == 5: e(f"s_add_u32 s{sW2}, s{sW2}, {64*6144}")
            return f
        return [a_op(q) for q in range(4)] + [w_op(q) for q in range(6)]
    def halo(i):
        e(f"s_add_u32 m0, s47, {i*4096}\ns_add_u32 s43, s46, {i*8192}")
        e.vm(f"buffer_load_dwordx4 v6, s[{sWS}:{sWS+3}], s43 offen lds", ('H', i))
    def vm_step(i):
        ops = dma_ops((i + 5)//2)
        return ops[:5] if i & 1 else ops[5:]
    halo(0)
    for i in range(-5, 0):
        if i == -3:
            for h in range(1, 4): halo(h)
        for f in vm_step(i): f()
        if i == -4:
            e(f"s_lshl_b32 s43, s{sHalf}, 13\nv_lshlrev_b32 v7, 4, v{vL}\nv_add_u32 v{vT}, s43, v7")
            e(f"v_lshrrev_b32 v2, 4, v{vL}\nv_and_b32 v3, 7, v{vL}\nv_lshlrev_b32 v2, 7, v2\nv_lshl_add_u32 v2, v3, 4, v2\nv_add_u32 v2, {HALO}, v2")
            e(f"v_add_u32 v3, {A_RING + 3*2048}, v7")
            e(f"s_cmp_eq_u32 s{sHalf}, 0\ns_cselect_b64 vcc, 0, -1\ns_movk_i32 s43, 1024\ns_cselect_b32 s{sInc0}, s43, 16384\ns_cselect_b32 s{sInc1}, s43, -32768\ns_cselect_b32 s43, 512, s43")
            e(f"v_cndmask_b32 v{vH}, v2, v3, vcc\nv_add_u32 v{vH+1}, s43, v{vH}")
            e(f"v_lshrrev_b32 v2, 2, v{vL}\nv_bfe_u32 v3, v{vL}, 3, 2\nv_and_b32 v4, 3, v{vL}\nv_lshlrev_b32 v4, 3, v4\nv_lshl_add_u32 v4, v2, 7, v4\nv_add_u32 v4, {W_RING}, v4")
            e(f"s_lshl_b32 s43, s{sHd}, 1\nv_xor_b32 v5, s43, v3\nv_lshl_add_u32 v{vW}, v5, 5, v4\nv_xor_b32 v5, 1, v5\nv_lshl_add_u32 v{vW+1}, v5, 5, v4")
            e(f"v_add_u32 v{vW+2}, {2*24576}, v{vW}\nv_add_u32 v{vW+3}, {2*24576}, v{vW+1}")
            for r in range(112):
                if r != 6: e(f"v_mov_b32 v{r}, 0")
    e("v_mov_b32 v6, 0")
    def reads(i):
        if i >= NS: return []
        s = i >> 1; kk = i & 1; sl = s % 3; b = i & 1; ops = []
        def rt(t):
            def f():
                if t == 0:
                    e.ds(f"ds_read_b128 {ar(fT(b,0),4)}, v{vH+kk}", ('T', i, 0))
                    e(f"v_add_u32 v{vH+kk}, s{sInc1 if sl == 2 else sInc0}, v{vH+kk}")
                else: e.ds(f"ds_read_b128 {ar(fT(b,t),4)}, v{vT} offset:{A_RING + sl*16384 + (t-1)*2048 + kk*1024}", ('T', i, t))
            return f
        def rw(n, j):
            def f():
                reg = vW + (n & 1) + (2 if sl == 2 else 0)
                e.ds(f"ds_read_b64_tr_b16 {ar(fW(b,n)+2*j,2)}, v{reg} offset:{(sl & 1 if sl < 2 else 0)*24576 + (2*kk+j)*6144 + (n>>1)*2048}", ('W', i, n))
            return f
        ops = [rw(0,0), rw(0,1), rt(1), rt(2), rt(3), rt(4), rw(1,0), rw(1,1), rt(0)]
        for n in range(2, 6): ops += [rw(n,0), rw(n,1)]
        if kk == 0:
            f0 = ops[0]
            def fb():
                e.wait(vm=[('S', s)] + ([('H', 0)] if s == 0 else []), ds='all' if i > 0 else None); e("s_barrier"); f0()
            ops[0] = fb
        return ops
    for f in reads(0): f()
    dg.stamp(e)
    vm_slots = cfg.get('vm_slots', [3, 9, 15, 20, 24])
    def tail_loads():
        ops = []
        def st(t):
            def f():
                if t == 0:
                    e(f"s_lshl_b32 s43, s{sHalf}, 2\ns_add_u32 s48, s44, s43\ns_sub_u32 s49, s48, 1\ns_cmp_eq_u32 s{sHalf}, 0\ns_cselect_b32 s49, s45, s49")
                    e(f"s_lshl_b32 s49, s49, 11\ns_add_u32 s49, s49, s41\ns_lshl_b32 s55, s48, 11\ns_add_u32 s55, s55, s41\ns_add_u32 s56, s55, 4096\nv_lshlrev_b32 v{vOA+1}, 3, v{vL}")
                so, off = (49, 0) if t == 0 else ((55, 56)[(t-1) >> 1], ((t-1) & 1)*2048)
                for k in range(4): e.vm(f"buffer_load_dwordx2 {vr(vST + t*8 + 2*k, 2)}, v{vOA+1}, s[{sWS}:{sWS+3}], s{so} offen offset:{off + 512*k}", 'ST')
            return f
        return [st(t) for t in range(5)]
    def cs_loads():
        def f():
            e(f"s_lshl_b32 s43, s{sHj}, 1\ns_add_u32 s57, s43, s{sHd}\ns_lshl_b32 s43, s57, 7\ns_add_u32 s58, s43, {CSQ}\ns_add_u32 s59, s58, 4096\ns_add_u32 s60, s58, 8192")
            e(f"v_lshrrev_b32 v{vOW}, 4, v{vL}\nv_lshlrev_b32 v{vOW}, 4, v{vOW}\nv_and_b32 v{vOW+1}, 15, v{vL}\nv_lshlrev_b32 v{vOW+1}, 2, v{vOW+1}")
            for m in range(2):
                for j in range(2): e.vm(f"buffer_load_dwordx4 {vr(vCS + m*8 + j*4, 4)}, v{vOW}, s[{sWS}:{sWS+3}], s{58+m} offen offset:{64*j}", 'CS')
            for j in range(2): e.vm(f"buffer_load_dword v{vCS+16+j}, v{vOW+1}, s[{sWS}:{sWS+3}], s60 offen offset:{64*j}", 'CS')
        return [f, None, None, None, None]
    for i in range(NS):
        if i % 6 == 0: e.mark(f"b{i//6}")
        rd = reads(i + 1); vo = vm_step(i); b = i & 1
        if i == 28: vo = tail_loads()
        if i == 29: vo = cs_loads()
        seq = []
        for n in range(6):
            ts = [1, 2, 3, 4] if n < 2 else [0, 1, 2, 3, 4]
            if n & 1: ts = ts[::-1]
            seq += [(n, t) for t in ts]
        for k, (n, t) in enumerate(seq):
            if k == 0: e.wait(ds='all')
            j = n & 1
            if n < 2: a = Q(j, t)
            elif n < 4: a = Kc(j, t)
            else: a = V(j, t)
            x, y = ar(fW(b, n), 4), ar(fT(b, t), 4)
            if n >= 4: x, y = y, x
            e(f"v_mfma_f32_16x16x32_bf16 {vr(a,4)}, {x}, {y}, {vr(a,4)}")
            if k < len(rd): rd[k]()
            if k in vm_slots and vo[vm_slots.index(k)]: vo[vm_slots.index(k)]()
    if cfg.get('fold', True): e.fold([f"b{k}" for k in range(5)], f"L{name}_loop", f"s{sCnt}")
    dg.stamp(e)
    vMu, vRs = 188, 194
    vMuV, vRsV = 200, 220
    tmp = 240
    e.wait(vm='all')
    for t in range(5):
        p = vST + t*8
        e(f"v_pk_add_f32 {vr(p,2)}, {vr(p,2)}, {vr(p+2,2)}\nv_pk_add_f32 {vr(p+4,2)}, {vr(p+4,2)}, {vr(p+6,2)}")
        e(f"v_add_f32 v{vMu+t}, v{p}, v{p+4}\nv_add_f32 v{vRs+t}, v{p+1}, v{p+5}")
    xreduce_g(e, "v_add_f32", [vMu+t for t in range(5)] + [vRs+t for t in range(5)], list(range(tmp, tmp+10)))
    e(f"s_mov_b32 s43, {fhex(1.0/D)}\nv_mov_b32 v{tmp}, {fhex(1e-5)}")
    e(f"s_lshl_b32 s61, s{sWave}, 10\ns_add_u32 s61, s61, {TAB}\nv_add_u32 v{tmp+1}, s61, v{vOW+1}\nv_add_u32 v{tmp+2}, s61, v{vOW}")
    for t in range(5):
        e(f"v_mul_f32 v{vMu+t}, {fhex(-1.0/D)}, v{vMu+t}\nv_fma_f32 v{vRs+t}, v{vRs+t}, s43, v{tmp}")
        e(f"v_fma_f32 v{vRs+t}, -v{vMu+t}, v{vMu+t}, v{vRs+t}\nv_max_f32 v{vRs+t}, v{vRs+t}, v{tmp}\nv_rsq_f32 v{vRs+t}, v{vRs+t}")
        e.ds(f"ds_write_b32 v{tmp+1}, v{vMu+t} offset:{t*128}")
        e.ds(f"ds_write_b32 v{tmp+1}, v{vRs+t} offset:{t*128+64}")
    for t in range(5):
        e.ds(f"ds_read_b128 {vr(vMuV+4*t,4)}, v{tmp+2} offset:{t*128}", 'TB')
        e.ds(f"ds_read_b128 {vr(vRsV+4*t,4)}, v{tmp+2} offset:{t*128+64}", 'TB')
    bC, bP, bP0 = 128, 132, 136
    e(f"v_and_b32 v{tmp+3}, 15, v{vL}\nv_lshrrev_b32 v{tmp+4}, 4, v{vL}\nv_lshlrev_b32 v{tmp+4}, 2, v{tmp+4}\nv_sub_u32 v{tmp+3}, v{tmp+3}, v{tmp+4}\nv_mov_b32 v{tmp+5}, {fhex(-1e30)}")
    e(f"s_and_b32 s43, s{sMi}, 7\ns_or_b32 s43, s43, s{sHalf}\ns_cmp_eq_u32 s43, 0\ns_cselect_b64 s[62:63], 0, -1")
    for r in range(4):
        e(f"v_subrev_u32 v{tmp+6}, {r}, v{tmp+3}\nv_cmp_gt_u32 vcc, 8, v{tmp+6}\nv_add_u32 v{tmp+6}, 16, v{tmp+6}\nv_cmp_gt_u32 s[64:65], 8, v{tmp+6}")
        e(f"v_cndmask_b32 v{bC+r}, v{tmp+5}, 0, vcc\ns_nop 0\nv_cndmask_b32 v{bP+r}, v{tmp+5}, 0, s[64:65]\nv_cndmask_b32 v{bP0+r}, v{tmp+5}, v{bP+r}, s[62:63]")
    def bsel(reg): return reg & ~1, reg & 1
    qf = lambda t: Q(0, t); kf = lambda t: Kc(0, t)
    def fold_qk(A, t, cs):
        mb_, ms = bsel(vMu + t); rb, rs = bsel(vRs + t)
        for j in range(2):
            a = A(j, t)
            for h in range(2): e(f"v_pk_fma_f32 {vr(a+2*h,2)}, {vr(cs+4*j+2*h,2)}, {vr(mb_,2)}, {vr(a+2*h,2)} op_sel:[0,{ms},0] op_sel_hi:[1,{ms},1]")
            for h in range(2): e(f"v_pk_mul_f32 {vr(a+2*h,2)}, {vr(a+2*h,2)}, {vr(rb,2)} op_sel:[0,{rs}] op_sel_hi:[1,{rs}]")
        for j in range(2):
            for h in range(2): e(f"v_cvt_pk_bf16_f32 v{A(0,t)+2*j+h}, v{A(j,t)+2*h}, v{A(j,t)+2*h+1}")
    for t in range(5): fold_qk(Kc, t, vCS + 8)
    for t in range(1, 5): fold_qk(Q, t, vCS)
    Sp = lambda t: Q(1, t); Sc = lambda t: Kc(1, t)
    e("s_nop 1")
    for t in range(1, 5):
        e(f"v_mfma_f32_16x16x32_bf16 {vr(Sp(t),4)}, {vr(kf(t-1),4)}, {vr(qf(t),4)}, {vr(bP0 if t == 1 else bP,4)}")
        e(f"v_mfma_f32_16x16x32_bf16 {vr(Sc(t),4)}, {vr(kf(t),4)}, {vr(qf(t),4)}, {vr(bC,4)}")
    vp = lambda j, t: 140 + j*10 + 2*t
    e.wait(ds='TB')
    cb = vCS + 16
    for t in range(5):
        for j in range(2):
            a = V(j, t)
            for h in range(2): e(f"v_pk_fma_f32 {vr(a+2*h,2)}, {vr(vMuV+4*t+2*h,2)}, {vr(cb,2)}, {vr(a+2*h,2)} op_sel:[0,{j},0] op_sel_hi:[1,{j},1]")
            for h in range(2): e(f"v_pk_mul_f32 {vr(a+2*h,2)}, {vr(a+2*h,2)}, {vr(vRsV+4*t+2*h,2)}")
            for h in range(2): e(f"v_cvt_pk_bf16_f32 v{vp(j,t)+h}, v{a+2*h}, v{a+2*h+1}")
    mx = lambda t: tmp + t - 1
    for t in range(1, 5):
        p, c = Sp(t), Sc(t)
        e(f"v_max3_f32 v{mx(t)}, v{p}, v{p+1}, v{p+2}\nv_max3_f32 v{mx(t)}, v{mx(t)}, v{p+3}, v{c}\nv_max3_f32 v{mx(t)}, v{mx(t)}, v{c+1}, v{c+2}\nv_max_f32 v{mx(t)}, v{mx(t)}, v{c+3}")
    xreduce_g(e, "v_max_f32", [mx(t) for t in range(1, 5)], list(range(tmp+4, tmp+8)))
    cexp = LOG2E*(32 ** -0.5)
    e(f"s_mov_b32 s43, {fhex(cexp)}")
    for t in range(1, 5): e(f"v_mul_f32 v{mx(t)}, {fhex(-cexp)}, v{mx(t)}")
    ones = 160
    for r in range(4): e(f"v_mov_b32 v{ones+r}, 0x3f803f80")
    pf = lambda t: qf(t)
    for t in range(1, 5):
        for b4 in (Sp(t), Sc(t)):
            for r in range(4): e(f"v_fma_f32 v{b4+r}, v{b4+r}, s43, v{mx(t)}")
        for b4 in (Sp(t), Sc(t)):
            for r in range(4): e(f"v_exp_f32 v{b4+r}, v{b4+r}")
        for q, b4 in enumerate((Sp(t), Sc(t))):
            for h in range(2): e(f"v_cvt_pk_bf16_f32 v{pf(t)+2*q+h}, v{b4+2*h}, v{b4+2*h+1}")
    O = lambda j, t: V(j, t); Dn = lambda t: Kc(0, t)
    e("s_nop 1")
    for t in range(1, 5):
        e(f"v_mfma_f32_16x16x32_bf16 {vr(Dn(t),4)}, {vr(ones,4)}, {vr(pf(t),4)}, 0")
        for j in range(2): e(f"v_mfma_f32_16x16x32_bf16 {vr(O(j,t),4)}, {vr(vp(j,t-1),4)}, {vr(pf(t),4)}, 0")
    e(f"s_lshl_b32 s43, s48, 15\ns_lshl_b32 s57, s57, 10\ns_add_u32 s43, s43, s57\ns_add_u32 s64, s43, {OF}")
    for t in range(1, 4): e(f"s_add_u32 s{64+t}, s{64+t-1}, 32768")
    e("s_nop 0")
    for t in range(1, 5): e(f"v_rcp_f32 v{Dn(t)}, v{Dn(t)}")
    st_aux = cfg.get('st_aux', '')
    for t in range(1, 5):
        for j in range(2):
            for h in range(2): e(f"v_pk_mul_f32 {vr(O(j,t)+2*h,2)}, {vr(O(j,t)+2*h,2)}, {vr(Dn(t),2)} op_sel:[0,0] op_sel_hi:[1,0]")
        for j in range(2):
            for h in range(2): e(f"v_cvt_pk_bf16_f32 v{Sp(t)+2*j+h}, v{O(j,t)+2*h}, v{O(j,t)+2*h+1}")
        e.vm(f"buffer_store_dwordx4 {vr(Sp(t),4)}, v{vOA}, s[{sWS}:{sWS+3}], s{64+t-1} offen {st_aux}")
    dg.stamp(e)
    if dg.on:
        e("s_waitcnt vmcnt(0)"); dg.stamp(e); dg.real(e); dg.flush(e, sWS, 42, sWave, 0)
    e("s_endpgm")
    return e.text()
```

```python
from common import *
def stats_epilogue(e, P, ntile, nblk, vL, vt, sWS, s_off, tile_stride=2048, aux=''):
    ones = vt; sm = lambda tt: vt + 4 + 8*tt; gr = lambda tt: vt + 8 + 8*tt
    va = vt + 4 + 8*ntile
    for r in range(4): e(f"v_mov_b32 v{ones+r}, 0x3f803f80")
    e(f"v_and_b32 v{va}, 15, v{vL}\nv_lshrrev_b32 v{va+1}, 4, v{vL}")
    for p in range(nblk):
        for tt in range(ntile):
            c = "0" if p == 0 else None
            e(f"v_mfma_f32_16x16x32_bf16 {vr(sm(tt),4)}, {vr(ones,4)}, {vr(P(tt,p),4)}, {c or vr(sm(tt),4)}")
            e(f"v_mfma_f32_16x16x32_bf16 {vr(gr(tt),4)}, {vr(P(tt,p),4)}, {vr(P(tt,p),4)}, {c or vr(gr(tt),4)}")
    e(f"v_lshrrev_b32 v{ones}, 2, v{va}\nv_cmp_eq_u32 s[60:61], v{ones}, v{va+1}\nv_and_b32 v{ones}, 3, v{va}")
    e(f"v_cmp_eq_u32 s[62:63], 1, v{ones}\nv_cmp_eq_u32 s[64:65], 2, v{ones}\nv_cmp_eq_u32 s[66:67], 3, v{ones}")
    e(f"v_lshlrev_b32 v{va}, 3, v{va}\nv_mov_b32 v{va+1}, 0x7ffffff0\ns_nop 0\nv_cndmask_b32 v{va}, v{va+1}, v{va}, s[60:61]")
    for tt in range(ntile):
        g = gr(tt); o = sm(tt) + 1
        e(f"v_cndmask_b32 v{o}, v{g}, v{g+1}, s[62:63]\nv_cndmask_b32 v{o}, v{o}, v{g+2}, s[64:65]\nv_cndmask_b32 v{o}, v{o}, v{g+3}, s[66:67]")
        e.vm(f"buffer_store_dwordx2 {vr(sm(tt),2)}, v{va}, s[{sWS}:{sWS+3}], s{s_off} offen offset:{tt*tile_stride} {aux}")

def gen_res(name, cfg):
    e = E(); dg = Diag(cfg.get('diag', False))
    down = cfg['down']
    K = F if down else D
    NS = K//32; B = 14 if down else cfg.get('B', 16); P = 7 if down else 8
    LT = cfg.get('LT', 5); LW = cfg.get('LW', 6); SPS = cfg.get('SPS', 2)
    apitch = HPITCH if down else 32768
    abase = HF if down else OF
    sWS, sWt, sOut = 4, 8, 12
    sWave, sMi, sNj, sT, sW, sM0, sCnt, sDel = 24, 25, 26, 28, 29, 30, 31, 27
    vW = 40; vOW = 44; vOT = 45; vL = 47; vR = 48
    aT = 0; aWf = 64
    acc = lambda n, tt: (n*2 + tt)*4
    e(f"{name}:")
    dg.real(e); dg.stamp(e)
    e(f"s_load_dwordx2 s[32:33], s[0:1], {KA_WS}\ns_load_dwordx2 s[36:37], s[0:1], {KA_WD if down else KA_WO}\ns_load_dwordx2 s[38:39], s[0:1], {KA_OUT}")
    e(f"v_lshrrev_b32 v1, 6, v0\nv_and_b32 v{vL}, 63, v0\nv_readfirstlane_b32 s{sWave}, v1")
    mb = cfg.get('mbits', 2)
    e(f"s_and_b32 s34, s2, 7\ns_lshr_b32 s35, s2, 3")
    e(f"s_and_b32 s{sMi}, s34, {(16>>mb)-1}\ns_lshl_b32 s{sMi}, s{sMi}, {mb}\ns_and_b32 s43, s35, {(1<<mb)-1}\ns_add_u32 s{sMi}, s{sMi}, s43")
    e(f"s_lshr_b32 s{sNj}, s34, {4-mb}\ns_lshl_b32 s{sNj}, s{sNj}, {5-mb}\ns_lshr_b32 s43, s35, {mb}\ns_add_u32 s{sNj}, s{sNj}, s43")
    e(f"v_lshrrev_b32 v2, 3, v{vL}\nv_bfe_u32 v3, v{vL}, 1, 2\nv_lshrrev_b32 v4, 4, v{vL}\nv_xor_b32 v3, v3, v4\nv_and_b32 v4, 1, v{vL}")
    e(f"v_lshlrev_b32 v2, 11, v2\nv_lshl_add_u32 v2, v3, 5, v2\nv_lshl_add_u32 v{vOW}, v4, 4, v2")
    e(f"v_lshlrev_b32 v{vOT}, 4, v{vL}\nv_add_u32 v{vOT+1}, {apitch}, v{vOT}")
    e(f"s_lshl_b32 s44, s{sMi}, 3\ns_lshl_b32 s43, s{sWave}, 1\ns_add_u32 s44, s44, s43")
    e(f"s_mul_i32 s{sT}, s44, {apitch}\ns_add_u32 s{sT}, s{sT}, {abase}")
    e(f"s_lshl_b32 s{sW}, s{sNj}, 7\ns_lshl_b32 s43, s{sWave}, 14\ns_add_u32 s{sW}, s{sW}, s43")
    e(f"s_lshl_b32 s{sM0}, s{sWave}, 10")
    if down:
        e(f"s_cmp_eq_u32 s{sWave}, 1\ns_cselect_b32 s{sDel}, 16384, 0\ns_cmp_eq_u32 s{sWave}, 2\ns_cselect_b32 s{sDel}, -16384, s{sDel}")
    e(f"s_lshl_b32 s45, s44, 15\ns_lshl_b32 s43, s{sNj}, 11\ns_add_u32 s45, s45, s43")
    e(f"s_add_u32 s46, s45, s40\ns_add_u32 s49, s46, 32768")
    e("s_waitcnt lgkmcnt(0)")
    srd(e, sWS, 32, WS_BYTES); srd(e, sWt, 36, K*D*2); srd(e, sOut, 38, S*D*2)
    def w_op(j):
        if not 0 <= j < NS: return None
        def f():
            e(f"s_add_u32 m0, s{sM0}, {(j % B)*4096}")
            so = sW
            if down and j % 7 == 3: e(f"s_add_u32 s43, s{sW}, s{sDel}"); so = 43
            else: e("s_nop 0")
            e.vm(f"buffer_load_dwordx4 v{vOW}, s[{sWt}:{sWt+3}], s{so} offen lds", ('W', j))
            e(f"s_add_u32 s{sW}, s{sW}, 65536")
        return f
    def t_op(j, tt):
        if not 0 <= j < NS: return None
        def f():
            e.vm(f"buffer_load_dwordx4 {ar(aT + (j % P)*8 + tt*4, 4)}, v{vOT+tt}, s[{sWS}:{sWS+3}], s{sT} offen", ('T', j))
            if tt == 1: e(f"s_add_u32 s{sT}, s{sT}, 1024")
        return f
    def vm_ops(i): return [w_op(i + LW), t_op(i + LT, 0), t_op(i + LT, 1)]
    first = True
    for i in range(-max(LT, LW), 0):
        for f in vm_ops(i):
            if f: f()
        if first:
            first = False
            for tt in range(2):
                for p in range(2):
                    e.vm(f"buffer_load_dwordx4 {vr(vR + (tt*2+p)*4, 4)}, v{vOT}, s[{sWS}:{sWS+3}], s{(46,49)[tt]} offen offset:{1024*p}", 'R')
    e(f"v_lshrrev_b32 v2, 2, v{vL}\nv_bfe_u32 v3, v{vL}, 3, 2\nv_and_b32 v4, 3, v{vL}\nv_lshlrev_b32 v4, 3, v4\nv_lshl_add_u32 v4, v2, 7, v4")
    for t in range(4): e(f"v_xor_b32 v5, {t}, v3\nv_lshl_add_u32 v{vW+t}, v5, 5, v4")
    e.wait(vm='R')
    for tt in range(2):
        for n in range(4):
            for h in range(2):
                src = vR + (tt*2 + (n >> 1))*4 + (n & 1)*2 + h
                e(f"v_lshlrev_b32 v{acc(n,tt)+2*h}, 16, v{src}\nv_and_b32 v{acc(n,tt)+2*h+1}, 0xffff0000, v{src}")
    def wreads(i):
        if i >= NS: return []
        ops = []
        for n in range(4):
            for j in range(2):
                def f(n=n, j=j):
                    if n == 0 and j == 0 and i % SPS == 0:
                        e.wait(vm=[('W', x) for x in range(i, i + SPS)]); e("s_barrier")
                    e.ds(f"ds_read_b64_tr_b16 {ar(aWf + (i & 1)*16 + n*4 + 2*j, 2)}, v{vW+n} offset:{(i % B)*4096 + j*2048}", ('F', i, n))
                ops.append(f)
        return ops
    assert B - LW >= SPS + 1 and LT <= P - 1 and LW >= SPS + 1
    for f in wreads(0): f()
    dg.stamp(e)
    for i in range(NS):
        if i % B == 0: e.mark(f"b{i//B}")
        rd = wreads(i + 1); vo = vm_ops(i)
        k = 0
        for n in range(4):
            e.wait(vm=('T', i) if n == 0 else None, ds=('F', i, n))
            for ti in range(2):
                tt = 1 - ti if n & 1 else ti
                a = vr(acc(n, tt), 4)
                e(f"v_mfma_f32_16x16x32_bf16 {a}, {ar(aWf + (i & 1)*16 + n*4, 4)}, {ar(aT + (i % P)*8 + tt*4, 4)}, {a}")
                if rd: rd[k]()
                if k in (1, 3, 5) and vo[k >> 1]: vo[k >> 1]()
                k += 1
    nb = NS//B
    if cfg.get('fold', True) and nb > 2: e.fold([f"b{k}" for k in range(nb)], f"L{name}_loop", f"s{sCnt}")
    dg.stamp(e)
    st_aux = cfg.get('st_aux', '')
    e(f"s_add_u32 s46, s45, s41\ns_add_u32 s49, s46, 32768")
    e(f"s_lshl_b32 s50, s44, 11\ns_lshl_b32 s43, s{sNj}, 7\ns_add_u32 s50, s50, s43\ns_add_u32 s50, s50, s47\ns_nop 1")
    Pk = lambda tt, p: vR + (tt*2 + p)*4
    def cvt(tt, p):
        for q in range(4):
            a = acc(2*p + (q >> 1), tt) + 2*(q & 1)
            e(f"v_cvt_pk_bf16_f32 v{Pk(tt,p)+q}, v{a}, v{a+1}")
    if down: e(f"s_cmp_lg_u32 s48, 0\ns_cbranch_scc1 L{name}_final")
    for p in range(2):
        for tt in range(2):
            cvt(tt, p)
            e.vm(f"buffer_store_dwordx4 {vr(Pk(tt,p),4)}, v{vOT}, s[{sWS}:{sWS+3}], s{(46,49)[tt]} offen offset:{1024*p} {st_aux}")
    stats_epilogue(e, Pk, 2, 2, vL, 64, sWS, 50, aux=st_aux)
    def fin():
        if dg.on:
            n0 = dg.n
            dg.stamp(e); e("s_waitcnt vmcnt(0)"); dg.stamp(e); dg.real(e); dg.flush(e, sWS, 42, sWave, 0)
            dg.n = n0
        e("s_endpgm")
    fin()
    if down:
        e(f"L{name}_final:")
        e(f"v_and_b32 v64, 15, v{vL}\nv_lshlrev_b32 v64, 12, v64\nv_bfe_u32 v65, v{vL}, 4, 1\nv_lshl_add_u32 v64, v65, 5, v64\nv_lshrrev_b32 v65, 5, v{vL}\nv_lshl_add_u32 v64, v65, 4, v64")
        e(f"s_and_b32 s43, s44, 63\ns_lshl_b32 s43, s43, 16\ns_lshr_b32 s46, s44, 6\ns_lshl_b32 s46, s46, 11\ns_add_u32 s46, s46, s43\ns_lshl_b32 s43, s{sNj}, 7\ns_add_u32 s46, s46, s43\ns_add_u32 s49, s46, 65536")
        for p in range(2):
            for tt in range(2): cvt(tt, p)
            for tt in range(2):
                r = Pk(tt, p)
                if tt == 1: e("s_nop 0")
                e(f"v_permlane16_swap_b32 v{r}, v{r+2}\nv_permlane16_swap_b32 v{r+1}, v{r+3}")
                e.vm(f"buffer_store_dwordx4 {vr(r,4)}, v64, s[{sOut}:{sOut+3}], s{(46,49)[tt]} offen offset:{64*p}")
        fin()
    return e.text()
```

```python
import sys, json
from common import *
from gu import gen_gu
from res import gen_res
from qkv import gen_qkv, QKV_LDS
from prep import gen_prep
NAME = "interleave_layers__sliding_local_dilated__swiglu_ffn__prompt"
def build(cfg):
    diag = cfg.get('diag', False)
    c = lambda k: dict(cfg.get(k, {}), diag=diag)
    bodies = {
        'prep': (gen_prep("prep_body", c('prep')), 1024, 256, 256),
        'qkv': (gen_qkv("qkv_body", c('qkv')), QKV_LDS, 512, 256),
        'o': (gen_res("o_body", dict(c('o'), down=False)), 65536, 512, 256),
        'gu': (gen_gu("gu_body", c('gu')), 131072, 512, 256),
        'down': (gen_res("down_body", dict(c('down'), down=True)), 57344, 512, 256),
    }
    L = [('prep', 'prep', {}),
         ('qkv1', 'qkv', {40: XF[0], 41: ST[0]}), ('o1', 'o', {40: XF[0], 41: XF[1], 47: ST[1]}),
         ('gu1', 'gu', {40: XF[1], 41: ST[1]}), ('down1', 'down', {40: XF[1], 41: XF[2], 47: ST[2], 48: 0}),
         ('qkv2', 'qkv', {40: XF[2], 41: ST[2]}), ('o2', 'o', {40: XF[2], 41: XF[3], 47: ST[3]}),
         ('gu2', 'gu', {40: XF[3], 41: ST[3]}), ('down2', 'down', {40: XF[3], 41: XF[0], 47: ST[0], 48: 1})]
    hdr = open("/code/" + NAME + ".s.ref").read().split("; Override launch")[0]
    text = ""; kds = ""
    for b in bodies:
        for i, (n, bb, p) in enumerate(L):
            if bb != b: continue
            text += entry(n + "_kernel")
            for s, v in p.items(): text += f"  s_mov_b32 s{s}, {hex(v)}\n"
            if diag: text += f"  s_mov_b32 s42, {i}\n"
            text += f"  s_cmp_lt_u32 s2, 256\n  s_cbranch_scc1 {b}_body\n  s_endpgm\n"
            kds += kd(n + "_kernel", bodies[b][2], bodies[b][3])
        text += ".p2align 6\n" + bodies[b][0]
    for n, b, p in L: hdr += f"; @launch kernel={n}_kernel grid=(256,1,1) block=(256,1,1) lds={bodies[b][1]}\n"
    return hdr + '.amdgcn_target "amdgcn-amd-amdhsa--gfx950"\n.text\n' + text + '.section .rodata,"a"\n' + kds
if __name__ == "__main__":
    out = sys.argv[1]; cfg = json.loads(sys.argv[2]) if len(sys.argv) > 2 else {}
    open(out, "w").write(build(cfg))
```

```python
class E:
    def __init__(self):
        self.L = []
        self.vmq = []; self.vm_done = 0
        self.dsq = []; self.ds_done = 0
        self.marks = {}
    def __call__(self, s):
        for x in s.split("\n"):
            x = x.strip()
            if x: self.L.append(x)
    def vm(self, s, tag=None):
        self.L.append(s); self.vmq.append(tag)
    def ds(self, s, tag=None):
        self.L.append(s); self.dsq.append(tag)
    @staticmethod
    def _need(q, done, tags, cap, force=False):
        if tags is None: return None, done
        if tags == 'all':
            last = len(q) - 1
        else:
            if not isinstance(tags, (list, set)): tags = [tags]
            last = -1
            for t in tags:
                idx = [i for i, x in enumerate(q) if x == t]
                assert idx, f"tag {t} never issued"
                last = max(last, idx[-1])
        if last < done and not force: return None, done
        n = len(q) - 1 - last
        n = min(n, cap)
        return n, max(done, len(q) - n)
    def wait(self, vm=None, ds=None, force=False):
        nv, self.vm_done = self._need(self.vmq, self.vm_done, vm, 63, force)
        nd, self.ds_done = self._need(self.dsq, self.ds_done, ds, 15)
        p = []
        if nv is not None: p.append(f"vmcnt({nv})")
        if nd is not None: p.append(f"lgkmcnt({nd})")
        if p: self.L.append("s_waitcnt " + " ".join(p))
        return bool(p)
    def mark(self, name):
        self.marks[name] = len(self.L)
    def fold(self, names, label, cnt_sgpr):
        pos = [self.marks[n] for n in names]
        n = len(pos) - 1
        bodies = [self.L[pos[i]:pos[i + 1]] for i in range(n)]
        for i in range(1, n):
            if bodies[i] != bodies[0]:
                for a, b in zip(bodies[0], bodies[i]):
                    if a != b:
                        raise AssertionError(f"fold mismatch body {i}: {a!r} vs {b!r}")
                raise AssertionError(f"fold length mismatch body {i}")
        body = list(bodies[0])
        new = [f"s_mov_b32 {cnt_sgpr}, {n}", ".p2align 3", f"{label}:"] + body + [f"s_sub_u32 {cnt_sgpr}, {cnt_sgpr}, 1", f"s_cmp_lg_u32 {cnt_sgpr}, 0", f"s_cbranch_scc1 {label}"]
        delta = len(new) - (pos[-1] - pos[0])
        self.L[pos[0]:pos[-1]] = new
        for k, v in self.marks.items():
            if v >= pos[-1]: self.marks[k] = v + delta
    def text(self):
        return "\n".join(("" if l.endswith(":") or l.startswith(".") else "  ") + l for l in self.L) + "\n"

def vr(a, n=1): return f"v{a}" if n == 1 else f"v[{a}:{a+n-1}]"
def ar(a, n=1): return f"a{a}" if n == 1 else f"a[{a}:{a+n-1}]"
def sr(a, n=1): return f"s{a}" if n == 1 else f"s[{a}:{a+n-1}]"

def kd(name, nvgpr=512, accum=256):
    return f""".p2align 6
.amdhsa_kernel {name}
  .amdhsa_next_free_vgpr {nvgpr}
  .amdhsa_next_free_sgpr 102
  .amdhsa_accum_offset {accum}
  .amdhsa_group_segment_fixed_size 0
  .amdhsa_kernarg_size 80
  .amdhsa_user_sgpr_count 2
  .amdhsa_user_sgpr_kernarg_segment_ptr 1
  .amdhsa_system_sgpr_workgroup_id_x 1
  .amdhsa_float_denorm_mode_32 3
.end_amdhsa_kernel
"""
def entry(name):
    return f".globl {name}\n.p2align 8\n.type {name},@function\n{name}:\n"
```

```python
import sys, json
from emit import *
from common import fhex, srd, xreduce_g, LOG2E, S, D, F, WS_BYTES, HPITCH
from res import stats_epilogue
NAME = "interleave_layers__sliding_local_dilated__swiglu_ffn__prompt"
LP = 0x2000000
XA, XB, OB, HB, STA, STB, FL = 0, 0x400000, 0x800000, 0xC00000, 0x1A00000, 0x1A40000, 0x1A80000
CSQ, CSG = 0x1A90000, 0x1AA0000
DIAG = 0x4000000
H1, H2, H3, H4 = 0, 16, 24, 32
LDS_BYTES = 163840
sWS, sWq, sWo, sWg, sWu, sWd, sAs, sOut, sDbg = 4, 8, 12, 16, 20, 24, 28, 32, 36
sWave, sLay, sLo = 40, 41, 42
sMi1, sHj, sMi2, sNj2, sMi3, sNj3 = 50, 51, 52, 53, 54, 55
sCnt = 56
vL, vOW2, vZ = 253, 252, 251
R = lambda s: f"s[{s}:{s+3}]"
MF = "v_mfma_f32_16x16x32_bf16"

class G:
    def __init__(self, cfg):
        self.cfg = cfg; self.e = E(); self.diag = cfg.get('diag', False); self.nlab = 0
    def lab(self, p):
        self.nlab += 1; return f"L{p}{self.nlab}"
    def stamp(self):
        if not self.diag: return
        self.e("s_memtime s[96:97]\ns_memrealtime s[98:99]\ns_waitcnt lgkmcnt(0)\nv_writelane_b32 v254, s96, s95\nv_writelane_b32 v255, s98, s95\ns_add_u32 s95, s95, 1".replace(
            "v_writelane_b32 v254, s96, s95\nv_writelane_b32 v255, s98, s95", "s_mov_b32 s94, m0\ns_mov_b32 m0, s95\nv_writelane_b32 v254, s96, m0\nv_writelane_b32 v255, s98, m0\ns_mov_b32 m0, s94"))
    def reset_q(self):
        e = self.e; e.vm_done = len(e.vmq); e.ds_done = len(e.dsq)
    def signal(self, stores, line_s):
        e = self.e; l = self.lab("sig")
        e.wait(vm=stores); self.stamp(); e("s_barrier")
        e(f"s_cmp_lg_u32 s{sWave}, 0\ns_cbranch_scc1 {l}\nv_mov_b32 v250, 1\ns_mov_b64 exec, 1")
        e(f"buffer_atomic_add v250, v{vZ}, {R(sWS)}, s{line_s} offen sc1\ns_mov_b64 exec, -1\n{l}:")
    def poll(self, line_s, count, voff=None):
        e = self.e; l = self.lab("pol"); d = self.lab("pdn")
        e(f"s_cmp_lg_u32 s{sWave}, 0\ns_cbranch_scc1 {d}\ns_mov_b32 s43, 0x40000\ns_mov_b64 exec, {3 if voff else 1}\n{l}:")
        e(f"buffer_load_dword v250, v{voff or vZ}, {R(sWS)}, s{line_s} offen sc1\ns_waitcnt vmcnt(0)\nv_cmp_gt_u32 vcc, {count}, v250")
        e(f"s_cbranch_vccz {d}\ns_sub_u32 s43, s43, 1\ns_cmp_lg_u32 s43, 0\ns_cbranch_scc1 {l}\n{d}:\ns_mov_b64 exec, -1\ns_waitcnt vmcnt(0) lgkmcnt(0)\ns_barrier")
        self.reset_q(); self.stamp()
    def check_dbg(self, vreg, off, count, tag):
        e = self.e; l = self.lab("chk"); d = self.lab("cdn")
        e.wait(vm=tag)
        e(f"v_cmp_gt_u32 vcc, {count}, v{vreg}\ns_cbranch_vccz {d}\ns_mov_b32 s43, 0x40000\n{l}:")
        e(f"buffer_load_dword v{vreg}, v{vZ}, {R(sDbg)}, 0 offen offset:{off} sc1\ns_waitcnt vmcnt(0)\nv_cmp_gt_u32 vcc, {count}, v{vreg}")
        e(f"s_cbranch_vccz {d}\ns_sub_u32 s43, s43, 1\ns_cmp_lg_u32 s43, 0\ns_cbranch_scc1 {l}\n{d}:")
    def arrive_dbg(self, off):
        self.e(f"v_mov_b32 v250, 1\ns_mov_b64 exec, 1\nbuffer_atomic_add v250, v{vZ}, {R(sDbg)}, 0 offen offset:{off} sc1\ns_mov_b64 exec, -1")
    def colsum_acc(self, src, n, acc, t, first):
        e = self.e
        for q in range(n):
            for r in range(4):
                s_ = src + 4*q + r
                if first and q == 0: e(f"v_lshlrev_b32 v{acc+2*r}, 16, v{s_}\nv_and_b32 v{acc+2*r+1}, 0xffff0000, v{s_}")
                else: e(f"v_lshlrev_b32 v{t}, 16, v{s_}\nv_and_b32 v{t+1}, 0xffff0000, v{s_}\nv_pk_add_f32 {vr(acc+2*r,2)}, {vr(acc+2*r,2)}, {vr(t,2)}")
    def colsum_publish(self, acc, t, lds):
        e = self.e
        xreduce_g(e, "v_add_f32", list(range(acc, acc+8)), list(range(t, t+8)))
        e(f"v_and_b32 v{t}, 7, v{vL}\ns_lshl_b32 s43, s{sWave}, 8\ns_add_u32 s43, s43, {lds}")
        for r in range(8): e(f"v_add_f32_dpp v{acc+r}, v{acc+r}, v{acc+r} row_ror:8 row_mask:0xf bank_mask:0xf")
        e(f"v_lshl_add_u32 v{t}, v{t}, 5, s43\nds_write_b128 v{t}, {vr(acc,4)}\nds_write_b128 v{t}, {vr(acc+4,4)} offset:16")
    def colsum_final(self, t, lds, dst_s):
        e = self.e
        e(f"v_lshlrev_b32 v{t}, 2, v{vL}\nv_add_u32 v{t+1}, {lds}, v{t}")
        for w in range(4): e(f"ds_read_b32 v{t+2+w}, v{t+1} offset:{256*w}")
        e(f"s_waitcnt lgkmcnt(0)\nv_add_f32 v{t+2}, v{t+2}, v{t+3}\nv_add_f32 v{t+4}, v{t+4}, v{t+5}\nv_add_f32 v{t+2}, v{t+2}, v{t+4}")
        e(f"buffer_store_dword v{t+2}, v{t}, {R(sWS)}, s{dst_s} offen sc1")
```

```python
from mg import *
W_RING, A_RING, HALO, PW = 0, 73728, 122880, 139264
CSX = PW + 4096
sHalf, sHd, sAb, sWb, sAi, sMA, sMW, sInc0, sInc1, sSt, sLead, sA, sW, sW2, sT0, sHt, sHb, sOwn, sHead, sPW = range(57, 77)
Q = lambda j, t: (j*4 + t - 1)*4
Kc = lambda j, t: 32 + (j*5 + t)*4
V = lambda j, t: 72 + (j*5 + t)*4
vT, vH, vW, vOA, vOW, vOH = 112, 114, 116, 120, 124, 126
vST = 128
fT = lambda b, kk, t: b*88 + kk*20 + t*4
fW = lambda b, kk, n: b*88 + 40 + kk*24 + n*4
class P1:
    def __init__(self, g): self.g = g; self.c = g.cfg.get('p1', {})
    def setup(self, l1):
        e = self.g.e
        e(f"s_lshr_b32 s{sHalf}, s{sWave}, 1\ns_and_b32 s{sHd}, s{sWave}, 1\ns_lshl_b32 s{sT0}, s{sMi1}, 3")
        e(f"s_add_u32 s{sLead}, s{sMi1}, s{sHj}\ns_and_b32 s{sLead}, s{sLead}, 3")
        if not self.c.get('jump', 1): e(f"s_mov_b32 s{sLead}, 7")
        e(f"s_lshl_b32 s{sMA}, s{sWave}, 12\ns_mul_i32 s{sMW}, s{sWave}, 6144\ns_add_u32 s{sPW}, s{sMW}, {PW}")
        e(f"s_and_b32 s43, s{sMi1}, 7\ns_cmp_lg_u32 s43, 0\ns_cselect_b32 s43, 1, 0\ns_sub_u32 s{sHt}, s{sT0}, s43")
        e(f"v_lshrrev_b32 v2, 3, v{vL}\nv_bfe_u32 v3, v{vL}, 1, 2\nv_lshrrev_b32 v4, 4, v{vL}\nv_xor_b32 v3, v3, v4\nv_and_b32 v5, 1, v{vL}")
        if l1:
            e(f"v_lshrrev_b32 v6, 5, v{vL}\nv_lshl_add_u32 v6, v6, 2, v2")
            e(f"s_lshl_b32 s43, s{sHalf}, 5\ns_lshl_b32 s44, s{sHd}, 2\ns_add_u32 s43, s43, s44")
        else:
            e(f"v_mov_b32 v6, v2\ns_lshl_b32 s43, s{sWave}, 4")
        e(f"v_mul_u32_u24 v6, 6144, v6\nv_lshl_add_u32 v6, v3, 5, v6\nv_lshl_add_u32 v{vOW}, v5, 4, v6\nv_add_u32 v{vOW+1}, {(16 if l1 else 8)*6144-1024}, v{vOW}")
        e(f"s_mul_i32 s43, s43, 6144\ns_lshl_b32 s{sWb}, s{sHj}, 7\ns_add_u32 s{sWb}, s{sWb}, s43")
        e(f"v_and_b32 v3, 7, v{vL}\ns_lshl_b32 s43, s{sWave}, 1\ns_add_u32 s43, s43, s{sT0}")
        if l1:
            for q in range(4):
                e(f"v_add_u32 v5, {4*(q&1)}, v4\nv_xor_b32 v5, v5, v3\nv_lshlrev_b32 v5, 4, v5\nv_lshl_add_u32 v5, v2, 12, v5\nv_add_u32 v{vOA+q}, {q*(32768-1024)}, v5")
            e(f"v_and_b32 v5, 6, v2\nv_xor_b32 v5, v5, v3\nv_lshlrev_b32 v5, 4, v5\nv_lshl_add_u32 v5, v2, 12, v5\nv_add_u32 v{vOH}, 32768, v5")
            e(f"s_lshr_b32 s44, s{sMi1}, 3\ns_lshl_b32 s44, s44, 11\ns_and_b32 s43, s43, 63\ns_lshl_b32 s43, s43, 16\ns_add_u32 s{sAb}, s43, s44")
            e(f"s_and_b32 s43, s{sHt}, 63\ns_lshl_b32 s43, s43, 16\ns_add_u32 s{sHb}, s43, s44\ns_movk_i32 s{sAi}, 128")
        else:
            e(f"v_lshlrev_b32 v{vOA}, 4, v{vL}\nv_mov_b32 v{vOA+1}, v{vOA}\nv_add_u32 v{vOA+2}, {32768-2048}, v{vOA}\nv_add_u32 v{vOA+3}, {32768-2048}, v{vOA}")
            e(f"v_lshlrev_b32 v5, 8, v2\nv_lshl_add_u32 v5, v3, 4, v5\nv_add_u32 v{vOH}, 128, v5")
            e(f"s_lshl_b32 s43, s43, 15\ns_add_u32 s44, s{sLo}, {XA}\ns_add_u32 s{sAb}, s43, s44\ns_lshl_b32 s43, s{sHt}, 15\ns_add_u32 s{sHb}, s43, s44\ns_movk_i32 s{sAi}, 2048")
    def setup_reads(self, l1):
        e = self.g.e
        e(f"v_and_b32 v2, 15, v{vL}\nv_lshrrev_b32 v3, 4, v{vL}\nv_and_b32 v4, 7, v{vL}")
        if l1:
            e(f"v_lshrrev_b32 v5, 1, v2\nv_xor_b32 v5, v5, v3\nv_lshlrev_b32 v5, 4, v5\nv_lshl_add_u32 v6, v2, 7, v5\nv_xor_b32 v7, 64, v6")
            e(f"v_and_b32 v5, 6, v4\nv_xor_b32 v5, v5, v3\nv_lshlrev_b32 v5, 4, v5\nv_lshl_add_u32 v8, v4, 7, v5\nv_xor_b32 v9, 64, v8")
        else:
            e(f"v_lshlrev_b32 v6, 4, v{vL}\nv_add_u32 v7, 1024, v6\nv_lshlrev_b32 v5, 7, v3\nv_lshl_add_u32 v8, v4, 4, v5\nv_add_u32 v9, 512, v8")
        e(f"s_lshl_b32 s43, s{sHalf}, 13\ns_add_u32 s43, s43, {A_RING}\nv_add_u32 v{vT}, s43, v6\nv_add_u32 v{vT+1}, s43, v7")
        e(f"s_cmp_eq_u32 s{sHalf}, 0\ns_cselect_b64 vcc, 0, -1\ns_movk_i32 s43, 1024\ns_cselect_b32 s{sInc0}, s43, 16384\ns_cselect_b32 s{sInc1}, s43, -32768")
        e(f"s_mov_b32 s43, {HALO}\ns_cselect_b32 s43, s43, {A_RING + 3*2048}")
        e(f"v_cndmask_b32 v8, v8, v6, vcc\nv_cndmask_b32 v9, v9, v7, vcc\nv_add_u32 v{vH}, s43, v8\nv_add_u32 v{vH+1}, s43, v9")
        e(f"v_lshrrev_b32 v2, 2, v{vL}\nv_bfe_u32 v3, v{vL}, 3, 2\nv_and_b32 v4, 3, v{vL}\nv_lshlrev_b32 v4, 3, v4\nv_lshl_add_u32 v4, v2, 7, v4")
        e(f"s_lshl_b32 s43, s{sHd}, 1\nv_xor_b32 v5, s43, v3\nv_lshl_add_u32 v{vW}, v5, 5, v4\nv_xor_b32 v5, 1, v5\nv_lshl_add_u32 v{vW+1}, v5, 5, v4")
        e(f"v_add_u32 v{vW+2}, {2*24576}, v{vW}\nv_add_u32 v{vW+3}, {2*24576}, v{vW+1}")
        for r in range(112): e(f"v_mov_b32 v{r}, 0")
    def sig_static(self, s): return [f"s_cmp_eq_u32 s{sLead}, {s & 3}", f"s_cselect_b32 s44, {(s+4) & 15}, {s}"]
    def offA(self): return [f"s_mul_i32 s45, s44, s{sAi}", f"s_add_u32 s{sA}, s45, s{sAb}"]
    def offW(self): return [f"s_mul_i32 s45, s44, {64*6144}", f"s_add_u32 s{sW}, s45, s{sWb}", f"s_add_u32 s{sW2}, s{sW}, 4096"]
    def a_ops(self, s):
        e = self.g.e
        return [(f"s_add_u32 m0, s{sMA}, {A_RING + (s % 3)*16384}" if q == 0 else None,
                 lambda q=q: e.vm(f"buffer_load_dwordx4 v{vOA+q}, {R(sAs)}, s{sA} offen offset:{1024*q} sc1 lds", ('S', s))) for q in range(4)]
    def w_ops(self, s):
        e = self.g.e
        return [(f"s_add_u32 m0, s{sMW}, {W_RING + (s % 3)*24576 + q*1024}" if q in (0, 4) else None,
                 lambda q=q: e.vm(f"buffer_load_dwordx4 v{vOW + (q&1)}, {R(sWq)}, s{sW if q < 4 else sW2} offen offset:{1024*(q&3)} lds", ('S', s))) for q in range(6)]
    def run(self, pre, ops):
        e = self.g.e
        for x in pre: e(x)
        for m, f in ops:
            if m: e(m + "\ns_nop 0")
            f()
    def prefetch_w(self):
        for s in range(2): self.run(self.sig_static(s) + self.offW(), self.w_ops(s))
    def halo(self, i):
        e = self.g.e
        e(f"s_cmp_eq_u32 s{sLead}, s{sWave}\ns_cselect_b32 s44, {(4*i+4) & 15}, {4*i}\ns_add_u32 s44, s44, s{sWave}\ns_mul_i32 s44, s44, s{sAi}")
        e(f"s_lshl_b32 s45, s{sWave}, 10\ns_add_u32 m0, s45, {HALO + i*4096}\ns_add_u32 s44, s44, s{sHb}")
        e.vm(f"buffer_load_dwordx4 v{vOH}, {R(sAs)}, s44 offen sc1 lds", ('H', i))
    def first_a(self):
        self.halo(0); self.run(self.sig_static(0) + self.offA(), self.a_ops(0))
    def prep_and_start(self):
        g = self.g; e = g.e
        e(f"s_mul_i32 s{sPW}, s{sWave}, 6144\ns_add_u32 s{sPW}, s{sPW}, {PW}\ns_mov_b32 m0, s{sPW}")
        e(f"s_lshr_b32 s80, s2, 2\ns_bfe_u32 s81, s2, 0x10001\ns_lshl_b32 s81, s81, 2\ns_add_u32 s81, s81, s{sWave}\ns_and_b32 s82, s2, 1")
        e(f"s_lshl_b32 s43, s80, 16\ns_lshl_b32 s44, s82, 11\ns_add_u32 s43, s43, s44\ns_lshl_b32 s44, s81, 8\ns_add_u32 s43, s43, s44")
        e(f"v_lshrrev_b32 v2, 4, v{vL}\nv_and_b32 v3, 15, v{vL}")
        for i in range(4):
            e(f"v_add_u32 v4, {4*i}, v2\nv_xor_b32 v5, v4, v3\nv_lshlrev_b32 v5, 4, v5\nv_lshl_add_u32 v5, v2, 12, v5\nv_add_u32 v5, {i*(16384-1024)}, v5")
            e.vm(f"buffer_load_dwordx4 v5, {R(sAs)}, s43 offen offset:{1024*i} lds", 'PX')
        e(f"s_lshr_b32 s46, s2, 3\ns_cmp_ge_u32 s46, 12\ns_cselect_b32 s44, 12, 0\ns_cselect_b32 s45, 2, 0\ns_sub_u32 s44, s46, s44\ns_add_u32 s45, s45, s82")
        e(f"s_lshr_b32 s47, s44, 2\ns_lshl_b32 s47, s47, 4\ns_and_b32 s44, s44, 3\ns_add_u32 s44, s44, s47\ns_bfe_u32 s47, s2, 0x20001\ns_lshl_b32 s47, s47, 2\ns_add_u32 s44, s44, s47")
        e(f"s_mul_i32 s83, s45, {3072*4}\ns_lshl_b32 s47, s44, 8\ns_add_u32 s83, s83, s47\ns_add_u32 s83, s83, {CSQ}")
        e(f"s_lshl_b32 s45, s45, 2\ns_add_u32 s45, s45, s{sWave}\ns_mul_i32 s45, s45, {64*6144}\ns_lshl_b32 s44, s44, 7\ns_add_u32 s45, s45, s44")
        e(f"s_cmp_ge_u32 s46, 24\ns_cselect_b32 s92, 0x40000000, 0\ns_cselect_b32 s45, 0, s45")
        e(f"v_lshrrev_b32 v4, 3, v{vL}\nv_mul_u32_u24 v4, 6144, v4\nv_and_b32 v5, 7, v{vL}\nv_lshl_add_u32 v4, v5, 4, v4\nv_or_b32 v4, s92, v4")
        for q in range(8):
            e.vm(f"buffer_load_dwordx4 {vr(160+4*q,4)}, v4, {R(sWq)}, s45 offen", 'PW'); e(f"s_add_u32 s45, s45, {8*6144}")
        e(f"s_bfe_u32 s43, s2, 0x10006\ns_mul_i32 s43, s43, {LP}\ns_and_b32 s44, s2, 63\ns_lshl_b32 s44, s44, 7\ns_add_u32 s43, s43, s44\ns_add_u32 s43, s43, {FL}")
        e.vm(f"buffer_store_dword v{vZ}, v{vZ}, {R(sWS)}, s43 offen sc1")
        self.setup(True); self.prefetch_w(); self.first_a(); self.setup_reads(True)
        g.stamp()
        e(f"v_and_b32 v128, 15, v{vL}\nv_lshrrev_b32 v129, 5, v{vL}\nv_bfe_u32 v130, v{vL}, 4, 1\nv_lshlrev_b32 v130, 3, v130\nv_lshl_add_u32 v130, v128, 8, v130\nv_add_u32 v130, s{sPW}, v130")
        e.wait(vm='PX')
        for q in range(8):
            e(f"v_add_u32 v131, {2*q}, v129\nv_xor_b32 v131, v131, v128\nv_lshl_add_u32 v131, v131, 4, v130")
            e.ds(f"ds_read_b64 {vr(140+2*q,2)}, v131", 'PX')
        e(f"s_lshl_b32 s43, s82, 6\ns_add_u32 s80, s80, s43\ns_lshl_b32 s43, s80, 15\ns_lshl_b32 s44, s81, 12\ns_add_u32 s43, s43, s44\ns_add_u32 s46, s43, {XA}")
        e(f"s_lshl_b32 s43, s80, 11\ns_lshl_b32 s44, s81, 8\ns_add_u32 s43, s43, s44\ns_add_u32 s47, s43, {STA}\nv_lshlrev_b32 v128, 4, v{vL}")
        e.wait(ds='PX')
        for q in range(4): e.vm(f"buffer_store_dwordx4 {vr(140+4*q,4)}, v128, {R(sWS)}, s46 offen offset:{1024*q} sc1")
        stats_epilogue(e, lambda tt, p: 140 + (tt*2+p)*4, 2, 2, vL, 192, sWS, 47, tile_stride=128, aux='sc1', sm0=84)
        e.wait(vm='PW')
        g.colsum_acc(160, 8, 216, 224, True); g.colsum_publish(216, 224, CSX)
        e("s_waitcnt lgkmcnt(0)\ns_barrier")
        l = g.lab("pf"); e(f"s_or_b32 s43, s{sWave}, s92\ns_cbranch_scc1 {l}"); g.colsum_final(224, CSX, 83); e(f"{l}:")
        g.stamp()
    def window(self):
        e = self.g.e
        e(f"s_mov_b32 s{sAs}, s{sWS}\ns_mov_b32 s{sAs+1}, s{sWS+1}\ns_mov_b32 s{sAs+2}, {hex(WS_BYTES)}")
        self.setup(False); self.prefetch_w(); self.setup_reads(False)
        e(f"s_lshl_b32 s77, s{sMi1}, 7\ns_add_u32 s77, s77, {FL + H4*128 - 128}\ns_and_b32 s43, s{sMi1}, 7\ns_cmp_eq_u32 s43, 0\ns_cselect_b32 s43, 0x80, 0")
        e(f"v_lshlrev_b32 v249, 7, v{vL}\nv_or_b32 v249, s43, v249")
    def start_l2(self):
        self.g.poll(77, 16, voff=249); self.first_a()
    def main(self, p2):
        g = self.g; e = g.e; c = self.c
        BOFF = c.get('BOFF', 12)
        for h in range(1, 4): self.halo(h)
        self.run(self.sig_static(1) + self.offA(), self.a_ops(1))
        self.run(self.sig_static(2) + self.offA() + self.offW(), self.a_ops(2) + self.w_ops(2))
        e(f"s_mov_b32 s{sSt}, 3")
        def reads(s):
            sl = s % 3; b = s & 1
            def rt(t, kk):
                def f():
                    if t == 0:
                        e.ds(f"ds_read_b128 {ar(fT(b,kk,0),4)}, v{vH+kk}", ('T', s, 0))
                        e(f"v_add_u32 v{vH+kk}, s{sInc1 if sl == 2 else sInc0}, v{vH+kk}")
                    else: e.ds(f"ds_read_b128 {ar(fT(b,kk,t),4)}, v{vT+kk} offset:{sl*16384 + (t-1)*2048}", ('T', s, t))
                return f
            def rw(n, kk, j):
                return lambda: e.ds(f"ds_read_b64_tr_b16 {ar(fW(b,kk,n)+2*j,2)}, v{vW + (n & 1) + (2 if sl == 2 else 0)} offset:{(sl & 1)*24576 + (2*kk+j)*6144 + (n>>1)*2048}", ('W', s, n))
            w = lambda n: [rw(n, kk, j) for kk in range(2) for j in range(2)]
            return w(0) + [rt(t, kk) for t in range(1, 5) for kk in range(2)] + w(1) + [rt(0, 0), rt(0, 1)] + w(2) + w(3) + w(4) + w(5)
        e.wait(vm=[('S', 0), ('H', 0)]); e("s_barrier")
        for f in reads(0): f()
        l = g.lab("ar"); e(f"s_or_b32 s43, s{sWave}, s{sLay}\ns_cbranch_scc1 {l}"); g.arrive_dbg(0); e(f"{l}:")
        g.stamp()
        vCk = 127
        nxt = p2.prefetch_ops()
        n_tail = c.get('pf_tail', 8); n_epi = c.get('pf_epi', 14)
        for s in range(16):
            if s % 6 == 0: e.mark(f"p1b{s//6}")
            fill = [[] for _ in range(56)]
            def bar(s=s):
                e.wait(vm=('S', s+1) if s < 15 else None, ds='all'); e("s_barrier")
            fill[BOFF].append(bar)
            if s < 15:
                for k, f in enumerate(reads(s+1)): fill[BOFF + k].append(f)
            if s + 3 < 16:
                sal = [f"s_and_b32 s44, s{sSt}, 3", f"s_cmp_eq_u32 s44, s{sLead}\ns_cselect_b32 s44, 4, 0", f"s_add_u32 s44, s44, s{sSt}", "s_and_b32 s44, s44, 15", f"s_add_u32 s{sSt}, s{sSt}, 1"] + self.offA() + self.offW()
                for k, x in enumerate(sal): fill[k].append(lambda x=x: e(x))
                for k, (m, f) in enumerate(self.a_ops(s+3) + self.w_ops(s+3)):
                    pos = BOFF + 2 + 4*k
                    if m: fill[pos-1].append(lambda m=m: e(m))
                    fill[pos].append(f)
            if s == 12: fill[54].append(lambda: e.vm(f"buffer_load_dword v{vCk}, v{vZ}, {R(sDbg)}, 0 offen sc1", 'CK'))
            if s == 13:
                sal = f"""s_lshl_b32 s43, s{sHalf}, 2
                s_add_u32 s{sOwn}, s{sT0}, s43
                s_sub_u32 s44, s{sOwn}, 1
                s_cmp_eq_u32 s{sHalf}, 0\ts_cselect_b32 s44, s{sHt}, s44
                s_add_u32 s45, s{sLo}, {STA}
                s_lshl_b32 s44, s44, 11
                s_add_u32 s77, s44, s45
                s_lshl_b32 s44, s{sOwn}, 11
                s_add_u32 s78, s44, s45
                s_add_u32 s79, s78, 4096
                v_lshlrev_b32 v{vOA+1}, 3, v{vL}
                s_lshl_b32 s43, s{sHj}, 1
                s_add_u32 s{sHead}, s43, s{sHd}
                s_lshl_b32 s43, s{sHead}, 7
                s_add_u32 s46, s43, {CSQ}
                v_lshrrev_b32 v{vOA+2}, 3, v{vL}
                v_and_b32 v{vOA+3}, 7, v{vL}
                v_lshlrev_b32 v{vOA+2}, 12, v{vOA+2}
                v_lshl_add_u32 v{vOA+2}, v{vOA+3}, 4, v{vOA+2}
                s_add_u32 s47, s46, {32768-1024}""".split("\n")
                for k, x in enumerate(sal): fill[k].append(lambda x=x: e(x.replace("\t", "\n")))
                fill[40].append(lambda: g.check_dbg(vCk, 0, 256, 'CK'))
                fill[41].append(lambda: e(f"s_add_u32 m0, s{sPW}, 1024"))
                fill[42].append(lambda: e.vm(f"buffer_load_dwordx4 v{vOA+2}, {R(sWS)}, s46 offen sc1 lds", 'CS'))
                fill[44].append(lambda: e.vm(f"buffer_load_dwordx4 v{vOA+2}, {R(sWS)}, s47 offen offset:1024 sc1 lds", 'CS'))
            if s in (13, 14):
                lds_ = []
                for t in range(5):
                    so, off = (77, 0) if t == 0 else ((78, 79)[(t-1) >> 1], ((t-1) & 1)*2048)
                    for k in range(4): lds_.append(lambda t=t, k=k, so=so, off=off: e.vm(f"buffer_load_dwordx2 {vr(vST + t*8 + 2*k, 2)}, v{vOA+1}, {R(sWS)}, s{so} offen offset:{off + 512*k} sc1", 'ST'))
                if s == 13:
                    for k in range(5): fill[46 + 2*k].append(lds_[k])
                else:
                    for k in range(15): fill[2*k].append(lds_[5 + k])
            if s == 15:
                for k, x in enumerate(p2.prefetch_setup()): fill[k if k < BOFF else BOFF].append(lambda x=x: e(x))
                for k in range(n_tail):
                    for z, f in enumerate(nxt.pop(0)): fill[BOFF + 1 + 5*k + z//2].append(f)
            seq = []; kk = 0
            for n in range(6):
                ts = [1, 2, 3, 4] if n < 2 else [0, 1, 2, 3, 4]
                if n & 1: ts = ts[::-1]
                for t in ts: seq += [(n, t, kk), (n, t, 1-kk)]; kk = 1 - kk
            b = s & 1
            for k, (n, t, kk) in enumerate(seq):
                e.wait(ds=[('W', s, n), ('T', s, t)])
                a = (Q if n < 2 else Kc if n < 4 else V)(n & 1, t)
                x, y = ar(fW(b, kk, n), 4), ar(fT(b, kk, t), 4)
                if n >= 4: x, y = y, x
                e(f"{MF} {vr(a,4)}, {x}, {y}, {vr(a,4)}")
                for f in fill[k]: f()
        e.fold([f"p1b{k}" for k in range(3)], "Lp1_loop", f"s{sCnt}")
        g.stamp()
        self.epilogue(p2, nxt, n_epi)
    def epilogue(self, p2, nxt, n_epi):
        g = self.g; e = g.e
        left = [n_epi]
        def pf():
            if left[0] > 0 and nxt:
                left[0] -= 1
                for f in nxt.pop(0): f()
        vCS = 168; vMu, vRs = 188, 194; vMuV, vRsV = 200, 220; tmp = 240
        vG16, vT4 = vOW, vOW + 1
        e(f"v_lshrrev_b32 v{vG16}, 4, v{vL}\nv_lshlrev_b32 v{vG16}, 4, v{vG16}\nv_and_b32 v{vT4}, 15, v{vL}\nv_lshlrev_b32 v{vT4}, 2, v{vT4}")
        e(f"v_add_u32 v{vG16}, s{sPW}, v{vG16}\nv_add_u32 v{vT4}, s{sPW}, v{vT4}\nv_lshlrev_b32 v{vOA}, 4, v{vL}")
        e.wait(vm=['ST', 'CS'])
        def csread(p, base):
            for m in range(2):
                for j in range(2): e.ds(f"ds_read_b128 {vr(base + m*8 + j*4, 4)}, v{vG16} offset:{1024 + (p*3+m)*128 + 64*j}", ('C', p))
            for j in range(2): e.ds(f"ds_read_b32 v{base+16+j}, v{vT4} offset:{1024 + (p*3+2)*128 + 64*j}", ('C', p))
        csread(0, vCS); csread(1, vMuV); csread(2, vRsV)
        for t in range(5):
            p = vST + t*8
            e(f"v_pk_add_f32 {vr(p,2)}, {vr(p,2)}, {vr(p+2,2)}\nv_pk_add_f32 {vr(p+4,2)}, {vr(p+4,2)}, {vr(p+6,2)}")
            e(f"v_add_f32 v{vMu+t}, v{p}, v{p+4}\nv_add_f32 v{vRs+t}, v{p+1}, v{p+5}")
        csread(3, vST); pf()
        xreduce_g(e, "v_add_f32", [vMu+t for t in range(5)] + [vRs+t for t in range(5)], list(range(tmp, tmp+10)))
        pf()
        e.wait(ds=('C', 3))
        for k in range(9): e(f"v_pk_add_f32 {vr(vCS+2*k,2)}, {vr(vCS+2*k,2)}, {vr(vMuV+2*k,2)}\nv_pk_add_f32 {vr(vST+2*k,2)}, {vr(vST+2*k,2)}, {vr(vRsV+2*k,2)}")
        for k in range(9): e(f"v_pk_add_f32 {vr(vCS+2*k,2)}, {vr(vCS+2*k,2)}, {vr(vST+2*k,2)}")
        pf()
        e(f"s_mov_b32 s43, {fhex(1.0/D)}\nv_mov_b32 v{tmp}, {fhex(1e-5)}")
        for t in range(5):
            e(f"v_mul_f32 v{vMu+t}, {fhex(-1.0/D)}, v{vMu+t}\nv_fma_f32 v{vRs+t}, v{vRs+t}, s43, v{tmp}")
            e(f"v_fma_f32 v{vRs+t}, -v{vMu+t}, v{vMu+t}, v{vRs+t}\nv_max_f32 v{vRs+t}, v{vRs+t}, v{tmp}\nv_rsq_f32 v{vRs+t}, v{vRs+t}")
            e.ds(f"ds_write_b32 v{vT4}, v{vMu+t} offset:{t*128}")
            e.ds(f"ds_write_b32 v{vT4}, v{vRs+t} offset:{t*128+64}")
        for t in range(5):
            e.ds(f"ds_read_b128 {vr(vMuV+4*t,4)}, v{vG16} offset:{t*128}", 'TB')
            e.ds(f"ds_read_b128 {vr(vRsV+4*t,4)}, v{vG16} offset:{t*128+64}", 'TB')
        pf()
        bC, bP, bP0 = 128, 132, 136
        e(f"v_and_b32 v{tmp+3}, 15, v{vL}\nv_lshrrev_b32 v{tmp+4}, 4, v{vL}\nv_lshlrev_b32 v{tmp+4}, 2, v{tmp+4}\nv_sub_u32 v{tmp+3}, v{tmp+3}, v{tmp+4}\nv_mov_b32 v{tmp+5}, {fhex(-1e30)}")
        e(f"s_and_b32 s43, s{sMi1}, 7\ns_or_b32 s43, s43, s{sHalf}\ns_cmp_eq_u32 s43, 0\ns_cselect_b64 s[46:47], 0, -1")
        for r in range(4):
            e(f"v_subrev_u32 v{tmp+6}, {r}, v{tmp+3}\nv_cmp_gt_u32 vcc, 8, v{tmp+6}\nv_add_u32 v{tmp+6}, 16, v{tmp+6}\nv_cmp_gt_u32 s[78:79], 8, v{tmp+6}")
            e(f"v_cndmask_b32 v{bC+r}, v{tmp+5}, 0, vcc\ns_nop 0\nv_cndmask_b32 v{bP+r}, v{tmp+5}, 0, s[78:79]\nv_cndmask_b32 v{bP0+r}, v{tmp+5}, v{bP+r}, s[46:47]")
        def bsel(reg): return reg & ~1, reg & 1
        qf = lambda t: Q(0, t); kf = lambda t: Kc(0, t)
        def fold_qk(A, t, cs):
            mb_, ms = bsel(vMu + t); rb, rs = bsel(vRs + t)
            for j in range(2):
                for h in range(2): e(f"v_pk_fma_f32 {vr(A(j,t)+2*h,2)}, {vr(cs+4*j+2*h,2)}, {vr(mb_,2)}, {vr(A(j,t)+2*h,2)} op_sel:[0,{ms},0] op_sel_hi:[1,{ms},1]")
            for j in range(2):
                for h in range(2): e(f"v_pk_mul_f32 {vr(A(j,t)+2*h,2)}, {vr(A(j,t)+2*h,2)}, {vr(rb,2)} op_sel:[0,{rs}] op_sel_hi:[1,{rs}]")
            for j in range(2):
                for h in range(2): e(f"v_cvt_pk_bf16_f32 v{A(0,t)+2*j+h}, v{A(j,t)+2*h}, v{A(j,t)+2*h+1}")
        for t in range(5):
            fold_qk(Kc, t, vCS + 8)
            if t & 1 == 0: pf()
        for t in range(1, 5):
            fold_qk(Q, t, vCS)
            if t & 1: pf()
        Sp = lambda t: Q(1, t); Sc = lambda t: Kc(1, t)
        e("s_nop 1")
        for t in range(1, 5):
            e(f"{MF} {vr(Sp(t),4)}, {vr(kf(t-1),4)}, {vr(qf(t),4)}, {vr(bP0 if t == 1 else bP,4)}")
            e(f"{MF} {vr(Sc(t),4)}, {vr(kf(t),4)}, {vr(qf(t),4)}, {vr(bC,4)}")
        vp = lambda j, t: 140 + j*10 + 2*t
        e.wait(ds='TB')
        cb = vCS + 16
        for t in range(5):
            for j in range(2):
                for h in range(2): e(f"v_pk_fma_f32 {vr(V(j,t)+2*h,2)}, {vr(vMuV+4*t+2*h,2)}, {vr(cb,2)}, {vr(V(j,t)+2*h,2)} op_sel:[0,{j},0] op_sel_hi:[1,{j},1]")
            for j in range(2):
                for h in range(2): e(f"v_pk_mul_f32 {vr(V(j,t)+2*h,2)}, {vr(V(j,t)+2*h,2)}, {vr(vRsV+4*t+2*h,2)}")
            for j in range(2):
                for h in range(2): e(f"v_cvt_pk_bf16_f32 v{vp(j,t)+h}, v{V(j,t)+2*h}, v{V(j,t)+2*h+1}")
            if t & 1 == 0: pf()
        mx = lambda t: tmp + t - 1
        for k in range(4):
            for t in range(1, 5):
                p, c_ = Sp(t), Sc(t)
                e([f"v_max3_f32 v{mx(t)}, v{p}, v{p+1}, v{p+2}", f"v_max3_f32 v{mx(t)}, v{mx(t)}, v{p+3}, v{c_}", f"v_max3_f32 v{mx(t)}, v{mx(t)}, v{c_+1}, v{c_+2}", f"v_max_f32 v{mx(t)}, v{mx(t)}, v{c_+3}"][k])
        xreduce_g(e, "v_max_f32", [mx(t) for t in range(1, 5)], list(range(tmp+4, tmp+8)))
        pf()
        cexp = LOG2E*(32 ** -0.5)
        e(f"s_mov_b32 s46, {fhex(cexp)}")
        for t in range(1, 5): e(f"v_mul_f32 v{mx(t)}, {fhex(-cexp)}, v{mx(t)}")
        ones = 160
        for r in range(4): e(f"v_mov_b32 v{ones+r}, 0x3f803f80")
        pfr = qf
        for t in range(1, 5):
            for b4 in (Sp(t), Sc(t)):
                for r in range(4): e(f"v_fma_f32 v{b4+r}, v{b4+r}, s46, v{mx(t)}")
            for b4 in (Sp(t), Sc(t)):
                for r in range(4): e(f"v_exp_f32 v{b4+r}, v{b4+r}")
            for q, b4 in enumerate((Sp(t), Sc(t))):
                for h in range(2): e(f"v_cvt_pk_bf16_f32 v{pfr(t)+2*q+h}, v{b4+2*h}, v{b4+2*h+1}")
            if t < 3: pf()
        while left[0] > 0 and nxt: pf()
        O = V; Dn = lambda t: Kc(0, t)
        e("s_nop 1")
        for t in range(1, 5):
            e(f"{MF} {vr(Dn(t),4)}, {vr(ones,4)}, {vr(pfr(t),4)}, 0")
            for j in range(2): e(f"{MF} {vr(O(j,t),4)}, {vr(vp(j,t-1),4)}, {vr(pfr(t),4)}, 0")
        e(f"s_lshl_b32 s43, s{sOwn}, 15\ns_lshl_b32 s44, s{sHead}, 10\ns_add_u32 s43, s43, s44\ns_add_u32 s43, s43, s{sLo}\ns_add_u32 s46, s43, {OB}")
        for t in range(1, 4): e(f"s_add_u32 s{46+t}, s{46+t-1}, 32768")
        for t in range(1, 5): e(f"v_rcp_f32 v{Dn(t)}, v{Dn(t)}")
        for t in range(1, 5):
            for j in range(2):
                for h in range(2): e(f"v_pk_mul_f32 {vr(O(j,t)+2*h,2)}, {vr(O(j,t)+2*h,2)}, {vr(Dn(t),2)} op_sel:[0,0] op_sel_hi:[1,0]")
            for j in range(2):
                for h in range(2): e(f"v_cvt_pk_bf16_f32 v{Sp(t)+2*j+h}, v{O(j,t)+2*h}, v{O(j,t)+2*h+1}")
            e.vm(f"buffer_store_dwordx4 {vr(Sp(t),4)}, v{vOA}, {R(sWS)}, s{46+t-1} offen sc1", 'OUT')
        g.stamp()
        e(f"s_lshl_b32 s77, s{sMi1}, 7\ns_add_u32 s77, s77, s{sLo}\ns_add_u32 s77, s77, {FL + H1*128}")
        g.signal('OUT', 77)
        p2.window(nxt)
```

```python
from mg import *
sEW, sWn, sM0, sDel, sP = 80, 88, 89, 90, 91
sT, sTile, sXo, sTj, sSide, sSideDst, sSideOn = 57, 58, 59, 60, 61, 62, 63
vW, vOT, vR = 40, 48, 52
vSide, vSAcc, vSOff = 100, 132, 140
CSX = 139264 + 4096
class P24:
    def __init__(self, g, down):
        self.g = g; self.down = down; self.c = g.cfg.get('p4' if down else 'p2', {})
        c = self.c
        self.NS = 112 if down else 32
        self.PD = 7 if down else c.get('PD', 8); self.NL = c.get('NL', 2 if down else 1)
        self.LT = c.get('LT', 5); self.LW = 21; self.B = 28 if down else 32; self.P = 14 if down else 8
        self.srd = sWd if down else sWo
    def prefetch_setup(self):
        PD, NL = self.PD, self.NL
        L = [f"s_lshl_b32 s{sWn}, s{sNj2}, 7", f"s_lshl_b32 s92, s{sWave}, 14", f"s_add_u32 s{sWn}, s{sWn}, s92", f"s_lshl_b32 s{sM0}, s{sWave}, 10",
             f"s_and_b32 s92, s{sMi2}, 3", f"s_lshl_b32 s{sP}, s92, 15", f"s_mul_i32 s92, s92, {NL if self.down or PD == 4 else 0}", f"s_and_b32 s93, s{sNj2}, 7", "s_add_u32 s92, s92, s93"]
        L += [f"s_cmp_ge_u32 s92, {PD}\ns_cselect_b32 s93, {PD}, 0\ns_sub_u32 s92, s92, s93"]*2
        L += [f"s_lshl_b32 s93, {(1<<NL)-1 if self.c.get('jump', 1) else 0}, s92", f"s_lshr_b32 s92, s93, {PD}", "s_or_b32 s93, s93, s92"]
        L += [f"s_bitcmp1_b32 s93, {q}\ns_cselect_b32 s{sEW+q}, {PD*65536}, 0" for q in range(PD)]
        if self.down: L += [f"s_cmp_eq_u32 s{sWave}, 1\ns_cselect_b32 s{sDel}, 16384, 0", f"s_cmp_eq_u32 s{sWave}, 2\ns_cselect_b32 s{sDel}, -16384, s{sDel}"]
        return L
    def w_op(self, j):
        e = self.g.e; PD, NS = self.PD, self.NS
        dma = lambda: e.vm(f"buffer_load_dwordx4 v{vOW2}, {R(self.srd)}, s92 offen lds", ('W4', self.down, j))
        if self.down:
            L = [f"s_add_u32 m0, s{sM0}, {(j % self.B)*4096}"]
            L += [f"s_add_u32 s92, s{sWn}, s{sEW + j % PD}"] if j < NS - PD else [f"s_mul_i32 s92, s{sEW + j % PD}, {1 - NS//PD}", f"s_add_u32 s92, s92, s{sWn}"]
            if j % 7 == 3: L += [f"s_add_u32 s92, s92, s{sDel}"]
            L += [dma, f"s_add_u32 s{sWn}, s{sWn}, 65536"]
        else:
            L = [f"s_add_u32 m0, s{sP}, s{sM0}", f"s_lshl_b32 s92, s{sP}, 4", f"s_add_u32 s92, s92, s{sEW + j % PD}", "s_and_b32 s92, s92, 0x1fffff",
                 f"s_add_u32 s92, s92, s{sWn}", dma, f"s_add_u32 s{sP}, s{sP}, 4096", f"s_and_b32 s{sP}, s{sP}, 0x1ffff"]
        return [x if callable(x) else (lambda x=x: e(x)) for x in L]
    def prefetch_ops(self):
        return [self.w_op(j) for j in range(self.LW - self.LT if self.down else 32)]
    def t_op(self, j, tt):
        e = self.g.e; PD, NS = self.PD, self.NS; L = []
        if tt == 0:
            L = [f"s_lshr_b32 s93, s{sEW + j % PD}, 6"]
            if self.down: L += ([] if j < NS - PD else [f"s_mul_i32 s93, s93, {1 - NS//PD}"]) + [f"s_add_u32 s93, s93, s{sT}"]
            else: L += [f"s_add_u32 s93, s93, s{sTj}", "s_and_b32 s93, s93, 0x7fff", f"s_add_u32 s93, s93, s{sT}"]
        L += [lambda: e.vm(f"buffer_load_dwordx4 {ar((j % self.P)*8 + tt*4, 4)}, v{vOT+tt}, {R(sWS)}, s93 offen sc1", ('T4', self.down, j))]
        if tt == 1: L += [f"s_add_u32 s{sT if self.down else sTj}, s{sT if self.down else sTj}, 1024"]
        return [x if callable(x) else (lambda x=x: e(x)) for x in L]
    def vm_ops(self, i):
        ops = []
        if self.down and i + self.LW < self.NS: ops.append(self.w_op(i + self.LW))
        if i + self.LT < self.NS: ops += [self.t_op(i + self.LT, 0), self.t_op(i + self.LT, 1)]
        return ops
    def side_setup(self):
        e = self.g.e
        e(f"s_lshr_b32 s46, s2, 3\ns_cmp_ge_u32 s46, 14\ns_cselect_b32 s44, 14, 0\ns_cselect_b32 s45, 1, 0")
        e(f"s_cselect_b32 s{sAs}, s{sWu}, s{sWg}\ns_cselect_b32 s{sAs+1}, s{sWu+1}, s{sWg+1}\ns_mov_b32 s{sAs+2}, {D*F*2}")
        e(f"s_sub_u32 s44, s46, s44\ns_bfe_u32 s47, s2, 0x20001\ns_mul_i32 s47, s47, 14\ns_add_u32 s44, s44, s47\ns_and_b32 s47, s2, 1")
        e(f"s_lshl_b32 s48, s47, 1\ns_add_u32 s48, s48, s45\ns_mul_i32 s48, s48, {F*4}\ns_lshl_b32 s49, s44, 8\ns_add_u32 s48, s48, s49\ns_add_u32 s{sSideDst}, s48, {CSG}")
        e(f"s_lshl_b32 s47, s47, 2\ns_add_u32 s47, s47, s{sWave}\ns_mul_i32 s47, s47, {64*2*F}\ns_lshl_b32 s44, s44, 7\ns_add_u32 s{sSide}, s47, s44")
        e(f"s_cmp_lt_u32 s46, 28\ns_cselect_b32 s{sSideOn}, 1, 0\ns_cmp_eq_u32 s{sLay}, 0\ns_cselect_b32 s{sSideOn}, s{sSideOn}, 0")
        e(f"v_lshrrev_b32 v{vSOff}, 3, v{vL}\nv_mul_u32_u24 v{vSOff}, {2*F}, v{vSOff}\nv_and_b32 v{vSOff+1}, 7, v{vL}\nv_lshl_add_u32 v{vSOff}, v{vSOff+1}, 4, v{vSOff}")
    def side_loads(self):
        g = self.g; e = g.e; l = g.lab("sl")
        e(f"s_cmp_eq_u32 s{sSideOn}, 0\ns_cbranch_scc1 {l}")
        for q in range(8): e(f"buffer_load_dwordx4 {vr(vSide+4*q,4)}, v{vSOff}, {R(sAs)}, s{sSide} offen\ns_add_u32 s{sSide}, s{sSide}, {8*2*F}")
        e(f"s_add_u32 s{sSide}, s{sSide}, {(512-64)*2*F}\n{l}:")
    def side_acc(self, first):
        g = self.g; e = g.e; l = g.lab("sa")
        e(f"s_cmp_eq_u32 s{sSideOn}, 0\ns_cbranch_scc1 {l}\ns_waitcnt vmcnt(0)")
        g.colsum_acc(vSide, 8, vSAcc, vSOff + 2, first)
        if not first: g.colsum_publish(vSAcc, vSide, CSX)
        e(f"{l}:")
    def window(self, nxt):
        g = self.g; e = g.e; down = self.down
        acc = lambda n, tt: (n*2 + tt)*4
        apitch = HPITCH if down else 32768
        e(f"s_lshl_b32 s{sTile}, s{sMi2}, 3\ns_lshl_b32 s43, s{sWave}, 1\ns_add_u32 s{sTile}, s{sTile}, s43")
        e(f"s_lshl_b32 s{sXo}, s{sTile}, 15\ns_lshl_b32 s43, s{sNj2}, 11\ns_add_u32 s{sXo}, s{sXo}, s43\ns_add_u32 s{sXo}, s{sXo}, s{sLo}")
        e(f"s_add_u32 s46, s{sXo}, {XB if down else XA}\ns_add_u32 s47, s46, 32768\nv_lshlrev_b32 v{vOT}, 4, v{vL}\nv_add_u32 v{vOT+1}, {apitch}, v{vOT}")
        for tt in range(2):
            for p in range(2): e.vm(f"buffer_load_dwordx4 {vr(vR + (tt*2+p)*4, 4)}, v{vOT}, {R(sWS)}, s{46+tt} offen offset:{1024*p} sc1", 'R')
        for op in nxt:
            for f in op: f()
        if not down: self.side_setup(); self.side_loads()
        e(f"s_mul_i32 s{sT}, s{sTile}, {apitch}\ns_add_u32 s{sT}, s{sT}, s{sLo}\ns_add_u32 s{sT}, s{sT}, {HB if down else OB}\ns_mov_b32 s{sTj}, 0")
        e(f"v_lshrrev_b32 v2, 2, v{vL}\nv_bfe_u32 v3, v{vL}, 3, 2\nv_and_b32 v4, 3, v{vL}\nv_lshlrev_b32 v4, 3, v4\nv_lshl_add_u32 v4, v2, 7, v4")
        for t in range(4):
            e(f"v_xor_b32 v5, {t}, v3\nv_lshl_add_u32 v{vW+t}, v5, 5, v4")
            if down: e(f"v_add_u32 v{vW+4+t}, {14*4096}, v{vW+t}")
        e.wait(vm='R')
        for tt in range(2):
            for n in range(4):
                for h in range(2):
                    src = vR + (tt*2 + (n >> 1))*4 + (n & 1)*2 + h
                    e(f"v_lshlrev_b32 v{acc(n,tt)+2*h}, 16, v{src}\nv_and_b32 v{acc(n,tt)+2*h+1}, 0xffff0000, v{src}")
        if not down: self.side_acc(True)
        if down: e(f"s_lshr_b32 s77, s{sMi2}, 1\ns_lshl_b32 s77, s77, 7\ns_add_u32 s77, s77, {FL + H3*128}")
        else: e(f"s_lshl_b32 s77, s{sMi2}, 7\ns_add_u32 s77, s77, {FL + H1*128}")
        e(f"s_add_u32 s77, s77, s{sLo}")
    def main(self, nx):
        g = self.g; e = g.e; down = self.down; NS, B, P = self.NS, self.B, self.P
        acc = lambda n, tt: (n*2 + tt)*4
        aW = lambda b, kk, n: 112 + b*32 + kk*16 + n*4
        UB = 14 if down else 4; NU = NS//2; nm = "p4" if down else "p2"
        g.poll(77, 32 if down else 16)
        for i in range(-self.LT, 0):
            for op in self.vm_ops(i):
                for f in op: f()
        def reads(u):
            if u >= NU: return []
            ops = []
            for n in range(4):
                for kk in range(2):
                    for j in range(2):
                        def f(n=n, kk=kk, j=j):
                            i = 2*u + kk
                            if down: reg, off = vW + n + (4 if i % B >= 14 else 0), (i % 14)*4096
                            else: reg, off = vW + n, (i % 8)*4096
                            e.ds(f"ds_read_b64_tr_b16 {ar(aW(u & 1, kk, n) + 2*j, 2)}, v{reg} offset:{off + j*2048}", ('F4', down, u, n))
                            if not down and u % 4 == 3 and kk == 1 and j == 1: e(f"v_add_u32 v{reg}, 32768, v{reg}")
                        ops.append(f)
            return ops
        for f in reads(0): f()
        g.stamp()
        for u in range(NU):
            if u % UB == 0: e.mark(f"{nm}b{u//UB}")
            fill = [[] for _ in range(16)]
            if down and u % 2 == 0:
                def bar(u=u):
                    e.wait(vm=[('W4', down, x) for x in range(2*u+2, min(2*u+6, NS))]); e("s_barrier")
                fill[0].append(bar)
            for k, f in enumerate(reads(u+1)): fill[k].append(f)
            ops = self.vm_ops(2*u) + self.vm_ops(2*u+1)
            for k, op in enumerate(ops):
                pos = 1 + (k*14)//max(len(ops), 1)
                for f in op: fill[pos].append(f)
            seq = []; kk = 0
            for n in range(4):
                for tt in ((1, 0) if n & 1 else (0, 1)): seq += [(n, tt, kk), (n, tt, 1-kk)]; kk = 1 - kk
            for k, (n, tt, kk) in enumerate(seq):
                e.wait(vm=('T4', down, 2*u+1) if k == 0 else None, ds=('F4', down, u, n))
                a = vr(acc(n, tt), 4)
                e(f"{MF} {a}, {ar(aW(u & 1, kk, n), 4)}, {ar(((2*u+kk) % P)*8 + tt*4, 4)}, {a}")
                for f in fill[k]: f()
        e.fold([f"{nm}b{k}" for k in range(4)], f"L{nm}_loop", f"s{sCnt}")
        g.stamp()
        e(f"s_add_u32 s46, s{sXo}, {XA + LP if down else XB}\ns_add_u32 s47, s46, 32768")
        e(f"s_lshl_b32 s48, s{sTile}, 11\ns_lshl_b32 s43, s{sNj2}, 7\ns_add_u32 s48, s48, s43\ns_add_u32 s48, s48, s{sLo}\ns_add_u32 s48, s48, {STA + LP if down else STB}\ns_nop 0")
        Pk = lambda tt, p: vR + (tt*2 + p)*4
        def cvt(tt, p):
            for q in range(4):
                a = acc(2*p + (q >> 1), tt) + 2*(q & 1)
                e(f"v_cvt_pk_bf16_f32 v{Pk(tt,p)+q}, v{a}, v{a+1}")
        if down: e(f"s_cmp_lg_u32 s{sLay}, 0\ns_cbranch_scc1 Lfinal")
        for p in range(2):
            for tt in range(2):
                cvt(tt, p)
                e.vm(f"buffer_store_dwordx4 {vr(Pk(tt,p),4)}, v{vOT}, {R(sWS)}, s{46+tt} offen offset:{1024*p} sc1", 'OUT4')
        stats_epilogue(e, Pk, 2, 2, vL, 72, sWS, 48, aux='sc1', sm0=64, tag='OUT4')
        g.stamp()
        if down: e(f"s_lshl_b32 s77, s{sMi2}, 7\ns_add_u32 s77, s77, {FL + H4*128}")
        else: e(f"s_lshr_b32 s77, s{sMi2}, 1\ns_lshl_b32 s77, s77, 7\ns_add_u32 s77, s77, s{sLo}\ns_add_u32 s77, s77, {FL + H2*128}")
        g.signal('OUT4', 77)
        if not down:
            nx.window(self)
        else:
            e(f"s_mov_b32 s{sLay}, 1\ns_mov_b32 s{sLo}, {hex(LP)}")
            nx.window()
            e("s_branch Llayer\nLfinal:")
            e(f"v_and_b32 v72, 15, v{vL}\nv_lshlrev_b32 v72, 12, v72\nv_bfe_u32 v73, v{vL}, 4, 1\nv_lshl_add_u32 v72, v73, 5, v72\nv_lshrrev_b32 v73, 5, v{vL}\nv_lshl_add_u32 v72, v73, 4, v72")
            e(f"s_and_b32 s43, s{sTile}, 63\ns_lshl_b32 s43, s43, 16\ns_lshr_b32 s46, s{sTile}, 6\ns_lshl_b32 s46, s46, 11\ns_add_u32 s46, s46, s43\ns_lshl_b32 s43, s{sNj2}, 7\ns_add_u32 s46, s46, s43\ns_add_u32 s47, s46, 65536")
            for p in range(2):
                for tt in range(2): cvt(tt, p)
                for tt in range(2):
                    r = Pk(tt, p)
                    if tt == 1: e("s_nop 0")
                    e(f"v_permlane16_swap_b32 v{r}, v{r+2}\nv_permlane16_swap_b32 v{r+1}, v{r+3}")
                    e(f"buffer_store_dwordx4 {vr(r,4)}, v72, {R(sOut)}, s{46+tt} offen offset:{64*p}")
            g.stamp()
```

```python
from mg import *
from p24 import sSideOn, sSideDst, CSX
sOdd, sT, sW, sM0, sGrp, sTch, sPW = 66, 67, 68, 69, 70, 71, 72
vW, vOW, vOT, vTch = 224, 231, 235, 239
aT = lambda s, kk, tt: (s & 1)*32 + kk*16 + tt*4
NWB = 4
aW = lambda L, kk: 64 + (L % NWB)*8 + kk*4
aDum, aSt = 96, 128
acc = lambda n, tt: (n*4 + tt)*4
PW3 = 131072
class P3:
    def __init__(self, g): self.g = g; self.c = g.cfg.get('p3', {})
    def w_ops(self, st):
        e = self.g.e; ops = []
        for mat in range(2):
            for q in range(4):
                L = [f"s_add_u32 m0, s{sM0}, {(st & 1)*32768 + mat*16384}", "NOP"] if q == 0 else []
                L += [lambda q=q, mat=mat: e.vm(f"buffer_load_dwordx4 v{vOW+q}, {R((sWg, sWu)[mat])}, s{sW} offen offset:{1024*q} lds", ('W3', st))]
                if q == 3 and mat == 1:
                    L += [f"s_add_u32 s{sW}, s{sW}, {64*2*F}"] + ([f"s_xor_b32 s{sM0}, s{sM0}, 0x10000"] if st & 1 else [])
                ops.append(L)
        return ops
    def t_ops(self, st):
        e = self.g.e; ops = []
        for tt in range(4):
            for kk in range(2):
                L = [lambda tt=tt, kk=kk: e.vm(f"buffer_load_dwordx4 {ar(aT(st, kk, tt), 4)}, v{vOT+tt}, {R(sWS)}, s{sT} offen offset:{(st & 1)*2048 + kk*1024} sc1", ('T3', st))]
                if tt == 3 and kk == 1 and st & 1: L += [f"s_add_u32 s{sT}, s{sT}, 4096"]
                ops.append(L)
        return ops
    def run(self, ops):
        for op in ops:
            for x in op:
                if callable(x): x()
                else: self.g.e("s_nop 0" if x == "NOP" else x)
    def window(self, p2):
        g = self.g; e = g.e
        e(f"s_and_b32 s{sOdd}, s{sNj3}, 1")
        e(f"v_lshrrev_b32 v2, 4, v{vL}\nv_bfe_u32 v3, v{vL}, 1, 3\nv_and_b32 v4, 1, v{vL}\nv_lshlrev_b32 v4, 4, v4")
        e(f"v_mul_u32_u24 v5, {2*F}, v2\nv_add_u32 v5, v5, v4\ns_cmp_eq_u32 s{sOdd}, 0\ns_cselect_b32 s44, 7, 0\nv_mov_b32 v7, 0x40000000")
        for i in range(4):
            e(f"v_add_u32 v6, {4*(i&1)}, v2\nv_xor_b32 v6, v6, v3\nv_cmp_eq_u32 vcc, s44, v6\nv_lshl_add_u32 v6, v6, 5, v5\nv_add_u32 v6, {i*4*2*F - 1024*i}, v6")
            e(f"v_cndmask_b32 v{vOW+i}, v6, v7, vcc" if self.c.get('trim', 1) else f"v_mov_b32 v{vOW+i}, v6")
        e(f"s_mul_i32 s{sW}, s{sNj3}, 224\ns_and_b32 s{sW}, s{sW}, 0xffffffc0\ns_mul_i32 s43, s{sWave}, {16*2*F}\ns_add_u32 s{sW}, s{sW}, s43\ns_lshl_b32 s{sM0}, s{sWave}, 12")
        self.run(self.w_ops(0)); self.run(self.w_ops(1))
        p2.side_loads()
        for tt in range(4): e(f"v_lshlrev_b32 v6, 4, v{vL}\nv_add_u32 v{vOT+tt}, {tt*32768}, v6")
        e(f"s_lshl_b32 s43, s{sLay}, 30\nv_or_b32 v{vTch}, s43, v6\ns_lshl_b32 s43, s2, 2\ns_add_u32 s43, s43, s{sWave}\ns_mul_i32 s{sTch}, s43, 7168")
        e(f"s_lshl_b32 s{sGrp}, s{sMi3}, 2\ns_add_u32 s{sGrp}, s{sGrp}, s{sWave}\ns_lshl_b32 s{sT}, s{sGrp}, 17\ns_add_u32 s{sT}, s{sT}, s{sLo}\ns_add_u32 s{sT}, s{sT}, {XB}")
        e(f"s_lshl_b32 s{sPW}, s{sWave}, 11\ns_add_u32 s{sPW}, s{sPW}, {PW3}")
        e(f"v_lshrrev_b32 v2, 2, v{vL}\nv_and_b32 v3, 7, v2\nv_and_b32 v4, 3, v{vL}\nv_lshlrev_b32 v4, 3, v4\nv_lshl_add_u32 v4, v2, 8, v4")
        e(f"s_lshl_b32 s43, s{sOdd}, 1\ns_cmp_eq_u32 s{sOdd}, 0\ns_cselect_b32 s45, 6, 1")
        for t in range(7):
            if t < 6: e(f"s_add_u32 s46, s43, {t}\nv_xor_b32 v5, s46, v3")
            else: e(f"v_xor_b32 v5, s45, v3")
            e(f"v_lshl_add_u32 v{vW+t}, v5, 5, v4")
        for r in list(range(100)) + list(range(144, 224)): e(f"v_mov_b32 v{r}, 0")
        p2.side_acc(False)
        for r in range(100, 144): e(f"v_mov_b32 v{r}, 0")
        e(f"s_lshl_b32 s77, s{sMi3}, 7\ns_add_u32 s77, s77, s{sLo}\ns_add_u32 s77, s77, {FL + H2*128}")
    def main(self, p4):
        g = self.g; e = g.e; c = self.c
        DW = 2
        g.poll(77, 32)
        self.run(self.t_ops(0))
        l = g.lab("cf"); e(f"s_cmp_eq_u32 s{sWave}, 1\ns_cselect_b32 s{sSideOn}, s{sSideOn}, 0\ns_cmp_eq_u32 s{sSideOn}, 0\ns_cbranch_scc1 {l}")
        g.colsum_final(240, CSX, sSideDst); e("s_waitcnt vmcnt(0)"); g.arrive_dbg(128); e(f"{l}:")
        def wread(L):
            s, n = divmod(L, 14)
            if s >= 16: return []
            ops = []
            for kk in range(2):
                for j in range(2):
                    def f(kk=kk, j=j):
                        if n == 0 and kk == 0 and j == 0 and s > 0: e.wait(vm=('W3', s), force=True); e("s_barrier")
                        e.ds(f"ds_read_b64_tr_b16 {ar(aW(L, kk) + 2*j, 2)}, v{vW + (n >> 1)} offset:{(s & 1)*32768 + (n & 1)*16384 + (kk*32 + 16*j)*256}", ('F3', L))
                        if kk == 1 and j == 1 and s & 1 and n & 1: e(f"v_xor_b32 v{vW + (n >> 1)}, 0x10000, v{vW + (n >> 1)}")
                    ops.append(f)
            return ops
        for L in range(DW):
            for f in wread(L): f()
        e("s_waitcnt vmcnt(0)")
        for _ in range(8): e.vmq.append(('W3', 1))
        g.stamp()
        nxt = p4.prefetch_ops(); vCk = 250
        for s in range(16):
            if s % 2 == 0: e.mark(f"p3b{s//2}")
            fill = [[] for _ in range(112)]
            def place(pos, op):
                pre = True
                for x in op:
                    if x == "NOP": continue
                    if callable(x): fill[pos].append(x); pre = False
                    else: fill[pos - 1 if pre else pos + 1].append(lambda x=x: e(x))
            for n in range(14):
                for k, f in enumerate(wread(s*14 + n + DW)): fill[n*8 + 2*k].append(f)
            if s < 15:
                for k, op in enumerate(self.t_ops(s+1)): place(7*k + 3, op)
            if s < 14:
                for k, op in enumerate(self.w_ops(s+2)): place(7*(k+8) + 3, op)
                if s % 2 == 0: place(55, [lambda: e.vm(f"buffer_load_dwordx4 {ar(aDum,4)}, v{vTch}, {R(sWd)}, s{sTch} offen"), f"s_add_u32 s{sTch}, s{sTch}, 1024"])
            else:
                for k in range(8):
                    for z, f in enumerate(nxt.pop(0)): fill[57 + 7*k + z].append(f)
            if s == 14:
                fill[1].append(lambda: e.vm(f"buffer_load_dword v{vCk}, v{vZ}, {R(sDbg)}, 0 offen offset:128 sc1", 'CK3'))
                for k, x in enumerate(p4.prefetch_setup()): fill[2*k + 5].append(lambda x=x: e(x))
                sal = f"""s_lshl_b32 s44, s{sGrp}, 13
                s_add_u32 s44, s44, s{sLo}
                s_add_u32 s44, s44, {STB}
                s_add_u32 s45, s44, 4096
                v_lshlrev_b32 v{vOW}, 3, v{vL}
                v_lshrrev_b32 v{vOW+1}, 3, v{vL}
                v_add_u32 v{vOW+1}, s{sOdd}, v{vOW+1}
                v_cmp_ne_u32 vcc, 7, v{vOW+1}
                v_bfe_u32 v{vOW+2}, v{vL}, 2, 1
                v_cndmask_b32 v{vOW+1}, 0, v{vOW+1}, vcc
                v_mul_u32_u24 v{vOW+2}, {F*4}, v{vOW+2}
                v_lshl_add_u32 v{vOW+1}, v{vOW+1}, 6, v{vOW+2}
                v_and_b32 v{vOW+2}, 3, v{vL}
                v_lshl_add_u32 v{vOW+1}, v{vOW+2}, 4, v{vOW+1}
                s_mul_i32 s46, s{sNj3}, 448
                s_add_u32 s46, s46, {CSG}
                s_add_u32 s47, s46, {2*F*4 - 1024}
                v_add_u32 v{vOW+2}, s{sPW}, v{vOT}""".split("\n")
                for k, x in enumerate(sal): fill[57 + 3*k].append(lambda x=x: e(x))
            if s == 15:
                fill[1].append(lambda: g.check_dbg(vCk, 128, 224, 'CK3'))
                fill[2].append(lambda: e(f"s_mov_b32 m0, s{sPW}"))
                fill[3].append(lambda: e.vm(f"buffer_load_dwordx4 v{vOW+1}, {R(sWS)}, s46 offen sc1 lds", 'CS3'))
                fill[5].append(lambda: e.vm(f"buffer_load_dwordx4 v{vOW+1}, {R(sWS)}, s47 offen offset:1024 sc1 lds", 'CS3'))
                for k in range(16):
                    fill[9 + 3*k].append(lambda k=k: e.vm(f"buffer_load_dwordx2 {ar(aSt + 2*k, 2)}, v{vOW}, {R(sWS)}, s{44 if k < 8 else 45} offen offset:{(k & 7)*512} sc1", 'ST3'))
                def c1():
                    e.wait(vm='CS3'); e.ds(f"ds_read_b128 v[240:243], v{vOW+2}", 'C3'); e.ds(f"ds_read_b128 v[244:247], v{vOW+2} offset:1024", 'C3')
                fill[97].append(c1)
                def c2():
                    e.wait(ds='C3'); e("v_add_f32 v240, v240, v244\nv_add_f32 v241, v241, v245")
                fill[105].append(c2)
                fill[106].append(lambda: e("v_add_f32 v242, v242, v246\nv_add_f32 v243, v243, v247"))
                fill[107].append(lambda: e.ds(f"ds_write_b128 v{vOW+2}, v[240:243]"))
            kk = 0
            for n in range(14):
                L = s*14 + n
                e.wait(vm=('T3', s) if n == 0 else None, ds=('F3', L), force=(n == 0))
                k = 0
                for tt in ((3, 2, 1, 0) if n & 1 else (0, 1, 2, 3)):
                    for z in (kk, 1 - kk):
                        a = vr(acc(n, tt), 4)
                        e(f"{MF} {a}, {ar(aW(L, z), 4)}, {ar(aT(s, z, tt), 4)}, {a}")
                        for f in fill[n*8 + k]: f()
                        k += 1
                    kk = 1 - kk
        e.fold([f"p3b{k}" for k in range(8)], "Lp3_loop", f"s{sCnt}")
        g.stamp()
        self.epilogue(p4, nxt)
    def epilogue(self, p4, nxt):
        g = self.g; e = g.e
        t0, tm, vC2, vMu, vC1, vS1, vS2, vCa = 224, 232, 236, 240, 244, 248, 249, 250
        e(f"v_lshrrev_b32 v{vCa}, 4, v{vL}\nv_lshlrev_b32 v{vCa}, 4, v{vCa}\nv_add_u32 v{vCa}, s{sPW}, v{vCa}")
        e.wait(vm='ST3', ds='all')
        for tt in range(4):
            for k in range(8): e(f"v_accvgpr_read_b32 v{t0+k}, a{aSt + tt*8 + k}")
            e(f"v_pk_add_f32 {vr(t0,2)}, {vr(t0,2)}, {vr(t0+2,2)}\nv_pk_add_f32 {vr(t0+4,2)}, {vr(t0+4,2)}, {vr(t0+6,2)}")
            e(f"v_add_f32 v{vMu+tt}, v{t0}, v{t0+4}\nv_add_f32 v{vC2+tt}, v{t0+1}, v{t0+5}")
        xreduce_g(e, "v_add_f32", [vMu+t for t in range(4)] + [vC2+t for t in range(4)], list(range(t0, t0+8)))
        csb = lambda t: t0 if t == 0 else acc(2*(t-1), 0)
        def csread(t):
            for m in range(2): e.ds(f"ds_read_b128 {vr(csb(t)+4*m,4)}, v{vCa} offset:{(2*t+m)*64}", ('CT', t))
        csread(0)
        e(f"s_mov_b32 s43, {fhex(1.0/D)}\nv_mov_b32 v{tm}, {fhex(1e-5)}")
        for tt in range(4):
            e(f"v_mul_f32 v{vMu+tt}, {fhex(-1.0/D)}, v{vMu+tt}\nv_fma_f32 v{vC2+tt}, v{vC2+tt}, s43, v{tm}")
            e(f"v_fma_f32 v{vC2+tt}, -v{vMu+tt}, v{vMu+tt}, v{vC2+tt}\nv_max_f32 v{vC2+tt}, v{vC2+tt}, v{tm}\nv_rsq_f32 v{vC1+tt}, v{vC2+tt}")
        e(f"v_lshlrev_b32 v{vS1}, 4, v{vL}\nv_and_b32 v{vS2}, 31, v{vL}\nv_lshlrev_b32 v{vS2}, 4, v{vS2}\nv_lshrrev_b32 v{tm}, 5, v{vL}")
        for tt in range(4): e(f"v_mul_f32 v{vC1+tt}, {fhex(-LOG2E)}, v{vC1+tt}")
        e(f"s_mov_b32 s43, {HPITCH}\nv_mad_u32_u24 v{vS2}, v{tm}, s43, v{vS2}")
        e(f"s_mul_i32 s43, s{sGrp}, {4*HPITCH}\ns_lshr_b32 s45, s{sNj3}, 1\ns_mul_i32 s45, s45, 7168\ns_add_u32 s43, s43, s45\ns_add_u32 s43, s43, s{sLo}\ns_add_u32 s43, s43, {HB}")
        e(f"s_lshl_b32 s45, s{sOdd}, 12\ns_add_u32 s57, s43, s45\ns_lshl_b32 s45, s{sOdd}, 9\ns_add_u32 s61, s43, s45\ns_add_u32 s61, s61, 3072\ns_add_u32 s62, s61, {2*HPITCH}")
        for tt in range(1, 4): e(f"s_add_u32 s{57+tt}, s{57+tt-1}, {HPITCH}")
        for t in range(7):
            cg, cu = csb(t), csb(t) + 4
            e.wait(ds=('CT', t))
            for tt in range(4):
                g_ = acc(2*t, tt); u = acc(2*t+1, tt)
                sel = tt & 1; mub = (vMu + tt) & ~1; c1 = (vC1 + tt) & ~1; c2 = (vC2 + tt) & ~1
                osel = f"op_sel:[0,{sel},0] op_sel_hi:[1,{sel},1]"
                for h in range(2): e(f"v_pk_fma_f32 {vr(g_+2*h,2)}, {vr(cg+2*h,2)}, {vr(mub,2)}, {vr(g_+2*h,2)} {osel}")
                for h in range(2): e(f"v_pk_fma_f32 {vr(u+2*h,2)}, {vr(cu+2*h,2)}, {vr(mub,2)}, {vr(u+2*h,2)} {osel}")
                for h in range(2): e(f"v_pk_mul_f32 {vr(tm+2*h,2)}, {vr(g_+2*h,2)}, {vr(c1,2)} op_sel:[0,{sel}] op_sel_hi:[1,{sel}]")
                for h in range(2): e(f"v_pk_mul_f32 {vr(g_+2*h,2)}, {vr(g_+2*h,2)}, {vr(u+2*h,2)}")
                for r in range(4): e(f"v_exp_f32 v{tm+r}, v{tm+r}")
                e("s_nop 0")
                for h in range(2): e(f"v_pk_fma_f32 {vr(tm+2*h,2)}, {vr(tm+2*h,2)}, {vr(c2,2)}, {vr(c2,2)} op_sel:[0,{sel},{sel}] op_sel_hi:[1,{sel},{sel}]")
                for r in range(4): e(f"v_rcp_f32 v{tm+r}, v{tm+r}")
                e("s_nop 0")
                for h in range(2): e(f"v_pk_mul_f32 {vr(g_+2*h,2)}, {vr(g_+2*h,2)}, {vr(tm+2*h,2)}")
                dst = acc(2*(t & ~1) + 1, tt) + 2*(t & 1) if t < 6 else acc(13, tt & ~1) + 2*(tt & 1)
                e(f"v_cvt_pk_bf16_f32 v{dst}, v{g_}, v{g_+1}\nv_cvt_pk_bf16_f32 v{dst+1}, v{g_+2}, v{g_+3}")
                if tt == 1 and t < 6: csread(t+1)
                if t < 6 and (t & 1):
                    e.vm(f"buffer_store_dwordx4 {vr(dst-2,4)}, v{vS1}, {R(sWS)}, s{57+tt} offen offset:{1024*(t>>1)} sc1", 'OUT3')
                if t == 6 and (tt & 1):
                    e(f"s_nop 1\nv_permlane32_swap_b32 v{dst-2}, v{dst}\nv_permlane32_swap_b32 v{dst-1}, v{dst+1}")
                    e.vm(f"buffer_store_dwordx4 {vr(dst-2,4)}, v{vS2}, {R(sWS)}, s{61 + (tt>>1)} offen sc1", 'OUT3')
        g.stamp()
        e(f"s_lshl_b32 s77, s{sMi3}, 7\ns_add_u32 s77, s77, s{sLo}\ns_add_u32 s77, s77, {FL + H3*128}")
        g.signal('OUT3', 77)
        p4.window(nxt)
```

```python
from common import *
def stats_epilogue(e, P, ntile, nblk, vL, vt, sWS, s_off, tile_stride=2048, aux='', sm0=60, tag=None):
    ones = vt; sm = lambda tt: vt + 4 + 8*tt; gr = lambda tt: vt + 8 + 8*tt
    va = vt + 4 + 8*ntile
    for r in range(4): e(f"v_mov_b32 v{ones+r}, 0x3f803f80")
    e(f"v_and_b32 v{va}, 15, v{vL}\nv_lshrrev_b32 v{va+1}, 4, v{vL}")
    for p in range(nblk):
        for tt in range(ntile):
            c = "0" if p == 0 else None
            e(f"v_mfma_f32_16x16x32_bf16 {vr(sm(tt),4)}, {vr(ones,4)}, {vr(P(tt,p),4)}, {c or vr(sm(tt),4)}")
            e(f"v_mfma_f32_16x16x32_bf16 {vr(gr(tt),4)}, {vr(P(tt,p),4)}, {vr(P(tt,p),4)}, {c or vr(gr(tt),4)}")
    e(f"v_lshrrev_b32 v{ones}, 2, v{va}\nv_cmp_eq_u32 s[{sm0+0}:{sm0+1}], v{ones}, v{va+1}\nv_and_b32 v{ones}, 3, v{va}")
    e(f"v_cmp_eq_u32 s[{sm0+2}:{sm0+3}], 1, v{ones}\nv_cmp_eq_u32 s[{sm0+4}:{sm0+5}], 2, v{ones}\nv_cmp_eq_u32 s[{sm0+6}:{sm0+7}], 3, v{ones}")
    e(f"v_lshlrev_b32 v{va}, 3, v{va}\nv_mov_b32 v{va+1}, 0x7ffffff0\ns_nop 0\nv_cndmask_b32 v{va}, v{va+1}, v{va}, s[{sm0+0}:{sm0+1}]")
    for tt in range(ntile):
        g = gr(tt); o = sm(tt) + 1
        e(f"v_cndmask_b32 v{o}, v{g}, v{g+1}, s[{sm0+2}:{sm0+3}]\nv_cndmask_b32 v{o}, v{o}, v{g+2}, s[{sm0+4}:{sm0+5}]\nv_cndmask_b32 v{o}, v{o}, v{g+3}, s[{sm0+6}:{sm0+7}]")
        e.vm(f"buffer_store_dwordx2 {vr(sm(tt),2)}, v{va}, s[{sWS}:{sWS+3}], s{s_off} offen offset:{tt*tile_stride} {aux}", tag)

def gen_res(name, cfg):
    e = E(); dg = Diag(cfg.get('diag', False))
    down = cfg['down']
    K = F if down else D
    NS = K//32; B = 14 if down else cfg.get('B', 16); P = 7 if down else 8
    LT = cfg.get('LT', 5); LW = cfg.get('LW', 6); SPS = cfg.get('SPS', 2)
    apitch = HPITCH if down else 32768
    abase = HF if down else OF
    sWS, sWt, sOut = 4, 8, 12
    sWave, sMi, sNj, sT, sW, sM0, sCnt, sDel = 24, 25, 26, 28, 29, 30, 31, 27
    vW = 40; vOW = 44; vOT = 45; vL = 47; vR = 48
    aT = 0; aWf = 64
    acc = lambda n, tt: (n*2 + tt)*4
    e(f"{name}:")
    dg.real(e); dg.stamp(e)
    e(f"s_load_dwordx2 s[32:33], s[0:1], {KA_WS}\ns_load_dwordx2 s[36:37], s[0:1], {KA_WD if down else KA_WO}\ns_load_dwordx2 s[38:39], s[0:1], {KA_OUT}")
    e(f"v_lshrrev_b32 v1, 6, v0\nv_and_b32 v{vL}, 63, v0\nv_readfirstlane_b32 s{sWave}, v1")
    mb = cfg.get('mbits', 2)
    e(f"s_and_b32 s34, s2, 7\ns_lshr_b32 s35, s2, 3")
    e(f"s_and_b32 s{sMi}, s34, {(16>>mb)-1}\ns_lshl_b32 s{sMi}, s{sMi}, {mb}\ns_and_b32 s43, s35, {(1<<mb)-1}\ns_add_u32 s{sMi}, s{sMi}, s43")
    e(f"s_lshr_b32 s{sNj}, s34, {4-mb}\ns_lshl_b32 s{sNj}, s{sNj}, {5-mb}\ns_lshr_b32 s43, s35, {mb}\ns_add_u32 s{sNj}, s{sNj}, s43")
    e(f"v_lshrrev_b32 v2, 3, v{vL}\nv_bfe_u32 v3, v{vL}, 1, 2\nv_lshrrev_b32 v4, 4, v{vL}\nv_xor_b32 v3, v3, v4\nv_and_b32 v4, 1, v{vL}")
    e(f"v_lshlrev_b32 v2, 11, v2\nv_lshl_add_u32 v2, v3, 5, v2\nv_lshl_add_u32 v{vOW}, v4, 4, v2")
    e(f"v_lshlrev_b32 v{vOT}, 4, v{vL}\nv_add_u32 v{vOT+1}, {apitch}, v{vOT}")
    e(f"s_lshl_b32 s44, s{sMi}, 3\ns_lshl_b32 s43, s{sWave}, 1\ns_add_u32 s44, s44, s43")
    e(f"s_mul_i32 s{sT}, s44, {apitch}\ns_add_u32 s{sT}, s{sT}, {abase}")
    e(f"s_lshl_b32 s{sW}, s{sNj}, 7\ns_lshl_b32 s43, s{sWave}, 14\ns_add_u32 s{sW}, s{sW}, s43")
    e(f"s_lshl_b32 s{sM0}, s{sWave}, 10")
    if down:
        e(f"s_cmp_eq_u32 s{sWave}, 1\ns_cselect_b32 s{sDel}, 16384, 0\ns_cmp_eq_u32 s{sWave}, 2\ns_cselect_b32 s{sDel}, -16384, s{sDel}")
    e(f"s_lshl_b32 s45, s44, 15\ns_lshl_b32 s43, s{sNj}, 11\ns_add_u32 s45, s45, s43")
    e(f"s_add_u32 s46, s45, s40\ns_add_u32 s49, s46, 32768")
    PD = cfg.get('PD', 0); NL = cfg.get('NL', 2); sET, sEW = 52, 60
    if PD:
        e(f"s_and_b32 s43, s35, {(1<<mb)-1}\ns_mul_i32 s43, s43, {NL}\ns_lshr_b32 s51, s35, {mb}\ns_add_u32 s43, s43, s51")
        for _ in range(3): e(f"s_cmp_ge_u32 s43, {PD}\ns_cselect_b32 s51, {PD}, 0\ns_sub_u32 s43, s43, s51")
        e(f"s_lshl_b32 s51, {(1<<NL)-1}, s43\ns_lshr_b32 s43, s51, {PD}\ns_or_b32 s51, s51, s43")
        for q in range(PD):
            e(f"s_bitcmp1_b32 s51, {q}\ns_cselect_b32 s{sET+q}, {PD*1024}, 0\ns_cselect_b32 s{sEW+q}, {PD*65536}, 0")
    def joff(j, base, arr, tmp):
        if not PD: return base
        if j < NS - PD: e(f"s_add_u32 s{tmp}, s{base}, s{arr + j % PD}")
        else: e(f"s_mul_i32 s{tmp}, s{arr + j % PD}, {1 - NS//PD}\ns_add_u32 s{tmp}, s{tmp}, s{base}")
        return tmp
    e("s_waitcnt lgkmcnt(0)")
    srd(e, sWS, 32, WS_BYTES); srd(e, sWt, 36, K*D*2); srd(e, sOut, 38, S*D*2)
    def w_op(j):
        if not 0 <= j < NS: return None
        def f():
            e(f"s_add_u32 m0, s{sM0}, {(j % B)*4096}")
            so = joff(j, sW, sEW, 43)
            if down and j % 7 == 3: e(f"s_add_u32 s43, s{so}, s{sDel}"); so = 43
            if so == sW: e("s_nop 0")
            e.vm(f"buffer_load_dwordx4 v{vOW}, s[{sWt}:{sWt+3}], s{so} offen lds", ('W', j))
            e(f"s_add_u32 s{sW}, s{sW}, 65536")
        return f
    def t_op(j, tt):
        if not 0 <= j < NS: return None
        def f():
            if tt == 0: joff(j, sT, sET, 51)
            e.vm(f"buffer_load_dwordx4 {ar(aT + (j % P)*8 + tt*4, 4)}, v{vOT+tt}, s[{sWS}:{sWS+3}], s{51 if PD else sT} offen", ('T', j))
            if tt == 1: e(f"s_add_u32 s{sT}, s{sT}, 1024")
        return f
    def vm_ops(i): return [w_op(i + LW), t_op(i + LT, 0), t_op(i + LT, 1)]
    first = True
    for i in range(-max(LT, LW), 0):
        for f in vm_ops(i):
            if f: f()
        if first:
            first = False
            for tt in range(2):
                for p in range(2):
                    e.vm(f"buffer_load_dwordx4 {vr(vR + (tt*2+p)*4, 4)}, v{vOT}, s[{sWS}:{sWS+3}], s{(46,49)[tt]} offen offset:{1024*p}", 'R')
    e(f"v_lshrrev_b32 v2, 2, v{vL}\nv_bfe_u32 v3, v{vL}, 3, 2\nv_and_b32 v4, 3, v{vL}\nv_lshlrev_b32 v4, 3, v4\nv_lshl_add_u32 v4, v2, 7, v4")
    for t in range(4): e(f"v_xor_b32 v5, {t}, v3\nv_lshl_add_u32 v{vW+t}, v5, 5, v4")
    e.wait(vm='R')
    for tt in range(2):
        for n in range(4):
            for h in range(2):
                src = vR + (tt*2 + (n >> 1))*4 + (n & 1)*2 + h
                e(f"v_lshlrev_b32 v{acc(n,tt)+2*h}, 16, v{src}\nv_and_b32 v{acc(n,tt)+2*h+1}, 0xffff0000, v{src}")
    def wreads(i):
        if i >= NS: return []
        ops = []
        for n in range(4):
            for j in range(2):
                def f(n=n, j=j):
                    if n == 0 and j == 0 and i % SPS == 0:
                        e.wait(vm=[('W', x) for x in range(i, i + SPS)]); e("s_barrier")
                    e.ds(f"ds_read_b64_tr_b16 {ar(aWf + (i & 1)*16 + n*4 + 2*j, 2)}, v{vW+n} offset:{(i % B)*4096 + j*2048}", ('F', i, n))
                ops.append(f)
        return ops
    assert B - LW >= SPS + 1 and LT <= P - 1 and LW >= SPS + 1
    for f in wreads(0): f()
    dg.stamp(e)
    for i in range(NS):
        if i % B == 0: e.mark(f"b{i//B}")
        rd = wreads(i + 1); vo = vm_ops(i)
        k = 0
        for n in range(4):
            e.wait(vm=('T', i) if n == 0 else None, ds=('F', i, n))
            for ti in range(2):
                tt = 1 - ti if n & 1 else ti
                a = vr(acc(n, tt), 4)
                e(f"v_mfma_f32_16x16x32_bf16 {a}, {ar(aWf + (i & 1)*16 + n*4, 4)}, {ar(aT + (i % P)*8 + tt*4, 4)}, {a}")
                if rd: rd[k]()
                if k in (1, 3, 5) and vo[k >> 1]: vo[k >> 1]()
                k += 1
    nb = NS//B
    if cfg.get('fold', True) and nb > 2: e.fold([f"b{k}" for k in range(nb)], f"L{name}_loop", f"s{sCnt}")
    dg.stamp(e)
    st_aux = cfg.get('st_aux', '')
    e(f"s_add_u32 s46, s45, s41\ns_add_u32 s49, s46, 32768")
    e(f"s_lshl_b32 s50, s44, 11\ns_lshl_b32 s43, s{sNj}, 7\ns_add_u32 s50, s50, s43\ns_add_u32 s50, s50, s47\ns_nop 1")
    Pk = lambda tt, p: vR + (tt*2 + p)*4
    def cvt(tt, p):
        for q in range(4):
            a = acc(2*p + (q >> 1), tt) + 2*(q & 1)
            e(f"v_cvt_pk_bf16_f32 v{Pk(tt,p)+q}, v{a}, v{a+1}")
    if down: e(f"s_cmp_lg_u32 s48, 0\ns_cbranch_scc1 L{name}_final")
    for p in range(2):
        for tt in range(2):
            cvt(tt, p)
            e.vm(f"buffer_store_dwordx4 {vr(Pk(tt,p),4)}, v{vOT}, s[{sWS}:{sWS+3}], s{(46,49)[tt]} offen offset:{1024*p} {st_aux}")
    stats_epilogue(e, Pk, 2, 2, vL, 64, sWS, 50, aux=st_aux)
    def fin():
        if dg.on:
            n0 = dg.n
            dg.stamp(e); e("s_waitcnt vmcnt(0)"); dg.stamp(e); dg.real(e); dg.flush(e, sWS, 42, sWave, 0)
            dg.n = n0
        e("s_endpgm")
    fin()
    if down:
        e(f"L{name}_final:")
        e(f"v_and_b32 v64, 15, v{vL}\nv_lshlrev_b32 v64, 12, v64\nv_bfe_u32 v65, v{vL}, 4, 1\nv_lshl_add_u32 v64, v65, 5, v64\nv_lshrrev_b32 v65, 5, v{vL}\nv_lshl_add_u32 v64, v65, 4, v64")
        e(f"s_and_b32 s43, s44, 63\ns_lshl_b32 s43, s43, 16\ns_lshr_b32 s46, s44, 6\ns_lshl_b32 s46, s46, 11\ns_add_u32 s46, s46, s43\ns_lshl_b32 s43, s{sNj}, 7\ns_add_u32 s46, s46, s43\ns_add_u32 s49, s46, 65536")
        for p in range(2):
            for tt in range(2): cvt(tt, p)
            for tt in range(2):
                r = Pk(tt, p)
                if tt == 1: e("s_nop 0")
                e(f"v_permlane16_swap_b32 v{r}, v{r+2}\nv_permlane16_swap_b32 v{r+1}, v{r+3}")
                e.vm(f"buffer_store_dwordx4 {vr(r,4)}, v64, s[{sOut}:{sOut+3}], s{(46,49)[tt]} offen offset:{64*p}")
        fin()
    return e.text()
```

```python
from mg import *
from p1 import P1
from p24 import P24
from p3 import P3

def build(cfg):
    g = G(cfg); e = g.e
    p1, p2, p3, p4 = P1(g), P24(g, False), P3(g), P24(g, True)
    e(f"s_cmp_lt_u32 s2, 256\ns_cbranch_scc1 Lgo\ns_endpgm\nLgo:")
    e("s_load_dwordx16 s[60:75], s[0:1], 0\ns_load_dwordx4 s[76:79], s[0:1], 64")
    if g.diag: e("s_mov_b32 s95, 0\nv_mov_b32 v254, 0\nv_mov_b32 v255, 0\ns_mov_b32 m0, 0")
    e(f"v_lshrrev_b32 v1, 6, v0\nv_and_b32 v{vL}, 63, v0\nv_readfirstlane_b32 s{sWave}, v1\nv_mov_b32 v{vZ}, 0")
    e(f"s_mov_b32 s{sLay}, 0\ns_mov_b32 s{sLo}, 0")
    e(f"s_and_b32 s44, s2, 1\ns_bfe_u32 s45, s2, 0x20001\ns_lshr_b32 s46, s2, 3")
    e(f"s_lshl_b32 s47, s44, 3\ns_and_b32 s43, s46, 7\ns_add_u32 s{sMi1}, s47, s43\ns_lshl_b32 s43, s45, 2\ns_lshr_b32 s{sHj}, s46, 3\ns_add_u32 s{sHj}, s{sHj}, s43")
    e(f"s_and_b32 s43, s45, 1\ns_lshl_b32 s43, s43, 2\ns_add_u32 s{sMi2}, s47, s43\ns_and_b32 s48, s46, 3\ns_add_u32 s{sMi2}, s{sMi2}, s48")
    e(f"s_lshr_b32 s43, s45, 1\ns_lshl_b32 s43, s43, 3\ns_lshr_b32 s49, s46, 2\ns_add_u32 s{sNj2}, s43, s49")
    e(f"s_lshl_b32 s43, s44, 2\ns_add_u32 s{sMi3}, s43, s48\ns_lshl_b32 s43, s45, 3\ns_add_u32 s{sNj3}, s43, s49")
    e(f"v_lshrrev_b32 v2, 3, v{vL}\nv_bfe_u32 v3, v{vL}, 1, 2\nv_lshrrev_b32 v4, 4, v{vL}\nv_xor_b32 v3, v3, v4\nv_and_b32 v4, 1, v{vL}")
    e(f"v_lshlrev_b32 v2, 11, v2\nv_lshl_add_u32 v2, v3, 5, v2\nv_lshl_add_u32 v{vOW2}, v4, 4, v2")
    e("s_waitcnt lgkmcnt(0)")
    srd(e, sAs, 60, S*D*2); srd(e, sWq, 62, D*3*D*2); srd(e, sWS, 78, WS_BYTES)
    srd(e, sWo, 64, D*D*2); srd(e, sWg, 68, D*F*2); srd(e, sWu, 70, D*F*2); srd(e, sWd, 72, F*D*2); srd(e, sOut, 74, S*D*2); srd(e, sDbg, 76, 256)
    g.stamp()
    p1.prep_and_start()
    e("s_branch Lp1_common")
    e("Llayer:")
    p1.start_l2()
    e("Lp1_common:")
    p1.main(p2)
    p2.main(p3)
    p3.main(p4)
    p4.main(p1)
    e("Lend:")
    if g.diag:
        e("s_waitcnt vmcnt(0)"); g.stamp()
        e(f"s_lshl_b32 s43, s2, 2\ns_add_u32 s43, s43, s{sWave}\ns_lshl_b32 s43, s43, 9\ns_add_u32 s43, s43, {hex(DIAG)}\nv_lshlrev_b32 v0, 3, v{vL}")
        e(f"buffer_store_dwordx2 v[254:255], v0, {R(sWS)}, s43 offen")
    e("s_endpgm")
    hdr = open("/code/" + NAME + ".s.ref").read().split("; Override launch")[0]
    hdr += f"; generated by gen/mega.py (persistent kernel, one workgroup per CU)\n; @launch grid=(256,1,1) block=(256,1,1) lds={LDS_BYTES}\n"
    return hdr + '.amdgcn_target "amdgcn-amd-amdhsa--gfx950"\n.text\n' + entry(NAME + "_kernel") + e.text() + '.section .rodata,"a"\n' + kd(NAME + "_kernel")
if __name__ == "__main__":
    cfg = json.loads(sys.argv[2]) if len(sys.argv) > 2 else {}
    open(sys.argv[1], "w").write(build(cfg))
```

```python
class E:
    def __init__(self):
        self.L = []
        self.vmq = []; self.vm_done = 0
        self.dsq = []; self.ds_done = 0
        self.marks = {}; self.merged = 0
    def __call__(self, s):
        for x in s.split("\n"):
            x = x.strip()
            if x: self.L.append(x)
    def vm(self, s, tag=None):
        self.L.append(s); self.vmq.append(tag)
    def ds(self, s, tag=None):
        self.L.append(s); self.dsq.append(tag)
    @staticmethod
    def _need(q, done, tags, cap, force=False):
        if tags is None: return None, done
        if tags == 'all':
            last = len(q) - 1
        else:
            if not isinstance(tags, (list, set)): tags = [tags]
            last = -1
            for t in tags:
                idx = [i for i, x in enumerate(q) if x == t]
                assert idx, f"tag {t} never issued"
                last = max(last, idx[-1])
        if last < done and not force: return None, done
        n = len(q) - 1 - last
        n = min(n, cap)
        return n, max(done, len(q) - n)
    def wait(self, vm=None, ds=None, force=False):
        nv, self.vm_done = self._need(self.vmq, self.vm_done, vm, 63, force)
        nd, self.ds_done = self._need(self.dsq, self.ds_done, ds, 15)
        p = []
        if nv is not None: p.append(f"vmcnt({nv})")
        if nd is not None: p.append(f"lgkmcnt({nd})")
        if p: self.L.append("s_waitcnt " + " ".join(p))
        return bool(p)
    def mark(self, name):
        self.marks[name] = len(self.L)
    def fold(self, names, label, cnt_sgpr):
        pos = [self.marks[n] for n in names]
        n = len(pos) - 1
        bodies = [self.L[pos[i]:pos[i + 1]] for i in range(n)]
        import re
        body = list(bodies[0])
        for i in range(1, n):
            for k, (a, b) in enumerate(zip(body, bodies[i])):
                if a == b: continue
                if a.startswith("s_waitcnt") and b.startswith("s_waitcnt"):
                    d = {}
                    for nm, v in re.findall(r"(\w+cnt)\((\d+)\)", a + " " + b): d[nm] = min(d.get(nm, 99), int(v))
                    body[k] = "s_waitcnt " + " ".join(f"{nm}({v})" for nm, v in d.items()); self.merged += 1
                else: raise AssertionError(f"fold mismatch body {i}: {a!r} vs {b!r}")
            assert len(body) == len(bodies[i]), f"fold length mismatch body {i}"
        new = [f"s_mov_b32 {cnt_sgpr}, {n}", ".p2align 3", f"{label}:"] + body + [f"s_sub_u32 {cnt_sgpr}, {cnt_sgpr}, 1", f"s_cmp_lg_u32 {cnt_sgpr}, 0", f"s_cbranch_scc1 {label}", f"Lmk_{label}_tail:"]
        delta = len(new) - (pos[-1] - pos[0])
        self.L[pos[0]:pos[-1]] = new
        for k, v in self.marks.items():
            if v >= pos[-1]: self.marks[k] = v + delta
    def text(self):
        return "\n".join(("" if l.endswith(":") or l.startswith(".") else "  ") + l for l in self.L) + "\n"

def vr(a, n=1): return f"v{a}" if n == 1 else f"v[{a}:{a+n-1}]"
def ar(a, n=1): return f"a{a}" if n == 1 else f"a[{a}:{a+n-1}]"
def sr(a, n=1): return f"s{a}" if n == 1 else f"s[{a}:{a+n-1}]"

def kd(name, nvgpr=512, accum=256):
    return f""".p2align 6
.amdhsa_kernel {name}
  .amdhsa_next_free_vgpr {nvgpr}
  .amdhsa_next_free_sgpr 102
  .amdhsa_accum_offset {accum}
  .amdhsa_group_segment_fixed_size 0
  .amdhsa_kernarg_size 80
  .amdhsa_user_sgpr_count 2
  .amdhsa_user_sgpr_kernarg_segment_ptr 1
  .amdhsa_system_sgpr_workgroup_id_x 1
  .amdhsa_float_denorm_mode_32 3
.end_amdhsa_kernel
"""
def entry(name):
    return f".globl {name}\n.p2align 8\n.type {name},@function\n{name}:\n"
```

```python
import sys, json
from emit import *
from common import fhex, srd, xreduce_g, LOG2E, S, D, F, WS_BYTES, HPITCH
from res import stats_epilogue
NAME = "interleave_layers__sliding_local_dilated__swiglu_ffn__prompt"
LP = 0x2000000
XA, XB, OB, HB, STA, STB, FL = 0, 0x400000, 0x800000, 0xC00000, 0x1A00000, 0x1A40000, 0x1A80000
CSQ, CSG = 0x1A90000, 0x1AA0000
PB = 0x1B00000
DIAG = 0x4000000
H1, H2, H4, HC, H3 = 0, 16, 24, 40, 64
LDS_BYTES = 163840
sWS, sWq, sWo, sWg, sWu, sWd, sAs, sOut, sDbg = 4, 8, 12, 16, 20, 24, 28, 32, 36
sWave, sLay, sLo = 40, 41, 42
sMi1, sHj, sMi2, sNj2, sMi3, sNj3 = 50, 51, 52, 53, 54, 55
sCnt = 56
vL, vOW2, vZ = 253, 252, 251
R = lambda s: f"s[{s}:{s+3}]"
MF = "v_mfma_f32_16x16x32_bf16"

class G:
    def __init__(self, cfg):
        self.cfg = cfg; self.e = E(); self.diag = cfg.get('diag', False); self.nlab = 0
    def lo(self, b): return '0' if b in self.cfg.get('reuse', 'H') else f's{sLo}'
    def lp(self, b): return 0 if b in self.cfg.get('reuse', 'H') else LP
    def touch(self, vlane16, dst, track=True):
        if not self.cfg.get('touch2', 0): return
        (self.e.vm if track else self.e)(f"global_load_dwordx4 {dst}, v{vlane16}, s[0:1]")
    def lab(self, p):
        self.nlab += 1; return f"L{p}{self.nlab}"
    def stamp(self):
        if not self.diag: return
        self.e("s_memtime s[96:97]\ns_memrealtime s[98:99]\ns_waitcnt lgkmcnt(0)\nv_writelane_b32 v254, s96, s95\nv_writelane_b32 v255, s98, s95\ns_add_u32 s95, s95, 1".replace(
            "v_writelane_b32 v254, s96, s95\nv_writelane_b32 v255, s98, s95", "s_mov_b32 s94, m0\ns_mov_b32 m0, s95\nv_writelane_b32 v254, s96, m0\nv_writelane_b32 v255, s98, m0\ns_mov_b32 m0, s94"))
    def reset_q(self):
        e = self.e; e.vm_done = len(e.vmq); e.ds_done = len(e.dsq)
    def signal(self, stores, line_s, pre=None):
        e = self.e; l = self.lab("sig")
        if pre: pre()
        e.wait(vm=stores); self.stamp(); e("s_barrier")
        e(f"s_cmp_lg_u32 s{sWave}, 0\ns_cbranch_scc1 {l}\nv_mov_b32 v250, 1\ns_mov_b64 exec, 1")
        e(f"buffer_atomic_add v250, v{vZ}, {R(sWS)}, s{line_s} offen sc1\ns_mov_b64 exec, -1\n{l}:")
    def poll(self, line_s, count, voff=None):
        e = self.e; l = self.lab("pol"); d = self.lab("pdn")
        e(f"s_cmp_lg_u32 s{sWave}, 0\ns_cbranch_scc1 {d}\ns_mov_b32 s43, 0x40000\ns_mov_b64 exec, {3 if voff else 1}\n{l}:")
        e(f"buffer_load_dword v250, v{voff or vZ}, {R(sWS)}, s{line_s} offen sc1\ns_waitcnt vmcnt(0)\nv_cmp_gt_u32 vcc, {count}, v250")
        e(f"s_cbranch_vccz {d}\ns_sub_u32 s43, s43, 1\ns_cmp_lg_u32 s43, 0\ns_cbranch_scc1 {l}\n{d}:\ns_mov_b64 exec, -1\ns_waitcnt vmcnt(0) lgkmcnt(0)\ns_barrier")
        self.reset_q(); self.stamp()
    def check(self, vreg, load, count, tag):
        e = self.e; l = self.lab("chk"); d = self.lab("cdn")
        e.wait(vm=tag)
        e(f"v_cmp_gt_u32 vcc, {count}, v{vreg}\ns_cbranch_vccz {d}\ns_mov_b32 s43, 0x40000\n{l}:")
        e(f"s_sleep 8\n{load}\ns_waitcnt vmcnt(0)\nv_cmp_gt_u32 vcc, {count}, v{vreg}")
        e(f"s_cbranch_vccz {d}\ns_sub_u32 s43, s43, 1\ns_cmp_lg_u32 s43, 0\ns_cbranch_scc1 {l}\n{d}:")
    def arrive(self, srd_, soff):
        self.e(f"v_mov_b32 v250, 1\ns_mov_b64 exec, 1\nbuffer_atomic_add v250, v{vZ}, {R(srd_)}, s{soff} offen sc1\ns_mov_b64 exec, -1")
    def colsum_acc(self, src, n, acc, t, first):
        e = self.e
        for q in range(n):
            for r in range(4):
                s_ = src + 4*q + r
                if first and q == 0: e(f"v_lshlrev_b32 v{acc+2*r}, 16, v{s_}\nv_and_b32 v{acc+2*r+1}, 0xffff0000, v{s_}")
                else: e(f"v_lshlrev_b32 v{t}, 16, v{s_}\nv_and_b32 v{t+1}, 0xffff0000, v{s_}\nv_pk_add_f32 {vr(acc+2*r,2)}, {vr(acc+2*r,2)}, {vr(t,2)}")
    def colsum_publish(self, acc, t, lds):
        e = self.e
        xreduce_g(e, "v_add_f32", list(range(acc, acc+8)), list(range(t, t+8)))
        e(f"v_and_b32 v{t}, 7, v{vL}\ns_lshl_b32 s43, s{sWave}, 8\ns_add_u32 s43, s43, {lds}")
        for r in range(8): e(f"v_add_f32_dpp v{acc+r}, v{acc+r}, v{acc+r} row_ror:8 row_mask:0xf bank_mask:0xf")
        e(f"v_lshl_add_u32 v{t}, v{t}, 5, s43\nds_write_b128 v{t}, {vr(acc,4)}\nds_write_b128 v{t}, {vr(acc+4,4)} offset:16")
    def colsum_final(self, t, lds, dst_s):
        e = self.e
        e(f"v_lshlrev_b32 v{t}, 2, v{vL}\nv_add_u32 v{t+1}, {lds}, v{t}")
        for w in range(4): e(f"ds_read_b32 v{t+2+w}, v{t+1} offset:{256*w}")
        e(f"s_waitcnt lgkmcnt(0)\nv_add_f32 v{t+2}, v{t+2}, v{t+3}\nv_add_f32 v{t+4}, v{t+4}, v{t+5}\nv_add_f32 v{t+2}, v{t+2}, v{t+4}")
        e(f"buffer_store_dword v{t+2}, v{t}, {R(sWS)}, s{dst_s} offen sc1")


class Rec:
    def __init__(self, e): self.e = e; self.ops = []
    def __call__(self, s):
        for x in s.split("\n"):
            x = x.strip()
            if x: self.ops.append(lambda x=x: self.e(x.replace("\t", "\n")))
    def vm(self, s, tag=None): self.ops.append(lambda: self.e.vm(s, tag))
    def ds(self, s, tag=None): self.ops.append(lambda: self.e.ds(s, tag))
    def wait(self, **k): self.ops.append(lambda: self.e.wait(**k))
    def call(self, f): self.ops.append(f)

def pour(fill, ops, lo, hi, cap=2, step=1):
    k = lo
    while ops and k < hi:
        while ops and len(fill[k]) < cap: fill[k].append(ops.pop(0))
        k += step
```

```python
from mg import *
W_RING, A_RING, HALO, PW = 0, 73728, 122880, 139264
CSX = PW + 4096
sHalf, sHd, sAb, sWb, sAi, sMA, sMW, sInc0, sInc1, sSt, sLead, sA, sW, sW2, sT0, sHt, sHb, sOwn, sHead, sPW = range(57, 77)
Q = lambda j, t: (j*4 + t - 1)*4
Kc = lambda j, t: 32 + (j*5 + t)*4
V = lambda j, t: 72 + (j*5 + t)*4
vT, vH, vW, vOA, vOW, vOH = 112, 114, 116, 120, 124, 126
vST = 128; vCS = 168; vMu, vRs = 188, 194; vMuV, vRsV = 200, 220; tmp = 240
bC, bP, bP0, ones = 128, 132, 136, 160
MSK = PW + 6144 + 4096
fT = lambda b, kk, t: b*88 + kk*20 + t*4
fW = lambda b, kk, n: b*88 + 40 + kk*24 + n*4
class P1:
    def __init__(self, g): self.g = g; self.c = g.cfg.get('p1', {})
    def setup(self, l1):
        e = self.g.e
        e(f"s_lshr_b32 s{sHalf}, s{sWave}, 1\ns_and_b32 s{sHd}, s{sWave}, 1\ns_lshl_b32 s{sT0}, s{sMi1}, 3")
        e(f"s_add_u32 s{sLead}, s{sMi1}, s{sHj}\ns_and_b32 s{sLead}, s{sLead}, 3")
        if not self.c.get('jump', 1): e(f"s_mov_b32 s{sLead}, 7")
        e(f"s_lshl_b32 s{sMA}, s{sWave}, 12\ns_mul_i32 s{sMW}, s{sWave}, 6144\ns_add_u32 s{sPW}, s{sMW}, {PW}")
        e(f"s_and_b32 s43, s{sMi1}, 7\ns_cmp_lg_u32 s43, 0\ns_cselect_b32 s43, 1, 0\ns_sub_u32 s{sHt}, s{sT0}, s43")
        e(f"v_lshrrev_b32 v2, 3, v{vL}\nv_bfe_u32 v3, v{vL}, 1, 2\nv_lshrrev_b32 v4, 4, v{vL}\nv_xor_b32 v3, v3, v4\nv_and_b32 v5, 1, v{vL}")
        if l1:
            e(f"v_lshrrev_b32 v6, 5, v{vL}\nv_lshl_add_u32 v6, v6, 2, v2")
            e(f"s_lshl_b32 s43, s{sHalf}, 5\ns_lshl_b32 s44, s{sHd}, 2\ns_add_u32 s43, s43, s44")
        else:
            e(f"v_mov_b32 v6, v2\ns_lshl_b32 s43, s{sWave}, 4")
        e(f"v_mul_u32_u24 v6, 6144, v6\nv_lshl_add_u32 v6, v3, 5, v6\nv_lshl_add_u32 v{vOW}, v5, 4, v6\nv_add_u32 v{vOW+1}, {(16 if l1 else 8)*6144-1024}, v{vOW}")
        e(f"s_mul_i32 s43, s43, 6144\ns_lshl_b32 s{sWb}, s{sHj}, 7\ns_add_u32 s{sWb}, s{sWb}, s43")
        e(f"v_and_b32 v3, 7, v{vL}\ns_lshl_b32 s43, s{sWave}, 1\ns_add_u32 s43, s43, s{sT0}")
        if l1:
            for q in range(4):
                e(f"v_add_u32 v5, {4*(q&1)}, v4\nv_xor_b32 v5, v5, v3\nv_lshlrev_b32 v5, 4, v5\nv_lshl_add_u32 v5, v2, 12, v5\nv_add_u32 v{vOA+q}, {q*(32768-1024)}, v5")
            e(f"v_and_b32 v5, 6, v2\nv_xor_b32 v5, v5, v3\nv_lshlrev_b32 v5, 4, v5\nv_lshl_add_u32 v5, v2, 12, v5\nv_add_u32 v{vOH}, 32768, v5")
            e(f"s_lshr_b32 s44, s{sMi1}, 3\ns_lshl_b32 s44, s44, 11\ns_and_b32 s43, s43, 63\ns_lshl_b32 s43, s43, 16\ns_add_u32 s{sAb}, s43, s44")
            e(f"s_and_b32 s43, s{sHt}, 63\ns_lshl_b32 s43, s43, 16\ns_add_u32 s{sHb}, s43, s44\ns_movk_i32 s{sAi}, 128")
        else:
            e(f"v_lshlrev_b32 v{vOA}, 4, v{vL}\nv_mov_b32 v{vOA+1}, v{vOA}\nv_add_u32 v{vOA+2}, {32768-2048}, v{vOA}\nv_add_u32 v{vOA+3}, {32768-2048}, v{vOA}")
            e(f"v_lshlrev_b32 v5, 8, v2\nv_lshl_add_u32 v5, v3, 4, v5\nv_add_u32 v{vOH}, 128, v5")
            e(f"s_lshl_b32 s43, s43, 15\ns_mov_b32 s44, {XA + self.g.lp('X')}\ns_add_u32 s{sAb}, s43, s44\ns_lshl_b32 s43, s{sHt}, 15\ns_add_u32 s{sHb}, s43, s44\ns_movk_i32 s{sAi}, 2048")
    def setup_reads(self, l1):
        e = self.g.e
        e(f"v_and_b32 v2, 15, v{vL}\nv_lshrrev_b32 v3, 4, v{vL}\nv_and_b32 v4, 7, v{vL}")
        if l1:
            e(f"v_lshrrev_b32 v5, 1, v2\nv_xor_b32 v5, v5, v3\nv_lshlrev_b32 v5, 4, v5\nv_lshl_add_u32 v6, v2, 7, v5\nv_xor_b32 v7, 64, v6")
            e(f"v_and_b32 v5, 6, v4\nv_xor_b32 v5, v5, v3\nv_lshlrev_b32 v5, 4, v5\nv_lshl_add_u32 v8, v4, 7, v5\nv_xor_b32 v9, 64, v8")
        else:
            e(f"v_lshlrev_b32 v6, 4, v{vL}\nv_add_u32 v7, 1024, v6\nv_lshlrev_b32 v5, 7, v3\nv_lshl_add_u32 v8, v4, 4, v5\nv_add_u32 v9, 512, v8")
        e(f"s_lshl_b32 s43, s{sHalf}, 13\ns_add_u32 s43, s43, {A_RING}\nv_add_u32 v{vT}, s43, v6\nv_add_u32 v{vT+1}, s43, v7")
        e(f"s_cmp_eq_u32 s{sHalf}, 0\ns_cselect_b64 vcc, 0, -1\ns_movk_i32 s43, 1024\ns_cselect_b32 s{sInc0}, s43, 16384\ns_cselect_b32 s{sInc1}, s43, -32768")
        e(f"s_mov_b32 s43, {HALO}\ns_cselect_b32 s43, s43, {A_RING + 3*2048}")
        e(f"v_cndmask_b32 v8, v8, v6, vcc\nv_cndmask_b32 v9, v9, v7, vcc\nv_add_u32 v{vH}, s43, v8\nv_add_u32 v{vH+1}, s43, v9")
        e(f"v_lshrrev_b32 v2, 2, v{vL}\nv_bfe_u32 v3, v{vL}, 3, 2\nv_and_b32 v4, 3, v{vL}\nv_lshlrev_b32 v4, 3, v4\nv_lshl_add_u32 v4, v2, 7, v4")
        e(f"s_lshl_b32 s43, s{sHd}, 1\nv_xor_b32 v5, s43, v3\nv_lshl_add_u32 v{vW}, v5, 5, v4\nv_xor_b32 v5, 1, v5\nv_lshl_add_u32 v{vW+1}, v5, 5, v4")
        e(f"v_add_u32 v{vW+2}, {2*24576}, v{vW}\nv_add_u32 v{vW+3}, {2*24576}, v{vW+1}")
    def zero_acc(self):
        for r in range(112): self.g.e(f"v_mov_b32 v{r}, 0")
    def sig_static(self, s): return [f"s_cmp_eq_u32 s{sLead}, {s & 3}", f"s_cselect_b32 s44, {(s+4) & 15}, {s}"]
    def offA(self): return [f"s_mul_i32 s45, s44, s{sAi}", f"s_add_u32 s{sA}, s45, s{sAb}"]
    def offW(self): return [f"s_mul_i32 s45, s44, {64*6144}", f"s_add_u32 s{sW}, s45, s{sWb}", f"s_add_u32 s{sW2}, s{sW}, 4096"]
    def a_ops(self, s):
        e = self.g.e
        return [(f"s_add_u32 m0, s{sMA}, {A_RING + (s % 3)*16384}" if q == 0 else None,
                 lambda q=q: e.vm(f"buffer_load_dwordx4 v{vOA+q}, {R(sAs)}, s{sA} offen offset:{1024*q} sc1 lds", ('S', s))) for q in range(4)]
    def w_ops(self, s):
        e = self.g.e
        return [(f"s_add_u32 m0, s{sMW}, {W_RING + (s % 3)*24576 + q*1024}" if q in (0, 4) else None,
                 lambda q=q: e.vm(f"buffer_load_dwordx4 v{vOW + (q&1)}, {R(sWq)}, s{sW if q < 4 else sW2} offen offset:{1024*(q&3)} lds", ('S', s))) for q in range(6)]
    def run(self, pre, ops):
        e = self.g.e
        for x in pre: e(x)
        for m, f in ops:
            if m: e(m + "\ns_nop 0")
            f()
    def prefetch_w(self, a=0, n=3):
        for s in range(a, n): self.run(self.sig_static(s) + self.offW(), self.w_ops(s))
    def halo(self, i):
        e = self.g.e
        e(f"s_cmp_eq_u32 s{sLead}, s{sWave}\ns_cselect_b32 s44, {(4*i+4) & 15}, {4*i}\ns_add_u32 s44, s44, s{sWave}\ns_mul_i32 s44, s44, s{sAi}")
        e(f"s_lshl_b32 s45, s{sWave}, 10\ns_add_u32 m0, s45, {HALO + i*4096}\ns_add_u32 s44, s44, s{sHb}")
        e.vm(f"buffer_load_dwordx4 v{vOH}, {R(sAs)}, s44 offen sc1 lds", ('H', i))
    def first_a(self):
        self.halo(0); self.run(self.sig_static(0) + self.offA(), self.a_ops(0))
    def prep_and_start(self):
        g = self.g; e = g.e
        e(f"s_mul_i32 s{sPW}, s{sWave}, 6144\ns_add_u32 s{sPW}, s{sPW}, {PW}\ns_mov_b32 m0, s{sPW}")
        e(f"s_lshr_b32 s80, s2, 2\ns_bfe_u32 s81, s2, 0x10001\ns_lshl_b32 s81, s81, 2\ns_add_u32 s81, s81, s{sWave}\ns_and_b32 s82, s2, 1")
        e(f"s_lshl_b32 s43, s80, 16\ns_lshl_b32 s44, s82, 11\ns_add_u32 s43, s43, s44\ns_lshl_b32 s44, s81, 8\ns_add_u32 s43, s43, s44")
        e(f"v_lshrrev_b32 v2, 4, v{vL}\nv_and_b32 v3, 15, v{vL}")
        for i in range(4):
            e(f"v_add_u32 v4, {4*i}, v2\nv_xor_b32 v5, v4, v3\nv_lshlrev_b32 v5, 4, v5\nv_lshl_add_u32 v5, v2, 12, v5\nv_add_u32 v5, {i*(16384-1024)}, v5")
            e.vm(f"buffer_load_dwordx4 v5, {R(sAs)}, s43 offen offset:{1024*i} lds", 'PX')
        e(f"s_lshr_b32 s46, s2, 3\ns_cmp_ge_u32 s46, 12\ns_cselect_b32 s44, 12, 0\ns_cselect_b32 s45, 2, 0\ns_sub_u32 s44, s46, s44\ns_add_u32 s45, s45, s82")
        e(f"s_lshr_b32 s47, s44, 2\ns_lshl_b32 s47, s47, 4\ns_and_b32 s44, s44, 3\ns_add_u32 s44, s44, s47\ns_bfe_u32 s47, s2, 0x20001\ns_lshl_b32 s47, s47, 2\ns_add_u32 s44, s44, s47")
        e(f"s_mul_i32 s83, s45, {3072*4}\ns_lshl_b32 s47, s44, 8\ns_add_u32 s83, s83, s47\ns_add_u32 s83, s83, {CSQ}")
        e(f"s_lshl_b32 s45, s45, 2\ns_add_u32 s45, s45, s{sWave}\ns_mul_i32 s45, s45, {64*6144}\ns_lshl_b32 s44, s44, 7\ns_add_u32 s45, s45, s44")
        e(f"s_cmp_ge_u32 s46, 24\ns_cselect_b32 s92, 0x40000000, 0\ns_cselect_b32 s45, 0, s45")
        e(f"v_lshrrev_b32 v4, 3, v{vL}\nv_mul_u32_u24 v4, 6144, v4\nv_and_b32 v5, 7, v{vL}\nv_lshl_add_u32 v4, v5, 4, v4\nv_or_b32 v4, s92, v4")
        for q in range(8):
            e.vm(f"buffer_load_dwordx4 {vr(160+4*q,4)}, v4, {R(sWq)}, s45 offen", 'PW'); e(f"s_add_u32 s45, s45, {8*6144}")
        e(f"s_lshr_b32 s43, s2, 7\ns_mul_i32 s43, s43, {LP}\ns_and_b32 s44, s2, 127\ns_lshl_b32 s44, s44, 7\ns_add_u32 s43, s43, s44\ns_add_u32 s43, s43, {FL}")
        e.vm(f"buffer_store_dword v{vZ}, v{vZ}, {R(sWS)}, s43 offen sc1")
        self.setup(True); self.setup_reads(True); self.zero_acc(); self.mask_table()
        if self.c.get('early', 0): self.prefetch_w(0, 1); self.first_a()
        e(f"v_and_b32 v128, 15, v{vL}\nv_lshrrev_b32 v129, 5, v{vL}\nv_bfe_u32 v130, v{vL}, 4, 1\nv_lshlrev_b32 v130, 3, v130\nv_lshl_add_u32 v130, v128, 8, v130\nv_add_u32 v130, s{sPW}, v130")
        e.wait(vm='PX')
        for q in range(8):
            e(f"v_add_u32 v131, {2*q}, v129\nv_xor_b32 v131, v131, v128\nv_lshl_add_u32 v131, v131, 4, v130")
            e.ds(f"ds_read_b64 {vr(140+2*q,2)}, v131", 'PX')
        e(f"s_lshl_b32 s43, s82, 6\ns_add_u32 s80, s80, s43\ns_lshl_b32 s43, s80, 15\ns_lshl_b32 s44, s81, 12\ns_add_u32 s43, s43, s44\ns_add_u32 s46, s43, {XA}")
        e(f"s_lshl_b32 s43, s80, 11\ns_lshl_b32 s44, s81, 8\ns_add_u32 s43, s43, s44\ns_add_u32 s47, s43, {STA}\nv_lshlrev_b32 v128, 4, v{vL}")
        e.wait(ds='PX')
        for q in range(4): e.vm(f"buffer_store_dwordx4 {vr(140+4*q,4)}, v128, {R(sWS)}, s46 offen offset:{1024*q} sc1")
        stats_epilogue(e, lambda tt, p: 140 + (tt*2+p)*4, 2, 2, vL, 192, sWS, 47, tile_stride=128, aux='sc1', sm0=84)
        self.side.setup()
        g.stamp()
        if not self.c.get('early', 0): self.prefetch_w(0, 1); self.first_a()
        e.wait(vm='PW')
        g.colsum_acc(160, 8, 216, 224, True); g.colsum_publish(216, 224, CSX)
        e("s_waitcnt lgkmcnt(0)\ns_barrier")
        l = g.lab("pf"); e(f"s_or_b32 s43, s{sWave}, s92\ns_cbranch_scc1 {l}"); g.colsum_final(224, CSX, 83); e(f"{l}:")
        e.vmq.append('PST')
        g.stamp()
        self.enter(True)
    def pre(self):
        e = self.g.e
        e(f"s_mov_b32 s{sAs}, s{sWS}\ns_mov_b32 s{sAs+1}, s{sWS+1}\ns_mov_b32 s{sAs+2}, {hex(WS_BYTES)}")
        self.setup(False); self.prefetch_w(0, self.c.get('wpre', 0)); self.setup_reads(False); self.side.disable()
    def window(self):
        e = self.g.e
        self.prefetch_w(self.c.get('wpre', 0), 3); self.zero_acc()
        e(f"s_lshl_b32 s77, s{sMi1}, 7\ns_add_u32 s77, s77, {FL + H4*128 - 128}\ns_and_b32 s43, s{sMi1}, 7\ns_cmp_eq_u32 s43, 0\ns_cselect_b32 s43, 0x80, 0")
        e(f"v_lshlrev_b32 v249, 7, v{vL}\nv_or_b32 v249, s43, v249")
    def start_l2(self):
        self.g.poll(77, 16, voff=249); self.first_a(); self.enter(False)
    def enter(self, l1):
        e = self.g.e
        if l1: self.prefetch_w(1, 2)
        self.run(self.sig_static(1) + self.offA(), self.a_ops(1))
        e.wait(vm=[('S', 0), ('H', 0), 'PST' if l1 else ('H', 0)]); e("s_barrier")
        for f in self.reads(0): f()
        for h in range(1, 4): self.halo(h)
        if l1: self.prefetch_w(2, 3)
        self.run(self.sig_static(2) + self.offA(), self.a_ops(2))
    def reads(self, s):
        e = self.g.e
        sl = s % 3; b = s & 1
        def rt(t, kk):
            def f():
                if t == 0:
                    e.ds(f"ds_read_b128 {ar(fT(b,kk,0),4)}, v{vH+kk}", ('T', s, 0))
                    e(f"v_add_u32 v{vH+kk}, s{sInc1 if sl == 2 else sInc0}, v{vH+kk}")
                else: e.ds(f"ds_read_b128 {ar(fT(b,kk,t),4)}, v{vT+kk} offset:{sl*16384 + (t-1)*2048}", ('T', s, t))
            return f
        def rw(n, kk, j):
            return lambda: e.ds(f"ds_read_b64_tr_b16 {ar(fW(b,kk,n)+2*j,2)}, v{vW + (n & 1) + (2 if sl == 2 else 0)} offset:{(sl & 1)*24576 + (2*kk+j)*6144 + (n>>1)*2048}", ('W', s, n))
        w = lambda n: [rw(n, kk, j) for kk in range(2) for j in range(2)]
        return w(0) + [rt(t, kk) for t in range(1, 5) for kk in range(2)] + w(1) + [rt(0, 0), rt(0, 1)] + w(2) + w(3) + w(4) + w(5)
    def main(self, p2):
        g = self.g; e = g.e; c = self.c
        BOFF = c.get('BOFF', 12)
        e(f"s_mov_b32 s{sSt}, 3")
        reads = self.reads
        if g.diag and c.get('xdelay'):
            e(f"s_and_b32 s43, s2, 1\ns_andn2_b32 s43, s43, s{sLay}\ns_cbranch_scc0 Lxd2\ns_mov_b32 s43, {c['xdelay']}\nLxd1:\ns_sleep 4\ns_sub_u32 s43, s43, 1\ns_cmp_lg_u32 s43, 0\ns_cbranch_scc1 Lxd1\nLxd2:")
        g.stamp()
        vCk = 127
        nxt = p2.prefetch_ops()
        n_tail = c.get('pf_tail', 8); n_epi = c.get('pf_epi', 14)
        for s in range(16):
            if s % 6 == 0: e.mark(f"p1b{s//6}")
            fill = [[] for _ in range(56)]
            def bar(s=s):
                e.wait(vm=('S', s+1) if s < 15 else None, ds='all'); e("s_barrier")
            fill[BOFF].append(bar)
            if s < 15:
                for k, f in enumerate(reads(s+1)): fill[BOFF + k].append(f)
            if s + 3 < 16:
                sal = [f"s_and_b32 s44, s{sSt}, 3", f"s_cmp_eq_u32 s44, s{sLead}\ns_cselect_b32 s44, 4, 0", f"s_add_u32 s44, s44, s{sSt}", "s_and_b32 s44, s44, 15", f"s_add_u32 s{sSt}, s{sSt}, 1"] + self.offA() + self.offW()
                for k, x in enumerate(sal): fill[k].append(lambda x=x: e(x))
                for k, (m, f) in enumerate(self.a_ops(s+3) + self.w_ops(s+3)):
                    pos = BOFF + 2 + 4*k
                    if m: fill[pos-1].append(lambda m=m: e(m))
                    fill[pos].append(f)
            if s == 12:
                ckl = f"buffer_load_dword v{vCk}, v187, {R(sDbg)}, 0 offen sc1"
                fill[0].append(lambda: e(f"v_and_b32 v187, 1, v{vL}\nv_lshlrev_b32 v187, 7, v187"))
                fill[1].append(lambda: e.vm(ckl, 'CK'))
                r = Rec(e)
                r(f"""s_lshl_b32 s43, s{sHalf}, 2
                s_add_u32 s{sOwn}, s{sT0}, s43
                s_sub_u32 s44, s{sOwn}, 1
                s_cmp_eq_u32 s{sHalf}, 0\ts_cselect_b32 s44, s{sHt}, s44
                s_add_u32 s45, s{sLo}, {STA}
                s_lshl_b32 s44, s44, 11
                s_add_u32 s77, s44, s45
                s_lshl_b32 s44, s{sOwn}, 11
                s_add_u32 s78, s44, s45
                s_add_u32 s79, s78, 4096
                s_lshl_b32 s43, s{sHj}, 1
                s_add_u32 s{sHead}, s43, s{sHd}
                s_lshl_b32 s43, s{sHead}, 7
                s_add_u32 s46, s43, {CSQ}""")
                pour(fill, r.ops, 10, 36); assert not r.ops
                r(f"""v_lshlrev_b32 v{vOA+1}, 3, v{vL}
                v_lshrrev_b32 v{vOA+2}, 3, v{vL}
                v_and_b32 v{vOA+3}, 7, v{vL}
                v_lshlrev_b32 v{vOA+2}, 12, v{vOA+2}
                v_lshl_add_u32 v{vOA+2}, v{vOA+3}, 4, v{vOA+2}
                v_lshlrev_b32 v{vOA}, 4, v{vL}
                v_add_u32 v{vOH}, s{sPW}, v{vOA}""")
                pour(fill, r.ops, 36, 48); assert not r.ops
                fill[47].append(lambda: g.check(vCk, ckl, 128, 'CK'))
                for p in range(4):
                    fill[48 + 2*p + (p > 0)].append(lambda p=p: (e.vm(f"buffer_load_dwordx4 {vr(vMuV+4*p,4)}, v{vOA+2}, {R(sWS)}, s46 offen sc1", 'CS'), e(f"s_add_u32 s46, s46, {3072*4}")))
            if s == 13:
                for t in range(5):
                    so, off = (77, 0) if t == 0 else ((78, 79)[(t-1) >> 1], ((t-1) & 1)*2048)
                    for k in range(4): fill[8*t + 2*k + 1].append(lambda t=t, k=k, so=so, off=off: e.vm(f"buffer_load_dwordx2 {vr(vST + t*8 + 2*k, 2)}, v{vOA+1}, {R(sWS)}, s{so} offen offset:{off + 512*k} sc1", ('ST', t)))
                su = [lambda x=x: e(x) for x in p2.prefetch_setup()]
                if not g.cfg.get('sideB', 0): pour(fill, su, 0, 40)
                r = Rec(e); self.p4.clear_mailbox(r, vOA, tmp)
                pour(fill, r.ops, 30, 48); assert not r.ops
                math = self.math_ops()
                pour(fill, math, 48, 56)
            if s == 14:
                if g.cfg.get('sideB', 0):
                    for k, f in enumerate(self.side.loads_tracked()): fill[(3*k)//2].append(f)
                pour(fill, math, 0, 56)
            if s == 15:
                pour(fill, su, 0, BOFF + 1); assert not su
                for k in range(n_tail):
                    for z, f in enumerate(nxt.pop(0)): fill[BOFF + 1 + 5*k + z].append(f)
                pour(fill, math, 0, 56)
            seq = []; kk = 0
            for n in range(6):
                ts = [1, 2, 3, 4] if n < 2 else [0, 1, 2, 3, 4]
                if n & 1: ts = ts[::-1]
                for t in ts: seq += [(n, t, kk), (n, t, 1-kk)]; kk = 1 - kk
            b = s & 1
            for k, (n, t, kk) in enumerate(seq):
                e.wait(ds=[('W', s, n), ('T', s, t)])
                a = (Q if n < 2 else Kc if n < 4 else V)(n & 1, t)
                x, y = ar(fW(b, kk, n), 4), ar(fT(b, kk, t), 4)
                if n >= 4: x, y = y, x
                e(f"{MF} {vr(a,4)}, {x}, {y}, {vr(a,4)}")
                for f in fill[k]: f()
            if s < 12: self.side.hook(sSt, s % 6)
        e.fold([f"p1b{k}" for k in range(3)], "Lp1_loop", f"s{sCnt}")
        g.stamp()
        for f in math: f()
        g.touch(vOA, "a[240:243]")
        self.epilogue(p2, nxt, n_epi)
    def mask_table(self):
        e = self.g.e; t = 232
        e(f"v_and_b32 v{t+3}, 15, v{vL}\nv_lshrrev_b32 v{t+4}, 4, v{vL}\nv_lshlrev_b32 v{t+4}, 2, v{t+4}\nv_sub_u32 v{t+3}, v{t+3}, v{t+4}\nv_mov_b32 v{t+5}, {fhex(-1e30)}")
        for r in range(4):
            e(f"v_subrev_u32 v{t+6}, {r}, v{t+3}\nv_cmp_gt_u32 vcc, 8, v{t+6}\nv_add_u32 v{t+6}, 16, v{t+6}\nv_cmp_gt_u32 s[78:79], 8, v{t+6}")
            e(f"v_cndmask_b32 v{132+r}, v{t+5}, 0, vcc\ns_nop 0\nv_cndmask_b32 v{136+r}, v{t+5}, 0, s[78:79]")
        e(f"v_lshlrev_b32 v{t}, 4, v{vL}\nv_add_u32 v{t}, {MSK}, v{t}\nds_write_b128 v{t}, v[132:135]\nds_write_b128 v{t}, v[136:139] offset:1024")
    def math_ops(self):
        r = Rec(self.g.e); vG16, vT4 = vOW, vOW + 1
        r(f"v_lshrrev_b32 v{vG16}, 4, v{vL}\nv_lshlrev_b32 v{vG16}, 4, v{vG16}\nv_and_b32 v{vT4}, 15, v{vL}\nv_lshlrev_b32 v{vT4}, 2, v{vT4}")
        r(f"v_add_u32 v{vG16}, s{sPW}, v{vG16}\nv_add_u32 v{vT4}, s{sPW}, v{vT4}\nv_add_u32 v{vOA+3}, {MSK}, v{vOA}")
        r.wait(vm='CS')
        for x in range(4): r(f"v_add_f32 v{vMuV+x}, v{vMuV+x}, v{vMuV+4+x}\nv_add_f32 v{vMuV+8+x}, v{vMuV+8+x}, v{vMuV+12+x}")
        for x in range(4): r(f"v_add_f32 v{vMuV+x}, v{vMuV+x}, v{vMuV+8+x}")
        r.ds(f"ds_write_b128 v{vOH}, {vr(vMuV,4)} offset:1024")
        for m in range(2):
            for j in range(2): r.ds(f"ds_read_b128 {vr(vCS + m*8 + j*4, 4)}, v{vG16} offset:{1024 + m*128 + 64*j}", 'CSR')
        for j in range(2): r.ds(f"ds_read_b32 v{vCS+16+j}, v{vT4} offset:{1024 + 256 + 64*j}", 'CSR')
        for t in range(5):
            p = vST + t*8
            r.wait(vm=('ST', t))
            r(f"v_add_f32 v{p}, v{p}, v{p+2}\nv_add_f32 v{p+1}, v{p+1}, v{p+3}\nv_add_f32 v{p+4}, v{p+4}, v{p+6}\nv_add_f32 v{p+5}, v{p+5}, v{p+7}")
            r(f"v_add_f32 v{vMu+t}, v{p}, v{p+4}\nv_add_f32 v{vRs+t}, v{p+1}, v{p+5}")
        r.ds(f"ds_read_b128 {vr(bC,4)}, v{vOA+3}", 'MK'); r.ds(f"ds_read_b128 {vr(bP,4)}, v{vOA+3} offset:1024", 'MK')
        xreduce_g(r, "v_add_f32", [vMu+t for t in range(5)] + [vRs+t for t in range(5)], list(range(tmp, tmp+10)))
        r(f"s_mov_b32 s48, {fhex(1.0/D)}\nv_mov_b32 v{tmp}, {fhex(1e-5)}")
        for t in range(5):
            r(f"v_mul_f32 v{vMu+t}, {fhex(-1.0/D)}, v{vMu+t}\nv_fma_f32 v{vRs+t}, v{vRs+t}, s48, v{tmp}")
            r(f"v_fma_f32 v{vRs+t}, -v{vMu+t}, v{vMu+t}, v{vRs+t}\nv_max_f32 v{vRs+t}, v{vRs+t}, v{tmp}\nv_rsq_f32 v{vRs+t}, v{vRs+t}")
            r.ds(f"ds_write_b32 v{vT4}, v{vMu+t} offset:{t*128}")
            r.ds(f"ds_write_b32 v{vT4}, v{vRs+t} offset:{t*128+64}")
        for t in range(5):
            r.ds(f"ds_read_b128 {vr(vMuV+4*t,4)}, v{vG16} offset:{t*128}", 'TB')
            r.ds(f"ds_read_b128 {vr(vRsV+4*t,4)}, v{vG16} offset:{t*128+64}", 'TB')
        r(f"s_and_b32 s43, s{sMi1}, 7\ns_or_b32 s43, s43, s{sHalf}\ts_cselect_b64 s[46:47], -1, 0\nv_mov_b32 v{tmp+5}, {fhex(-1e30)}")
        r.wait(ds='MK')
        for x in range(4): r(f"v_cndmask_b32 v{bP0+x}, v{tmp+5}, v{bP+x}, s[46:47]\nv_mov_b32 v{ones+x}, 0x3f803f80")
        return r.ops
    def epilogue(self, p2, nxt, n_epi):
        g = self.g; e = g.e
        left = [n_epi]
        def pf():
            if left[0] > 0 and nxt:
                left[0] -= 1
                for f in nxt.pop(0): f()
        e.wait(ds='CSR')
        def bsel(reg): return reg & ~1, reg & 1
        qf = lambda t: Q(0, t); kf = lambda t: Kc(0, t)
        def fold_qk(A, t, cs):
            mb_, ms = bsel(vMu + t); rb, rs = bsel(vRs + t)
            for j in range(2):
                for h in range(2): e(f"v_pk_fma_f32 {vr(A(j,t)+2*h,2)}, {vr(cs+4*j+2*h,2)}, {vr(mb_,2)}, {vr(A(j,t)+2*h,2)} op_sel:[0,{ms},0] op_sel_hi:[1,{ms},1]")
            for j in range(2):
                for h in range(2): e(f"v_pk_mul_f32 {vr(A(j,t)+2*h,2)}, {vr(A(j,t)+2*h,2)}, {vr(rb,2)} op_sel:[0,{rs}] op_sel_hi:[1,{rs}]")
            for j in range(2):
                for h in range(2): e(f"v_cvt_pk_bf16_f32 v{A(0,t)+2*j+h}, v{A(j,t)+2*h}, v{A(j,t)+2*h+1}")
        for t in range(5):
            fold_qk(Kc, t, vCS + 8); pf()
        for t in range(1, 5):
            fold_qk(Q, t, vCS); pf()
        Sp = lambda t: Q(1, t); Sc = lambda t: Kc(1, t)
        e("s_nop 1")
        for t in range(1, 5):
            e(f"{MF} {vr(Sp(t),4)}, {vr(kf(t-1),4)}, {vr(qf(t),4)}, {vr(bP0 if t == 1 else bP,4)}")
            e(f"{MF} {vr(Sc(t),4)}, {vr(kf(t),4)}, {vr(qf(t),4)}, {vr(bC,4)}")
        vp = lambda j, t: 140 + j*10 + 2*t
        e.wait(ds='TB')
        cb = vCS + 16
        for t in range(5):
            for j in range(2):
                for h in range(2): e(f"v_pk_fma_f32 {vr(V(j,t)+2*h,2)}, {vr(vMuV+4*t+2*h,2)}, {vr(cb,2)}, {vr(V(j,t)+2*h,2)} op_sel:[0,{j},0] op_sel_hi:[1,{j},1]")
            for j in range(2):
                for h in range(2): e(f"v_pk_mul_f32 {vr(V(j,t)+2*h,2)}, {vr(V(j,t)+2*h,2)}, {vr(vRsV+4*t+2*h,2)}")
            for j in range(2):
                for h in range(2): e(f"v_cvt_pk_bf16_f32 v{vp(j,t)+h}, v{V(j,t)+2*h}, v{V(j,t)+2*h+1}")
            if t & 1 == 0: pf()
        mx = lambda t: tmp + t - 1
        for k in range(4):
            for t in range(1, 5):
                p, c_ = Sp(t), Sc(t)
                e([f"v_max3_f32 v{mx(t)}, v{p}, v{p+1}, v{p+2}", f"v_max3_f32 v{mx(t)}, v{mx(t)}, v{p+3}, v{c_}", f"v_max3_f32 v{mx(t)}, v{mx(t)}, v{c_+1}, v{c_+2}", f"v_max_f32 v{mx(t)}, v{mx(t)}, v{c_+3}"][k])
        xreduce_g(e, "v_max_f32", [mx(t) for t in range(1, 5)], list(range(tmp+4, tmp+8)))
        pf()
        cexp = LOG2E*(32 ** -0.5)
        e(f"s_mov_b32 s46, {fhex(cexp)}")
        for t in range(1, 5): e(f"v_mul_f32 v{mx(t)}, {fhex(-cexp)}, v{mx(t)}")
        pfr = qf
        for t in range(1, 5):
            for b4 in (Sp(t), Sc(t)):
                for r in range(4): e(f"v_fma_f32 v{b4+r}, v{b4+r}, s46, v{mx(t)}")
            for b4 in (Sp(t), Sc(t)):
                for r in range(4): e(f"v_exp_f32 v{b4+r}, v{b4+r}")
            for q, b4 in enumerate((Sp(t), Sc(t))):
                for h in range(2): e(f"v_cvt_pk_bf16_f32 v{pfr(t)+2*q+h}, v{b4+2*h}, v{b4+2*h+1}")
            if t < 3: pf()
        while left[0] > 0 and nxt: pf()
        O = V; Dn = lambda t: Kc(0, t)
        e("s_nop 1")
        for t in range(1, 5):
            e(f"{MF} {vr(Dn(t),4)}, {vr(ones,4)}, {vr(pfr(t),4)}, 0")
            for j in range(2): e(f"{MF} {vr(O(j,t),4)}, {vr(vp(j,t-1),4)}, {vr(pfr(t),4)}, 0")
        e(f"s_lshl_b32 s43, s{sOwn}, 15\ns_lshl_b32 s44, s{sHead}, 10\ns_add_u32 s43, s43, s44\ns_add_u32 s43, s43, {g.lo('O')}\ns_add_u32 s46, s43, {OB}")
        for t in range(1, 4): e(f"s_add_u32 s{46+t}, s{46+t-1}, 32768")
        for t in range(1, 5): e(f"v_rcp_f32 v{Dn(t)}, v{Dn(t)}")
        for t in range(1, 5):
            for j in range(2):
                for h in range(2): e(f"v_pk_mul_f32 {vr(O(j,t)+2*h,2)}, {vr(O(j,t)+2*h,2)}, {vr(Dn(t),2)} op_sel:[0,0] op_sel_hi:[1,0]")
            for j in range(2):
                for h in range(2): e(f"v_cvt_pk_bf16_f32 v{Sp(t)+2*j+h}, v{O(j,t)+2*h}, v{O(j,t)+2*h+1}")
            e.vm(f"buffer_store_dwordx4 {vr(Sp(t),4)}, v{vOA}, {R(sWS)}, s{46+t-1} offen sc1", 'OUT')
        g.stamp()
        e(f"s_lshl_b32 s77, s{sMi1}, 7\ns_add_u32 s77, s77, s{sLo}\ns_add_u32 s77, s77, {FL + H1*128}")
        g.signal('OUT', 77, p2.pre)
        p2.window(nxt)
```

```python
from mg import *
sEW, sWn, sM0, sDel, sP = 80, 88, 89, 90, 91
sT, sTile, sXo, sTj = 57, 58, 59, 60
vW, vOT, vR = 40, 48, 52
class P24:
    def __init__(self, g, down):
        self.g = g; self.down = down; self.c = g.cfg.get('p4' if down else 'p2', {})
        c = self.c
        self.NS = 112 if down else 32
        self.PD = 7 if down else c.get('PD', 8); self.NL = c.get('NL', 2 if down else 1)
        self.LT = c.get('LT', 6); self.LW = 21; self.B = 28 if down else 32; self.P = 14 if down else 8
        self.srd = sWd if down else sWo
    def prefetch_setup(self):
        PD, NL = self.PD, self.NL
        L = [f"s_lshl_b32 s{sWn}, s{sNj2}, 7", f"s_lshl_b32 s92, s{sWave}, 14", f"s_add_u32 s{sWn}, s{sWn}, s92", f"s_lshl_b32 s{sM0}, s{sWave}, 10",
             f"s_and_b32 s92, s{sMi2}, 3", f"s_lshl_b32 s{sP}, s92, 19", f"v_add_u32 v186, s{sWn}, v{vOW2}", f"s_mul_i32 s92, s92, {NL if self.down or PD == 4 else 0}", f"s_and_b32 s93, s{sNj2}, 7", "s_add_u32 s92, s92, s93"]
        L += [f"s_cmp_ge_u32 s92, {PD}\ns_cselect_b32 s93, {PD}, 0\ns_sub_u32 s92, s92, s93"]*2
        L += [f"s_lshl_b32 s93, {(1<<NL)-1 if self.c.get('jump', 1) else 0}, s92", f"s_lshr_b32 s92, s93, {PD}", "s_or_b32 s93, s93, s92"]
        L += [f"s_bitcmp1_b32 s93, {q}\ns_cselect_b32 s{sEW+q}, {PD*65536}, 0" for q in range(PD)]
        if self.down: L += [f"s_cmp_eq_u32 s{sWave}, 1\ns_cselect_b32 s{sDel}, 16384, 0", f"s_cmp_eq_u32 s{sWave}, 2\ns_cselect_b32 s{sDel}, -16384, s{sDel}"]
        return L
    def w_op(self, j):
        e = self.g.e; PD, NS = self.PD, self.NS
        dma = lambda: e.vm(f"buffer_load_dwordx4 v{vOW2}, {R(self.srd)}, s92 offen lds", ('W4', self.down, j))
        if self.down:
            L = [f"s_add_u32 m0, s{sM0}, {(j % self.B)*4096}"]
            L += [f"s_add_u32 s92, s{sWn}, s{sEW + j % PD}"] if j < NS - PD or not self.c.get('jump', 1) else [f"s_mul_i32 s92, s{sEW + j % PD}, {1 - NS//PD}", f"s_add_u32 s92, s92, s{sWn}"]
            if j % 7 == 3: L += [f"s_add_u32 s92, s92, s{sDel}"]
            L += [dma, f"s_add_u32 s{sWn}, s{sWn}, {65536 if not (self.c.get('hitW') and j % 14 == 13) else -13*65536}"]
        else:
            dma = lambda: e.vm(f"buffer_load_dwordx4 v186, {R(self.srd)}, s92 offen lds", ('W4', self.down, j))
            L = [f"s_add_u32 m0, s{sM0}, {j*4096}", f"s_add_u32 s92, s{sP}, s{sEW + j % PD}", "s_and_b32 s92, s92, 0x1fffff", dma, f"s_add_u32 s{sP}, s{sP}, 65536"]
        return [x if callable(x) else (lambda x=x: e(x)) for x in L]
    def prefetch_ops(self):
        return [self.w_op(j) for j in range(self.LW if self.down else 32)]
    def t_op(self, j, tt):
        e = self.g.e; PD, NS = self.PD, self.NS; L = []
        if tt == 0:
            L = [f"s_lshr_b32 s93, s{sEW + j % PD}, 6"]
            if self.down: L += ([] if j < NS - PD else [f"s_mul_i32 s93, s93, {1 - NS//PD}"]) + [f"s_add_u32 s93, s93, s{sT}"]
            else: L += [f"s_add_u32 s93, s93, s{sTj}", "s_and_b32 s93, s93, 0x7fff", f"s_add_u32 s93, s93, s{sT}"]
        L += [lambda: e.vm(f"buffer_load_dwordx4 {ar((j % self.P)*8 + tt*4, 4)}, v{vOT+tt}, {R(sWS)}, s93 offen {self.c.get('taux', 'sc1')}", ('T4', self.down, j))]
        if tt == 1: L += [f"s_add_u32 s{sT if self.down else sTj}, s{sT if self.down else sTj}, {1024 if not (self.c.get('hitT') and j % 14 == 13) else -13*1024}"]
        return [x if callable(x) else (lambda x=x: e(x)) for x in L]
    def vm_ops(self, i):
        ops = []
        if self.down and i + self.LW < self.NS: ops.append(self.w_op(i + self.LW))
        if i + self.LT < self.NS: ops += [self.t_op(i + self.LT, 0), self.t_op(i + self.LT, 1)]
        return ops
    def pre(self):
        g = self.g; e = g.e; down = self.down
        apitch = HPITCH if down else 32768
        e(f"s_lshl_b32 s{sTile}, s{sMi2}, 3\ns_lshl_b32 s43, s{sWave}, 1\ns_add_u32 s{sTile}, s{sTile}, s43")
        e(f"s_lshl_b32 s{sXo}, s{sTile}, 15\ns_lshl_b32 s43, s{sNj2}, 11\ns_add_u32 s{sXo}, s{sXo}, s43\ns_add_u32 s{sXo}, s{sXo}, {g.lo('X')}")
        e(f"s_add_u32 s46, s{sXo}, {XB if down else XA}\ns_add_u32 s47, s46, 32768\nv_lshlrev_b32 v{vOT}, 4, v{vL}\nv_add_u32 v{vOT+1}, {apitch}, v{vOT}")
        for tt in range(2):
            for p in range(2): e.vm(f"buffer_load_dwordx4 {vr(vR + (tt*2+p)*4, 4)}, v{vOT}, {R(sWS)}, s{46+tt} offen offset:{1024*p} sc1", 'R')
        e(f"s_mul_i32 s{sT}, s{sTile}, {apitch}\ns_add_u32 s{sT}, s{sT}, {g.lo('O')}\ns_add_u32 s{sT}, s{sT}, {HB if down else OB}\ns_and_b32 s{sTj}, s{sMi2}, 3\ns_lshl_b32 s{sTj}, s{sTj}, 13")
        e(f"v_lshrrev_b32 v2, 2, v{vL}\nv_bfe_u32 v3, v{vL}, 3, 2\nv_and_b32 v4, 3, v{vL}\nv_lshlrev_b32 v4, 3, v4\nv_lshl_add_u32 v4, v2, 7, v4")
        for t in range(4):
            e(f"v_xor_b32 v5, {t}, v3\nv_lshl_add_u32 v{vW+t}, v5, 5, v4")
            if down: e(f"v_add_u32 v{vW+4+t}, {14*4096}, v{vW+t}")
        if not down: self.side.acc()
    def window(self, nxt):
        g = self.g; e = g.e; down = self.down
        acc = lambda n, tt: (n*2 + tt)*4
        for op in nxt:
            for f in op: f()
        e.wait(vm='R')
        for tt in range(2):
            for n in range(4):
                for h in range(2):
                    src = vR + (tt*2 + (n >> 1))*4 + (n & 1)*2 + h
                    e(f"v_lshlrev_b32 v{acc(n,tt)+2*h}, 16, v{src}\nv_and_b32 v{acc(n,tt)+2*h+1}, 0xffff0000, v{src}")
        if not down: self.side.publish()
        if down: e(f"s_lshr_b32 s77, s{sMi2}, 1\ns_lshl_b32 s77, s77, 7\ns_add_u32 s77, s77, {FL + H3*128}")
        else: e(f"s_lshl_b32 s77, s{sMi2}, 7\ns_add_u32 s77, s77, {FL + H1*128}")
        e(f"s_add_u32 s77, s77, s{sLo}")
    def main(self, nx):
        g = self.g; e = g.e; down = self.down; NS, B, P = self.NS, self.B, self.P
        acc = lambda n, tt: (n*2 + tt)*4
        aW = lambda b, kk, n: 112 + b*32 + kk*16 + n*4
        UB = 14 if down else 4; NU = NS//2; nm = "p4" if down else "p2"
        g.poll(77, 32 if down else 16)
        if not down: self.side.final()
        for i in range(-self.LT, 0):
            for op in self.vm_ops(i)[-2:]:
                for f in op: f()
        def reads(u):
            if u >= NU: return []
            ops = []
            for n in range(4):
                for kk in range(2):
                    for j in range(2):
                        def f(n=n, kk=kk, j=j):
                            i = 2*u + kk
                            if down: reg, off = vW + n + (4 if i % B >= 14 else 0), (i % 14)*4096
                            else: reg, off = vW + n, (i % 8)*4096
                            e.ds(f"ds_read_b64_tr_b16 {ar(aW(u & 1, kk, n) + 2*j, 2)}, v{reg} offset:{off + j*2048}", ('F4', down, u, n))
                            if not down and u % 4 == 3 and kk == 1 and j == 1: e(f"v_add_u32 v{reg}, 32768, v{reg}")
                        ops.append(f)
            return ops
        for f in reads(0): f()
        g.stamp()
        for u in range(NU):
            if u % UB == 0: e.mark(f"{nm}b{u//UB}")
            fill = [[] for _ in range(16)]
            if down and u % 2 == 0:
                def bar(u=u):
                    e.wait(vm=[('W4', down, x) for x in range(2*u+2, min(2*u+6, NS))]); e("s_barrier")
                fill[0].append(bar)
            if not down and u == 13: fill[0].append(lambda: e("s_barrier"))
            for k, f in enumerate(reads(u+1)): fill[k].append(f)
            ops = self.vm_ops(2*u) + self.vm_ops(2*u+1)
            for k, op in enumerate(ops):
                pos = 1 + (k*14)//max(len(ops), 1)
                for f in op: fill[pos].append(f)
            seq = []; kk = 0
            for n in range(4):
                for tt in ((1, 0) if n & 1 else (0, 1)): seq += [(n, tt, kk), (n, tt, 1-kk)]; kk = 1 - kk
            for k, (n, tt, kk) in enumerate(seq):
                e.wait(vm=('T4', down, 2*u+1) if k == 0 else None, ds=('F4', down, u, n))
                a = vr(acc(n, tt), 4)
                e(f"{MF} {a}, {ar(aW(u & 1, kk, n), 4)}, {ar(((2*u+kk) % P)*8 + tt*4, 4)}, {a}")
                for f in fill[k]: f()
        e.fold([f"{nm}b{k}" for k in range(4)], f"L{nm}_loop", f"s{sCnt}")
        g.stamp()
        e(f"s_add_u32 s46, s{sXo}, {XA + LP if down else XB}\ns_add_u32 s47, s46, 32768")
        e(f"s_lshl_b32 s48, s{sTile}, 11\ns_lshl_b32 s43, s{sNj2}, 7\ns_add_u32 s48, s48, s43\ns_add_u32 s48, s48, s{sLo}\ns_add_u32 s48, s48, {STA + LP if down else STB}\ns_nop 0")
        Pk = lambda tt, p: vR + (tt*2 + p)*4
        def cvt(tt, p):
            for q in range(4):
                a = acc(2*p + (q >> 1), tt) + 2*(q & 1)
                e(f"v_cvt_pk_bf16_f32 v{Pk(tt,p)+q}, v{a}, v{a+1}")
        if down: e(f"s_cmp_lg_u32 s{sLay}, 0\ns_cbranch_scc1 Lfinal")
        for p in range(2):
            for tt in range(2):
                cvt(tt, p)
                e.vm(f"buffer_store_dwordx4 {vr(Pk(tt,p),4)}, v{vOT}, {R(sWS)}, s{46+tt} offen offset:{1024*p} sc1", 'OUT4')
        stats_epilogue(e, Pk, 2, 2, vL, 72, sWS, 48, aux='sc1', sm0=64, tag='OUT4')
        g.stamp()
        if down: e(f"s_lshl_b32 s77, s{sMi2}, 7\ns_add_u32 s77, s77, {FL + H4*128}")
        else: e(f"s_lshr_b32 s77, s{sMi2}, 1\ns_lshl_b32 s77, s77, 7\ns_add_u32 s77, s77, s{sLo}\ns_add_u32 s77, s77, {FL + H2*128}")
        if down: e(f"s_mov_b32 s{sLay}, 1\ns_mov_b32 s{sLo}, {hex(LP)}")
        g.signal('OUT4', 77, nx.pre)
        if not down: self.side.arrive()
        nx.window()
        if down:
            e("s_branch Llayer\nLfinal:")
            e(f"v_and_b32 v72, 15, v{vL}\nv_lshlrev_b32 v72, 12, v72\nv_bfe_u32 v73, v{vL}, 4, 1\nv_lshl_add_u32 v72, v73, 5, v72\nv_lshrrev_b32 v73, 5, v{vL}\nv_lshl_add_u32 v72, v73, 4, v72")
            e(f"s_and_b32 s43, s{sTile}, 63\ns_lshl_b32 s43, s43, 16\ns_lshr_b32 s46, s{sTile}, 6\ns_lshl_b32 s46, s46, 11\ns_add_u32 s46, s46, s43\ns_lshl_b32 s43, s{sNj2}, 7\ns_add_u32 s46, s46, s43\ns_add_u32 s47, s46, 65536")
            for p in range(2):
                for tt in range(2): cvt(tt, p)
                for tt in range(2):
                    r = Pk(tt, p)
                    if tt == 1: e("s_nop 0")
                    e(f"v_permlane16_swap_b32 v{r}, v{r+2}\nv_permlane16_swap_b32 v{r+1}, v{r+3}")
                    e(f"buffer_store_dwordx4 {vr(r,4)}, v72, {R(sOut)}, s{46+tt} offen offset:{64*p}")
            g.stamp()
```

```python
from mg import *
sOdd, sW, sM0, sGrp, sTch, sPW, sT = 66, 67, 68, 69, 70, 71, 72
vW, vOT, vOW, vTch, vCa, vMu, tm = 224, 231, 232, 236, 237, 238, 242
vC1, vC2, vS2 = vMu, vOW, vTch
aT = lambda s, kk, tt: (s & 1)*32 + kk*16 + tt*4
NWB = 4
aW = lambda L, kk: 64 + (L % NWB)*8 + kk*4
aDum, aC = 96, 104
acc = lambda n, tt: (n*4 + tt)*4
PW3 = 131072
class P3:
    def __init__(self, g): self.g = g; self.c = g.cfg.get('p3', {})
    def w_ops(self, st):
        e = self.g.e; ops = []
        for mat in range(2):
            for q in range(4):
                L = [f"s_add_u32 m0, s{sM0}, {(st & 1)*32768 + mat*16384}", "NOP"] if q == 0 else []
                L += [lambda q=q, mat=mat: e.vm(f"buffer_load_dwordx4 v{vOW+q}, {R((sWg, sWu)[mat])}, s{sW} offen offset:{1024*q} lds", ('W3', st))]
                if q == 3 and mat == 1:
                    L += [f"s_add_u32 s{sW}, s{sW}, {64*2*F}"] + ([f"s_xor_b32 s{sM0}, s{sM0}, 0x10000"] if st & 1 else [])
                ops.append(L)
        return ops
    def st_ops(self):
        e = self.g.e; ops = []
        for m in range(2):
            for q in range(4):
                L = [f"s_add_u32 m0, s{sM0}, {32768 + m*16384}", "NOP"] if q == 0 else []
                ops.append(L + [lambda q=q, m=m: e.vm(f"buffer_load_dwordx4 v{vOT}, {R(sWS)}, s{44+m} offen offset:{1024*q} sc1 lds", 'ST3')])
        return ops
    def t_ops(self, st):
        e = self.g.e; ops = []
        for tt in range(4):
            for kk in range(2):
                L = [lambda tt=tt, kk=kk: e.vm(f"buffer_load_dwordx4 {ar(aT(st, kk, tt), 4)}, v{vOT}, {R(sWS)}, s{sT+tt} offen offset:{(st & 1)*2048 + kk*1024} sc1", ('T3', st, tt))]
                if kk == 1 and st & 1: L += [f"s_add_u32 s{sT+tt}, s{sT+tt}, 4096"]
                ops.append(L)
        return ops
    def run(self, ops):
        for op in ops:
            for x in op:
                if callable(x): x()
                else: self.g.e("s_nop 0" if x == "NOP" else x)
    def pre(self):
        g = self.g; e = g.e
        e(f"s_and_b32 s{sOdd}, s{sNj3}, 1")
        e(f"v_lshrrev_b32 v2, 4, v{vL}\nv_bfe_u32 v3, v{vL}, 1, 3\nv_and_b32 v4, 1, v{vL}\nv_lshlrev_b32 v4, 4, v4")
        e(f"v_mul_u32_u24 v5, {2*F}, v2\nv_add_u32 v5, v5, v4\ns_cmp_eq_u32 s{sOdd}, 0\ns_cselect_b32 s44, 7, 0\nv_mov_b32 v7, 0x40000000")
        for i in range(4):
            e(f"v_add_u32 v6, {4*(i&1)}, v2\nv_xor_b32 v6, v6, v3\nv_cmp_eq_u32 vcc, s44, v6\nv_lshl_add_u32 v6, v6, 5, v5\nv_add_u32 v6, {i*4*2*F - 1024*i}, v6")
            e(f"v_cndmask_b32 v{vOW+i}, v6, v7, vcc")
        e(f"s_mul_i32 s{sW}, s{sNj3}, 224\ns_and_b32 s{sW}, s{sW}, 0xffffffc0\ns_mul_i32 s43, s{sWave}, {16*2*F}\ns_add_u32 s{sW}, s{sW}, s43\ns_lshl_b32 s{sM0}, s{sWave}, 12")
        e(f"v_lshlrev_b32 v{vOT}, 4, v{vL}\ns_lshl_b32 s43, s{sLay}, 30\nv_or_b32 v{vTch}, s43, v{vOT}\ns_lshl_b32 s43, s2, 2\ns_add_u32 s43, s43, s{sWave}\ns_mul_i32 s{sTch}, s43, 7168")
        e(f"s_lshl_b32 s{sGrp}, s{sMi3}, 2\ns_add_u32 s{sGrp}, s{sGrp}, s{sWave}\ns_lshl_b32 s{sT}, s{sGrp}, 17\ns_add_u32 s{sT}, s{sT}, {g.lo('X')}\ns_add_u32 s{sT}, s{sT}, {XB}")
        for tt in range(1, 4): e(f"s_add_u32 s{sT+tt}, s{sT+tt-1}, 32768")
        e(f"s_lshl_b32 s{sPW}, s{sWave}, 11\ns_add_u32 s{sPW}, s{sPW}, {PW3}")
        e(f"v_lshrrev_b32 v2, 2, v{vL}\nv_and_b32 v3, 7, v2\nv_and_b32 v4, 3, v{vL}\nv_lshlrev_b32 v5, 3, v4\nv_lshl_add_u32 v5, v2, 8, v5")
        e(f"s_lshl_b32 s43, s{sOdd}, 1\ns_cmp_eq_u32 s{sOdd}, 0\ns_cselect_b32 s45, 6, 1")
        for t in range(7):
            if t < 6: e(f"s_add_u32 s46, s43, {t}\nv_xor_b32 v6, s46, v3")
            else: e(f"v_xor_b32 v6, s45, v3")
            e(f"v_lshl_add_u32 v{vW+t}, v6, 5, v5")
        e(f"s_mul_i32 s46, s{sNj3}, 448\ns_add_u32 s46, s46, {CSG}\ns_add_u32 s47, s46, {2*F*4}\ns_lshr_b32 s48, s{sNj3}, 3\ns_lshl_b32 s48, s48, 7\ns_add_u32 s48, s48, {FL + HC*128}")
        e(f"s_lshl_b32 s44, s{sGrp}, 13\ns_add_u32 s44, s44, s{sLo}\ns_add_u32 s44, s44, {STB}\ns_add_u32 s45, s44, 4096")
        for st in range(self.c.get('wpre', 0)): self.run(self.w_ops(st))
    def window(self):
        g = self.g; e = g.e
        for st in range(self.c.get('wpre', 0), 3): self.run(self.w_ops(st))
        e(f"s_lshl_b32 s77, s{sMi3}, 7\ns_add_u32 s77, s77, s{sLo}\ns_add_u32 s77, s77, {FL + H2*128}")
    def stats_ops(self, fill):
        e = self.g.e; r = Rec(e); t = tm + 4; P = lambda tt: vMu + 2*tt
        r(f"s_add_u32 s43, s{sM0}, 32768\nv_lshlrev_b32 v250, 3, v{vL}\nv_add_u32 v250, s43, v250")
        pour(fill, r.ops, 5, 12)
        rd = lambda dst, tt, k: (lambda: e.ds(f"ds_read_b64 {vr(dst,2)}, v250 offset:{(tt>>1)*16384 + (tt&1)*2048 + k*512}", ('SR', tt, k)))
        fill[13].append(lambda: e.wait(vm='ST3'))
        for tt in range(4): fill[13 + tt].append(rd(P(tt), tt, 0))
        for i in range(12):
            tt, k = i & 3, 1 + (i >> 2); d = t + 2*(i & 1)
            fill[17 + 3*i].append(rd(d, tt, k))
            def add(tt=tt, k=k, d=d):
                e.wait(ds=('SR', tt, k)); e(f"v_add_f32 v{P(tt)}, v{P(tt)}, v{d}\nv_add_f32 v{P(tt)+1}, v{P(tt)+1}, v{d+1}")
            fill[22 + 3*i].append(add)
        xreduce_g(r, "v_add_f32", list(range(vMu, vMu+4)), list(range(t, t+4)))
        xreduce_g(r, "v_add_f32", list(range(vMu+4, vMu+8)), list(range(t, t+4)))
        r(f"s_mov_b32 s43, {fhex(1.0/D)}\nv_mov_b32 v250, {fhex(1e-5)}")
        for x in range(4): r(f"v_mul_f32 v{P(x)}, {fhex(-1.0/D)}, v{P(x)}\nv_fma_f32 v{P(x)+1}, v{P(x)+1}, s43, v250")
        for x in range(4): r(f"v_fma_f32 v{P(x)+1}, -v{P(x)}, v{P(x)}, v{P(x)+1}\nv_max_f32 v{P(x)+1}, v{P(x)+1}, v250")
        for x in range(4): r(f"v_rsq_f32 v{t+x}, v{P(x)+1}\nv_accvgpr_write_b32 a{aC+4+x}, v{P(x)+1}")
        for x in range(4): r(f"v_mul_f32 v{t+x}, {fhex(-LOG2E)}, v{t+x}\nv_accvgpr_write_b32 a{aC+x}, v{t+x}")
        for x in range(1, 4): r(f"v_mov_b32 v{vMu+x}, v{P(x)}")
        ckl = f"buffer_load_dword v{vCa}, v{vZ}, {R(sWS)}, s48 offen sc1"
        fill[55].append(lambda: e.vm(ckl, 'CK3'))
        r(f"v_lshrrev_b32 v250, 3, v{vL}\nv_add_u32 v250, s{sOdd}, v250\nv_cmp_ne_u32 vcc, 7, v250\nv_bfe_u32 v{tm}, v{vL}, 2, 1\nv_mul_u32_u24 v{tm}, {F*4}, v{tm}")
        r(f"v_cndmask_b32 v250, 0, v250, vcc\nv_lshl_add_u32 v250, v250, 6, v{tm}\nv_and_b32 v{tm}, 3, v{vL}\nv_lshl_add_u32 v250, v{tm}, 4, v250")
        r.call(lambda: self.g.check(vCa, ckl, 56, 'CK3'))
        for a in range(2): r.vm(f"buffer_load_dwordx4 {vr(tm+4*a,4)}, v250, {R(sWS)}, s{46+a} offen sc1", 'CS3')
        r(f"v_lshrrev_b32 v{vCa}, 4, v{vL}\nv_lshlrev_b32 v{vCa}, 4, v{vCa}\nv_add_u32 v{vCa}, s{sPW}, v{vCa}\nv_add_u32 v250, s{sPW}, v{vOT}")
        pour(fill, r.ops, 56, 72, cap=2); pour(fill, r.ops, 72, 112, cap=3); assert not r.ops, len(r.ops)
    def epi_units(self):
        e = self.g.e; U = []
        def ph(i, name):
            if not 0 <= i < 28: return []
            r = Rec(e); t, tt = i >> 2, i & 3
            g_, u = acc(2*t, tt), acc(2*t+1, tt); T = tm + 4*(i & 1)
            sel = tt & 1; c1 = (vC1 + tt) & ~1; c2 = (vC2 + tt) & ~1
            if name == 'a':
                for h in range(2): r(f"v_pk_mul_f32 {vr(T+2*h,2)}, {vr(g_+2*h,2)}, {vr(c1,2)} op_sel:[0,{sel}] op_sel_hi:[1,{sel}]")
            if name == 'b':
                for h in range(2): r(f"v_pk_mul_f32 {vr(g_+2*h,2)}, {vr(g_+2*h,2)}, {vr(u+2*h,2)}")
            if name == 'c':
                for x in range(4): r(f"v_exp_f32 v{T+x}, v{T+x}")
            if name == 'd':
                for h in range(2): r(f"v_pk_fma_f32 {vr(T+2*h,2)}, {vr(T+2*h,2)}, {vr(c2,2)}, {vr(c2,2)} op_sel:[0,{sel},{sel}] op_sel_hi:[1,{sel},{sel}]")
            if name == 'e':
                for x in range(4): r(f"v_rcp_f32 v{T+x}, v{T+x}")
            if name == 'f':
                for h in range(2): r(f"v_pk_mul_f32 {vr(g_+2*h,2)}, {vr(g_+2*h,2)}, {vr(T+2*h,2)}")
            if name == 'g':
                dst = acc(2*(t & ~1) + 1, tt) + 2*(t & 1) if t < 6 else acc(13, tt & ~1) + 2*(tt & 1)
                r(f"v_cvt_pk_bf16_f32 v{dst}, v{g_}, v{g_+1}\nv_cvt_pk_bf16_f32 v{dst+1}, v{g_+2}, v{g_+3}")
                if t < 6 and (t & 1): r.vm(f"buffer_store_dwordx4 {vr(dst-2,4)}, v{vOT}, {R(sWS)}, s{57+tt} offen sc1", ('OUT3', t >> 1)); r(f"s_add_u32 s{57+tt}, s{57+tt}, 16384")
                if t == 6 and (tt & 1):
                    r(f"s_nop 1\nv_permlane32_swap_b32 v{dst-2}, v{dst}\nv_permlane32_swap_b32 v{dst-1}, v{dst+1}")
                    r.vm(f"buffer_store_dwordx4 {vr(dst-2,4)}, v{vS2}, {R(sWS)}, s{61 + (tt>>1)} offen sc1", 'OUT3')
            return r.ops
        for i in range(-1, 29):
            c, ee = ph(i, 'c'), ph(i, 'e')
            nop = [lambda: e("s_nop 0")] if i == 28 else []
            f, g2, a = ph(i-1, 'f'), ph(i-1, 'g'), ph(i+1, 'a')
            U.append([c[:2], c[2:] + nop + f + a + g2 + ph(i, 'd') + ph(i+1, 'b'), ee[:2], ee[2:]])
        return U
    def signal_field(self, tag, f):
        g = self.g; e = g.e; l = g.lab("sgf")
        e.wait(vm=tag); e("s_barrier")
        e(f"s_cmp_lg_u32 s{sWave}, 0\ns_cbranch_scc1 {l}\nv_mov_b32 v250, 1\ns_mov_b64 exec, 1")
        e(f"buffer_atomic_add v250, v{vZ}, {R(sWS)}, s77 offen sc1\ns_mov_b64 exec, -1\n{l}:\ns_add_u32 s77, s77, 2048")
    def main(self, p4):
        g = self.g; e = g.e; c = self.c
        DW = 2
        g.poll(77, 32)
        self.run(self.t_ops(0))
        def wread(L):
            s, n = divmod(L, 14)
            if s >= 16: return []
            ops = []
            for kk in range(2):
                for j in range(2):
                    def f(kk=kk, j=j):
                        if n == 0 and kk == 0 and j == 0 and s > 0: e.wait(vm=('W3', s)); e("s_barrier")
                        e.ds(f"ds_read_b64_tr_b16 {ar(aW(L, kk) + 2*j, 2)}, v{vW + (n >> 1)} offset:{(s & 1)*32768 + (n & 1)*16384 + (kk*32 + 16*j)*256}", ('F3', L))
                        if kk == 1 and j == 1 and s & 1 and n & 1: e(f"v_xor_b32 v{vW + (n >> 1)}, 0x10000, v{vW + (n >> 1)}")
                    ops.append(f)
            return ops
        for L in range(DW):
            for f in wread(L): f()
        g.stamp()
        nxt = p4.prefetch_ops()
        def corr(n, b):
            r = Rec(e); r.wait(ds=('CT', n))
            for tt in range(4):
                for x in range(4): r(f"v_fmac_f32 v{acc(n,tt)+x}, v{tm+4*b+x}, v{vMu+tt}")
            return r.ops
        csrd = lambda n, b: (lambda: e.ds(f"ds_read_b128 {vr(tm+4*b,4)}, v{vCa} offset:{n*64}", ('CT', n)))
        EU = self.epi_units()
        for s in range(16):
            if s % 2 == 0: e.mark(f"p3b{s//2}")
            fill = [[] for _ in range(112)]
            def place(pos, op):
                pre = True
                for x in op:
                    if x == "NOP": continue
                    if callable(x): fill[pos].append(x); pre = False
                    else: fill[pos - 1 if pre else pos + 1].append(lambda x=x: e(x))
            for n in range(14):
                for k, f in enumerate(wread(s*14 + n + DW)): fill[n*8 + 2*k].append(f)
            if s < 15:
                for k, op in enumerate(self.t_ops(s+1)): place((5*k + 9) if s == 0 else 7*k + 3, op)
            if s == 0:
                for k, op in enumerate(self.st_ops()): place(5*k + 49, op)
            elif s < 14:
                for k, op in enumerate(self.w_ops(s+2)): place(7*(k+8) + 3, op)
            if s < 14 and s % 2 == 0:
                place(91 if s == 0 else 55, [lambda: e.vm(f"buffer_load_dwordx4 {ar(aDum,4)}, v{vTch}, {R(sWd)}, s{sTch} offen"), f"s_add_u32 s{sTch}, s{sTch}, 1024"])
            if s == 1: self.stats_ops(fill)
            if s == 14:
                su = [lambda x=x: e(x) for x in p4.prefetch_setup()]
                for k, f in enumerate(su): fill[2*k + 1].append(f)
                for k in range(4):
                    for z, f in enumerate(nxt.pop(0)): fill[57 + 14*k + 2*z].append(f)
                fill[0].append(lambda: (e.wait(vm='CS3'), e(f"v_add_f32 v{tm}, v{tm}, v{tm+4}\nv_add_f32 v{tm+1}, v{tm+1}, v{tm+5}")))
                fill[1].append(lambda: e(f"v_add_f32 v{tm+2}, v{tm+2}, v{tm+6}\nv_add_f32 v{tm+3}, v{tm+3}, v{tm+7}"))
                fill[2].append(lambda: e.ds(f"ds_write_b128 v250, {vr(tm,4)}"))
                fill[3].append(csrd(7, 1))
                for n in range(1, 14):
                    fill[n*8].append(csrd((n+7) % 14, n & 1 ^ 1))
                    ops = corr((n+6) % 14, n & 1)
                    fill[n*8].insert(0, ops.pop(0))
                    for k in range(8): fill[n*8 + k] += [ops.pop(0), ops.pop(0)]
            if s == 15:
                ops = corr(6, 0)
                r = Rec(e)
                for x in range(4): r(f"v_accvgpr_read_b32 v{vC1+x}, a{aC+x}\nv_accvgpr_read_b32 v{vC2+x}, a{aC+4+x}")
                r(f"v_and_b32 v{vS2}, 31, v{vL}\nv_lshlrev_b32 v{vS2}, 4, v{vS2}\nv_lshrrev_b32 v250, 5, v{vL}\ns_mov_b32 s43, {HPITCH}\nv_mad_u32_u24 v{vS2}, v250, s43, v{vS2}")
                r(f"s_mul_i32 s43, s{sGrp}, {4*HPITCH}\ns_lshr_b32 s45, s{sNj3}, 4\ns_mul_i32 s45, s45, {56*1024}\ns_add_u32 s43, s43, s45\ns_add_u32 s43, s43, {g.lo('H')}\ns_add_u32 s43, s43, {HB}")
                r(f"s_and_b32 s44, s{sNj3}, 15\ns_lshl_b32 s45, s44, 10\ns_add_u32 s57, s43, s45\ns_lshl_b32 s45, s44, 9\ns_add_u32 s61, s43, s45\ns_add_u32 s61, s61, {48*1024}\ns_add_u32 s62, s61, {2*HPITCH}")
                for tt in range(1, 4): r(f"s_add_u32 s{57+tt}, s{57+tt-1}, {HPITCH}")
                r(f"s_lshl_b32 s77, s{sMi3}, 1\ns_lshr_b32 s43, s{sNj3}, 4\ns_add_u32 s77, s77, s43\ns_lshl_b32 s77, s77, 7\ns_add_u32 s77, s77, s{sLo}\ns_add_u32 s77, s77, {FL + H3*128}")
                ops += r.ops
                pour(fill, ops, 0, 20, cap=3); pour(fill, ops, 19, 20, cap=12); assert not ops, len(ops)
                for k in range(4):
                    for z, f in enumerate(nxt.pop(0)): fill[21 + 6*k + z].append(f)
                SA, SB, CK = c.get('SA', 14), c.get('SB', 22), c.get('CK', 21)
                EU[SA+1][0].insert(0, lambda: self.signal_field(('OUT3', 0), 0))
                for k in range(4): EU[SA+1+k][2] += nxt.pop(0)
                EU[SB+1][0].insert(0, lambda: self.signal_field(('OUT3', 1), 1))
                su = p4.setup_ops()
                for k in range(6): EU[19+k][3] += su[k*len(su)//6:(k+1)*len(su)//6]
                EU[CK+1][0].insert(0, p4.ck_load)
                for i in range(-1, 22):
                    for z in range(4): fill[24 + 4*i + z] += EU[0][z]
                    EU.pop(0)
            kk = 0
            for n in range(14):
                L = s*14 + n
                k = 0
                for tt in ((3, 2, 1, 0) if n & 1 else (0, 1, 2, 3)):
                    e.wait(vm=('T3', s, tt if s == 0 else 3) if n == 0 else None, ds=('F3', L))
                    for z in (kk, 1 - kk):
                        a = vr(acc(n, tt), 4)
                        e(f"{MF} {a}, {ar(aW(L, z), 4)}, {ar(aT(s, z, tt), 4)}, {'0' if s == 0 and z == kk else a}")
                        for f in fill[n*8 + k]: f()
                        k += 1
                    kk = 1 - kk
        e.fold([f"p3b{k}" for k in range(1, 8)], "Lp3_loop", f"s{sCnt}")
        g.stamp()
        for u in EU:
            for part in u:
                for f in part: f()
        g.stamp(); g.stamp()
```

```python
from mg import *
sRA, sRB, sEW, sWn, sM0, sDel = 80, 84, 88, 92, 79, 78
sET, sT, sTile, sXo, sFld, sLine = 63, 48, 49, 76, 65, 64
vW, vOT, vR, vCk, vM, vU = 64, 72, 76, 74, 96, 112
aT = lambda j, tt: 128 + (j % 16)*8 + tt*4
aW = lambda k, kk, n: (k & 1)*32 + kk*16 + n*4
acc = lambda h, n, tt: h*32 + (n*2 + tt)*4
NS = 56
def kb(j): return 7*((j & 15) >> 1) + 4*(j & 1) + (j >> 4) if j < 48 else 7*(j - 48) + 3
class P4S:
    def __init__(self, g):
        self.g = g; self.c = g.cfg.get('p4', {})
        self.LT = self.c.get('LT', 6); self.LW = 12; self.ND = self.c.get('ND', 8)
    def prefetch_setup(self):
        L = [f"s_xor_b32 s93, s{sNj2}, 1", "s_lshl_b32 s93, s93, 7", f"s_add_u32 s{sRA}, s{sWd}, s93\ns_addc_u32 s{sRA+1}, s{sWd+1}, 0", f"s_sub_u32 s{sRA+2}, {F*D*2}, s93", f"s_mov_b32 s{sRA+3}, 0x20000",
             f"s_lshl_b32 s93, s{sNj2}, 7", f"s_add_u32 s{sRB}, s{sWd}, s93\ns_addc_u32 s{sRB+1}, s{sWd+1}, 0", f"s_sub_u32 s{sRB}, s{sRB}, 1024\ns_subb_u32 s{sRB+1}, s{sRB+1}, 0",
             f"s_sub_u32 s{sRB+2}, {F*D*2 + 1024}, s93", f"s_mov_b32 s{sRB+3}, 0x20000",
             f"s_and_b32 s93, s{sNj2}, 1", f"s_mul_i32 s{sWn}, s93, {56*65536}", f"s_lshl_b32 s93, s{sWave}, 14", f"s_add_u32 s{sWn}, s{sWn}, s93", f"s_lshl_b32 s{sM0}, s{sWave}, 11",
             f"s_lshr_b32 s93, s{sNj2}, 1", f"s_add_u32 s93, s93, s{sMi2}", f"s_and_b32 s93, s93, 3" if self.c.get('jump', 1) else "s_mov_b32 s93, 7"]
        L += [f"s_cmp_eq_u32 s93, {q}\ns_cselect_b32 s{sEW+q}, {14*65536}, 0" for q in range(4)]
        L += [f"s_cmp_eq_u32 s{sWave}, 1\ns_cselect_b32 s{sDel}, 16384, 0", f"s_cmp_eq_u32 s{sWave}, 2\ns_cselect_b32 s{sDel}, -16384, s{sDel}"]
        return L
    def wrap(self, L): return [x if callable(x) else (lambda x=x: self.g.e(x)) for x in L]
    def w_op(self, j):
        e = self.g.e; jl = (j + 4) % NS; d = kb(jl) - kb(j); E_ = sEW + (j & 3)
        L = [f"s_add_u32 m0, s{sM0}, {(j % 16)*8192}"]
        if d == 14 and j < 48 and jl < 48: L += [f"s_add_u32 s93, s{sWn}, s{E_}"]
        else:
            x = f"s_cmp_lg_u32 s{E_}, 0\ns_cselect_b32 s93, {d*65536}, 0"
            if (j >= 48) != (jl >= 48): L += [x + (f"\ns_cselect_b32 s43, s{sDel}, 0" if jl >= 48 else f"\ns_cselect_b32 s43, 0, s{sDel}"), "s_add_u32 s93, s93, s43"]
            elif j >= 48: L += [x, f"s_add_u32 s93, s93, s{sDel}"]
            else: L += [x]
            L += [f"s_add_u32 s93, s93, s{sWn}"]
        L += [lambda: e.vm(f"buffer_load_dwordx4 v{vOW2}, {R(sRA)}, s93 offen lds", ('W5', j)),
              lambda: e.vm(f"buffer_load_dwordx4 v{vOW2}, {R(sRB)}, s93 offen offset:1024 lds", ('W5', j))]
        if j + 1 < NS: L += [f"s_add_u32 s{sWn}, s{sWn}, {(kb(j+1) - kb(j))*65536}"]
        return self.wrap(L)
    def prefetch_ops(self): return [self.w_op(j) for j in range(self.LW)]
    def t_op(self, j):
        e = self.g.e
        L = [f"s_add_u32 s47, s{sT}, s{57 + (j & 3)}"] if j + 4 < NS else [f"s_mul_i32 s47, s{57 + (j & 3)}, -13", f"s_add_u32 s47, s47, s{sT}"]
        L += [lambda tt=tt: e.vm(f"buffer_load_dwordx4 {ar(aT(j, tt), 4)}, v{vOT+tt}, {R(sWS)}, s47 offen offset:{1024*(j & 3)} sc1", ('T5', j)) for tt in range(2)]
        if j & 3 == 3: L += [f"s_add_u32 s{sT}, s{sT}, 4096"]
        return self.wrap(L)
    def vm_ops(self, i):
        return (self.w_op(i + self.LW) if i + self.LW < NS else []) + (self.t_op(i + self.LT) if i + self.LT < NS else [])
    def clear_mailbox(self, e, voff, vt):
        e(f"s_lshl_b32 s44, s2, 2\ns_add_u32 s44, s44, s{sWave}\ns_lshl_b32 s44, s44, 12\ns_add_u32 s44, s44, {self.g.lo('P')}\ns_add_u32 s44, s44, {PB}")
        for r in range(4): e(f"v_mov_b32 v{vt+r}, -1")
        for q in range(4): e.vm(f"buffer_store_dwordx4 {vr(vt,4)}, v{voff}, {R(sWS)}, s44 offen offset:{1024*q} sc1")
    def setup_ops(self):
        r = Rec(self.g.e)
        r(f"s_and_b32 s43, s{sNj2}, 1")
        r(f"s_and_b32 s{sLine}, s{sMi2}, 14\ns_add_u32 s{sLine}, s{sLine}, s43\ns_lshl_b32 s{sLine}, s{sLine}, 7\ns_add_u32 s{sLine}, s{sLine}, s{sLo}\ns_add_u32 s{sLine}, s{sLine}, {FL + H3*128}")
        r(f"s_lshl_b32 s{sTile}, s{sMi2}, 3\ns_lshl_b32 s43, s{sWave}, 1\ns_add_u32 s{sTile}, s{sTile}, s43")
        r(f"s_lshl_b32 s{sXo}, s{sTile}, 15\ns_lshl_b32 s43, s{sNj2}, 11\ns_add_u32 s{sXo}, s{sXo}, s43\ns_add_u32 s{sXo}, s{sXo}, {self.g.lo('X')}")
        r(f"s_add_u32 s46, s{sXo}, {XB}\ns_add_u32 s47, s46, 32768\nv_lshlrev_b32 v{vOT}, 4, v{vL}\nv_add_u32 v{vOT+1}, {HPITCH}, v{vOT}")
        for tt in range(2):
            for p in range(2): r.vm(f"buffer_load_dwordx4 {vr(vR + (tt*2+p)*4, 4)}, v{vOT}, {R(sWS)}, s{46+tt} offen offset:{1024*p} sc1", 'R5')
        r(f"s_mul_i32 s{sT}, s{sTile}, {HPITCH}\ns_and_b32 s43, s{sNj2}, 1\ns_mul_i32 s44, s43, {56*1024}\ns_add_u32 s{sT}, s{sT}, s44\ns_add_u32 s{sT}, s{sT}, {self.g.lo('H')}\ns_add_u32 s{sT}, s{sT}, {HB}")
        r(f"v_bfe_u32 v92, v{vL}, 2, 3\nv_bfe_u32 v93, v{vL}, 3, 2\nv_and_b32 v94, 3, v{vL}\nv_lshlrev_b32 v94, 3, v94\nv_lshl_add_u32 v94, v92, 7, v94\nv_lshrrev_b32 v92, 5, v{vL}\nv_lshl_add_u32 v94, v92, 11, v94")
        for t in range(4): r(f"v_xor_b32 v92, {t}, v93\nv_lshl_add_u32 v{vW+t}, v92, 5, v94\nv_add_u32 v{vW+4+t}, 0x10000, v{vW+t}")
        for x in range(32): r(f"v_mov_b32 v{x}, 0")
        return r.ops
    def ck_load(self): self.g.e.vm(f"buffer_load_dword v{vCk}, v{vZ}, {R(sWS)}, s{sLine} offen sc1", 'CK5')
    def ck(self, nm):
        e = self.g.e
        e.wait(vm='CK5')
        t = f"v_cmp_gt_u32 vcc, 16, v{vCk}\ns_cbranch_vccz L{nm}_ok"
        e(f"{t}\ns_mov_b32 s43, 0x40000\nL{nm}_sp:\ns_sleep {self.c.get('slp', 10)}\nbuffer_load_dword v{vCk}, v{vZ}, {R(sWS)}, s{sLine} offen sc1\ns_waitcnt vmcnt(0)\n{t}")
        e(f"s_sub_u32 s43, s43, 1\ns_cmp_lg_u32 s43, 0\ns_cbranch_scc1 L{nm}_sp\nL{nm}_ok:\ns_add_u32 s{sLine}, s{sLine}, 2048")
    def main(self, nx, p3):
        g = self.g; e = g.e; c = self.c; ND = self.ND
        for q in range(4): e(f"s_cmp_lg_u32 s{sEW+q}, 0\ns_cselect_b32 s{57+q}, 4096, 0")
        self.ck("p4a"); g.stamp()
        for j in range(self.LT):
            for f in self.t_op(j): f()
        items = [(u, h) for u in range(28 - ND) for h in range(2)] + [(u, h) for h in range(2) for u in range(28 - ND, 28)]
        def reads(k):
            if k >= len(items): return []
            u, h = items[k]; ops = []
            for n in range(4):
                for kk in range(2):
                    for j in range(2):
                        i = 2*u + kk
                        ops.append(lambda n=n, kk=kk, j=j, i=i: e.ds(f"ds_read_b64_tr_b16 {ar(aW(k, kk, n) + 2*j, 2)}, v{vW + n + (4 if i & 8 else 0)} offset:{(i & 7)*8192 + j*4096 + h*1024}", ('F5', k, n)))
            return ops
        e.wait(vm=('W5', 5)); e("s_barrier")
        for f in reads(0): f()
        e.wait(vm='R5')
        for tt in range(2):
            for n in range(4):
                for h in range(2):
                    src = vR + (tt*2 + (n >> 1))*4 + (n & 1)*2 + h
                    e(f"v_lshlrev_b32 v{acc(1,n,tt)+2*h}, 16, v{src}\nv_and_b32 v{acc(1,n,tt)+2*h+1}, 0xffff0000, v{src}")
        p3.signal_field('OUT3', 2)
        g.stamp()
        Pk = lambda tt, p: vR + (tt*2 + p)*4
        def cvt(r, h, tt, p):
            for q in range(4):
                a = acc(h, 2*p + (q >> 1), tt) + 2*(q & 1)
                r(f"v_cvt_pk_bf16_f32 v{Pk(tt,p)+q}, v{a}, v{a+1}")
        def mail_loads(r):
            for q in range(4): r.vm(f"buffer_load_dwordx4 {vr(vM+4*q,4)}, v{vOT}, {R(sWS)}, s45 offen offset:{1024*q} sc1", 'MB')
        kB = len(items) - ND
        for k, (u, h) in enumerate(items):
            if k % 16 == 0 and k <= 32: e.mark(f"p4b{k//16}")
            fill = [[] for _ in range(16)]
            if h == 0 and u % 2 == 0:
                def bar(u=u):
                    e.wait(vm=[('W5', x) for x in range(2*u+2, min(2*u+6, NS))]); e("s_barrier")
                fill[0].append(bar)
            for z, f in enumerate(reads(k+1)): fill[z].append(f)
            if k < 32 and k % 16 == 12 - self.LT: fill[0].append(lambda: self.ck("p4b"))
            if k < 32 and k % 16 == 12 - self.LT - 3: fill[0].append(self.ck_load)
            if u < 28 - ND: ops = self.vm_ops(2*u + h)
            else: ops = self.vm_ops(2*u) + self.vm_ops(2*u+1) if h == 0 else []
            for z, f in enumerate(ops): fill[1 + (z*14)//len(ops)].append(f)
            if k == len(items) - 1: fill[9].append(lambda: (e.wait(ds='all'), e("s_barrier")))
            if k == kB:
                r = Rec(e)
                r(f"s_lshl_b32 s45, s2, 2\ns_add_u32 s45, s45, s{sWave}\ns_lshl_b32 s45, s45, 12\ns_xor_b32 s44, s45, {32*4*4096}\ns_add_u32 s43, {g.lo('P')}, {PB}\ns_add_u32 s44, s44, s43\ns_add_u32 s45, s45, s43")
                for p in range(2):
                    for tt in range(2):
                        cvt(r, 0, tt, p); r.vm(f"buffer_store_dwordx4 {vr(Pk(tt,p),4)}, v{vOT}, {R(sWS)}, s44 offen offset:{1024*(tt*2+p)} sc1")
                pour(fill, r.ops, 0, 16, cap=3); assert not r.ops
            if k == len(items) - c.get('XL', 3):
                r = Rec(e); mail_loads(r); pour(fill, r.ops, 0, 16, cap=2, step=2)
            seq = []; kk = 0
            for n in range(4):
                for tt in ((1, 0) if n & 1 else (0, 1)): seq += [(n, tt, kk), (n, tt, 1-kk)]; kk = 1 - kk
            for z, (n, tt, kk) in enumerate(seq):
                e.wait(vm=('T5', 2*u+1) if z == 0 and h == 0 else None, ds=('F5', k, n | 1), force=(z == 0 and h == 0))
                a = vr(acc(h, n, tt), 4)
                e(f"{MF} {a}, {ar(aW(k, kk, n), 4)}, {ar(aT(2*u+kk, tt), 4)}, {a}")
                for f in fill[z]: f()
        e.fold([f"p4b{k}" for k in range(3)], "Lp4_loop", f"s{sCnt}")
        g.stamp()
        e(f"s_mov_b32 s43, 0x40000\nLp4_mb:\ns_waitcnt vmcnt(0)"); g.reset_q()
        e(f"v_max3_u32 v{vU}, v{vM}, v{vM+1}, v{vM+2}\nv_max3_u32 v{vU+1}, v{vM+3}, v{vM+4}, v{vM+5}")
        for x in range(5): e(f"v_max3_u32 v{vU + (x&1)}, v{vU + (x&1)}, v{vM+6+2*x}, v{vM+7+2*x}")
        e(f"v_max_u32 v{vU}, v{vU}, v{vU+1}\nv_cmp_eq_u32 vcc, -1, v{vU}\ns_cbranch_vccz Lp4_mbok")
        mail_loads(e); e(f"s_sub_u32 s43, s43, 1\ns_cmp_lg_u32 s43, 0\ns_cbranch_scc1 Lp4_mb\ns_waitcnt vmcnt(0)\nLp4_mbok:"); g.reset_q()
        e(f"s_add_u32 s46, s{sXo}, {XA + g.lp('X')}\ns_add_u32 s47, s46, 32768")
        e(f"s_lshl_b32 s48, s{sTile}, 11\ns_lshl_b32 s43, s{sNj2}, 7\ns_add_u32 s48, s48, s43\ns_add_u32 s48, s48, {STA + LP}")
        def addp(tt, p):
            for q in range(4):
                src = vM + (tt*2 + p)*4 + q; a = acc(1, 2*p + (q >> 1), tt) + 2*(q & 1)
                e(f"v_lshlrev_b32 v{vU+2*q}, 16, v{src}\nv_and_b32 v{vU+2*q+1}, 0xffff0000, v{src}")
            for q in range(4):
                a = acc(1, 2*p + (q >> 1), tt) + 2*(q & 1)
                e(f"v_pk_add_f32 {vr(a,2)}, {vr(a,2)}, {vr(vU+2*q,2)}")
        e(f"s_cmp_lg_u32 s{sLay}, 0\ns_cbranch_scc1 Lfinal")
        for p in range(2):
            for tt in range(2):
                addp(tt, p); cvt(e, 1, tt, p)
                e.vm(f"buffer_store_dwordx4 {vr(Pk(tt,p),4)}, v{vOT}, {R(sWS)}, s{46+tt} offen offset:{1024*p} sc1", 'OUT5')
        stats_epilogue(e, Pk, 2, 2, vL, 128, sWS, 48, aux='sc1', sm0=64, tag='OUT5')
        g.stamp()
        e(f"s_lshl_b32 s77, s{sMi2}, 7\ns_add_u32 s77, s77, {FL + H4*128}\ns_mov_b32 s{sLay}, 1\ns_mov_b32 s{sLo}, {hex(LP)}")
        g.signal('OUT5', 77, nx.pre)
        nx.window()
        e("s_branch Llayer\nLfinal:")
        e(f"v_and_b32 v128, 15, v{vL}\nv_lshlrev_b32 v128, 12, v128\nv_bfe_u32 v129, v{vL}, 4, 1\nv_lshl_add_u32 v128, v129, 5, v128\nv_lshrrev_b32 v129, 5, v{vL}\nv_lshl_add_u32 v128, v129, 4, v128")
        e(f"s_and_b32 s43, s{sTile}, 63\ns_lshl_b32 s43, s43, 16\ns_lshr_b32 s46, s{sTile}, 6\ns_lshl_b32 s46, s46, 11\ns_add_u32 s46, s46, s43\ns_lshl_b32 s43, s{sNj2}, 7\ns_add_u32 s46, s46, s43\ns_add_u32 s47, s46, 65536")
        for p in range(2):
            for tt in range(2):
                addp(tt, p); cvt(e, 1, tt, p); r = Pk(tt, p)
                e(f"s_nop 1\nv_permlane16_swap_b32 v{r}, v{r+2}\nv_permlane16_swap_b32 v{r+1}, v{r+3}")
                e(f"buffer_store_dwordx4 {vr(r,4)}, v128, {R(sOut)}, s{46+tt} offen offset:{64*p} {c.get('faux', '')}")
        g.stamp()
```

```python
from mg import *
sSide, sDst, sOn = 100, 101, 3
sWhen, sWoT = 88, 89
sSr = 84
aS = 176
vOff = 238; vAcc, vT = 100, 108
CSX = 139264 + 4096
class Side:
    def __init__(self, g): self.g = g
    def skip(self):
        l = self.g.lab("sd"); self.g.e(f"s_cmp_eq_u32 s{sOn}, 0\ns_cbranch_scc1 {l}"); return l
    def setup(self):
        e = self.g.e
        e(f"s_lshr_b32 s46, s2, 3\ns_cmp_ge_u32 s46, 14\ns_cselect_b32 s44, 14, 0\ns_cselect_b32 s45, 1, 0")
        e(f"s_cselect_b32 s{sSr}, s{sWu}, s{sWg}\ns_cselect_b32 s{sSr+1}, s{sWu+1}, s{sWg+1}\ns_mov_b32 s{sSr+2}, {D*F*2}\ns_mov_b32 s{sSr+3}, 0x20000")
        e(f"s_sub_u32 s44, s46, s44\ns_bfe_u32 s47, s2, 0x20001\ns_mul_i32 s47, s47, 14\ns_add_u32 s44, s44, s47\ns_and_b32 s47, s2, 1")
        e(f"s_lshl_b32 s48, s47, 1\ns_add_u32 s48, s48, s45\ns_mul_i32 s48, s48, {F*4}\ns_lshl_b32 s49, s44, 8\ns_add_u32 s48, s48, s49\ns_add_u32 s{sDst}, s48, {CSG}")
        e(f"s_lshl_b32 s47, s47, 2\ns_add_u32 s47, s47, s{sWave}\ns_mul_i32 s47, s47, {64*2*F}\ns_lshl_b32 s44, s44, 7\ns_add_u32 s{sSide}, s47, s44")
        e(f"s_cmp_lt_u32 s46, 28\ns_cselect_b32 s{sOn}, 1, 0\ns_cmp_eq_u32 s{sLay}, 0\ns_cselect_b32 s{sOn}, s{sOn}, 0")
        e(f"v_lshrrev_b32 v{vOff}, 3, v{vL}\nv_mul_u32_u24 v{vOff}, {2*F}, v{vOff}\nv_and_b32 v{vOff+1}, 7, v{vL}\nv_lshl_add_u32 v{vOff}, v{vOff+1}, 4, v{vOff}")
        e(f"s_cmp_eq_u32 s{sOn}, 0\ns_cselect_b32 s43, 0x40000000, 0\nv_or_b32 v{vOff}, s43, v{vOff}\nv_lshlrev_b32 v{vOff+1}, 4, v{vL}")
        e(f"s_lshl_b32 s43, s2, 2\ns_add_u32 s43, s43, s{sWave}\ns_lshl_b32 s{sWoT}, s43, 11")
        e(f"s_mul_i32 s43, s46, 43\ns_lshr_b32 s43, s43, 8\ns_mul_i32 s43, s43, 6\ns_sub_u32 s43, s46, s43\ns_add_u32 s43, s43, 4")
        if self.g.cfg.get('sidesync'): e("s_mov_b32 s43, 9")
        e(f"s_cmp_eq_u32 s{sLay}, 0\ns_cselect_b32 s{sWhen}, s43, 63")
    def disable(self):
        self.g.e(f"s_mov_b32 s{sSr}, s{sWg}\ns_mov_b32 s{sSr+1}, s{sWg+1}\ns_mov_b32 s{sSr+2}, {D*F*2}\ns_mov_b32 s{sSr+3}, 0x20000\ns_mov_b32 s{sOn}, 0\ns_mov_b32 s{sWhen}, 63\ns_mov_b32 s{sSide}, 0\nv_mov_b32 v{vOff}, 0x40000000")
    def loads_tracked(self):
        r = Rec(self.g.e)
        for q in range(8):
            r.vm(f"buffer_load_dwordx4 {ar(aS+32+4*q,4)}, v{vOff}, {R(sSr)}, s{sSide} offen"); r(f"s_add_u32 s{sSide}, s{sSide}, {8*2*F}")
        return r.ops
    def hook(self, sSt, k):
        self.g.e(f"s_cmp_eq_u32 s{sSt}, s{sWhen}\ns_cbranch_scc0 Lside_skip{k}\ns_call_b64 s[78:79], Lside_sub\nLside_skip{k}:")
    def subroutine(self):
        e = self.g.e
        e(f"Lside_sub:\nbuffer_load_dwordx4 a[240:243], v{vOff+1}, {R(sWo)}, s{sWoT} offen\ns_add_u32 s{sWoT}, s{sWoT}, 1024\ns_cmp_ge_u32 s{sWhen}, 10\ns_cbranch_scc1 Lside_b")
        e(f"s_cmp_lg_u32 s{sWave}, 0\ns_cbranch_scc1 Lside_a\ns_and_b32 s43, s2, 1\ns_lshl_b32 s43, s43, 7"); self.g.arrive(sDbg, 43); e("Lside_a:")
        for b in range(2):
            for q in range(8 if b == 0 or not self.g.cfg.get('sideB', 0) else 0): e(f"buffer_load_dwordx4 {ar(aS+32*b+4*q,4)}, v{vOff}, {R(sSr)}, s{sSide} offen\ns_add_u32 s{sSide}, s{sSide}, {8*2*F}")
            e(f"s_add_u32 s{sSide}, s{sSide}, {(512-64)*2*F*(1-b)}\ns_add_u32 s{sWhen}, s{sWhen}, 6\ns_setpc_b64 s[78:79]")
            if b == 0: e("Lside_b:")
    def half(self, b):
        e = self.g.e
        for q in range(8):
            for r in range(4): e(f"v_accvgpr_read_b32 v{vT+4+r}, a{aS+32*b+4*q+r}")
            self.g.colsum_acc(vT+4, 1, vAcc, vT, b == 0 and q == 0)
    def acc(self):
        l = self.skip(); self.half(0); self.g.e(f"{l}:")
    def publish(self):
        l = self.skip(); self.half(1); self.g.colsum_publish(vAcc, vT, CSX); self.g.e(f"{l}:")
    def final(self):
        e = self.g.e
        e(f"s_cmp_eq_u32 s{sWave}, 1\ns_cselect_b32 s{sOn}, s{sOn}, 0")
        l = self.skip(); self.g.colsum_final(vT, CSX, sDst); e(f"{l}:")
    def arrive(self):
        l = self.skip(); self.g.e(f"s_bfe_u32 s43, s2, 0x20001\ns_lshl_b32 s43, s43, 7\ns_add_u32 s43, s43, {FL + HC*128}"); self.g.arrive(sWS, 43); self.g.e(f"{l}:")
```

```python
from mg import *
from p1 import P1
from p24 import P24
from p3 import P3
from side import Side
from p4s import P4S

def build(cfg):
    g = G(cfg); e = g.e
    p1, p2, p3, p4 = P1(g), P24(g, False), P3(g), P4S(g)
    p1.p4 = p4
    p1.side = p2.side = Side(g)
    e(f"s_cmp_lt_u32 s2, 256\ns_cbranch_scc1 Lgo\ns_endpgm\nLgo:")
    e("s_load_dwordx16 s[60:75], s[0:1], 0\ns_load_dwordx4 s[76:79], s[0:1], 64")
    if g.diag: e("s_mov_b32 s95, 0\nv_mov_b32 v254, 0\nv_mov_b32 v255, 0\ns_mov_b32 m0, 0")
    e(f"v_lshrrev_b32 v1, 6, v0\nv_and_b32 v{vL}, 63, v0\nv_readfirstlane_b32 s{sWave}, v1\nv_mov_b32 v{vZ}, 0")
    e(f"s_mov_b32 s{sLay}, 0\ns_mov_b32 s{sLo}, 0")
    e(f"s_and_b32 s44, s2, 1\ns_bfe_u32 s45, s2, 0x20001\ns_lshr_b32 s46, s2, 3")
    e(f"s_lshl_b32 s47, s44, 3\ns_and_b32 s43, s46, 7\ns_add_u32 s{sMi1}, s47, s43\ns_lshl_b32 s43, s45, 2\ns_lshr_b32 s{sHj}, s46, 3\ns_add_u32 s{sHj}, s{sHj}, s43")
    e(f"s_and_b32 s43, s45, 1\ns_lshl_b32 s43, s43, 2\ns_add_u32 s{sMi2}, s47, s43\ns_and_b32 s48, s46, 3\ns_add_u32 s{sMi2}, s{sMi2}, s48")
    e(f"s_lshr_b32 s43, s45, 1\ns_lshl_b32 s43, s43, 3\ns_lshr_b32 s49, s46, 2\ns_add_u32 s{sNj2}, s43, s49")
    e(f"s_lshl_b32 s43, s44, 2\ns_add_u32 s{sMi3}, s43, s48\ns_lshl_b32 s43, s45, 3\ns_add_u32 s{sNj3}, s43, s49")
    e(f"v_lshrrev_b32 v2, 3, v{vL}\nv_bfe_u32 v3, v{vL}, 1, 2\nv_lshrrev_b32 v4, 4, v{vL}\nv_xor_b32 v3, v3, v4\nv_and_b32 v4, 1, v{vL}")
    e(f"v_lshlrev_b32 v2, 11, v2\nv_lshl_add_u32 v2, v3, 5, v2\nv_lshl_add_u32 v{vOW2}, v4, 4, v2")
    e("s_waitcnt lgkmcnt(0)")
    srd(e, sAs, 60, S*D*2); srd(e, sWq, 62, D*3*D*2); srd(e, sWS, 78, WS_BYTES)
    srd(e, sWo, 64, D*D*2); srd(e, sWg, 68, D*F*2); srd(e, sWu, 70, D*F*2); srd(e, sWd, 72, F*D*2); srd(e, sOut, 74, S*D*2); srd(e, sDbg, 76, 256)
    e(f"s_getpc_b64 s[0:1]\nLpc0:\ns_lshr_b32 s43, s2, 3\ns_lshl_b32 s43, s43, 2\ns_add_u32 s43, s43, s{sWave}\ns_and_b32 s43, s43, 63\ns_lshl_b32 s43, s43, 10")
    e(f"s_add_u32 s0, s0, s43\ns_addc_u32 s1, s1, 0\ns_and_b32 s0, s0, 0xffffff80\nv_lshlrev_b32 v2, 4, v{vL}")
    e.vm("global_load_dwordx4 a[240:243], v2, s[0:1]")
    if cfg.get('tlb', 0):
        sh = cfg.get('tlbsh', 15)
        e(f"s_lshr_b32 s43, s2, 3\ns_lshl_b32 s43, s43, 21\nv_lshlrev_b32 v2, {sh}, v0\nv_cmp_gt_u32 vcc, 0x200000, v2\nv_mov_b32 v3, 0x40000000\nv_lshlrev_b32 v4, 21, v0\nv_cndmask_b32 v2, v3, v2, vcc")
        e.vm(f"buffer_load_dword v245, v2, {R(sWS)}, s43 offen sc1")
        for i, sr_ in enumerate((sOut, sWo, sWd)): e.vm(f"buffer_load_dword v{242+i}, v4, {R(sr_)}, 0 offen sc1")
    g.stamp()
    p1.prep_and_start()
    e("s_branch Lp1_common")
    e("Llayer:")
    p1.start_l2()
    e("Lp1_common:")
    p1.main(p2)
    p2.main(p3)
    p3.main(p4)
    p4.main(p1, p3)
    e("Lend:")
    if g.diag:
        e("s_waitcnt vmcnt(0)"); g.stamp()
        e(f"s_lshl_b32 s43, s2, 2\ns_add_u32 s43, s43, s{sWave}\ns_lshl_b32 s43, s43, 9\ns_add_u32 s43, s43, {hex(DIAG)}\nv_lshlrev_b32 v0, 3, v{vL}")
        e(f"buffer_store_dwordx2 v[254:255], v0, {R(sWS)}, s43 offen")
    e("s_endpgm")
    p1.side.subroutine()
    e("Lcode_end:\n.fill (Lpc0 + 65536 - Lcode_end)/4, 4, 0xbf810000")
    hdr = open("/code/" + NAME + ".s.ref").read().split("; Override launch")[0]
    hdr += f"; generated by gen/mega.py (persistent kernel, one workgroup per CU)\n; @launch grid=(256,1,1) block=(256,1,1) lds={LDS_BYTES}\n"
    return hdr + '.amdgcn_target "amdgcn-amd-amdhsa--gfx950"\n.text\n' + entry(NAME + "_kernel") + e.text() + '.section .rodata,"a"\n' + kd(NAME + "_kernel")
if __name__ == "__main__":
    cfg = json.loads(sys.argv[2]) if len(sys.argv) > 2 else {}
    open(sys.argv[1], "w").write(build(cfg))
```

```python
from mg import *
W_RING, A_RING, HALO, PW = 0, 73728, 122880, 139264
CSX = PW + 4096
sHalf, sHd, sAb, sWb, sAi, sMA, sMW, sInc0, sInc1, sSt, sLead, sA, sW, sW2, sT0, sHt, sHb, sOwn, sHead, sPW = range(57, 77)
Q = lambda j, t: (j*4 + t - 1)*4
Kc = lambda j, t: 32 + (j*5 + t)*4
V = lambda j, t: 72 + (j*5 + t)*4
vT, vH, vW, vOA, vOW, vOH = 112, 114, 116, 120, 124, 126
vST = 128; vCS = 168; vMu, vRs = 188, 194; vMuV, vRsV = 200, 220; tmp = 240
bC, bP, bP0, ones = 128, 132, 136, 160
MSK = PW + 6144 + 4096
fT = lambda b, kk, t: b*88 + kk*20 + t*4
fW = lambda b, kk, n: b*88 + 40 + kk*24 + n*4
class P1:
    def __init__(self, g): self.g = g; self.c = g.cfg.get('p1', {})
    def setup(self, l1):
        e = self.g.e
        e(f"s_lshr_b32 s{sHalf}, s{sWave}, 1\ns_and_b32 s{sHd}, s{sWave}, 1\ns_lshl_b32 s{sT0}, s{sMi1}, 3")
        e(f"s_add_u32 s{sLead}, s{sMi1}, s{sHj}\ns_and_b32 s{sLead}, s{sLead}, 3")
        if not self.c.get('jump', 1): e(f"s_mov_b32 s{sLead}, 7")
        e(f"s_lshl_b32 s{sMA}, s{sWave}, 12\ns_mul_i32 s{sMW}, s{sWave}, 6144\ns_add_u32 s{sPW}, s{sMW}, {PW}")
        e(f"s_and_b32 s43, s{sMi1}, 7\ns_cmp_lg_u32 s43, 0\ns_cselect_b32 s43, 1, 0\ns_sub_u32 s{sHt}, s{sT0}, s43")
        e(f"v_lshrrev_b32 v2, 3, v{vL}\nv_bfe_u32 v3, v{vL}, 1, 2\nv_lshrrev_b32 v4, 4, v{vL}\nv_xor_b32 v3, v3, v4\nv_and_b32 v5, 1, v{vL}")
        if l1:
            e(f"v_lshrrev_b32 v6, 5, v{vL}\nv_lshl_add_u32 v6, v6, 2, v2")
            e(f"s_lshl_b32 s43, s{sHalf}, 5\ns_lshl_b32 s44, s{sHd}, 2\ns_add_u32 s43, s43, s44")
        else:
            e(f"v_mov_b32 v6, v2\ns_lshl_b32 s43, s{sWave}, 4")
        e(f"v_mul_u32_u24 v6, 6144, v6\nv_lshl_add_u32 v6, v3, 5, v6\nv_lshl_add_u32 v{vOW}, v5, 4, v6\nv_add_u32 v{vOW+1}, {(16 if l1 else 8)*6144-1024}, v{vOW}")
        e(f"s_mul_i32 s43, s43, 6144\ns_lshl_b32 s{sWb}, s{sHj}, 7\ns_add_u32 s{sWb}, s{sWb}, s43")
        e(f"v_and_b32 v3, 7, v{vL}\ns_lshl_b32 s43, s{sWave}, 1\ns_add_u32 s43, s43, s{sT0}")
        if l1:
            for q in range(4):
                e(f"v_add_u32 v5, {4*(q&1)}, v4\nv_xor_b32 v5, v5, v3\nv_lshlrev_b32 v5, 4, v5\nv_lshl_add_u32 v5, v2, 12, v5\nv_add_u32 v{vOA+q}, {q*(32768-1024)}, v5")
            e(f"v_and_b32 v5, 6, v2\nv_xor_b32 v5, v5, v3\nv_lshlrev_b32 v5, 4, v5\nv_lshl_add_u32 v5, v2, 12, v5\nv_add_u32 v{vOH}, 32768, v5")
            e(f"s_lshr_b32 s44, s{sMi1}, 3\ns_lshl_b32 s44, s44, 11\ns_and_b32 s43, s43, 63\ns_lshl_b32 s43, s43, 16\ns_add_u32 s{sAb}, s43, s44")
            e(f"s_and_b32 s43, s{sHt}, 63\ns_lshl_b32 s43, s43, 16\ns_add_u32 s{sHb}, s43, s44\ns_movk_i32 s{sAi}, 128")
        else:
            e(f"v_lshlrev_b32 v{vOA}, 4, v{vL}\nv_mov_b32 v{vOA+1}, v{vOA}\nv_add_u32 v{vOA+2}, {32768-2048}, v{vOA}\nv_add_u32 v{vOA+3}, {32768-2048}, v{vOA}")
            e(f"v_lshlrev_b32 v5, 8, v2\nv_lshl_add_u32 v5, v3, 4, v5\nv_add_u32 v{vOH}, 128, v5")
            e(f"s_lshl_b32 s43, s43, 15\ns_mov_b32 s44, {XA + self.g.lp('X')}\ns_add_u32 s{sAb}, s43, s44\ns_lshl_b32 s43, s{sHt}, 15\ns_add_u32 s{sHb}, s43, s44\ns_movk_i32 s{sAi}, 2048")
    def setup_reads(self, l1):
        e = self.g.e
        e(f"v_and_b32 v2, 15, v{vL}\nv_lshrrev_b32 v3, 4, v{vL}\nv_and_b32 v4, 7, v{vL}")
        if l1:
            e(f"v_lshrrev_b32 v5, 1, v2\nv_xor_b32 v5, v5, v3\nv_lshlrev_b32 v5, 4, v5\nv_lshl_add_u32 v6, v2, 7, v5\nv_xor_b32 v7, 64, v6")
            e(f"v_and_b32 v5, 6, v4\nv_xor_b32 v5, v5, v3\nv_lshlrev_b32 v5, 4, v5\nv_lshl_add_u32 v8, v4, 7, v5\nv_xor_b32 v9, 64, v8")
        else:
            e(f"v_lshlrev_b32 v6, 4, v{vL}\nv_add_u32 v7, 1024, v6\nv_lshlrev_b32 v5, 7, v3\nv_lshl_add_u32 v8, v4, 4, v5\nv_add_u32 v9, 512, v8")
        e(f"s_lshl_b32 s43, s{sHalf}, 13\ns_add_u32 s43, s43, {A_RING}\nv_add_u32 v{vT}, s43, v6\nv_add_u32 v{vT+1}, s43, v7")
        e(f"s_cmp_eq_u32 s{sHalf}, 0\ns_cselect_b64 vcc, 0, -1\ns_movk_i32 s43, 1024\ns_cselect_b32 s{sInc0}, s43, 16384\ns_cselect_b32 s{sInc1}, s43, -32768")
        e(f"s_mov_b32 s43, {HALO}\ns_cselect_b32 s43, s43, {A_RING + 3*2048}")
        e(f"v_cndmask_b32 v8, v8, v6, vcc\nv_cndmask_b32 v9, v9, v7, vcc\nv_add_u32 v{vH}, s43, v8\nv_add_u32 v{vH+1}, s43, v9")
        e(f"v_lshrrev_b32 v2, 2, v{vL}\nv_bfe_u32 v3, v{vL}, 3, 2\nv_and_b32 v4, 3, v{vL}\nv_lshlrev_b32 v4, 3, v4\nv_lshl_add_u32 v4, v2, 7, v4")
        e(f"s_lshl_b32 s43, s{sHd}, 1\nv_xor_b32 v5, s43, v3\nv_lshl_add_u32 v{vW}, v5, 5, v4\nv_xor_b32 v5, 1, v5\nv_lshl_add_u32 v{vW+1}, v5, 5, v4")
        e(f"v_add_u32 v{vW+2}, {2*24576}, v{vW}\nv_add_u32 v{vW+3}, {2*24576}, v{vW+1}")
    def zero_acc(self):
        for r in range(112): self.g.e(f"v_mov_b32 v{r}, 0")
    def sig_static(self, s): return [f"s_cmp_eq_u32 s{sLead}, {s & 3}", f"s_cselect_b32 s44, {(s+4) & 15}, {s}"]
    def offA(self): return [f"s_mul_i32 s45, s44, s{sAi}", f"s_add_u32 s{sA}, s45, s{sAb}"]
    def offW(self): return [f"s_mul_i32 s45, s44, {64*6144}", f"s_add_u32 s{sW}, s45, s{sWb}", f"s_add_u32 s{sW2}, s{sW}, 4096"]
    def a_ops(self, s):
        e = self.g.e
        return [(f"s_add_u32 m0, s{sMA}, {A_RING + (s % 3)*16384}" if q == 0 else None,
                 lambda q=q: e.vm(f"buffer_load_dwordx4 v{vOA+q}, {R(sAs)}, s{sA} offen offset:{1024*q} sc1 lds", ('S', s))) for q in range(4)]
    def w_ops(self, s):
        e = self.g.e
        return [(f"s_add_u32 m0, s{sMW}, {W_RING + (s % 3)*24576 + q*1024}" if q in (0, 4) else None,
                 lambda q=q: e.vm(f"buffer_load_dwordx4 v{vOW + (q&1)}, {R(sWq)}, s{sW if q < 4 else sW2} offen offset:{1024*(q&3)} lds", ('S', s))) for q in range(6)]
    def run(self, pre, ops):
        e = self.g.e
        for x in pre: e(x)
        for m, f in ops:
            if m: e(m + "\ns_nop 0")
            f()
    def prefetch_w(self, a=0, n=3):
        for s in range(a, n): self.run(self.sig_static(s) + self.offW(), self.w_ops(s))
    def halo(self, i):
        e = self.g.e
        e(f"s_cmp_eq_u32 s{sLead}, s{sWave}\ns_cselect_b32 s44, {(4*i+4) & 15}, {4*i}\ns_add_u32 s44, s44, s{sWave}\ns_mul_i32 s44, s44, s{sAi}")
        e(f"s_lshl_b32 s45, s{sWave}, 10\ns_add_u32 m0, s45, {HALO + i*4096}\ns_add_u32 s44, s44, s{sHb}")
        e.vm(f"buffer_load_dwordx4 v{vOH}, {R(sAs)}, s44 offen sc1 lds", ('H', i))
    def first_a(self):
        self.halo(0); self.run(self.sig_static(0) + self.offA(), self.a_ops(0))
    def prep_and_start(self, kernargs, more, rest):
        g = self.g; e = g.e
        e(f"s_mul_i32 s{sPW}, s{sWave}, 6144\ns_add_u32 s{sPW}, s{sPW}, {PW}\ns_mov_b32 m0, s{sPW}")
        e(f"s_lshr_b32 s80, s2, 2\ns_bfe_u32 s81, s2, 0x10001\ns_lshl_b32 s81, s81, 2\ns_add_u32 s81, s81, s{sWave}\ns_and_b32 s82, s2, 1")
        e(f"s_lshl_b32 s43, s80, 16\ns_lshl_b32 s44, s82, 11\ns_add_u32 s43, s43, s44\ns_lshl_b32 s44, s81, 8\ns_add_u32 s43, s43, s44")
        e(f"v_lshrrev_b32 v2, 4, v{vL}\nv_and_b32 v3, 15, v{vL}")
        for i in range(4):
            if i == 0: e("v_xor_b32 v5, v2, v3\nv_lshlrev_b32 v5, 4, v5\nv_lshl_add_u32 v6, v2, 12, v5")
            else: e(f"v_xor_b32 v5, {64*i}, v6\nv_add_u32 v{6+i}, {i*(16384-1024)}, v5")
        kernargs()
        for i in range(4): e.vm(f"buffer_load_dwordx4 v{6+i}, {R(sAs)}, s43 offen offset:{1024*i} lds", 'PX')
        more()
        e(f"s_lshr_b32 s46, s2, 3\ns_cmp_ge_u32 s46, 12\ns_cselect_b32 s44, 12, 0\ns_cselect_b32 s45, 2, 0\ns_sub_u32 s44, s46, s44\ns_add_u32 s45, s45, s82")
        e(f"s_lshr_b32 s47, s44, 2\ns_lshl_b32 s47, s47, 4\ns_and_b32 s44, s44, 3\ns_add_u32 s44, s44, s47\ns_bfe_u32 s47, s2, 0x20001\ns_lshl_b32 s47, s47, 2\ns_add_u32 s44, s44, s47")
        e(f"s_mul_i32 s83, s45, {3072*4}\ns_lshl_b32 s47, s44, 8\ns_add_u32 s83, s83, s47\ns_add_u32 s83, s83, {CSQ}")
        e(f"s_lshl_b32 s45, s45, 2\ns_add_u32 s45, s45, s{sWave}\ns_mul_i32 s45, s45, {64*6144}\ns_lshl_b32 s44, s44, 7\ns_add_u32 s45, s45, s44")
        e(f"s_cmp_ge_u32 s46, 24\ns_cselect_b32 s92, 0x40000000, 0\ns_cselect_b32 s45, 0, s45")
        e(f"v_lshrrev_b32 v4, 3, v{vL}\nv_mul_u32_u24 v4, 6144, v4\nv_and_b32 v5, 7, v{vL}\nv_lshl_add_u32 v4, v5, 4, v4\nv_or_b32 v4, s92, v4")
        for q in range(8):
            e.vm(f"buffer_load_dwordx4 {vr(160+4*q,4)}, v4, {R(sWq)}, s45 offen", 'PW'); e(f"s_add_u32 s45, s45, {8*6144}")
        rest()
        e(f"s_lshr_b32 s43, s2, 7\ns_mul_i32 s43, s43, {LP}\ns_and_b32 s44, s2, 127\ns_lshl_b32 s44, s44, 7\ns_add_u32 s43, s43, s44\ns_add_u32 s43, s43, {FL}")
        e.vm(f"buffer_store_dword v{vZ}, v{vZ}, {R(sWS)}, s43 offen sc1")
        self.setup(True); self.setup_reads(True); self.zero_acc(); self.mask_table()
        if self.c.get('early', 0): self.prefetch_w(0, 1); self.first_a()
        e(f"v_and_b32 v128, 15, v{vL}\nv_lshrrev_b32 v129, 5, v{vL}\nv_bfe_u32 v130, v{vL}, 4, 1\nv_lshlrev_b32 v130, 3, v130\nv_lshl_add_u32 v130, v128, 8, v130\nv_add_u32 v130, s{sPW}, v130")
        e.wait(vm='PX')
        for q in range(8):
            e(f"v_add_u32 v131, {2*q}, v129\nv_xor_b32 v131, v131, v128\nv_lshl_add_u32 v131, v131, 4, v130")
            e.ds(f"ds_read_b64 {vr(140+2*q,2)}, v131", 'PX')
        e(f"s_lshl_b32 s43, s82, 6\ns_add_u32 s80, s80, s43\ns_lshl_b32 s43, s80, 15\ns_lshl_b32 s44, s81, 12\ns_add_u32 s43, s43, s44\ns_add_u32 s46, s43, {XA}")
        e(f"s_lshl_b32 s43, s80, 11\ns_lshl_b32 s44, s81, 8\ns_add_u32 s43, s43, s44\ns_add_u32 s47, s43, {STA}\nv_lshlrev_b32 v128, 4, v{vL}")
        e.wait(ds='PX')
        for q in range(4): e.vm(f"buffer_store_dwordx4 {vr(140+4*q,4)}, v128, {R(sWS)}, s46 offen offset:{1024*q} sc1")
        stats_epilogue(e, lambda tt, p: 140 + (tt*2+p)*4, 2, 2, vL, 192, sWS, 47, tile_stride=128, aux='sc1', sm0=84)
        self.side.setup()
        g.stamp()
        if not self.c.get('early', 0): self.prefetch_w(0, 1); self.first_a()
        e.wait(vm='PW')
        g.colsum_acc(160, 8, 216, 224, True); g.colsum_publish(216, 224, CSX)
        e("s_waitcnt lgkmcnt(0)\ns_barrier")
        l = g.lab("pf"); e(f"s_or_b32 s43, s{sWave}, s92\ns_cbranch_scc1 {l}"); g.colsum_final(224, CSX, 83); e(f"{l}:")
        e.vmq.append('PST')
        g.stamp()
        self.enter(True)
    def pre(self):
        e = self.g.e
        e(f"s_mov_b32 s{sAs}, s{sWS}\ns_mov_b32 s{sAs+1}, s{sWS+1}\ns_mov_b32 s{sAs+2}, {hex(WS_BYTES)}")
        self.setup(False); self.prefetch_w(0, self.c.get('wpre', 0)); self.setup_reads(False); self.side.disable()
    def window(self):
        e = self.g.e
        self.prefetch_w(self.c.get('wpre', 0), 3); self.zero_acc()
        e(f"s_lshl_b32 s77, s{sMi1}, 7\ns_add_u32 s77, s77, {FL + H4*128 - 128}\ns_and_b32 s43, s{sMi1}, 7\ns_cmp_eq_u32 s43, 0\ns_cselect_b32 s43, 0x80, 0")
        e(f"v_lshlrev_b32 v249, 7, v{vL}\nv_or_b32 v249, s43, v249")
    def start_l2(self):
        self.g.poll(77, 16, voff=249); self.first_a(); self.enter(False)
    def enter(self, l1):
        e = self.g.e
        if l1: self.prefetch_w(1, 2)
        self.run(self.sig_static(1) + self.offA(), self.a_ops(1))
        e.wait(vm=[('S', 0), ('H', 0), 'PST' if l1 else ('H', 0)]); e("s_barrier")
        for f in self.reads(0): f()
        for h in range(1, 4): self.halo(h)
        if l1: self.prefetch_w(2, 3)
        self.run(self.sig_static(2) + self.offA(), self.a_ops(2))
    def reads(self, s):
        e = self.g.e
        sl = s % 3; b = s & 1
        def rt(t, kk):
            def f():
                if t == 0:
                    e.ds(f"ds_read_b128 {ar(fT(b,kk,0),4)}, v{vH+kk}", ('T', s, 0))
                    e(f"v_add_u32 v{vH+kk}, s{sInc1 if sl == 2 else sInc0}, v{vH+kk}")
                else: e.ds(f"ds_read_b128 {ar(fT(b,kk,t),4)}, v{vT+kk} offset:{sl*16384 + (t-1)*2048}", ('T', s, t))
            return f
        def rw(n, kk, j):
            return lambda: e.ds(f"ds_read_b64_tr_b16 {ar(fW(b,kk,n)+2*j,2)}, v{vW + (n & 1) + (2 if sl == 2 else 0)} offset:{(sl & 1)*24576 + (2*kk+j)*6144 + (n>>1)*2048}", ('W', s, n))
        w = lambda n: [rw(n, kk, j) for kk in range(2) for j in range(2)]
        return w(0) + [rt(t, kk) for t in range(1, 5) for kk in range(2)] + w(1) + [rt(0, 0), rt(0, 1)] + w(2) + w(3) + w(4) + w(5)
    def main(self, p2):
        g = self.g; e = g.e; c = self.c
        BOFF = c.get('BOFF', 12)
        e(f"s_mov_b32 s{sSt}, 3")
        reads = self.reads
        if g.diag and c.get('xdelay'):
            e(f"s_and_b32 s43, s2, 1\ns_andn2_b32 s43, s43, s{sLay}\ns_cbranch_scc0 Lxd2\ns_mov_b32 s43, {c['xdelay']}\nLxd1:\ns_sleep 4\ns_sub_u32 s43, s43, 1\ns_cmp_lg_u32 s43, 0\ns_cbranch_scc1 Lxd1\nLxd2:")
        g.stamp()
        vCk = 127
        nxt = p2.prefetch_ops()
        n_tail = c.get('pf_tail', 8); n_epi = c.get('pf_epi', 14)
        for s in range(16):
            if s % 6 == 0: e.mark(f"p1b{s//6}")
            fill = [[] for _ in range(56)]
            def bar(s=s):
                e.wait(vm=('S', s+1) if s < 15 else None, ds='all'); e("s_barrier")
            fill[BOFF].append(bar)
            if s < 15:
                for k, f in enumerate(reads(s+1)): fill[BOFF + k].append(f)
            if s + 3 < 16:
                sal = [f"s_and_b32 s44, s{sSt}, 3", f"s_cmp_eq_u32 s44, s{sLead}\ns_cselect_b32 s44, 4, 0", f"s_add_u32 s44, s44, s{sSt}", "s_and_b32 s44, s44, 15", f"s_add_u32 s{sSt}, s{sSt}, 1"] + self.offA() + self.offW()
                for k, x in enumerate(sal): fill[k].append(lambda x=x: e(x))
                for k, (m, f) in enumerate(self.a_ops(s+3) + self.w_ops(s+3)):
                    pos = BOFF + 2 + 4*k
                    if m: fill[pos-1].append(lambda m=m: e(m))
                    fill[pos].append(f)
            if s == 12:
                ckl = f"buffer_load_dword v{vCk}, v187, {R(sDbg)}, 0 offen sc1"
                fill[0].append(lambda: e(f"v_and_b32 v187, 1, v{vL}\nv_lshlrev_b32 v187, 7, v187"))
                fill[1].append(lambda: e.vm(ckl, 'CK'))
                r = Rec(e)
                r(f"""s_lshl_b32 s43, s{sHalf}, 2
                s_add_u32 s{sOwn}, s{sT0}, s43
                s_sub_u32 s44, s{sOwn}, 1
                s_cmp_eq_u32 s{sHalf}, 0\ts_cselect_b32 s44, s{sHt}, s44
                s_add_u32 s45, s{sLo}, {STA}
                s_lshl_b32 s44, s44, 11
                s_add_u32 s77, s44, s45
                s_lshl_b32 s44, s{sOwn}, 11
                s_add_u32 s78, s44, s45
                s_add_u32 s79, s78, 4096
                s_lshl_b32 s43, s{sHj}, 1
                s_add_u32 s{sHead}, s43, s{sHd}
                s_lshl_b32 s43, s{sHead}, 7
                s_add_u32 s46, s43, {CSQ}""")
                pour(fill, r.ops, 10, 36); assert not r.ops
                r(f"""v_lshlrev_b32 v{vOA+1}, 3, v{vL}
                v_lshrrev_b32 v{vOA+2}, 3, v{vL}
                v_and_b32 v{vOA+3}, 7, v{vL}
                v_lshlrev_b32 v{vOA+2}, 12, v{vOA+2}
                v_lshl_add_u32 v{vOA+2}, v{vOA+3}, 4, v{vOA+2}
                v_lshlrev_b32 v{vOA}, 4, v{vL}
                v_add_u32 v{vOH}, s{sPW}, v{vOA}""")
                pour(fill, r.ops, 36, 48); assert not r.ops
                fill[47].append(lambda: g.check(vCk, ckl, 128, 'CK'))
                for p in range(4):
                    fill[48 + 2*p + (p > 0)].append(lambda p=p: (e.vm(f"buffer_load_dwordx4 {vr(vMuV+4*p,4)}, v{vOA+2}, {R(sWS)}, s46 offen sc1", 'CS'), e(f"s_add_u32 s46, s46, {3072*4}")))
            if s == 13:
                for t in range(5):
                    so, off = (77, 0) if t == 0 else ((78, 79)[(t-1) >> 1], ((t-1) & 1)*2048)
                    for k in range(4): fill[8*t + 2*k + 1].append(lambda t=t, k=k, so=so, off=off: e.vm(f"buffer_load_dwordx2 {vr(vST + t*8 + 2*k, 2)}, v{vOA+1}, {R(sWS)}, s{so} offen offset:{off + 512*k} sc1", ('ST', t)))
                su = [lambda x=x: e(x) for x in p2.prefetch_setup()]
                if not g.cfg.get('sideB', 0): pour(fill, su, 0, 40)
                r = Rec(e); self.p4.clear_mailbox(r, vOA, tmp)
                pour(fill, r.ops, 30, 48); assert not r.ops
                math = self.math_ops()
                pour(fill, math, 48, 56)
            if s == 14:
                if g.cfg.get('sideB', 0):
                    for k, f in enumerate(self.side.loads_tracked()): fill[(3*k)//2].append(f)
                pour(fill, math, 0, 56)
            if s == 15:
                pour(fill, su, 0, BOFF + 1); assert not su
                for k in range(n_tail):
                    for z, f in enumerate(nxt.pop(0)): fill[BOFF + 1 + 5*k + z].append(f)
                pour(fill, math, 0, 56)
            seq = []; kk = 0
            for n in range(6):
                ts = [1, 2, 3, 4] if n < 2 else [0, 1, 2, 3, 4]
                if n & 1: ts = ts[::-1]
                for t in ts: seq += [(n, t, kk), (n, t, 1-kk)]; kk = 1 - kk
            b = s & 1
            for k, (n, t, kk) in enumerate(seq):
                e.wait(ds=[('W', s, n), ('T', s, t)])
                a = (Q if n < 2 else Kc if n < 4 else V)(n & 1, t)
                x, y = ar(fW(b, kk, n), 4), ar(fT(b, kk, t), 4)
                if n >= 4: x, y = y, x
                e(f"{MF} {vr(a,4)}, {x}, {y}, {vr(a,4)}")
                for f in fill[k]: f()
            if s < 12: self.side.hook(sSt, s % 6)
        e.fold([f"p1b{k}" for k in range(3)], "Lp1_loop", f"s{sCnt}")
        g.stamp()
        for f in math: f()
        self.epilogue(p2, nxt, n_epi)
    def mask_table(self):
        e = self.g.e; t = 232
        e(f"v_and_b32 v{t+3}, 15, v{vL}\nv_lshrrev_b32 v{t+4}, 4, v{vL}\nv_lshlrev_b32 v{t+4}, 2, v{t+4}\nv_sub_u32 v{t+3}, v{t+3}, v{t+4}\nv_mov_b32 v{t+5}, {fhex(-1e30)}")
        for r in range(4):
            e(f"v_subrev_u32 v{t+6}, {r}, v{t+3}\nv_cmp_gt_u32 vcc, 8, v{t+6}\nv_add_u32 v{t+6}, 16, v{t+6}\nv_cmp_gt_u32 s[78:79], 8, v{t+6}")
            e(f"v_cndmask_b32 v{132+r}, v{t+5}, 0, vcc\ns_nop 0\nv_cndmask_b32 v{136+r}, v{t+5}, 0, s[78:79]")
        e(f"v_lshlrev_b32 v{t}, 4, v{vL}\nv_add_u32 v{t}, {MSK}, v{t}\nds_write_b128 v{t}, v[132:135]\nds_write_b128 v{t}, v[136:139] offset:1024")
    def math_ops(self):
        r = Rec(self.g.e); vG16, vT4 = vOW, vOW + 1
        r(f"v_lshrrev_b32 v{vG16}, 4, v{vL}\nv_lshlrev_b32 v{vG16}, 4, v{vG16}\nv_and_b32 v{vT4}, 15, v{vL}\nv_lshlrev_b32 v{vT4}, 2, v{vT4}")
        r(f"v_add_u32 v{vG16}, s{sPW}, v{vG16}\nv_add_u32 v{vT4}, s{sPW}, v{vT4}\nv_add_u32 v{vOA+3}, {MSK}, v{vOA}")
        r.wait(vm='CS')
        for x in range(4): r(f"v_add_f32 v{vMuV+x}, v{vMuV+x}, v{vMuV+4+x}\nv_add_f32 v{vMuV+8+x}, v{vMuV+8+x}, v{vMuV+12+x}")
        for x in range(4): r(f"v_add_f32 v{vMuV+x}, v{vMuV+x}, v{vMuV+8+x}")
        r.ds(f"ds_write_b128 v{vOH}, {vr(vMuV,4)} offset:1024")
        for m in range(2):
            for j in range(2): r.ds(f"ds_read_b128 {vr(vCS + m*8 + j*4, 4)}, v{vG16} offset:{1024 + m*128 + 64*j}", 'CSR')
        for j in range(2): r.ds(f"ds_read_b32 v{vCS+16+j}, v{vT4} offset:{1024 + 256 + 64*j}", 'CSR')
        for t in range(5):
            p = vST + t*8
            r.wait(vm=('ST', t))
            r(f"v_add_f32 v{p}, v{p}, v{p+2}\nv_add_f32 v{p+1}, v{p+1}, v{p+3}\nv_add_f32 v{p+4}, v{p+4}, v{p+6}\nv_add_f32 v{p+5}, v{p+5}, v{p+7}")
            r(f"v_add_f32 v{vMu+t}, v{p}, v{p+4}\nv_add_f32 v{vRs+t}, v{p+1}, v{p+5}")
        r.ds(f"ds_read_b128 {vr(bC,4)}, v{vOA+3}", 'MK'); r.ds(f"ds_read_b128 {vr(bP,4)}, v{vOA+3} offset:1024", 'MK')
        xreduce_g(r, "v_add_f32", [vMu+t for t in range(5)] + [vRs+t for t in range(5)], list(range(tmp, tmp+10)))
        r(f"s_mov_b32 s48, {fhex(1.0/D)}\nv_mov_b32 v{tmp}, {fhex(1e-5)}")
        for t in range(5):
            r(f"v_mul_f32 v{vMu+t}, {fhex(-1.0/D)}, v{vMu+t}\nv_fma_f32 v{vRs+t}, v{vRs+t}, s48, v{tmp}")
            r(f"v_fma_f32 v{vRs+t}, -v{vMu+t}, v{vMu+t}, v{vRs+t}\nv_max_f32 v{vRs+t}, v{vRs+t}, v{tmp}\nv_rsq_f32 v{vRs+t}, v{vRs+t}")
            r.ds(f"ds_write_b32 v{vT4}, v{vMu+t} offset:{t*128}")
            r.ds(f"ds_write_b32 v{vT4}, v{vRs+t} offset:{t*128+64}")
        for t in range(5):
            r.ds(f"ds_read_b128 {vr(vMuV+4*t,4)}, v{vG16} offset:{t*128}", 'TB')
            r.ds(f"ds_read_b128 {vr(vRsV+4*t,4)}, v{vG16} offset:{t*128+64}", 'TB')
        r(f"s_and_b32 s43, s{sMi1}, 7\ns_or_b32 s43, s43, s{sHalf}\ts_cselect_b64 s[46:47], -1, 0\nv_mov_b32 v{tmp+5}, {fhex(-1e30)}")
        r.wait(ds='MK')
        for x in range(4): r(f"v_cndmask_b32 v{bP0+x}, v{tmp+5}, v{bP+x}, s[46:47]\nv_mov_b32 v{ones+x}, 0x3f803f80")
        return r.ops
    def epilogue(self, p2, nxt, n_epi):
        g = self.g; e = g.e
        left = [n_epi]
        def pf():
            if left[0] > 0 and nxt:
                left[0] -= 1
                for f in nxt.pop(0): f()
        e.wait(ds='CSR')
        def bsel(reg): return reg & ~1, reg & 1
        qf = lambda t: Q(0, t); kf = lambda t: Kc(0, t)
        def fold_qk(A, t, cs):
            mb_, ms = bsel(vMu + t); rb, rs = bsel(vRs + t)
            for j in range(2):
                for h in range(2): e(f"v_pk_fma_f32 {vr(A(j,t)+2*h,2)}, {vr(cs+4*j+2*h,2)}, {vr(mb_,2)}, {vr(A(j,t)+2*h,2)} op_sel:[0,{ms},0] op_sel_hi:[1,{ms},1]")
            for j in range(2):
                for h in range(2): e(f"v_pk_mul_f32 {vr(A(j,t)+2*h,2)}, {vr(A(j,t)+2*h,2)}, {vr(rb,2)} op_sel:[0,{rs}] op_sel_hi:[1,{rs}]")
            for j in range(2):
                for h in range(2): e(f"v_cvt_pk_bf16_f32 v{A(0,t)+2*j+h}, v{A(j,t)+2*h}, v{A(j,t)+2*h+1}")
        for t in range(5):
            fold_qk(Kc, t, vCS + 8); pf()
        for t in range(1, 5):
            fold_qk(Q, t, vCS); pf()
        Sp = lambda t: Q(1, t); Sc = lambda t: Kc(1, t)
        e("s_nop 1")
        for t in range(1, 5):
            e(f"{MF} {vr(Sp(t),4)}, {vr(kf(t-1),4)}, {vr(qf(t),4)}, {vr(bP0 if t == 1 else bP,4)}")
            e(f"{MF} {vr(Sc(t),4)}, {vr(kf(t),4)}, {vr(qf(t),4)}, {vr(bC,4)}")
        vp = lambda j, t: 140 + j*10 + 2*t
        e.wait(ds='TB')
        cb = vCS + 16
        for t in range(5):
            for j in range(2):
                for h in range(2): e(f"v_pk_fma_f32 {vr(V(j,t)+2*h,2)}, {vr(vMuV+4*t+2*h,2)}, {vr(cb,2)}, {vr(V(j,t)+2*h,2)} op_sel:[0,{j},0] op_sel_hi:[1,{j},1]")
            for j in range(2):
                for h in range(2): e(f"v_pk_mul_f32 {vr(V(j,t)+2*h,2)}, {vr(V(j,t)+2*h,2)}, {vr(vRsV+4*t+2*h,2)}")
            for j in range(2):
                for h in range(2): e(f"v_cvt_pk_bf16_f32 v{vp(j,t)+h}, v{V(j,t)+2*h}, v{V(j,t)+2*h+1}")
            if t & 1 == 0: pf()
        mx = lambda t: tmp + t - 1
        for k in range(4):
            for t in range(1, 5):
                p, c_ = Sp(t), Sc(t)
                e([f"v_max3_f32 v{mx(t)}, v{p}, v{p+1}, v{p+2}", f"v_max3_f32 v{mx(t)}, v{mx(t)}, v{p+3}, v{c_}", f"v_max3_f32 v{mx(t)}, v{mx(t)}, v{c_+1}, v{c_+2}", f"v_max_f32 v{mx(t)}, v{mx(t)}, v{c_+3}"][k])
        xreduce_g(e, "v_max_f32", [mx(t) for t in range(1, 5)], list(range(tmp+4, tmp+8)))
        pf()
        cexp = LOG2E*(32 ** -0.5)
        e(f"s_mov_b32 s46, {fhex(cexp)}")
        for t in range(1, 5): e(f"v_mul_f32 v{mx(t)}, {fhex(-cexp)}, v{mx(t)}")
        pfr = qf
        for t in range(1, 5):
            for b4 in (Sp(t), Sc(t)):
                for r in range(4): e(f"v_fma_f32 v{b4+r}, v{b4+r}, s46, v{mx(t)}")
            for b4 in (Sp(t), Sc(t)):
                for r in range(4): e(f"v_exp_f32 v{b4+r}, v{b4+r}")
            for q, b4 in enumerate((Sp(t), Sc(t))):
                for h in range(2): e(f"v_cvt_pk_bf16_f32 v{pfr(t)+2*q+h}, v{b4+2*h}, v{b4+2*h+1}")
            if t < 3: pf()
        while left[0] > 0 and nxt: pf()
        O = V; Dn = lambda t: Kc(0, t)
        e("s_nop 1")
        for t in range(1, 5):
            e(f"{MF} {vr(Dn(t),4)}, {vr(ones,4)}, {vr(pfr(t),4)}, 0")
            for j in range(2): e(f"{MF} {vr(O(j,t),4)}, {vr(vp(j,t-1),4)}, {vr(pfr(t),4)}, 0")
        e(f"s_lshl_b32 s43, s{sOwn}, 15\ns_lshl_b32 s44, s{sHead}, 10\ns_add_u32 s43, s43, s44\ns_add_u32 s43, s43, {g.lo('O')}\ns_add_u32 s46, s43, {OB}")
        for t in range(1, 4): e(f"s_add_u32 s{46+t}, s{46+t-1}, 32768")
        for t in range(1, 5): e(f"v_rcp_f32 v{Dn(t)}, v{Dn(t)}")
        for t in range(1, 5):
            for j in range(2):
                for h in range(2): e(f"v_pk_mul_f32 {vr(O(j,t)+2*h,2)}, {vr(O(j,t)+2*h,2)}, {vr(Dn(t),2)} op_sel:[0,0] op_sel_hi:[1,0]")
            for j in range(2):
                for h in range(2): e(f"v_cvt_pk_bf16_f32 v{Sp(t)+2*j+h}, v{O(j,t)+2*h}, v{O(j,t)+2*h+1}")
            e.vm(f"buffer_store_dwordx4 {vr(Sp(t),4)}, v{vOA}, {R(sWS)}, s{46+t-1} offen sc1", 'OUT')
        g.stamp()
        e(f"s_lshl_b32 s77, s{sMi1}, 7\ns_add_u32 s77, s77, s{sLo}\ns_add_u32 s77, s77, {FL + H1*128}")
        g.signal('OUT', 77, p2.pre)
        p2.window(nxt)
```

```python
from mg import *
from p1 import P1
from p24 import P24
from p3 import P3
from side import Side
from p4s import P4S

def build(cfg):
    g = G(cfg); e = g.e
    p1, p2, p3, p4 = P1(g), P24(g, False), P3(g), P4S(g)
    p1.p4 = p4
    p1.side = p2.side = Side(g)
    if g.diag: e("s_memtime s[96:97]\ns_memrealtime s[98:99]")
    srds = [(sAs, 0, S*D*2), (sWq, 8, D*3*D*2), (sWS, 72, WS_BYTES), (sWo, 16, D*D*2), (sWg, 32, D*F*2), (sWu, 40, D*F*2), (sWd, 48, F*D*2), (sOut, 56, S*D*2), (sDbg, 64, 256)]
    e(f"s_cmp_lt_u32 s2, 256\ns_cbranch_scc1 Lgo\ns_endpgm\nLgo:")
    for r, off, n in srds[:2]: e(f"s_load_dwordx2 s[{r}:{r+1}], s[0:1], {off}")
    e(f"s_getpc_b64 s[44:45]\nLpc0:\ns_bfe_u32 s43, s2, 0x40003\ns_lshl_b32 s43, s43, 12\nv_lshl_add_u32 v2, v0, 4, s43\ns_and_b32 s44, s44, 0xffffff80")
    e.vm("global_load_dwordx4 a[240:243], v2, s[44:45]")
    e(f"v_lshrrev_b32 v1, 6, v0\nv_and_b32 v{vL}, 63, v0\nv_readfirstlane_b32 s{sWave}, v1\nv_mov_b32 v{vZ}, 0")
    for r, off, n in srds[:2]: e(f"s_mov_b32 s{r+2}, {hex(n)}\ns_mov_b32 s{r+3}, 0x20000")
    def kernargs():
        e("s_waitcnt lgkmcnt(0)")
        if g.diag: e("v_mov_b32 v254, 0\nv_mov_b32 v255, 0\nv_writelane_b32 v254, s96, 0\nv_writelane_b32 v255, s98, 0\ns_mov_b32 s95, 1")
        if cfg.get('st0'): g.stamp()
    def more():
        for r, off, n in srds[2:]: e(f"s_load_dwordx2 s[{r}:{r+1}], s[0:1], {off}")
    def rest():
        for r, off, n in srds[2:]: e(f"s_mov_b32 s{r+2}, {hex(n)}\ns_mov_b32 s{r+3}, 0x20000")
        e(f"s_mov_b32 s{sLay}, 0\ns_mov_b32 s{sLo}, 0")
        e(f"s_and_b32 s44, s2, 1\ns_bfe_u32 s45, s2, 0x20001\ns_lshr_b32 s46, s2, 3")
        e(f"s_lshl_b32 s47, s44, 3\ns_and_b32 s43, s46, 7\ns_add_u32 s{sMi1}, s47, s43\ns_lshl_b32 s43, s45, 2\ns_lshr_b32 s{sHj}, s46, 3\ns_add_u32 s{sHj}, s{sHj}, s43")
        e(f"s_and_b32 s43, s45, 1\ns_lshl_b32 s43, s43, 2\ns_add_u32 s{sMi2}, s47, s43\ns_and_b32 s48, s46, 3\ns_add_u32 s{sMi2}, s{sMi2}, s48")
        e(f"s_lshr_b32 s43, s45, 1\ns_lshl_b32 s43, s43, 3\ns_lshr_b32 s49, s46, 2\ns_add_u32 s{sNj2}, s43, s49")
        e(f"s_lshl_b32 s43, s44, 2\ns_add_u32 s{sMi3}, s43, s48\ns_lshl_b32 s43, s45, 3\ns_add_u32 s{sNj3}, s43, s49")
        e(f"v_lshrrev_b32 v2, 3, v{vL}\nv_bfe_u32 v3, v{vL}, 1, 2\nv_lshrrev_b32 v4, 4, v{vL}\nv_xor_b32 v3, v3, v4\nv_and_b32 v4, 1, v{vL}")
        e(f"v_lshlrev_b32 v2, 11, v2\nv_lshl_add_u32 v2, v3, 5, v2\nv_lshl_add_u32 v{vOW2}, v4, 4, v2\ns_waitcnt lgkmcnt(0)")
    p1.prep_and_start(kernargs, more, rest)
    e("s_branch Lp1_common")
    e("Llayer:")
    p1.start_l2()
    e("Lp1_common:")
    p1.main(p2)
    p2.main(p3)
    p3.main(p4)
    p4.main(p1, p3)
    e("Lend:")
    if g.diag:
        e("s_waitcnt vmcnt(0)"); g.stamp()
        e(f"s_lshl_b32 s43, s2, 2\ns_add_u32 s43, s43, s{sWave}\ns_lshl_b32 s43, s43, 9\ns_add_u32 s43, s43, {hex(DIAG)}\nv_lshlrev_b32 v0, 3, v{vL}")
        e(f"buffer_store_dwordx2 v[254:255], v0, {R(sWS)}, s43 offen")
    e("s_endpgm")
    p1.side.subroutine()
    e("Lcode_end:\n.fill (Lpc0 + 65536 - Lcode_end)/4, 4, 0xbf810000")
    hdr = open("/code/" + NAME + ".s.ref").read().split("; Override launch")[0]
    hdr += f"; generated by gen/mega.py (persistent kernel, one workgroup per CU)\n; @launch grid=(256,1,1) block=(256,1,1) lds={LDS_BYTES}\n"
    return hdr + '.amdgcn_target "amdgcn-amd-amdhsa--gfx950"\n.text\n' + entry(NAME + "_kernel") + e.text() + '.section .rodata,"a"\n' + kd(NAME + "_kernel")
if __name__ == "__main__":
    cfg = json.loads(sys.argv[2]) if len(sys.argv) > 2 else {}
    open(sys.argv[1], "w").write(build(cfg))
```

```python
import sys, json
from emit import *
from common import fhex, srd, xreduce_g, LOG2E, S, D, F, WS_BYTES, HPITCH
from res import stats_epilogue
NAME = "interleave_layers__sliding_local_dilated__swiglu_ffn__prompt"
LP = 0x2400000
XA, XB, OB, HB, STA, STB, FL = 0, 0x400000, 0x800000, 0xC00000, 0x1A00000, 0x1A40000, 0x1A80000
CSQ, CSG = 0x1AB0000, 0x1AA0000
PB = 0x1B00000
PB2 = 0x1F00000
DIAG = 0x5000000
H1, H2, H4, HC, H3 = 0, 32, 40, 56, 64
LDS_BYTES = 163840
sWS, sWq, sWo, sWg, sWu, sWd, sAs, sOut, sDbg = 4, 8, 12, 16, 20, 24, 28, 32, 36
sWave, sLay, sLo = 40, 41, 42
sMi1, sHj, sMi2, sNj2, sMi3, sNj3 = 50, 51, 52, 53, 54, 55
sCnt = 56
vL, vOW2, vZ = 253, 252, 251
R = lambda s: f"s[{s}:{s+3}]"
MF = "v_mfma_f32_16x16x32_bf16"

class G:
    def __init__(self, cfg):
        self.cfg = cfg; self.e = E(); self.diag = cfg.get('diag', False); self.nlab = 0; self.px = cfg.get('px', 2)
    def lo(self, b): return '0' if b in self.cfg.get('reuse', 'H') else f's{sLo}'
    def lp(self, b): return 0 if b in self.cfg.get('reuse', 'H') else LP
    def touch(self, vlane16, dst, track=True):
        if not self.cfg.get('touch2', 0): return
        (self.e.vm if track else self.e)(f"global_load_dwordx4 {dst}, v{vlane16}, s[0:1]")
    def lab(self, p):
        self.nlab += 1; return f"L{p}{self.nlab}"
    def stamp(self):
        if not self.diag: return
        self.e("s_memtime s[96:97]\ns_memrealtime s[98:99]\ns_waitcnt lgkmcnt(0)\nv_writelane_b32 v254, s96, s95\nv_writelane_b32 v255, s98, s95\ns_add_u32 s95, s95, 1".replace(
            "v_writelane_b32 v254, s96, s95\nv_writelane_b32 v255, s98, s95", "s_mov_b32 s94, m0\ns_mov_b32 m0, s95\nv_writelane_b32 v254, s96, m0\nv_writelane_b32 v255, s98, m0\ns_mov_b32 m0, s94"))
    def reset_q(self):
        e = self.e; e.vm_done = len(e.vmq); e.ds_done = len(e.dsq)
    def signal(self, stores, line_s, pre=None):
        e = self.e; l = self.lab("sig")
        if pre: pre()
        e.wait(vm=stores); self.stamp(); e("s_barrier")
        e(f"s_cmp_lg_u32 s{sWave}, 0\ns_cbranch_scc1 {l}\nv_mov_b32 v250, 1\ns_mov_b64 exec, 1")
        e(f"buffer_atomic_add v250, v{vZ}, {R(sWS)}, s{line_s} offen sc1\ns_mov_b64 exec, -1\n{l}:")
    def poll(self, line_s, count, voff=None):
        e = self.e; l = self.lab("pol"); d = self.lab("pdn")
        e(f"s_cmp_lg_u32 s{sWave}, 0\ns_cbranch_scc1 {d}\ns_mov_b32 s43, 0x40000\ns_mov_b64 exec, {3 if voff else 1}\n{l}:")
        e(f"buffer_load_dword v250, v{voff or vZ}, {R(sWS)}, s{line_s} offen sc1\ns_waitcnt vmcnt(0)\nv_cmp_gt_u32 vcc, {count}, v250")
        e(f"s_cbranch_vccz {d}\ns_sub_u32 s43, s43, 1\ns_cmp_lg_u32 s43, 0\ns_cbranch_scc1 {l}\n{d}:\ns_mov_b64 exec, -1\ns_waitcnt vmcnt(0) lgkmcnt(0)\ns_barrier")
        self.reset_q(); self.stamp()
    def check(self, vreg, load, count, tag):
        e = self.e; l = self.lab("chk"); d = self.lab("cdn")
        e.wait(vm=tag)
        e(f"v_cmp_gt_u32 vcc, {count}, v{vreg}\ns_cbranch_vccz {d}\ns_mov_b32 s43, 0x40000\n{l}:")
        e(f"s_sleep 8\n{load}\ns_waitcnt vmcnt(0)\nv_cmp_gt_u32 vcc, {count}, v{vreg}")
        e(f"s_cbranch_vccz {d}\ns_sub_u32 s43, s43, 1\ns_cmp_lg_u32 s43, 0\ns_cbranch_scc1 {l}\n{d}:")
    def arrive(self, srd_, soff):
        self.e(f"v_mov_b32 v250, 1\ns_mov_b64 exec, 1\nbuffer_atomic_add v250, v{vZ}, {R(srd_)}, s{soff} offen sc1\ns_mov_b64 exec, -1")
    def colsum_acc(self, src, n, acc, t, first):
        e = self.e
        for q in range(n):
            for r in range(4):
                s_ = src + 4*q + r
                if first and q == 0: e(f"v_lshlrev_b32 v{acc+2*r}, 16, v{s_}\nv_and_b32 v{acc+2*r+1}, 0xffff0000, v{s_}")
                else: e(f"v_lshlrev_b32 v{t}, 16, v{s_}\nv_and_b32 v{t+1}, 0xffff0000, v{s_}\nv_pk_add_f32 {vr(acc+2*r,2)}, {vr(acc+2*r,2)}, {vr(t,2)}")
    def colsum_publish(self, acc, t, lds):
        e = self.e
        xreduce_g(e, "v_add_f32", list(range(acc, acc+8)), list(range(t, t+8)))
        e(f"v_and_b32 v{t}, 7, v{vL}\ns_lshl_b32 s43, s{sWave}, 8\ns_add_u32 s43, s43, {lds}")
        for r in range(8): e(f"v_add_f32_dpp v{acc+r}, v{acc+r}, v{acc+r} row_ror:8 row_mask:0xf bank_mask:0xf")
        e(f"v_lshl_add_u32 v{t}, v{t}, 5, s43\nds_write_b128 v{t}, {vr(acc,4)}\nds_write_b128 v{t}, {vr(acc+4,4)} offset:16")
    def colsum_final(self, t, lds, dst_s):
        e = self.e
        e(f"v_lshlrev_b32 v{t}, 2, v{vL}\nv_add_u32 v{t+1}, {lds}, v{t}")
        for w in range(4): e(f"ds_read_b32 v{t+2+w}, v{t+1} offset:{256*w}")
        e(f"s_waitcnt lgkmcnt(0)\nv_add_f32 v{t+2}, v{t+2}, v{t+3}\nv_add_f32 v{t+4}, v{t+4}, v{t+5}\nv_add_f32 v{t+2}, v{t+2}, v{t+4}")
        e(f"buffer_store_dword v{t+2}, v{t}, {R(sWS)}, s{dst_s} offen sc1")


class Rec:
    def __init__(self, e): self.e = e; self.ops = []
    def __call__(self, s):
        for x in s.split("\n"):
            x = x.strip()
            if x:
                f = lambda x=x: self.e(x.replace("\t", "\n"))
                f.sc = x.startswith("s_") and "\tv_" not in x; self.ops.append(f)
    def vm(self, s, tag=None): self.ops.append(lambda: self.e.vm(s, tag))
    def ds(self, s, tag=None): self.ops.append(lambda: self.e.ds(s, tag))
    def wait(self, **k):
        f = lambda: self.e.wait(**k)
        f.sc = True; self.ops.append(f)
    def call(self, f): self.ops.append(f)

def pour(fill, ops, lo, hi, cap=2, step=1):
    k = lo
    while ops and k < hi:
        while ops and len(fill[k]) < cap: fill[k].append(ops.pop(0))
        k += step

def space(fill, ops, isvm, first=2):
    n = len(fill); nv = sum(isvm(f) for f in ops)
    if not nv: return
    pend = []; k = 0; prev = 0
    for f in ops:
        if isvm(f):
            pos = min(first + (k*n)//nv, n - 1); k += 1
            for z, x in enumerate(pend): fill[max(prev, pos - len(pend) + z)].append(x)
            pend = []; fill[pos].append(f); prev = pos
        else: pend.append(f)
    for z, x in enumerate(pend): fill[min(prev + 1 + z, n - 1)].append(x)

class Slots:
    def __init__(self, n): self.n = n; self.sc = [[] for _ in range(n)]; self.ve = [[] for _ in range(n)]
    def load(self, k): return max(0, len(self.sc[k]) - 1) + len(self.ve[k])
    def pour(self, ops, lo, hi, cap=2, partial=False):
        k = lo; vec_here = False
        while ops:
            if partial and k >= hi: break
            assert k < hi, ("stream does not fit", len(ops))
            if getattr(ops[0], 'sc', False):
                if not vec_here and not self.sc[k]: self.sc[k].append(ops.pop(0)); continue
                if self.load(k) < cap and (k + 1 >= hi or self.sc[k+1] or (len(ops) > 1 and getattr(ops[1], 'sc', False))): self.ve[k].append(ops.pop(0)); vec_here = True; continue
            elif self.load(k) < cap: self.ve[k].append(ops.pop(0)); vec_here = True; continue
            k += 1; vec_here = False
        return k
    def emit(self, k):
        for f in self.sc[k] + self.ve[k]: f()
```

```python
import re
def regs(tok):
    m = re.fullmatch(r"-?(?:abs\()?([sva])\[(\d+):(\d+)\]\)?", tok)
    if m: return {m.group(1) + str(i) for i in range(int(m.group(2)), int(m.group(3)) + 1)}
    m = re.fullmatch(r"-?(?:abs\()?([sva]\d+)\)?", tok)
    if m: return {m.group(1)}
    if tok in ("m0", "vcc", "exec"): return {tok}
    return set()
class I:
    def __init__(s, t):
        s.t = t; p = t.split(None, 1); s.op = p[0]
        a = [x.strip() for x in p[1].split(",")] if len(p) > 1 else []
        if a: a[-1:] = a[-1].split()
        s.a = a; op = s.op
        s.mfma = op.startswith("v_mfma"); s.wait = op == "s_waitcnt"
        s.ctl = t.endswith(":") or t.startswith(".") or op in ("s_barrier", "s_endpgm", "s_sleep", "s_setpc_b64", "s_call_b64", "s_getpc_b64") or op.startswith(("s_cbranch", "s_branch", "s_load", "s_memtime", "s_memreal"))
        s.ds = op.startswith("ds_"); s.vm = op.startswith(("buffer_", "global_"))
        s.valu = op.startswith("v_") and not s.mfma
        s.salu = op.startswith("s_") and not s.ctl and not s.wait and op != "s_nop"
        s.nop = op == "s_nop"
        s.trans = bool(re.match(r"v_(exp|rcp|rsq|log|sqrt)_", op)); s.pk = op.startswith("v_pk_")
        R = [regs(x) for x in a]; allr = set().union(*R) if R else set()
        s.lds = s.vm and "lds" in a
        if s.salu:
            if op.startswith(("s_cmp", "s_bitcmp")): s.w, s.r = {"scc"}, allr
            else:
                s.w, s.r = set(R[0]), set().union(*R[1:]) if len(R) > 1 else set()
                if not op.startswith(("s_mov", "s_mul_i32", "s_cselect")): s.w |= {"scc"}
                if op.startswith(("s_cselect", "s_addc", "s_subb")): s.r |= {"scc"}
        elif s.valu or s.mfma:
            s.w, s.r = set(R[0]), set().union(*R[1:]) if len(R) > 1 else set()
            if op.startswith(("v_fmac", "v_writelane")): s.r |= R[0]
            if op.startswith(("v_permlane", "v_swap")): s.w, s.r = set(allr), set(allr)
            s.r |= {"exec"}
        elif s.ds:
            if op.startswith("ds_read"): s.w, s.r = set(R[0]), set().union(*R[1:])
            else: s.w, s.r = set(), allr
            s.r |= {"exec"}
        elif s.vm:
            if "load" in op and not s.lds: s.w, s.r = set(R[0]), set().union(*R[1:])
            else: s.w, s.r = set(), allr
            s.r |= {"exec"} | ({"m0"} if s.lds else set())
        else: s.w, s.r = set(), allr
    @property
    def scalar(s): return s.salu or s.wait or s.nop
def gap_cost(g):
    t = 4; prev = None
    for x in g:
        if (x.ds or x.vm) and prev is not None: t += 8 if prev.valu else 4 if (prev.ds and x.ds) else 0
        prev = x
        if x.scalar or x.ctl:
            if x.ctl and (x.t.endswith(":") or x.t.startswith(".")): continue
            t += 4*(int(x.a[0]) + 1) if x.nop else 4
        else:
            t = max(t, 28 if x.pk else 8) + (8 if x.trans else 4)
    return max(t, 16)
def cnts(w): return {k: int(v) for k, v in re.findall(r"(\w+cnt)\((\d+)\)", w.t)}
def pack(L):
    P = [I(t) for t in L]
    idx = [i for i, x in enumerate(P) if x.mfma]
    gaps = [P[:idx[0]]] + [P[a+1:b] for a, b in zip(idx, idx[1:] + [len(P)])]
    M = [P[i] for i in idx]
    moved = 0
    for _ in range(2):
        for k in range(1, len(gaps) - 1):
            g = gaps[k]
            if len(g) > 20 or gap_cost(g) <= 16: continue
            if g and not (g[0].scalar or g[0].ctl):
                j = next((j for j, x in enumerate(g) if x.scalar or x.ctl), None)
                if j is not None and not g[j].ctl and not g[j].nop:
                    x = g[j]; front = g[:j]; ok = False
                    if x.salu: ok = all(not (x.w & (v.r | v.w)) and not (x.r & v.w) for v in front) and not ("m0" in x.w and front[0].lds)
                    else:
                        c = cnts(x); nv = sum(v.vm for v in front); nd = sum(v.ds for v in front)
                        if c.get("vmcnt", 99) >= nv and c.get("lgkmcnt", 99) >= nd:
                            x = I("s_waitcnt " + " ".join(f"{n}({v - (nv if n == 'vmcnt' else nd)})" for n, v in c.items())); ok = True
                    n = [x] + front + g[j+1:]
                    if ok and gap_cost(n) < gap_cost(g): gaps[k] = g = n; moved += 1
            for j in range(1, len(g)):
                x = g[j]; i = j
                if not (x.ds or x.vm): continue
                while i > 0 and g[i-1].valu and not (x.r & g[i-1].w) and not (x.w & (g[i-1].r | g[i-1].w)): i -= 1
                if i < j and not (i > 0 and x.lds and "m0" in g[i-1].w):
                    n = g[:i] + [x] + g[i:j] + g[j+1:]
                    if gap_cost(n) < gap_cost(g): gaps[k] = g = n; moved += 1
            nx = gaps[k+1]
            if gap_cost(g) > 16 and g[-1].salu and "exec" not in g[-1].w and len(nx) <= 8 and not ("m0" in g[-1].w and nx and nx[0].lds):
                if gap_cost(g[:-1]) + gap_cost([g[-1]] + nx) < gap_cost(g) + gap_cost(nx):
                    gaps[k+1] = [g[-1]] + nx; gaps[k] = g[:-1]; moved += 1
    out = [x.t for x in gaps[0]]
    for m, g in zip(M, gaps[1:]): out += [m.t] + [x.t for x in g]
    return out, moved
def report(L, names):
    P = [I(t) for t in L]; cur = None; res = {}; g = None
    def close():
        if g is not None and cur and len(g) <= 30:
            r = res.setdefault(cur, [0, 0]); r[0] += 1; r[1] += gap_cost(g)
    for x in P:
        if x.mfma: close(); g = []
        else:
            if x.t.rstrip(":") in names: close(); g = None; cur = x.t.rstrip(":")
            elif g is not None: g.append(x)
    return {k: (n, c, c - 16*n) for k, (n, c) in res.items()}
def check(L):
    P = [I(t) for t in L if not (t.endswith(":") or t.startswith(".") or t.startswith(";"))]
    bad = []
    for i, x in enumerate(P):
        d = 0
        for y in P[i+1:i+14]:
            need = 0; vw = {r for r in x.w if r[0] in "va" and r != "vcc"}; sw = x.w - vw - {"scc"}
            if x.mfma:
                if y.mfma:
                    c = regs(y.a[3]); ab = regs(y.a[1]) | regs(y.a[2])
                    if vw & ab: need = 8
                    elif vw & c and vw != c: need = 6
                elif (y.valu or y.ds or y.vm) and vw & (y.r | y.w): need = 8
                elif y.valu and regs(x.a[3]) & y.w: need = 3
            elif x.valu:
                if y.mfma and vw & y.r: need = 2
                if y.op.startswith("v_permlane") and vw & y.r: need = 2
                if "_dpp" in y.op and vw & y.r: need = 2
                if y.op.startswith(("v_readfirstlane", "v_readlane")) and vw & y.r: need = 1
                if x.trans and y.valu and not y.trans and vw & y.r: need = 1
                if y.valu and sw & y.r: need = 2
                if y.vm and sw & y.r: need = 5
            elif x.salu and "m0" in x.w and y.lds: need = 1
            elif x.vm and "store_dwordx4" in x.op and y.valu and regs(x.a[0]) & y.w: need = 2
            if d < need: bad.append((i, x.t, y.t, d, need))
            if y.op in ("s_branch", "s_endpgm", "s_setpc_b64"): break
            d += int(y.a[0]) + 1 if y.nop else 1
    return bad
```

```python
from mg import *
W_RING, A_RING, HALO, PW = 0, 73728, 122880, 139264
CSX = PW + 4096
sHalf, sHd, sAb, sWb, sAi, sMA, sMW, sInc0, sInc1, sSt, sLead, sA, sW, sW2, sT0, sHt, sHb, sOwn, sHead, sPW = range(57, 77)
Q = lambda j, t: (j*4 + t - 1)*4
Kc = lambda j, t: 32 + (j*5 + t)*4
V = lambda j, t: 72 + (j*5 + t)*4
vT, vH, vW, vOA, vOW, vOH = 112, 114, 116, 120, 124, 126
vST = 128; vCS = 168; vMu, vRs = 188, 194; vMuV, vRsV = 200, 220; tmp = 240
bC, bP, bP0, ones = 128, 132, 136, 160
MSK = PW + 6144 + 4096
fT = lambda b, kk, t: b*88 + kk*20 + t*4
fW = lambda b, kk, n: b*88 + 40 + kk*24 + n*4
class P1:
    def __init__(self, g): self.g = g; self.c = g.cfg.get('p1', {}); self.ntA = self.ntW = ''
    def setup(self, l1):
        e = self.g.e
        e(f"s_lshr_b32 s{sHalf}, s{sWave}, 1\ns_and_b32 s{sHd}, s{sWave}, 1\ns_lshl_b32 s{sT0}, s{sMi1}, 3")
        e(f"s_add_u32 s{sLead}, s{sMi1}, s{sHj}\ns_and_b32 s{sLead}, s{sLead}, 15" if l1 else f"s_mov_b32 s{sLead}, 0")
        e(f"s_lshl_b32 s{sMA}, s{sWave}, 12\ns_mul_i32 s{sMW}, s{sWave}, 6144\ns_add_u32 s{sPW}, s{sMW}, {PW}")
        e(f"s_and_b32 s43, s{sMi1}, 7\ns_cmp_lg_u32 s43, 0\ns_cselect_b32 s43, 1, 0\ns_sub_u32 s{sHt}, s{sT0}, s43")
        e(f"v_lshrrev_b32 v2, 3, v{vL}\nv_bfe_u32 v3, v{vL}, 1, 2\nv_lshrrev_b32 v4, 4, v{vL}\nv_xor_b32 v3, v3, v4\nv_and_b32 v5, 1, v{vL}")
        if l1:
            e(f"v_lshrrev_b32 v6, 5, v{vL}\nv_lshl_add_u32 v6, v6, 2, v2")
            e(f"s_lshl_b32 s43, s{sHalf}, 5\ns_lshl_b32 s44, s{sHd}, 2\ns_add_u32 s43, s43, s44")
        else:
            e(f"v_mov_b32 v6, v2\ns_lshl_b32 s43, s{sWave}, 4")
        e(f"v_mul_u32_u24 v6, 6144, v6\nv_lshl_add_u32 v6, v3, 5, v6\nv_lshl_add_u32 v{vOW}, v5, 4, v6\nv_add_u32 v{vOW+1}, {(16 if l1 else 8)*6144-1024}, v{vOW}")
        e(f"s_mul_i32 s43, s43, 6144\ns_lshl_b32 s{sWb}, s{sHj}, 7\ns_add_u32 s{sWb}, s{sWb}, s43")
        e(f"v_and_b32 v3, 7, v{vL}\ns_lshl_b32 s43, s{sWave}, 1\ns_add_u32 s43, s43, s{sT0}")
        if l1:
            for q in range(4):
                e(f"v_add_u32 v5, {4*(q&1)}, v4\nv_xor_b32 v5, v5, v3\nv_lshlrev_b32 v5, 4, v5\nv_lshl_add_u32 v5, v2, 12, v5\nv_add_u32 v{vOA+q}, {q*(32768-1024)}, v5")
            e(f"v_and_b32 v5, 6, v2\nv_xor_b32 v5, v5, v3\nv_lshlrev_b32 v5, 4, v5\nv_lshl_add_u32 v5, v2, 12, v5\nv_add_u32 v{vOH}, 32768, v5")
            e(f"s_lshr_b32 s44, s{sMi1}, 3\ns_lshl_b32 s44, s44, 11\ns_and_b32 s43, s43, 63\ns_lshl_b32 s43, s43, 16\ns_add_u32 s{sAb}, s43, s44")
            e(f"s_and_b32 s43, s{sHt}, 63\ns_lshl_b32 s43, s43, 16\ns_add_u32 s{sHb}, s43, s44\ns_movk_i32 s{sAi}, 128")
        else:
            e(f"v_lshlrev_b32 v{vOA}, 4, v{vL}\nv_mov_b32 v{vOA+1}, v{vOA}\nv_add_u32 v{vOA+2}, {32768-2048}, v{vOA}\nv_add_u32 v{vOA+3}, {32768-2048}, v{vOA}")
            e(f"v_lshlrev_b32 v5, 8, v2\nv_lshl_add_u32 v5, v3, 4, v5\nv_add_u32 v{vOH}, 128, v5")
            e(f"s_lshl_b32 s43, s43, 15\ns_mov_b32 s44, {XA + self.g.lp('X')}\ns_add_u32 s{sAb}, s43, s44\ns_lshl_b32 s43, s{sHt}, 15\ns_add_u32 s{sHb}, s43, s44\ns_movk_i32 s{sAi}, 2048")
    def setup_reads(self, l1):
        e = self.g.e
        e(f"v_and_b32 v2, 15, v{vL}\nv_lshrrev_b32 v3, 4, v{vL}\nv_and_b32 v4, 7, v{vL}")
        if l1:
            e(f"v_lshrrev_b32 v5, 1, v2\nv_xor_b32 v5, v5, v3\nv_lshlrev_b32 v5, 4, v5\nv_lshl_add_u32 v6, v2, 7, v5\nv_xor_b32 v7, 64, v6")
            e(f"v_and_b32 v5, 6, v4\nv_xor_b32 v5, v5, v3\nv_lshlrev_b32 v5, 4, v5\nv_lshl_add_u32 v8, v4, 7, v5\nv_xor_b32 v9, 64, v8")
        else:
            e(f"v_lshlrev_b32 v6, 4, v{vL}\nv_add_u32 v7, 1024, v6\nv_lshlrev_b32 v5, 7, v3\nv_lshl_add_u32 v8, v4, 4, v5\nv_add_u32 v9, 512, v8")
        e(f"s_lshl_b32 s43, s{sHalf}, 13\ns_add_u32 s43, s43, {A_RING}\nv_add_u32 v{vT}, s43, v6\nv_add_u32 v{vT+1}, s43, v7")
        e(f"s_cmp_eq_u32 s{sHalf}, 0\ns_cselect_b64 vcc, 0, -1\ns_movk_i32 s43, 1024\ns_cselect_b32 s{sInc0}, s43, 16384\ns_cselect_b32 s{sInc1}, s43, -32768")
        e(f"s_mov_b32 s43, {HALO}\ns_cselect_b32 s43, s43, {A_RING + 3*2048}")
        e(f"v_cndmask_b32 v8, v8, v6, vcc\nv_cndmask_b32 v9, v9, v7, vcc\nv_add_u32 v{vH}, s43, v8\nv_add_u32 v{vH+1}, s43, v9")
        e(f"v_lshrrev_b32 v2, 2, v{vL}\nv_bfe_u32 v3, v{vL}, 3, 2\nv_and_b32 v4, 3, v{vL}\nv_lshlrev_b32 v4, 3, v4\nv_lshl_add_u32 v4, v2, 7, v4")
        e(f"s_lshl_b32 s43, s{sHd}, 1\nv_xor_b32 v5, s43, v3\nv_lshl_add_u32 v{vW}, v5, 5, v4\nv_xor_b32 v5, 1, v5\nv_lshl_add_u32 v{vW+1}, v5, 5, v4")
        e(f"v_add_u32 v{vW+2}, {2*24576}, v{vW}\nv_add_u32 v{vW+3}, {2*24576}, v{vW+1}")
    def zero_acc(self):
        for r in range(112): self.g.e(f"v_mov_b32 v{r}, 0")
    def sig_static(self, s): return [f"s_add_u32 s44, s{sLead}, {s}", "s_and_b32 s44, s44, 15"]
    def offA(self): return [f"s_mul_i32 s45, s44, s{sAi}", f"s_add_u32 s{sA}, s45, s{sAb}"]
    def offW(self): return [f"s_mul_i32 s45, s44, {64*6144}", f"s_add_u32 s{sW}, s45, s{sWb}", f"s_add_u32 s{sW2}, s{sW}, 4096"]
    def a_ops(self, s):
        e = self.g.e
        return [(f"s_add_u32 m0, s{sMA}, {A_RING + (s % 3)*16384}" if q == 0 else None,
                 lambda q=q: e.vm(f"buffer_load_dwordx4 v{vOA+q}, {R(sAs)}, s{sA} offen offset:{1024*q} sc1 {self.ntA} lds", ('S', s))) for q in range(4)]
    def w_ops(self, s):
        e = self.g.e
        return [(f"s_add_u32 m0, s{sMW}, {W_RING + (s % 3)*24576 + q*1024}" if q in (0, 4) else None,
                 lambda q=q: e.vm(f"buffer_load_dwordx4 v{vOW + (q&1)}, {R(sWq)}, s{sW if q < 4 else sW2} offen offset:{1024*(q&3)} {self.ntW} lds", ('S', s))) for q in range(6)]
    def run(self, pre, ops):
        e = self.g.e
        for x in pre: e(x)
        for m, f in ops:
            if m: e(m + "\ns_nop 0")
            f()
    def prefetch_w(self, a=0, n=3):
        for s in range(a, n): self.run(self.sig_static(s) + self.offW(), self.w_ops(s))
    def halo(self, i):
        e = self.g.e
        e(f"s_add_u32 s44, s{sLead}, s{sWave}\ns_add_u32 s44, s44, {4*i}\ns_and_b32 s44, s44, 15\ns_mul_i32 s44, s44, s{sAi}")
        e(f"s_lshl_b32 s45, s{sWave}, 10\ns_add_u32 m0, s45, {HALO + i*4096}\ns_add_u32 s44, s44, s{sHb}")
        e.vm(f"buffer_load_dwordx4 v{vOH}, {R(sAs)}, s44 offen sc1 lds", ('H', i))
    def first_a(self):
        self.halo(0); self.run(self.sig_static(0) + self.offA(), self.a_ops(0))
    def prep_and_start(self, kernargs, more, rest):
        g = self.g; e = g.e
        self.setup(True)
        kernargs()
        nt = self.c.get('nt0', 0); self.ntA = 'nt' if nt & 1 else ''; self.ntW = 'nt' if nt & 2 else ''
        self.run(self.sig_static(0) + self.offA(), self.a_ops(0)); self.prefetch_w(0, 1); self.halo(0)
        self.ntA = self.ntW = ''
        more(); rest()
        e(f"s_lshr_b32 s43, s2, 7\ns_mul_i32 s43, s43, {LP}\ns_and_b32 s44, s2, 127\ns_lshl_b32 s44, s44, 7\ns_add_u32 s43, s43, s44\ns_add_u32 s43, s43, {FL}")
        e.vm(f"buffer_store_dword v{vZ}, v{vZ}, {R(sWS)}, s43 offen sc1")
        self.setup_reads(True); self.zero_acc(); self.mask_table()
        e(f"v_and_b32 v128, 15, v{vL}\nv_lshrrev_b32 v129, 5, v{vL}\nv_lshrrev_b32 v130, 1, v128\nv_xor_b32 v129, v129, v130\nv_bfe_u32 v130, v{vL}, 4, 1\nv_lshlrev_b32 v130, 3, v130")
        e(f"v_lshl_add_u32 v130, v128, 7, v130\nv_lshl_add_u32 v130, v129, 4, v130\ns_add_u32 s43, s{sMA}, {A_RING}")
        for q in range(4): e(f"v_xor_b32 v{132+q}, {32*q}, v130\nv_add_u32 v{132+q}, s43, v{132+q}")
        e(f"v_lshrrev_b32 v129, 4, v{vL}\nv_lshlrev_b32 v129, 4, v129\nv_mov_b32 v130, 0x40000000\nv_cmp_eq_u32 vcc, 0, v128\ns_lshl_b32 s43, s{sHalf}, 30\ns_xor_b32 s44, s43, 0x40000000")
        e(f"v_cndmask_b32 v129, v130, v129, vcc\nv_or_b32 v136, s43, v129\nv_or_b32 v137, s44, v129\nv_lshlrev_b32 v128, 4, v{vL}")
        for r in range(4): e(f"v_mov_b32 v{156+r}, 0x3f803f80")
        e(f"s_lshl_b32 s43, s{sWave}, 1\ns_add_u32 s43, s43, s{sT0}\ns_lshl_b32 s46, s43, 15\ns_lshl_b32 s47, s{sLead}, 11\ns_add_u32 s46, s46, s47\ns_add_u32 s46, s46, {XA}\ns_add_u32 s47, s46, 32768")
        e(f"s_lshl_b32 s48, s43, 11\ns_lshl_b32 s43, s{sLead}, 7\ns_add_u32 s48, s48, s43\ns_add_u32 s48, s48, {STA}")
        e(f"s_lshl_b32 s43, s{sHj}, 1\ns_add_u32 s43, s43, s{sHd}\ns_lshl_b32 s43, s43, 7\ns_mul_i32 s49, s{sLead}, {3072*4}\ns_add_u32 s49, s49, s43\ns_add_u32 s49, s49, {CSQ}")
        g.stamp()
        def xreads():
            g.stamp()
            for tt in range(2):
                for q in range(4): e.ds(f"ds_read_b64 {vr(140 + tt*8 + 2*q, 2)}, v{132+q} offset:{2048*tt}", 'PX')
        def prep():
            e.wait(ds='all')
            for kk in range(2):
                for n in range(6): e(f"{MF} {vr(160+4*n,4)}, {ar(fW(0,kk,n),4)}, v[156:159], {vr(160+4*n,4) if kk else 0}")
            for tt in range(2):
                for p in range(0 if g.cfg.get('noxa') else 2): e.vm(f"buffer_store_dwordx4 {vr(140+(tt*2+p)*4,4)}, v128, {R(sWS)}, s{46+tt} offen offset:{1024*p} sc1")
            stats_epilogue(e, lambda tt, p: 140 + (tt*2+p)*4, 2, 2, vL, 192, sWS, 48, aux='sc1', sm0=80)
            for n in range(6):
                e.vm(f"buffer_store_dwordx4 {vr(160+4*n,4)}, v{136+(n&1)}, {R(sWS)}, s49 offen offset:{64*(n&1)} sc1")
                if n & 1: e("s_add_u32 s49, s49, 4096")
            self.side.setup()
        self.enter(True, xreads, prep)
    def pre(self):
        e = self.g.e
        e(f"s_mov_b32 s{sAs}, s{sWS}\ns_mov_b32 s{sAs+1}, s{sWS+1}\ns_mov_b32 s{sAs+2}, {hex(WS_BYTES)}")
        self.setup(False); self.prefetch_w(0, self.c.get('wpre', 0)); self.setup_reads(False); self.side.disable()
    def window(self):
        e = self.g.e
        self.prefetch_w(self.c.get('wpre', 0), 3); self.zero_acc()
        e(f"s_lshl_b32 s77, s{sMi1}, 7\ns_add_u32 s77, s77, {FL + H4*128 - 128}\ns_and_b32 s43, s{sMi1}, 7\ns_cmp_eq_u32 s43, 0\ns_cselect_b32 s43, 0x80, 0")
        e(f"v_lshlrev_b32 v249, 7, v{vL}\nv_or_b32 v249, s43, v249")
    def start_l2(self):
        self.g.poll(77, 16, voff=249); self.first_a(); self.enter(False)
    def enter(self, l1, hook=None, hook2=None):
        e = self.g.e; o = self.c.get('ord', 1) if l1 else 0
        if l1 and o == 0: self.prefetch_w(1, 2)
        self.run(self.sig_static(1) + self.offA(), self.a_ops(1))
        e.wait(vm=[('S', 0), ('H', 0)]); e("s_barrier")
        if hook: hook()
        if o == 2: self.prefetch_w(1, 2)
        for f in self.reads(0): f()
        if o == 1: self.prefetch_w(1, 2)
        if o: hook2()
        for h in range(1, 4): self.halo(h)
        if l1: self.prefetch_w(2, 3)
        self.run(self.sig_static(2) + self.offA(), self.a_ops(2))
        if l1 and not o: hook2()
    def reads(self, s):
        e = self.g.e
        sl = s % 3; b = s & 1
        def rt(t, kk):
            def f():
                if t == 0:
                    e.ds(f"ds_read_b128 {ar(fT(b,kk,0),4)}, v{vH+kk}", ('T', s, 0))
                    e(f"v_add_u32 v{vH+kk}, s{sInc1 if sl == 2 else sInc0}, v{vH+kk}")
                else: e.ds(f"ds_read_b128 {ar(fT(b,kk,t),4)}, v{vT+kk} offset:{sl*16384 + (t-1)*2048}", ('T', s, t))
            return f
        def rw(n, kk, j):
            return lambda: e.ds(f"ds_read_b64_tr_b16 {ar(fW(b,kk,n)+2*j,2)}, v{vW + (n & 1) + (2 if sl == 2 else 0)} offset:{(sl & 1)*24576 + (2*kk+j)*6144 + (n>>1)*2048}", ('W', s, n))
        w = lambda n: [rw(n, kk, j) for kk in range(2) for j in range(2)]
        return w(0) + [rt(t, kk) for t in range(1, 5) for kk in range(2)] + w(1) + [rt(0, 0), rt(0, 1)] + w(2) + w(3) + w(4) + w(5)
    def main(self, p2):
        g = self.g; e = g.e; c = self.c
        BOFF = c.get('BOFF', 12)
        e(f"s_mov_b32 s{sSt}, 4")
        for x in self.sig_static(3) + self.offA(): e(x)
        reads = self.reads
        if g.diag and c.get('xdelay'):
            e(f"s_and_b32 s43, s2, 1\ns_andn2_b32 s43, s43, s{sLay}\ns_cbranch_scc0 Lxd2\ns_mov_b32 s43, {c['xdelay']}\nLxd1:\ns_sleep 4\ns_sub_u32 s43, s43, 1\ns_cmp_lg_u32 s43, 0\ns_cbranch_scc1 Lxd1\nLxd2:")
        g.stamp()
        vCk = 127
        nxt = p2.prefetch_ops()
        n_tail = len(nxt)//4; n_epi = c.get('pf_epi', len(nxt)//3); SP = 160//len(nxt)
        carry = []
        for s in range(16):
            if s % 6 == 0: e.mark(f"p1b{s//6}")
            fill = [[] for _ in range(56)]
            def bar(s=s):
                e.wait(vm=('S', s+1) if s < 15 else None, ds='all'); e("s_barrier")
            fill[BOFF].append(bar)
            burst = c.get('burst', 0) and s <= 12
            if burst:
                per = [BOFF + (c.get('span', 52)*p)//10 for p in range(10)]; nr = [4, 3, 4, 3, 3, 4, 3, 4, 3, 3]
                rpos = [per[p] + z for p in range(10) for z in range(nr[p])]; dpos = [per[p] + nr[p] - 1 for p in range(10)]
            else:
                rpos = [BOFF + k for k in range(34)]; dpos = [BOFF + 2 + 4*k for k in range(10)]
            for k, f in carry: fill[k].append(f)
            carry = []
            def put(k, f):
                if k < 56: fill[k].append(f)
                else: carry.append((k - 56, f))
            if s < 15:
                for k, f in enumerate(reads(s+1)): put(rpos[k], f)
            if s + 3 < 16:
                sal = ["s_add_u32 s44, s44, 1", "s_and_b32 s44, s44, 15", f"s_add_u32 s{sSt}, s{sSt}, 1"] + self.offA()
                for k, x in enumerate(self.offW()): fill[k].append(lambda x=x: e(x))
                if s < 12:
                    for k, x in enumerate(sal): fill[(dpos[3] + 1 if burst else 47) + k].append(lambda x=x: e(x))
                for k, (m, f) in enumerate(self.a_ops(s+3) + self.w_ops(s+3)):
                    pos = dpos[k]
                    if m: put(pos-1, lambda m=m: e(m))
                    put(pos, f)
            if s == 12:
                ckl = f"buffer_load_dword v{vCk}, v187, {R(sDbg)}, 0 offen sc1"
                fill[0].append(lambda: e(f"v_and_b32 v187, 1, v{vL}\nv_lshlrev_b32 v187, 7, v187"))
                fill[1].append(lambda: e.vm(ckl, 'CK'))
                r = Rec(e)
                r(f"""s_lshl_b32 s43, s{sHalf}, 2
                s_add_u32 s{sOwn}, s{sT0}, s43
                s_sub_u32 s44, s{sOwn}, 1
                s_cmp_eq_u32 s{sHalf}, 0\ts_cselect_b32 s44, s{sHt}, s44
                s_add_u32 s45, s{sLo}, {STA}
                s_lshl_b32 s44, s44, 11
                s_add_u32 s77, s44, s45
                s_lshl_b32 s44, s{sOwn}, 11
                s_add_u32 s78, s44, s45
                s_add_u32 s79, s78, 4096
                s_lshl_b32 s43, s{sHj}, 1
                s_add_u32 s{sHead}, s43, s{sHd}
                s_lshl_b32 s43, s{sHead}, 7
                s_add_u32 s46, s43, {CSQ}""")
                pour(fill, r.ops, 10, 36); assert not r.ops
                r(f"""v_lshlrev_b32 v{vOA+1}, 3, v{vL}
                v_lshlrev_b32 v{vOA}, 4, v{vL}
                v_add_u32 v{vOH}, s{sPW}, v{vOA}""")
                pour(fill, r.ops, 36, 48); assert not r.ops
                fill[47].append(lambda: g.check(vCk, ckl, 128, 'CK'))
                def csl():
                    e(f"s_cmp_lg_u32 s{sLay}, 0\ns_cbranch_scc1 Lp1_csl\nv_bfe_u32 v{vOA+2}, v{vL}, 3, 2\nv_lshrrev_b32 v{vOA+3}, 5, v{vL}\nv_mad_u32_u24 v{vOA+2}, v{vOA+3}, 3, v{vOA+2}")
                    e(f"v_and_b32 v{vOA+3}, 7, v{vL}\nv_lshlrev_b32 v{vOA+3}, 4, v{vOA+3}\nv_lshl_add_u32 v{vOA+2}, v{vOA+2}, 12, v{vOA+3}")
                    for p in range(8): e(f"buffer_load_dwordx4 {vr(vMuV+4*p,4)}, v{vOA+2}, {R(sWS)}, s46 offen sc1\ns_add_u32 s46, s46, {2*3072*4}")
                    e("Lp1_csl:")
                fill[52].append(csl)
            if s == 13:
                for t in range(5):
                    so, off = (77, 0) if t == 0 else ((78, 79)[(t-1) >> 1], ((t-1) & 1)*2048)
                    for k in range(4): fill[8*t + 2*k + 1].append(lambda t=t, k=k, so=so, off=off: e.vm(f"buffer_load_dwordx2 {vr(vST + t*8 + 2*k, 2)}, v{vOA+1}, {R(sWS)}, s{so} offen offset:{off + 512*k} sc1", ('ST', t)))
                su = [lambda x=x: e(x) for x in p2.prefetch_setup()]
                if not g.cfg.get('sideB', 0): pour(fill, su, 0, 40)
                r = Rec(e); self.p4.clear_mailbox(r, vOA, tmp, f"s{sLo}")
                if g.cfg.get('p2k', 0): r(f"s_lshl_b32 s44, s{sLay}, 30\nv_or_b32 v{tmp+4}, s44, v{vOA}"); p2.clear_mailbox(r, tmp+4, tmp, hex(LP), fill=False)
                pour(fill, r.ops, 30, 56); assert not r.ops
                math = self.math_ops()
                if not g.cfg.get('p2k', 0): pour(fill, math, 48, 56)
            if s == 14:
                if g.cfg.get('sideB', 0):
                    for k, f in enumerate(self.side.loads_tracked()): fill[(3*k)//2].append(f)
                pour(fill, math, 0, 56)
            if s == 15:
                pour(fill, su, 0, BOFF + 1); assert not su
                for k in range(n_tail):
                    op = nxt.pop(0)
                    for z, f in enumerate(op): fill[BOFF + 1 + SP*k + (SP*z)//len(op)].append(f)
                pour(fill, math, 0, 56)
            seq = []; kk = 0
            for n in range(6):
                ts = [1, 2, 3, 4] if n < 2 else [0, 1, 2, 3, 4]
                if n & 1: ts = ts[::-1]
                for t in ts: seq += [(n, t, kk), (n, t, 1-kk)]; kk = 1 - kk
            b = s & 1
            for k, (n, t, kk) in enumerate(seq):
                e.wait(ds=[('W', s, n), ('T', s, t)])
                a = (Q if n < 2 else Kc if n < 4 else V)(n & 1, t)
                x, y = ar(fW(b, kk, n), 4), ar(fT(b, kk, t), 4)
                if n >= 4: x, y = y, x
                e(f"{MF} {vr(a,4)}, {x}, {y}, {vr(a,4)}")
                for f in fill[k]: f()
            if s < 12: self.side.hook(sSt, s % 6)
        e.fold([f"p1b{k}" for k in range(3)], "Lp1_loop", f"s{sCnt}")
        g.stamp()
        for f in math: f()
        self.epilogue(p2, nxt, n_epi)
    def mask_table(self):
        e = self.g.e; t = 232
        e(f"v_and_b32 v{t+3}, 15, v{vL}\nv_lshrrev_b32 v{t+4}, 4, v{vL}\nv_lshlrev_b32 v{t+4}, 2, v{t+4}\nv_sub_u32 v{t+3}, v{t+3}, v{t+4}\nv_mov_b32 v{t+5}, {fhex(-1e30)}")
        for r in range(4):
            e(f"v_subrev_u32 v{t+6}, {r}, v{t+3}\nv_cmp_gt_u32 vcc, 8, v{t+6}\nv_add_u32 v{t+6}, 16, v{t+6}\nv_cmp_gt_u32 s[78:79], 8, v{t+6}")
            e(f"v_cndmask_b32 v{132+r}, v{t+5}, 0, vcc\ns_nop 0\nv_cndmask_b32 v{136+r}, v{t+5}, 0, s[78:79]")
        e(f"v_lshlrev_b32 v{t}, 4, v{vL}\nv_add_u32 v{t}, {MSK}, v{t}\nds_write_b128 v{t}, v[132:135]\nds_write_b128 v{t}, v[136:139] offset:1024")
    def math_ops(self):
        r = Rec(self.g.e); vG16, vT4 = vOW, vOW + 1
        r(f"v_lshrrev_b32 v{vG16}, 4, v{vL}\nv_lshlrev_b32 v{vG16}, 4, v{vG16}\nv_and_b32 v{vT4}, 15, v{vL}\nv_lshlrev_b32 v{vT4}, 2, v{vT4}")
        r(f"v_add_u32 v{vG16}, s{sPW}, v{vG16}\nv_add_u32 v{vT4}, s{sPW}, v{vT4}\nv_add_u32 v{vOA+3}, {MSK}, v{vOA}")
        def css():
            e = self.g.e; e.wait(vm=('ST', 0))
            e(f"s_cmp_lg_u32 s{sLay}, 0\ns_cbranch_scc1 Lp1_css")
            for d in (16, 8, 4):
                for x in range(0, d, 2): e(f"v_pk_add_f32 {vr(vMuV+x,2)}, {vr(vMuV+x,2)}, {vr(vMuV+d+x,2)}")
            for x in range(4): e(f"v_mov_b32 v{vMuV+4+x}, v{vMuV+x}")
            for x in range(4): e(f"v_permlane32_swap_b32 v{vMuV+x}, v{vMuV+4+x}")
            for x in range(4): e(f"v_add_f32 v{vMuV+x}, v{vMuV+x}, v{vMuV+4+x}")
            e(f"ds_write_b128 v{vOH}, {vr(vMuV,4)} offset:1024\nLp1_css:")
        r.call(css)
        for m in range(2):
            for j in range(2): r.ds(f"ds_read_b128 {vr(vCS + m*8 + j*4, 4)}, v{vG16} offset:{1024 + m*128 + 64*j}", 'CSR')
        for j in range(2): r.ds(f"ds_read_b32 v{vCS+16+j}, v{vT4} offset:{1024 + 256 + 64*j}", 'CSR')
        for t in range(5):
            p = vST + t*8
            r.wait(vm=('ST', t))
            r(f"v_add_f32 v{p}, v{p}, v{p+2}\nv_add_f32 v{p+1}, v{p+1}, v{p+3}\nv_add_f32 v{p+4}, v{p+4}, v{p+6}\nv_add_f32 v{p+5}, v{p+5}, v{p+7}")
            r(f"v_add_f32 v{vMu+t}, v{p}, v{p+4}\nv_add_f32 v{vRs+t}, v{p+1}, v{p+5}")
        r.ds(f"ds_read_b128 {vr(bC,4)}, v{vOA+3}", 'MK'); r.ds(f"ds_read_b128 {vr(bP,4)}, v{vOA+3} offset:1024", 'MK')
        xreduce_g(r, "v_add_f32", [vMu+t for t in range(5)] + [vRs+t for t in range(5)], list(range(tmp, tmp+10)))
        r(f"s_mov_b32 s48, {fhex(1.0/D)}\nv_mov_b32 v{tmp}, {fhex(1e-5)}")
        for t in range(5):
            r(f"v_mul_f32 v{vMu+t}, {fhex(-1.0/D)}, v{vMu+t}\nv_fma_f32 v{vRs+t}, v{vRs+t}, s48, v{tmp}")
            r(f"v_fma_f32 v{vRs+t}, -v{vMu+t}, v{vMu+t}, v{vRs+t}\nv_max_f32 v{vRs+t}, v{vRs+t}, v{tmp}\nv_rsq_f32 v{vRs+t}, v{vRs+t}")
            r.ds(f"ds_write_b32 v{vT4}, v{vMu+t} offset:{t*128}")
            r.ds(f"ds_write_b32 v{vT4}, v{vRs+t} offset:{t*128+64}")
        for t in range(5):
            r.ds(f"ds_read_b128 {vr(vMuV+4*t,4)}, v{vG16} offset:{t*128}", 'TB')
            r.ds(f"ds_read_b128 {vr(vRsV+4*t,4)}, v{vG16} offset:{t*128+64}", 'TB')
        r(f"s_and_b32 s43, s{sMi1}, 7\ns_or_b32 s43, s43, s{sHalf}\ts_cselect_b64 s[46:47], -1, 0\nv_mov_b32 v{tmp+5}, {fhex(-1e30)}")
        r.wait(ds='MK')
        for x in range(4): r(f"v_cndmask_b32 v{bP0+x}, v{tmp+5}, v{bP+x}, s[46:47]\nv_mov_b32 v{ones+x}, 0x3f803f80")
        return r.ops
    def epilogue(self, p2, nxt, n_epi):
        g = self.g; e = g.e
        left = [n_epi]
        def pf():
            if left[0] > 0 and nxt:
                left[0] -= 1
                for f in nxt.pop(0): f()
        e.wait(ds='CSR')
        def bsel(reg): return reg & ~1, reg & 1
        qf = lambda t: Q(0, t); kf = lambda t: Kc(0, t)
        def fold_qk(A, t, cs):
            mb_, ms = bsel(vMu + t); rb, rs = bsel(vRs + t)
            for j in range(2):
                for h in range(2): e(f"v_pk_fma_f32 {vr(A(j,t)+2*h,2)}, {vr(cs+4*j+2*h,2)}, {vr(mb_,2)}, {vr(A(j,t)+2*h,2)} op_sel:[0,{ms},0] op_sel_hi:[1,{ms},1]")
            for j in range(2):
                for h in range(2): e(f"v_pk_mul_f32 {vr(A(j,t)+2*h,2)}, {vr(A(j,t)+2*h,2)}, {vr(rb,2)} op_sel:[0,{rs}] op_sel_hi:[1,{rs}]")
            for j in range(2):
                for h in range(2): e(f"v_cvt_pk_bf16_f32 v{A(0,t)+2*j+h}, v{A(j,t)+2*h}, v{A(j,t)+2*h+1}")
        for t in range(5):
            fold_qk(Kc, t, vCS + 8)
            if t != 2: pf()
        for t in range(1, 5):
            fold_qk(Q, t, vCS)
            if t & 1: pf()
        Sp = lambda t: Q(1, t); Sc = lambda t: Kc(1, t)
        e("s_nop 1")
        for t in range(1, 5):
            e(f"{MF} {vr(Sp(t),4)}, {vr(kf(t-1),4)}, {vr(qf(t),4)}, {vr(bP0 if t == 1 else bP,4)}")
            e(f"{MF} {vr(Sc(t),4)}, {vr(kf(t),4)}, {vr(qf(t),4)}, {vr(bC,4)}")
        vp = lambda j, t: 140 + j*10 + 2*t
        e.wait(ds='TB')
        cb = vCS + 16
        for t in range(5):
            for j in range(2):
                for h in range(2): e(f"v_pk_fma_f32 {vr(V(j,t)+2*h,2)}, {vr(vMuV+4*t+2*h,2)}, {vr(cb,2)}, {vr(V(j,t)+2*h,2)} op_sel:[0,{j},0] op_sel_hi:[1,{j},1]")
            for j in range(2):
                for h in range(2): e(f"v_pk_mul_f32 {vr(V(j,t)+2*h,2)}, {vr(V(j,t)+2*h,2)}, {vr(vRsV+4*t+2*h,2)}")
            for j in range(2):
                for h in range(2): e(f"v_cvt_pk_bf16_f32 v{vp(j,t)+h}, v{V(j,t)+2*h}, v{V(j,t)+2*h+1}")
            if t & 1 == 0: pf()
        mx = lambda t: tmp + t - 1
        for k in range(4):
            for t in range(1, 5):
                p, c_ = Sp(t), Sc(t)
                e([f"v_max3_f32 v{mx(t)}, v{p}, v{p+1}, v{p+2}", f"v_max3_f32 v{mx(t)}, v{mx(t)}, v{p+3}, v{c_}", f"v_max3_f32 v{mx(t)}, v{mx(t)}, v{c_+1}, v{c_+2}", f"v_max_f32 v{mx(t)}, v{mx(t)}, v{c_+3}"][k])
        xreduce_g(e, "v_max_f32", [mx(t) for t in range(1, 5)], list(range(tmp+4, tmp+8)))
        pf()
        cexp = LOG2E*(32 ** -0.5)
        e(f"s_mov_b32 s46, {fhex(cexp)}")
        for t in range(1, 5): e(f"v_mul_f32 v{mx(t)}, {fhex(-cexp)}, v{mx(t)}")
        pfr = qf
        for t in range(1, 5):
            for b4 in (Sp(t), Sc(t)):
                for r in range(4): e(f"v_fma_f32 v{b4+r}, v{b4+r}, s46, v{mx(t)}")
            for b4 in (Sp(t), Sc(t)):
                for r in range(4): e(f"v_exp_f32 v{b4+r}, v{b4+r}")
            for q, b4 in enumerate((Sp(t), Sc(t))):
                for h in range(2): e(f"v_cvt_pk_bf16_f32 v{pfr(t)+2*q+h}, v{b4+2*h}, v{b4+2*h+1}")
            if t < 3: pf()
        while left[0] > 0 and nxt: pf()
        O = V; Dn = lambda t: Kc(0, t)
        e("s_nop 1")
        for t in range(1, 5):
            e(f"{MF} {vr(Dn(t),4)}, {vr(ones,4)}, {vr(pfr(t),4)}, 0")
            for j in range(2): e(f"{MF} {vr(O(j,t),4)}, {vr(vp(j,t-1),4)}, {vr(pfr(t),4)}, 0")
        e(f"s_lshl_b32 s43, s{sOwn}, 15\ns_lshl_b32 s44, s{sHead}, 10\ns_add_u32 s43, s43, s44\ns_add_u32 s43, s43, {g.lo('O')}\ns_add_u32 s46, s43, {OB}")
        for t in range(1, 4): e(f"s_add_u32 s{46+t}, s{46+t-1}, 32768")
        for t in range(1, 5): e(f"v_rcp_f32 v{Dn(t)}, v{Dn(t)}")
        for t in range(1, 5):
            for j in range(2):
                for h in range(2): e(f"v_pk_mul_f32 {vr(O(j,t)+2*h,2)}, {vr(O(j,t)+2*h,2)}, {vr(Dn(t),2)} op_sel:[0,0] op_sel_hi:[1,0]")
            for j in range(2):
                for h in range(2): e(f"v_cvt_pk_bf16_f32 v{Sp(t)+2*j+h}, v{O(j,t)+2*h}, v{O(j,t)+2*h+1}")
            e.vm(f"buffer_store_dwordx4 {vr(Sp(t),4)}, v{vOA}, {R(sWS)}, s{46+t-1} offen sc1", 'OUT')
        g.stamp()
        e(f"s_lshl_b32 s77, s{sMi1}, 1\ns_lshr_b32 s43, s{sHj}, 3\ns_add_u32 s77, s77, s43\ns_lshl_b32 s77, s77, 7\ns_add_u32 s77, s77, s{sLo}\ns_add_u32 s77, s77, {FL + H1*128}")
        g.signal('OUT', 77, p2.pre)
        p2.window(nxt)
```

```python
from mg import *
sEW, sWn, sM0, sDel, sP = 80, 88, 89, 90, 91
sT, sTile, sXo, sTj = 57, 58, 59, 60
vW, vOT, vR = 40, 48, 52
class P24:
    def __init__(self, g, down):
        self.g = g; self.down = down; self.c = g.cfg.get('p4' if down else 'p2', {})
        c = self.c
        self.NS = 112 if down else 32
        self.PD = 7 if down else c.get('PD', 8); self.NL = c.get('NL', 2 if down else 1)
        self.LT = c.get('LT', 6); self.LW = 21; self.B = 28 if down else 32; self.P = 14 if down else 8
        self.srd = sWd if down else sWo
    def prefetch_setup(self):
        PD, NL = self.PD, self.NL
        L = [f"s_lshl_b32 s{sWn}, s{sNj2}, 7", f"s_lshl_b32 s92, s{sWave}, 14", f"s_add_u32 s{sWn}, s{sWn}, s92", f"s_lshl_b32 s{sM0}, s{sWave}, 10",
             f"s_and_b32 s92, s{sMi2}, 3", f"s_lshl_b32 s{sP}, s92, 19", f"v_add_u32 v186, s{sWn}, v{vOW2}", f"s_mul_i32 s92, s92, {NL if self.down or PD == 4 else 0}", f"s_lshr_b32 s93, s2, 5", "s_add_u32 s92, s92, s93"]
        L += [f"s_cmp_ge_u32 s92, {PD}\ns_cselect_b32 s93, {PD}, 0\ns_sub_u32 s92, s92, s93"]*2
        L += [f"s_lshl_b32 s93, {(1<<NL)-1 if self.c.get('jump', 1) else 0}, s92", f"s_lshr_b32 s92, s93, {PD}", "s_or_b32 s93, s93, s92"]
        L += [f"s_bitcmp1_b32 s93, {q}\ns_cselect_b32 s{sEW+q}, {PD*65536}, 0" for q in range(PD)]
        if self.down: L += [f"s_cmp_eq_u32 s{sWave}, 1\ns_cselect_b32 s{sDel}, 16384, 0", f"s_cmp_eq_u32 s{sWave}, 2\ns_cselect_b32 s{sDel}, -16384, s{sDel}"]
        return L
    def w_op(self, j):
        e = self.g.e; PD, NS = self.PD, self.NS
        dma = lambda: e.vm(f"buffer_load_dwordx4 v{vOW2}, {R(self.srd)}, s92 offen lds", ('W4', self.down, j))
        if self.down:
            L = [f"s_add_u32 m0, s{sM0}, {(j % self.B)*4096}"]
            L += [f"s_add_u32 s92, s{sWn}, s{sEW + j % PD}"] if j < NS - PD or not self.c.get('jump', 1) else [f"s_mul_i32 s92, s{sEW + j % PD}, {1 - NS//PD}", f"s_add_u32 s92, s92, s{sWn}"]
            if j % 7 == 3: L += [f"s_add_u32 s92, s92, s{sDel}"]
            L += [dma, f"s_add_u32 s{sWn}, s{sWn}, {65536 if not (self.c.get('hitW') and j % 14 == 13) else -13*65536}"]
        else:
            dma = lambda: e.vm(f"buffer_load_dwordx4 v186, {R(self.srd)}, s92 offen lds", ('W4', self.down, j))
            L = [f"s_add_u32 m0, s{sM0}, {j*4096}", f"s_add_u32 s92, s{sP}, s{sEW + j % PD}", "s_and_b32 s92, s92, 0x1fffff", dma, f"s_add_u32 s{sP}, s{sP}, 65536"]
        return [x if callable(x) else (lambda x=x: e(x)) for x in L]
    def prefetch_ops(self):
        return [self.w_op(j) for j in range(32)]
    def clear_mailbox(self, *a, **k): pass
    def t_op(self, j, tt):
        e = self.g.e; PD, NS = self.PD, self.NS; L = []
        if tt == 0:
            L = [f"s_lshr_b32 s93, s{sEW + j % PD}, 6"]
            if self.down: L += ([] if j < NS - PD else [f"s_mul_i32 s93, s93, {1 - NS//PD}"]) + [f"s_add_u32 s93, s93, s{sT}"]
            else: L += [f"s_add_u32 s93, s93, s{sTj}", "s_and_b32 s93, s93, 0x7fff", f"s_add_u32 s93, s93, s{sT}"]
        L += [lambda: e.vm(f"buffer_load_dwordx4 {ar((j % self.P)*8 + tt*4, 4)}, v{vOT+tt}, {R(sWS)}, s93 offen {self.c.get('taux', 'sc1')}", ('T4', self.down, j))]
        if tt == 1: L += [f"s_add_u32 s{sT if self.down else sTj}, s{sT if self.down else sTj}, {1024 if not (self.c.get('hitT') and j % 14 == 13) else -13*1024}"]
        return [x if callable(x) else (lambda x=x: e(x)) for x in L]
    def vm_ops(self, i):
        ops = []
        if self.down and i + self.LW < self.NS: ops.append(self.w_op(i + self.LW))
        if i + self.LT < self.NS: ops += [self.t_op(i + self.LT, 0), self.t_op(i + self.LT, 1)]
        return ops
    def pre(self):
        g = self.g; e = g.e; down = self.down
        apitch = HPITCH if down else 32768
        e(f"s_lshl_b32 s{sTile}, s{sMi2}, 3\ns_lshl_b32 s43, s{sWave}, 1\ns_add_u32 s{sTile}, s{sTile}, s43")
        e(f"s_lshl_b32 s{sXo}, s{sTile}, 15\ns_lshl_b32 s43, s{sNj2}, 11\ns_add_u32 s{sXo}, s{sXo}, s43\ns_add_u32 s{sXo}, s{sXo}, {g.lo('X')}")
        e(f"s_add_u32 s46, s{sXo}, {XB if down else XA}\ns_add_u32 s47, s46, 32768\nv_lshlrev_b32 v{vOT}, 4, v{vL}\nv_add_u32 v{vOT+1}, {apitch}, v{vOT}")
        for tt in range(2):
            for p in range(2): e.vm(f"buffer_load_dwordx4 {vr(vR + (tt*2+p)*4, 4)}, v{vOT}, {R(sWS)}, s{46+tt} offen offset:{1024*p} sc1", 'R')
        e(f"s_mul_i32 s{sT}, s{sTile}, {apitch}\ns_add_u32 s{sT}, s{sT}, {g.lo('O')}\ns_add_u32 s{sT}, s{sT}, {HB if down else OB}\ns_and_b32 s{sTj}, s{sMi2}, 3\ns_lshl_b32 s{sTj}, s{sTj}, 13")
        e(f"v_lshrrev_b32 v2, 2, v{vL}\nv_bfe_u32 v3, v{vL}, 3, 2\nv_and_b32 v4, 3, v{vL}\nv_lshlrev_b32 v4, 3, v4\nv_lshl_add_u32 v4, v2, 7, v4")
        for t in range(4):
            e(f"v_xor_b32 v5, {t}, v3\nv_lshl_add_u32 v{vW+t}, v5, 5, v4")
            if down: e(f"v_add_u32 v{vW+4+t}, {14*4096}, v{vW+t}")
        if not down: self.side.acc()
    def window(self, nxt):
        g = self.g; e = g.e; down = self.down
        acc = lambda n, tt: (n*2 + tt)*4
        for op in nxt:
            for f in op: f()
        e.wait(vm='R')
        for tt in range(2):
            for n in range(4):
                for h in range(2):
                    src = vR + (tt*2 + (n >> 1))*4 + (n & 1)*2 + h
                    e(f"v_lshlrev_b32 v{acc(n,tt)+2*h}, 16, v{src}\nv_and_b32 v{acc(n,tt)+2*h+1}, 0xffff0000, v{src}")
        if not down: self.side.publish()
        if down: e(f"s_lshr_b32 s77, s{sMi2}, 1\ns_lshl_b32 s77, s77, 7\ns_add_u32 s77, s77, {FL + H3*128}")
        else: e(f"s_lshl_b32 s77, s{sMi2}, 8\ns_add_u32 s77, s77, {FL + H1*128}\nv_lshlrev_b32 v249, 7, v{vL}")
        e(f"s_add_u32 s77, s77, s{sLo}")
    def main(self, nx):
        g = self.g; e = g.e; down = self.down; NS, B, P = self.NS, self.B, self.P
        acc = lambda n, tt: (n*2 + tt)*4
        aW = lambda b, kk, n: 112 + b*32 + kk*16 + n*4
        UB = 14 if down else 4; NU = NS//2; nm = "p4" if down else "p2"
        g.poll(77, 8, voff=249)
        if not down: self.side.final()
        for i in range(-self.LT, 0):
            for op in self.vm_ops(i)[-2:]:
                for f in op: f()
        def reads(u):
            if u >= NU: return []
            ops = []
            for n in range(4):
                for kk in range(2):
                    for j in range(2):
                        def f(n=n, kk=kk, j=j):
                            i = 2*u + kk
                            if down: reg, off = vW + n + (4 if i % B >= 14 else 0), (i % 14)*4096
                            else: reg, off = vW + n, (i % 8)*4096
                            e.ds(f"ds_read_b64_tr_b16 {ar(aW(u & 1, kk, n) + 2*j, 2)}, v{reg} offset:{off + j*2048}", ('F4', down, u, n))
                            if not down and u % 4 == 3 and kk == 1 and j == 1: e(f"v_add_u32 v{reg}, 32768, v{reg}")
                        ops.append(f)
            return ops
        for f in reads(0): f()
        g.stamp()
        for u in range(NU):
            if u % UB == 0: e.mark(f"{nm}b{u//UB}")
            fill = [[] for _ in range(16)]
            if down and u % 2 == 0:
                def bar(u=u):
                    e.wait(vm=[('W4', down, x) for x in range(2*u+2, min(2*u+6, NS))]); e("s_barrier")
                fill[0].append(bar)
            if not down and u == 13: fill[0].append(lambda: e("s_barrier"))
            for k, f in enumerate(reads(u+1)): fill[k].append(f)
            ops = self.vm_ops(2*u) + self.vm_ops(2*u+1)
            for k, op in enumerate(ops):
                pos = 1 + (k*14)//max(len(ops), 1)
                for f in op: fill[pos].append(f)
            seq = []; kk = 0
            for n in range(4):
                for tt in ((1, 0) if n & 1 else (0, 1)): seq += [(n, tt, kk), (n, tt, 1-kk)]; kk = 1 - kk
            for k, (n, tt, kk) in enumerate(seq):
                e.wait(vm=('T4', down, 2*u+1) if k == 0 else None, ds=('F4', down, u, n))
                a = vr(acc(n, tt), 4)
                e(f"{MF} {a}, {ar(aW(u & 1, kk, n), 4)}, {ar(((2*u+kk) % P)*8 + tt*4, 4)}, {a}")
                for f in fill[k]: f()
        e.fold([f"{nm}b{k}" for k in range(4)], f"L{nm}_loop", f"s{sCnt}")
        g.stamp()
        e(f"s_add_u32 s46, s{sXo}, {XA + LP if down else XB}\ns_add_u32 s47, s46, 32768")
        e(f"s_lshl_b32 s48, s{sTile}, 11\ns_lshl_b32 s43, s{sNj2}, 7\ns_add_u32 s48, s48, s43\ns_add_u32 s48, s48, s{sLo}\ns_add_u32 s48, s48, {STA + LP if down else STB}\ns_nop 0")
        Pk = lambda tt, p: vR + (tt*2 + p)*4
        def cvt(tt, p):
            for q in range(4):
                a = acc(2*p + (q >> 1), tt) + 2*(q & 1)
                e(f"v_cvt_pk_bf16_f32 v{Pk(tt,p)+q}, v{a}, v{a+1}")
        if down: e(f"s_cmp_lg_u32 s{sLay}, 0\ns_cbranch_scc1 Lfinal")
        for p in range(2):
            for tt in range(2):
                cvt(tt, p)
                e.vm(f"buffer_store_dwordx4 {vr(Pk(tt,p),4)}, v{vOT}, {R(sWS)}, s{46+tt} offen offset:{1024*p} sc1", 'OUT4')
        stats_epilogue(e, Pk, 2, 2, vL, 72, sWS, 48, aux='sc1', sm0=64, tag='OUT4')
        g.stamp()
        if down: e(f"s_lshl_b32 s77, s{sMi2}, 7\ns_add_u32 s77, s77, {FL + H4*128}")
        else: e(f"s_lshr_b32 s77, s{sMi2}, 1\ns_lshl_b32 s77, s77, 7\ns_add_u32 s77, s77, s{sLo}\ns_add_u32 s77, s77, {FL + H2*128}")
        if down: e(f"s_mov_b32 s{sLay}, 1\ns_mov_b32 s{sLo}, {hex(LP)}")
        g.signal('OUT4', 77, nx.pre)
        if not down: self.side.arrive()
        nx.window()
        if down:
            e("s_branch Llayer\nLfinal:")
            e(f"v_and_b32 v72, 15, v{vL}\nv_lshlrev_b32 v72, 12, v72\nv_bfe_u32 v73, v{vL}, 4, 1\nv_lshl_add_u32 v72, v73, 5, v72\nv_lshrrev_b32 v73, 5, v{vL}\nv_lshl_add_u32 v72, v73, 4, v72")
            e(f"s_and_b32 s43, s{sTile}, 63\ns_lshl_b32 s43, s43, 16\ns_lshr_b32 s46, s{sTile}, 6\ns_lshl_b32 s46, s46, 11\ns_add_u32 s46, s46, s43\ns_lshl_b32 s43, s{sNj2}, 7\ns_add_u32 s46, s46, s43\ns_add_u32 s47, s46, 65536")
            for p in range(2):
                for tt in range(2): cvt(tt, p)
                for tt in range(2):
                    r = Pk(tt, p)
                    if tt == 1: e("s_nop 0")
                    e(f"v_permlane16_swap_b32 v{r}, v{r+2}\nv_permlane16_swap_b32 v{r+1}, v{r+3}")
                    e(f"buffer_store_dwordx4 {vr(r,4)}, v72, {R(sOut)}, s{46+tt} offen offset:{64*p}")
            g.stamp()
```

```python
from mg import *
sOdd, sW, sM0, sGrp, sTch, sPW, sT = 66, 67, 68, 69, 70, 71, 72
vW, vOT, vOW, vTch, vCa, vMu, tm = 224, 231, 232, 236, 237, 238, 242
vC1, vC2, vS2 = vMu, vOW, vTch
aT = lambda s, kk, tt: (192 if s >= 14 else 0) + (s & 1)*32 + kk*16 + tt*4
NWB = 4
aW = lambda L, kk: 64 + (L % NWB)*8 + kk*4
aDum, aC = 96, 104
acc = lambda n, tt: (n*4 + tt)*4
PW3 = 131072
class P3:
    def __init__(self, g): self.g = g; self.c = g.cfg.get('p3', {})
    def w_ops(self, st):
        e = self.g.e; ops = []
        for mat in range(2):
            for q in range(4):
                L = [f"s_add_u32 m0, s{sM0}, {(st & 1)*32768 + mat*16384}", "NOP"] if q == 0 else []
                L += [lambda q=q, mat=mat: e.vm(f"buffer_load_dwordx4 v{vOW+q}, {R((sWg, sWu)[mat])}, s{sW} offen offset:{1024*q} {self.g.cfg.get('waux', '')} lds", ('W3', st))]
                if q == 3 and mat == 1:
                    L += [f"s_add_u32 s{sW}, s{sW}, {64*2*F}"] + ([f"s_xor_b32 s{sM0}, s{sM0}, 0x10000"] if st & 1 else [])
                ops.append(L)
        return ops
    def st_ops(self):
        e = self.g.e; ops = []
        for m in range(2):
            for q in range(4):
                L = [f"s_add_u32 m0, s{sM0}, {32768 + m*16384}", "NOP"] if q == 0 else []
                ops.append(L + [lambda q=q, m=m: e.vm(f"buffer_load_dwordx4 v{vOT}, {R(sWS)}, s{44+m} offen offset:{1024*q} sc1 lds", 'ST3')])
        return ops
    def t_ops(self, st):
        e = self.g.e; ops = []
        for tt in range(4):
            for kk in range(2):
                L = [lambda tt=tt, kk=kk: e.vm(f"buffer_load_dwordx4 {ar(aT(st, kk, tt), 4)}, v{vOT}, {R(sWS)}, s{sT+tt} offen offset:{(st & 1)*2048 + kk*1024} sc1", ('T3', st, tt))]
                if kk == 1 and st & 1: L += [f"s_add_u32 s{sT+tt}, s{sT+tt}, 4096"]
                ops.append(L)
        return ops
    def run(self, ops):
        for op in ops:
            for x in op:
                if callable(x): x()
                else: self.g.e("s_nop 0" if x == "NOP" else x)
    def pre(self):
        g = self.g; e = g.e
        e(f"s_and_b32 s{sOdd}, s{sNj3}, 1")
        e(f"v_lshrrev_b32 v2, 4, v{vL}\nv_bfe_u32 v3, v{vL}, 1, 3\nv_and_b32 v4, 1, v{vL}\nv_lshlrev_b32 v4, 4, v4")
        e(f"v_mul_u32_u24 v5, {2*F}, v2\nv_add_u32 v5, v5, v4\ns_cmp_eq_u32 s{sOdd}, 0\ns_cselect_b32 s44, 7, 0\nv_mov_b32 v7, 0x40000000")
        for i in range(4):
            e(f"v_add_u32 v6, {4*(i&1)}, v2\nv_xor_b32 v6, v6, v3\nv_cmp_eq_u32 vcc, s44, v6\nv_lshl_add_u32 v6, v6, 5, v5\nv_add_u32 v6, {i*4*2*F - 1024*i}, v6")
            e(f"v_cndmask_b32 v{vOW+i}, v6, v7, vcc")
        e(f"s_mul_i32 s{sW}, s{sNj3}, 224\ns_and_b32 s{sW}, s{sW}, 0xffffffc0\ns_mul_i32 s43, s{sWave}, {16*2*F}\ns_add_u32 s{sW}, s{sW}, s43\ns_lshl_b32 s{sM0}, s{sWave}, 12")
        e(f"v_lshlrev_b32 v{vOT}, 4, v{vL}\ns_lshl_b32 s43, s{sLay}, 30\nv_or_b32 v{vTch}, s43, v{vOT}\ns_lshl_b32 s43, s2, 2\ns_add_u32 s43, s43, s{sWave}\ns_mul_i32 s{sTch}, s43, 7168")
        e(f"s_lshl_b32 s{sGrp}, s{sMi3}, 2\ns_add_u32 s{sGrp}, s{sGrp}, s{sWave}\ns_lshl_b32 s{sT}, s{sGrp}, 17\ns_add_u32 s{sT}, s{sT}, {g.lo('X')}\ns_add_u32 s{sT}, s{sT}, {XB}")
        for tt in range(1, 4): e(f"s_add_u32 s{sT+tt}, s{sT+tt-1}, 32768")
        e(f"s_lshl_b32 s{sPW}, s{sWave}, 11\ns_add_u32 s{sPW}, s{sPW}, {PW3}")
        e(f"v_lshrrev_b32 v2, 2, v{vL}\nv_and_b32 v3, 7, v2\nv_and_b32 v4, 3, v{vL}\nv_lshlrev_b32 v5, 3, v4\nv_lshl_add_u32 v5, v2, 8, v5")
        e(f"s_lshl_b32 s43, s{sOdd}, 1\ns_cmp_eq_u32 s{sOdd}, 0\ns_cselect_b32 s45, 6, 1")
        for t in range(7):
            if t < 6: e(f"s_add_u32 s46, s43, {t}\nv_xor_b32 v6, s46, v3")
            else: e(f"v_xor_b32 v6, s45, v3")
            e(f"v_lshl_add_u32 v{vW+t}, v6, 5, v5")
        e(f"s_mul_i32 s46, s{sNj3}, 448\ns_add_u32 s46, s46, {CSG}\ns_add_u32 s47, s46, {2*F*4}\ns_lshr_b32 s48, s{sNj3}, 3\ns_lshl_b32 s48, s48, 7\ns_add_u32 s48, s48, {FL + HC*128}")
        e(f"s_lshl_b32 s44, s{sGrp}, 13\ns_add_u32 s44, s44, s{sLo}\ns_add_u32 s44, s44, {STB}\ns_add_u32 s45, s44, 4096")
        for st in range(self.c.get('wpre', 0)): self.run(self.w_ops(st))
    def window(self):
        g = self.g; e = g.e
        for st in range(self.c.get('wpre', 0), self.c.get('NP', 2)): self.run(self.w_ops(st))
        e(f"s_lshl_b32 s77, s{sMi3}, 7\ns_add_u32 s77, s77, s{sLo}\ns_add_u32 s77, s77, {FL + H2*128}")
    def stats_ops(self, fill):
        e = self.g.e; r = Rec(e); t = tm + 4; P = lambda tt: vMu + 2*tt
        r(f"s_add_u32 s43, s{sM0}, 32768\nv_lshlrev_b32 v250, 3, v{vL}\nv_add_u32 v250, s43, v250")
        pour(fill, r.ops, 5, 12)
        rd = lambda dst, tt, k: (lambda: e.ds(f"ds_read_b64 {vr(dst,2)}, v250 offset:{(tt>>1)*16384 + (tt&1)*2048 + k*512}", ('SR', tt, k)))
        fill[13].append(lambda: e.wait(vm='ST3'))
        for tt in range(4): fill[13 + tt].append(rd(P(tt), tt, 0))
        for i in range(12):
            tt, k = i & 3, 1 + (i >> 2); d = t + 2*(i & 1)
            fill[17 + 3*i].append(rd(d, tt, k))
            def add(tt=tt, k=k, d=d):
                e.wait(ds=('SR', tt, k)); e(f"v_add_f32 v{P(tt)}, v{P(tt)}, v{d}\nv_add_f32 v{P(tt)+1}, v{P(tt)+1}, v{d+1}")
            fill[22 + 3*i].append(add)
        xreduce_g(r, "v_add_f32", list(range(vMu, vMu+4)), list(range(t, t+4)))
        xreduce_g(r, "v_add_f32", list(range(vMu+4, vMu+8)), list(range(t, t+4)))
        r(f"s_mov_b32 s43, {fhex(1.0/D)}\nv_mov_b32 v250, {fhex(1e-5)}")
        for x in range(4): r(f"v_mul_f32 v{P(x)}, {fhex(-1.0/D)}, v{P(x)}\nv_fma_f32 v{P(x)+1}, v{P(x)+1}, s43, v250")
        for x in range(4): r(f"v_fma_f32 v{P(x)+1}, -v{P(x)}, v{P(x)}, v{P(x)+1}\nv_max_f32 v{P(x)+1}, v{P(x)+1}, v250")
        for x in range(4): r(f"v_rsq_f32 v{t+x}, v{P(x)+1}\nv_accvgpr_write_b32 a{aC+4+x}, v{P(x)+1}")
        for x in range(4): r(f"v_mul_f32 v{t+x}, {fhex(-LOG2E)}, v{t+x}\nv_accvgpr_write_b32 a{aC+x}, v{t+x}")
        for x in range(1, 4): r(f"v_mov_b32 v{vMu+x}, v{P(x)}")
        ckl = f"buffer_load_dword v{vCa}, v{vZ}, {R(sWS)}, s48 offen sc1"
        fill[55].append(lambda: e.vm(ckl, 'CK3'))
        r(f"v_lshrrev_b32 v250, 3, v{vL}\nv_add_u32 v250, s{sOdd}, v250\nv_cmp_ne_u32 vcc, 7, v250\nv_bfe_u32 v{tm}, v{vL}, 2, 1\nv_mul_u32_u24 v{tm}, {F*4}, v{tm}")
        r(f"v_cndmask_b32 v250, 0, v250, vcc\nv_lshl_add_u32 v250, v250, 6, v{tm}\nv_and_b32 v{tm}, 3, v{vL}\nv_lshl_add_u32 v250, v{tm}, 4, v250")
        r.call(lambda: self.g.check(vCa, ckl, 56, 'CK3'))
        for a in range(2): r.vm(f"buffer_load_dwordx4 {vr(tm+4*a,4)}, v250, {R(sWS)}, s{46+a} offen sc1", 'CS3')
        r(f"v_lshrrev_b32 v{vCa}, 4, v{vL}\nv_lshlrev_b32 v{vCa}, 4, v{vCa}\nv_add_u32 v{vCa}, s{sPW}, v{vCa}\nv_add_u32 v250, s{sPW}, v{vOT}")
        pour(fill, r.ops, 56, 72, cap=2); pour(fill, r.ops, 72, 112, cap=3); assert not r.ops, len(r.ops)
    def epi_units(self):
        e = self.g.e; U = []
        def ph(i, name):
            if not 0 <= i < 28: return []
            r = Rec(e); t, tt = i >> 2, i & 3
            g_, u = acc(2*t, tt), acc(2*t+1, tt); T = tm + 4*(i & 1)
            sel = tt & 1; c1 = (vC1 + tt) & ~1; c2 = (vC2 + tt) & ~1
            if name == 'a':
                for h in range(2): r(f"v_pk_mul_f32 {vr(T+2*h,2)}, {vr(g_+2*h,2)}, {vr(c1,2)} op_sel:[0,{sel}] op_sel_hi:[1,{sel}]")
            if name == 'b':
                for h in range(2): r(f"v_pk_mul_f32 {vr(g_+2*h,2)}, {vr(g_+2*h,2)}, {vr(u+2*h,2)}")
            if name == 'c':
                for x in range(4): r(f"v_exp_f32 v{T+x}, v{T+x}")
            if name == 'd':
                for h in range(2): r(f"v_pk_fma_f32 {vr(T+2*h,2)}, {vr(T+2*h,2)}, {vr(c2,2)}, {vr(c2,2)} op_sel:[0,{sel},{sel}] op_sel_hi:[1,{sel},{sel}]")
            if name == 'e':
                for x in range(4): r(f"v_rcp_f32 v{T+x}, v{T+x}")
            if name == 'f':
                for h in range(2): r(f"v_pk_mul_f32 {vr(g_+2*h,2)}, {vr(g_+2*h,2)}, {vr(T+2*h,2)}")
            if name == 'g':
                dst = acc(2*(t & ~1) + 1, tt) + 2*(t & 1) if t < 6 else acc(13, tt & ~1) + 2*(tt & 1)
                r(f"v_cvt_pk_bf16_f32 v{dst}, v{g_}, v{g_+1}\nv_cvt_pk_bf16_f32 v{dst+1}, v{g_+2}, v{g_+3}")
                if t < 6 and (t & 1): r.vm(f"buffer_store_dwordx4 {vr(dst-2,4)}, v{vOT}, {R(sWS)}, s{57+tt} offen sc1", ('OUT3', t >> 1)); r(f"s_add_u32 s{57+tt}, s{57+tt}, 16384")
                if t == 6 and (tt & 1):
                    r(f"s_nop 1\nv_permlane32_swap_b32 v{dst-2}, v{dst}\nv_permlane32_swap_b32 v{dst-1}, v{dst+1}")
                    r.vm(f"buffer_store_dwordx4 {vr(dst-2,4)}, v{vS2}, {R(sWS)}, s{61 + (tt>>1)} offen sc1", 'OUT3')
            return r.ops
        for i in range(-1, 30):
            c, e0, e1, g2 = ph(i, 'c'), ph(i-1, 'e'), ph(i, 'e'), ph(i-2, 'g')
            nop = [lambda: e("s_nop 0")] if i in (0, 28) else []
            U.append(dict(v=[e0[1:2], e0[2:3], g2[0:1], g2[1:2], g2[2:] + c[0:1], c[1:2], [], c[2:] + e0[3:] + nop + ph(i, 'd') + ph(i-1, 'f') + ph(i+1, 'a') + ph(i+1, 'b') + e1[0:1]],
                          pre=[], mem=[]))
        return U
    def signal_field(self, tag, f):
        g = self.g; e = g.e; l = g.lab("sgf")
        e.wait(vm=tag); e("s_barrier")
        e(f"s_cmp_lg_u32 s{sWave}, 0\ns_cbranch_scc1 {l}\nv_mov_b32 v250, 1\ns_mov_b64 exec, 1")
        e(f"buffer_atomic_add v250, v{vZ}, {R(sWS)}, s77 offen sc1\ns_mov_b64 exec, -1\n{l}:\ns_add_u32 s77, s77, 2048")
    def signal_last(self):
        self.g.e(f"s_xor_b32 s43, s{sCnt}, 2\ns_or_b32 s43, s43, s{sWave}\ns_cbranch_scc1 Lp3_sgl"); self.g.arrive(sWS, 77); self.g.e("Lp3_sgl:")
    def tail(self, p4, wread1, order):
        g = self.g; e = g.e; c = self.c
        N = 448; S = Slots(N); BASE = 260
        tiles = [(s, 2*p + z) for p, s in order for z in range(2)]
        def place(pos, op):
            pre = True
            for x in op:
                if x == "NOP": continue
                if callable(x): S.ve[pos].append(x); pre = False
                else: S.sc[pos - 1 if pre else pos + 1].append(lambda x=x: e(x))
        EU = self.epi_units()
        for q in range(2, 56):
            for z, f in enumerate(wread1(168 + q, *tiles[q])):
                b = 8*(q - 2); S.ve[b + ((2, 2, 6, 7)[z] if b > BASE else 2*z)].append(f)
        VS = c.get('VS', 5)
        for k, op in enumerate(self.t_ops(13) + self.w_ops(14) + self.t_ops(14) + self.w_ops(15) + self.t_ops(15)): place((VS*k + 2) | 1, op)
        first = {s: next(k for k, (p, s_) in enumerate(order) if s_ == s) for s in (13, 14, 15)}
        for s in (13, 14, 15): S.sc[16*(first[s] - 1)].append(lambda s=s: (e.wait(vm=('W3', s)), e("s_barrier")))
        assert 16*(first[13] - 1) < VS*24
        r = Rec(e); r.wait(vm='CS3')
        for x in range(4): r(f"v_add_f32 v{tm+x}, v{tm+x}, v{tm+4+x}")
        r.ds(f"ds_write_b128 v250, {vr(tm,4)}")
        S.pour(r.ops, 0, 8)
        left = list(range(14)); tau = {}
        def pick(k):
            if k == 15: return True
            for n in left:
                if n >> 1 not in (order[k-1][0], order[k][0], order[k+1][0]):
                    left.remove(n); tau[k] = n
                    if pick(k+1): return True
                    left.append(n); left.sort()
            return False
        assert pick(1) and sorted(tau.values()) == list(range(14))
        for k in range(1, 15):
            n = tau[k]; b = k & 1
            S.ve[16*(k-1) + 9 if k == 1 else 16*(k-1) + 1].append(lambda n=n, b=b: e.ds(f"ds_read_b128 {vr(tm+4*b,4)}, v{vCa} offset:{n*64}", ('CT', n)))
        for k in range(1, 15):
            n = tau[k]; b = k & 1; r = Rec(e); r.wait(ds=('CT', n))
            for tt in range(4):
                for x in range(4): r(f"v_fmac_f32 v{acc(n,tt)+x}, v{tm+4*b+x}, v{vMu+tt}")
            S.pour(r.ops, 16*k, 16*k + 16)
        r = Rec(e)
        for x in p4.prefetch_setup(): r(x.replace("\n", "\t"))
        r(f"s_mul_i32 s43, s{sGrp}, {4*HPITCH}\ns_lshr_b32 s45, s{sNj3}, 4\ns_mul_i32 s45, s45, {56*1024}\ns_add_u32 s43, s43, s45\ns_add_u32 s43, s43, {g.lo('H')}\ns_add_u32 s43, s43, {HB}")
        r(f"s_and_b32 s44, s{sNj3}, 15\ns_lshl_b32 s45, s44, 10\ns_add_u32 s57, s43, s45\ns_lshl_b32 s45, s44, 9\ns_add_u32 s61, s43, s45\ns_add_u32 s61, s61, {48*1024}\ns_add_u32 s62, s61, {2*HPITCH}")
        for tt in range(1, 4): r(f"s_add_u32 s{57+tt}, s{57+tt-1}, {HPITCH}")
        r(f"s_lshl_b32 s77, s{sMi3}, 1\ns_lshr_b32 s43, s{sNj3}, 4\ns_add_u32 s77, s77, s43\ns_lshl_b32 s77, s77, 7\ns_add_u32 s77, s77, s{sLo}\ns_add_u32 s77, s77, {FL + H3*128}")
        su = p4.setup_ops()
        S.pour(r.ops + [f for f in su if getattr(f, 'sc', False)], 20, 200, cap=0)
        nxt = p4.prefetch_ops()
        for k in range(4):
            op = nxt.pop(0); pos = 205 + 12*k
            S.sc[pos-2].append(op[0]); S.sc[pos-1].append(op[1]); S.ve[pos].insert(0, op[2]); S.ve[pos+6].insert(0, op[3])
        r = Rec(e)
        r(f"v_and_b32 v{vS2}, 31, v{vL}\nv_lshlrev_b32 v{vS2}, 4, v{vS2}\nv_lshrrev_b32 v250, 5, v{vL}\ns_mov_b32 s43, {HPITCH}\nv_mad_u32_u24 v{vS2}, v250, s43, v{vS2}")
        for x in range(4): r(f"v_accvgpr_read_b32 v{vC1+x}, a{aC+x}\nv_accvgpr_read_b32 v{vC2+x}, a{aC+4+x}")
        S.pour(r.ops, 246, 259)
        SA, SB, CL, CK = c.get('SA', 13), c.get('SB', 22), c.get('CL', 17), c.get('CK', 20)
        assert BASE + 8*SB >= 432
        EU[SA+1]['pre'].append(lambda: self.signal_field(('OUT3', 0), 0))
        for k in range(4): EU[SA+1+k]['mem'] += nxt.pop(0)
        EU[SB+1]['pre'].append(lambda: self.signal_field([('OUT3', 1), ('W5', 7)], 1))
        EU[CL+1]['mem'].insert(0, p4.ck_load)
        EU[CK+1]['pre'].append(lambda: p4.ck("p4a"))
        ft = p4.first_t(); nq = c.get('NQ', 5)
        for k in range(nq): EU[CK+1+k]['mem'] += ft[k*len(ft)//nq:(k+1)*len(ft)//nq]
        for k in range(len(nxt)): EU[max(CK + nq, SB) + 1 + k]['mem'] += nxt[k]
        EU[24]['pre'] += p4.reads(0)
        for i in range(-1, 23):
            u = EU[i+1]; b = BASE + 8*i
            S.sc[b] += u['pre']
            z = 0; lastv = -1
            for f in u['mem']:
                if getattr(f, 'sc', False):
                    while S.sc[b+z] and z < 6: z += 1
                    assert z > lastv; S.sc[b+z].append(f)
                else:
                    while z in (2, 3, 6): z += 1
                    S.ve[b+z].append(f); lastv = z; z = min(z + 1, 7)
            for z in range(8): S.ve[b+z] += u['v'][z]
        S.pour([f for f in su if not getattr(f, 'sc', False)], BASE + 8*10, BASE + 8*CK)
        kk = 0; k = 0; seen = set()
        for q, (s, n) in enumerate(tiles):
            if c.get('fine') and q == c['fine']: g.stamp()
            for tt in ((3, 2, 1, 0) if n & 1 else (0, 1, 2, 3)):
                e.wait(vm=('T3', s, tt if s > 12 else 3), ds=('F3', 168 + q))
                for z in (kk, 1 - kk):
                    a = vr(acc(n, tt), 4)
                    e(f"{MF} {a}, {ar(aW(168 + q, z), 4)}, {ar(aT(s, z, tt), 4)}, {a}")
                    S.emit(k); k += 1
                kk = 1 - kk
        g.stamp()
        for u in EU[24:]:
            m = u['mem']; h = (len(m) + 1)//2
            for f in u['pre'] + m[:h] + sum(u['v'][:4], []) + m[h:] + sum(u['v'][4:], []): f()
        for f in p4.init_ops(): f()
        g.stamp(); g.stamp()
    def main(self, p4):
        g = self.g; e = g.e; c = self.c
        DW = c.get('DW', 2); NP = c.get('NP', 2)
        g.poll(77, 32)
        self.run(self.t_ops(0))
        def wread(L): return wread1(L, *divmod(L, 14))
        def wread1(L, s, n):
            ops = []
            for kk in range(2):
                for j in range(2):
                    def f(kk=kk, j=j):
                        if n == 0 and kk == 0 and j == 0 and 0 < s <= 12: e.wait(vm=('W3', s)); e("s_barrier")
                        e.ds(f"ds_read_b64_tr_b16 {ar(aW(L, kk) + 2*j, 2)}, v{vW + (n >> 1)} offset:{(s & 1)*32768 + (n & 1)*16384 + (kk*32 + 16*j)*256}", ('F3', L))
                        if kk == 1 and j == 1 and s & 1 and n & 1 and s < 15: e(f"v_xor_b32 v{vW + (n >> 1)}, 0x10000, v{vW + (n >> 1)}")
                    ops.append(f)
            return ops
        for L in range(DW):
            for f in wread(L): f()
        g.stamp()
        for s in range(12):
            if s in (0, 1, 15): e(f"Lmk_p3s{s}:")
            if c.get('fine') and s in (1, 2, 15): g.stamp()
            if s % 2 == 0: e.mark(f"p3b{s//2}")
            if c.get('fine') and s == 14: g.stamp()
            fill = [[] for _ in range(112)]
            def place(pos, op):
                pre = True
                for x in op:
                    if x == "NOP": continue
                    if callable(x): fill[pos].append(x); pre = False
                    else: fill[pos - 1 if pre else pos + 1].append(lambda x=x: e(x))
            if c.get('burst', 0) and 2 <= s < 14:
                pos = [7*p + z for p in range(16) for z in (range(4) if p % 2 == 0 else range(c.get('b0', 0), c.get('b0', 0) + 3))]
                rd = [f for n in range(14) for f in wread(s*14 + n + DW)]
                for k, f in enumerate(rd): fill[pos[k]].append(f)
            else:
                for n in range(14):
                    for k, f in enumerate(wread(s*14 + n + DW)): fill[n*8 + 2*k].append(f)
            if s < 15:
                TS = c.get('TS', 7)
                for k, op in enumerate(self.t_ops(s+1)): place(((5 if NP == 3 else 4)*k + 9) if s == 0 else TS*k + 3, op)
            if s == 0:
                for k, op in enumerate(self.st_ops()): place(5*k + 49 if NP == 3 else 4*k + 41, op)
                if NP == 2:
                    for k, op in enumerate(self.w_ops(2)): place(4*k + 75, op)
            elif s < 14:
                for k, op in enumerate(self.w_ops(s+2)): place(7*(k+8) + 3, op)
            if s % 2 == 0 or s == 1:
                place(108 if s == 0 else 53, [lambda: e.vm(f"buffer_load_dwordx4 {ar(aDum,4)}, v{vTch}, {R(sWd)}, s{sTch} offen"), f"s_add_u32 s{sTch}, s{sTch}, 1024"])
            if s == 1: self.stats_ops(fill)
            kk = 0
            for n in range(14):
                L = s*14 + n
                k = 0
                for tt in ((3, 2, 1, 0) if n & 1 else (0, 1, 2, 3)):
                    e.wait(vm=('T3', s, tt if s == 0 else 3) if n == 0 else None, ds=('F3', L))
                    for z in (kk, 1 - kk):
                        a = vr(acc(n, tt), 4)
                        e(f"{MF} {a}, {ar(aW(L, z), 4)}, {ar(aT(s, z, tt), 4)}, {'0' if s == 0 and z == kk else a}")
                        for f in fill[n*8 + k]: f()
                        k += 1
                    kk = 1 - kk
        e.mark("p3b6")
        e.fold([f"p3b{k}" for k in range(1, 7)], "Lp3_loop", f"s{sCnt}")
        if c.get('fine'): g.stamp()
        order = [(p, 12) for p in range(7)] + [(p, 13) for p in range(4)] + [(0, 14), (1, 14), (2, 14), (4, 13), (0, 15), (5, 13), (1, 15), (6, 13), (2, 15)]
        order += [(p, s) for p in range(3, 7) for s in (14, 15)]
        self.tail(p4, wread1, order)
```

```python
from mg import *
sRA, sRB, sEW, sWn, sM0, sDel = 80, 84, 88, 92, 79, 78
sET, sT, sTile, sXo, sFld, sLine = 63, 48, 49, 76, 65, 64
vW, vOT, vR, vCk, vM, vU = 0, 8, 16, 10, 96, 112
aT = lambda j, tt: 128 + (j % 16)*8 + tt*4
aW = lambda k, kk, n: (k & 1)*32 + kk*16 + n*4
acc = lambda h, n, tt: 32 + h*32 + (n*2 + tt)*4
NS = 56
def kb(j): return 7*((j & 15) >> 1) + 4*(j & 1) + (j >> 4) if j < 48 else 7*(j - 48) + 3
class P4S:
    def __init__(self, g):
        self.g = g; self.c = g.cfg.get('p4', {})
        self.LT = self.c.get('LT', 8); self.LW = self.c.get('LW', 12); self.PD = self.c.get('PD', 4); self.NL = self.PD//4; self.ND = ND = self.c.get('ND', 8)
        self.items = [(u, h) for u in range(28 - ND) for h in range(2)] + [(u, h) for h in range(2) for u in range(28 - ND, 28)]
    def prefetch_setup(self):
        L = [f"s_xor_b32 s93, s{sNj2}, 1", "s_lshl_b32 s93, s93, 7", f"s_add_u32 s{sRA}, s{sWd}, s93\ns_addc_u32 s{sRA+1}, s{sWd+1}, 0", f"s_sub_u32 s{sRA+2}, {F*D*2}, s93", f"s_mov_b32 s{sRA+3}, 0x20000",
             f"s_lshl_b32 s93, s{sNj2}, 7", f"s_add_u32 s{sRB}, s{sWd}, s93\ns_addc_u32 s{sRB+1}, s{sWd+1}, 0", f"s_sub_u32 s{sRB}, s{sRB}, 1024\ns_subb_u32 s{sRB+1}, s{sRB+1}, 0",
             f"s_sub_u32 s{sRB+2}, {F*D*2 + 1024}, s93", f"s_mov_b32 s{sRB+3}, 0x20000",
             f"s_and_b32 s93, s{sNj2}, 1", f"s_mul_i32 s{sWn}, s93, {56*65536}", f"s_lshl_b32 s93, s{sWave}, 14", f"s_add_u32 s{sWn}, s{sWn}, s93", f"s_lshl_b32 s{sM0}, s{sWave}, 11"]
        L += [f"s_cmp_eq_u32 s{sWave}, 1\ns_cselect_b32 s{sDel}, 16384, 0", f"s_cmp_eq_u32 s{sWave}, 2\ns_cselect_b32 s{sDel}, -16384, s{sDel}"]
        return L
    def wrap(self, L):
        out = []
        for x in L:
            f = x if callable(x) else (lambda x=x: self.g.e(x))
            f.vm = callable(x); f.sc = not f.vm; out.append(f)
        return out
    def w_op(self, j):
        e = self.g.e
        L = [f"s_add_u32 m0, s{sM0}, {(j % 16)*8192}", f"s_add_u32 s{sWn}, s{sWn}, {(kb(j) - kb(j-1))*65536 if j else 0}"]
        if j == 48: L += [f"s_add_u32 s{sWn}, s{sWn}, s{sDel}"]
        L += [lambda: e.vm(f"buffer_load_dwordx4 v{vOW2}, {R(sRA)}, s{sWn} offen lds", ('W5', j)),
              lambda: e.vm(f"buffer_load_dwordx4 v{vOW2}, {R(sRB)}, s{sWn} offen offset:1024 lds", ('W5', j))]
        return self.wrap(L)
    def prefetch_ops(self): return [self.w_op(j) for j in range(self.LW)]
    def t_op(self, j):
        e = self.g.e
        L = [f"s_add_u32 s{sT}, s{sT}, 4096"] if j and j & 3 == 0 else []
        L += [lambda tt=tt: e.vm(f"buffer_load_dwordx4 {ar(aT(j, tt), 4)}, v{vOT+tt}, {R(sWS)}, s{sT} offen offset:{1024*(j & 3)} sc1", ('T5', j)) for tt in range(2)]
        return self.wrap(L)
    def vm_ops(self, i):
        return (self.w_op(i + self.LW) if i + self.LW < NS else []) + (self.t_op(i + self.LT) if i + self.LT < NS else [])
    def clear_mailbox(self, e, voff, vt, lo):
        e(f"s_lshl_b32 s44, s2, 2\ns_add_u32 s44, s44, s{sWave}\ns_lshl_b32 s44, s44, 12\ns_add_u32 s44, s44, {lo}\ns_add_u32 s44, s44, {PB}")
        for r in range(4): e(f"v_mov_b32 v{vt+r}, -1")
        for q in range(4): e.vm(f"buffer_store_dwordx4 {vr(vt,4)}, v{voff}, {R(sWS)}, s44 offen offset:{1024*q} sc1")
    def setup_ops(self):
        r = Rec(self.g.e)
        r(f"s_and_b32 s43, s{sNj2}, 1")
        r(f"s_and_b32 s{sLine}, s{sMi2}, 14\ns_add_u32 s{sLine}, s{sLine}, s43\ns_lshl_b32 s{sLine}, s{sLine}, 7\ns_add_u32 s{sLine}, s{sLine}, s{sLo}\ns_add_u32 s{sLine}, s{sLine}, {FL + H3*128}")
        r(f"s_lshl_b32 s{sTile}, s{sMi2}, 3\ns_lshl_b32 s43, s{sWave}, 1\ns_add_u32 s{sTile}, s{sTile}, s43")
        r(f"s_lshl_b32 s{sXo}, s{sTile}, 15\ns_lshl_b32 s43, s{sNj2}, 11\ns_add_u32 s{sXo}, s{sXo}, s43\ns_add_u32 s{sXo}, s{sXo}, {self.g.lo('X')}")
        r(f"s_add_u32 s46, s{sXo}, {XB}\ns_add_u32 s47, s46, 32768\nv_lshlrev_b32 v{vOT}, 4, v{vL}\nv_add_u32 v{vOT+1}, {HPITCH}, v{vOT}")
        for tt in range(2):
            for p in range(2): r.vm(f"buffer_load_dwordx4 {vr(vR + (tt*2+p)*4, 4)}, v{vOT}, {R(sWS)}, s{46+tt} offen offset:{1024*p} sc1", 'R5')
        r(f"s_mul_i32 s{sT}, s{sTile}, {HPITCH}\ns_and_b32 s43, s{sNj2}, 1\ns_mul_i32 s44, s43, {56*1024}\ns_add_u32 s{sT}, s{sT}, s44\ns_add_u32 s{sT}, s{sT}, {self.g.lo('H')}\ns_add_u32 s{sT}, s{sT}, {HB}")
        r(f"v_bfe_u32 v11, v{vL}, 2, 3\nv_bfe_u32 v12, v{vL}, 3, 2\nv_and_b32 v13, 3, v{vL}\nv_lshlrev_b32 v13, 3, v13\nv_lshl_add_u32 v13, v11, 7, v13\nv_lshrrev_b32 v11, 5, v{vL}\nv_lshl_add_u32 v13, v11, 11, v13")
        for t in range(4): r(f"v_xor_b32 v11, {t}, v12\nv_lshl_add_u32 v{vW+t}, v11, 5, v13\nv_add_u32 v{vW+4+t}, 0x10000, v{vW+t}")
        return r.ops
    def ck_load(self): self.g.e.vm(f"buffer_load_dword v{vCk}, v{vZ}, {R(sWS)}, s{sLine} offen sc1", 'CK5')
    def ck(self, nm):
        e = self.g.e
        e.wait(vm='CK5')
        t = f"v_cmp_gt_u32 vcc, 16, v{vCk}\ns_cbranch_vccz L{nm}_ok"
        e(f"{t}\ns_mov_b32 s43, 0x40000\nL{nm}_sp:\ns_sleep {self.c.get('slp', 10)}\nbuffer_load_dword v{vCk}, v{vZ}, {R(sWS)}, s{sLine} offen sc1\ns_waitcnt vmcnt(0)\n{t}")
        e(f"s_sub_u32 s43, s43, 1\ns_cmp_lg_u32 s43, 0\ns_cbranch_scc1 L{nm}_sp\nL{nm}_ok:\ns_add_u32 s{sLine}, s{sLine}, 2048")
    def reads(self, k):
        e = self.g.e
        if k >= len(self.items): return []
        u, h = self.items[k]
        return [lambda n=n, kk=kk, j=j, i=2*u+kk: e.ds(f"ds_read_b64_tr_b16 {ar(aW(k, kk, n) + 2*j, 2)}, v{vW + n + (4 if i & 8 else 0)} offset:{(i & 7)*8192 + j*4096 + h*1024}", ('F5', k, n))
                for n in range(4) for kk in range(2) for j in range(2)]
    def first_t(self): return [f for j in range(self.LT) for f in self.t_op(j)]
    def init_ops(self):
        r = Rec(self.g.e)
        for x in range(0, 32, 2): r(f"v_pk_mul_f32 {vr(32+x,2)}, {vr(vZ-1,2)}, 0 op_sel:[1,0] op_sel_hi:[1,0]")
        r.wait(vm='R5')
        for tt in range(2):
            for n in range(4):
                for h in range(2):
                    src = vR + (tt*2 + (n >> 1))*4 + (n & 1)*2 + h
                    r(f"v_lshlrev_b32 v{acc(1,n,tt)+2*h}, 16, v{src}\nv_and_b32 v{acc(1,n,tt)+2*h+1}, 0xffff0000, v{src}")
        return r.ops
    def main(self, nx, p3):
        g = self.g; e = g.e; c = self.c; ND = self.ND; items = self.items; reads = self.reads
        g.stamp(); g.stamp()
        Pk = lambda tt, p: vR + (tt*2 + p)*4
        def cvt(r, h, tt, p):
            for q in range(4):
                a = acc(h, 2*p + (q >> 1), tt) + 2*(q & 1)
                r(f"v_cvt_pk_bf16_f32 v{Pk(tt,p)+q}, v{a}, v{a+1}")
        def mail_loads(r):
            for q in range(4): r.vm(f"buffer_load_dwordx4 {vr(vM+4*q,4)}, v{vOT}, {R(sWS)}, s45 offen offset:{1024*q} sc1", 'MB')
        kB = len(items) - ND
        for k, (u, h) in enumerate(items):
            if k % 16 == 0 and k <= 32: e.mark(f"p4b{k//16}")
            fill = [[] for _ in range(16)]
            if h == 0 and u % 2 == 0:
                def bar(u=u):
                    e.wait(vm=[('W5', x) for x in range(2*u+2, min(2*u+6, NS))], force=True); e("s_barrier")
                    if u % 8 == self.LT//2 + (self.LT//2 & 1) and u < 16: p3.signal_last()
                fill[0].append(bar)
            for z, f in enumerate(reads(k+1)): fill[z].append(f)
            kc = 16 - self.LT
            if k < 32 and k % 16 == kc: fill[0].append(lambda k=k: self.ck("p4b" if c.get('fold', 1) else f"p4b{k}"))
            if k < 32 and k % 16 == max(kc - 3, 0): fill[0].append(self.ck_load)
            if u < 28 - ND: ops = self.vm_ops(2*u + h)
            else: ops = self.vm_ops(2*u) + self.vm_ops(2*u+1) if h == 0 else []
            if c.get('even', 1): space(fill, ops, lambda f: f.vm, c.get('first', 2))
            else:
                for z, f in enumerate(ops): fill[1 + (z*14)//len(ops)].append(f)
            if k == len(items) - 1: fill[9].append(lambda: (e.wait(ds='all'), e("s_barrier")))
            if k == kB:
                r = Rec(e)
                r(f"s_lshl_b32 s45, s2, 2\ns_add_u32 s45, s45, s{sWave}\ns_lshl_b32 s45, s45, 12\ns_xor_b32 s44, s45, {g.px*4*4096}\ns_add_u32 s43, s{sLo}, {PB}\ns_add_u32 s44, s44, s43\ns_add_u32 s45, s45, s43")
                for p in range(2):
                    for tt in range(2):
                        cvt(r, 0, tt, p); r.vm(f"buffer_store_dwordx4 {vr(Pk(tt,p),4)}, v{vOT}, {R(sWS)}, s44 offen offset:{1024*(tt*2+p)} sc1")
                pour(fill, r.ops, 0, 16, cap=3); assert not r.ops
            if k == len(items) - c.get('XL', 3):
                r = Rec(e); mail_loads(r); pour(fill, r.ops, 0, 16, cap=2, step=2)
            seq = []; kk = 0
            for n in range(4):
                for tt in ((1, 0) if n & 1 else (0, 1)): seq += [(n, tt, kk), (n, tt, 1-kk)]; kk = 1 - kk
            for z, (n, tt, kk) in enumerate(seq):
                e.wait(vm=('T5', 2*u+1) if z == 0 and h == 0 else None, ds=('F5', k, n | 1), force=(z == 0 and h == 0))
                a = vr(acc(h, n, tt), 4)
                e(f"{MF} {a}, {ar(aW(k, kk, n), 4)}, {ar(aT(2*u+kk, tt), 4)}, {a}")
                for f in fill[z]: f()
        if c.get('fold', 1): e.fold([f"p4b{k}" for k in range(3)], "Lp4_loop", f"s{sCnt}")
        g.stamp()
        e(f"s_mov_b32 s43, 0x40000\nLp4_mb:\ns_waitcnt vmcnt(0)"); g.reset_q()
        e(f"v_max3_u32 v{vU}, v{vM}, v{vM+1}, v{vM+2}\nv_max3_u32 v{vU+1}, v{vM+3}, v{vM+4}, v{vM+5}")
        for x in range(5): e(f"v_max3_u32 v{vU + (x&1)}, v{vU + (x&1)}, v{vM+6+2*x}, v{vM+7+2*x}")
        e(f"v_max_u32 v{vU}, v{vU}, v{vU+1}\nv_cmp_eq_u32 vcc, -1, v{vU}\ns_cbranch_vccz Lp4_mbok")
        mail_loads(e); e(f"s_sub_u32 s43, s43, 1\ns_cmp_lg_u32 s43, 0\ns_cbranch_scc1 Lp4_mb\ns_waitcnt vmcnt(0)\nLp4_mbok:"); g.reset_q()
        e(f"s_add_u32 s46, s{sXo}, {XA + g.lp('X')}\ns_add_u32 s47, s46, 32768")
        e(f"s_lshl_b32 s48, s{sTile}, 11\ns_lshl_b32 s43, s{sNj2}, 7\ns_add_u32 s48, s48, s43\ns_add_u32 s48, s48, {STA + LP}")
        def addp(tt, p):
            for q in range(4):
                src = vM + (tt*2 + p)*4 + q; a = acc(1, 2*p + (q >> 1), tt) + 2*(q & 1)
                e(f"v_lshlrev_b32 v{vU+2*q}, 16, v{src}\nv_and_b32 v{vU+2*q+1}, 0xffff0000, v{src}")
            for q in range(4):
                a = acc(1, 2*p + (q >> 1), tt) + 2*(q & 1)
                e(f"v_pk_add_f32 {vr(a,2)}, {vr(a,2)}, {vr(vU+2*q,2)}")
        e(f"s_cmp_lg_u32 s{sLay}, 0\ns_cbranch_scc1 Lfinal")
        for p in range(2):
            for tt in range(2):
                addp(tt, p); cvt(e, 1, tt, p)
                e.vm(f"buffer_store_dwordx4 {vr(Pk(tt,p),4)}, v{vOT}, {R(sWS)}, s{46+tt} offen offset:{1024*p} sc1", 'OUT5')
        stats_epilogue(e, Pk, 2, 2, vL, 128, sWS, 48, aux='sc1', sm0=64, tag='OUT5')
        g.stamp()
        e(f"s_lshl_b32 s77, s{sMi2}, 7\ns_add_u32 s77, s77, {FL + H4*128}\ns_mov_b32 s{sLay}, 1\ns_mov_b32 s{sLo}, {hex(LP)}")
        g.signal('OUT5', 77, nx.pre)
        nx.window()
        e("s_branch Llayer\nLfinal:")
        e(f"v_and_b32 v128, 15, v{vL}\nv_lshrrev_b32 v129, 4, v{vL}\nv_lshrrev_b32 v130, 1, v129\nv_and_b32 v129, 1, v129\nv_lshl_add_u32 v129, v129, 1, v130")
        e(f"v_and_b32 v130, 7, v{vL}\nv_xor_b32 v129, v129, v130\nv_lshlrev_b32 v129, 4, v129\nv_lshl_add_u32 v128, v128, 7, v129\ns_lshl_b32 s43, s{sWave}, 12\nv_add_u32 v128, s43, v128\nv_xor_b32 v129, 64, v128")
        for p in range(2):
            for tt in range(2):
                addp(tt, p); cvt(e, 1, tt, p); r = Pk(tt, p)
                e(f"s_nop 1\nv_permlane16_swap_b32 v{r}, v{r+2}\nv_permlane16_swap_b32 v{r+1}, v{r+3}")
                e.ds(f"ds_write_b128 v{128+p}, {vr(r,4)} offset:{2048*tt}")
        e(f"v_lshrrev_b32 v131, 3, v{vL}\nv_xor_b32 v132, v131, v130\nv_lshlrev_b32 v132, 4, v132\nv_lshl_add_u32 v132, v131, 7, v132\nv_add_u32 v132, s43, v132")
        for q in range(4): e.ds(f"ds_read_b128 {vr(vM+4*q,4)}, v132 offset:{1024*q}", ('FO', q))
        e(f"v_lshlrev_b32 v130, 4, v130\nv_lshl_add_u32 v130, v131, 12, v130")
        e(f"s_and_b32 s43, s{sTile}, 63\ns_lshl_b32 s43, s43, 16\ns_lshr_b32 s46, s{sTile}, 6\ns_lshl_b32 s46, s46, 11\ns_add_u32 s46, s46, s43\ns_lshl_b32 s43, s{sNj2}, 7\ns_add_u32 s46, s46, s43")
        for q in range(4):
            e.wait(ds=('FO', q))
            e(f"buffer_store_dwordx4 {vr(vM+4*q,4)}, v130, {R(sOut)}, s46 offen {c.get('faux', 'sc1')}\ns_add_u32 s46, s46, 32768")
        g.stamp()
```

```python
from mg import *
sRA, sRB, sEW, sWn = 80, 84, 88, 92
sT, sTile, sXo, sLine, sET = 48, 49, 76, 64, 57
vOT, vL16, vCk, vXw, vXr, vW, vR, vt, vM, vU, vX, vS = 0, 4, 5, 6, 7, 8, 16, 32, 36, 52, 192, 224
aT = lambda U, kk, tt: 128 + (U % 4)*32 + kk*16 + tt*4
aW = lambda k, kk, n: (k & 1)*32 + kk*16 + n*4
acc = lambda h, n, tt: 64 + h*64 + (n*4 + tt)*4
class PK:
    def __init__(self, g, down):
        self.g = g; self.down = down; self.c = g.cfg.get('p4' if down else 'p2', {})
        self.NS = 56 if down else 16; self.LW = 12 if down else 16; self.LQ = self.c.get('LQ', 3)
        self.nm = "p4" if down else "p2"; self.srd = sWd if down else sWo; self.wbytes = (F if down else D)*D*2
        self.sM0, self.sDel = (79, 78) if down else (59, None)
        self.pb = PB if down else PB2
    def kb(self, j):
        if not self.down: return j
        return 7*((j & 15) >> 1) + 4*(j & 1) + (j >> 4) if j < 48 else 7*(j - 48) + 3
    def spec(self, j): return self.down and j >= 48
    def prefetch_setup(self):
        w = self.srd; D4 = self.kb(4) - self.kb(0)
        L = [f"s_xor_b32 s93, s{sNj2}, 1", "s_lshl_b32 s93, s93, 7", f"s_add_u32 s{sRA}, s{w}, s93\ns_addc_u32 s{sRA+1}, s{w+1}, 0", f"s_sub_u32 s{sRA+2}, {self.wbytes}, s93", f"s_mov_b32 s{sRA+3}, 0x20000",
             f"s_lshl_b32 s93, s{sNj2}, 7", f"s_add_u32 s{sRB}, s{w}, s93\ns_addc_u32 s{sRB+1}, s{w+1}, 0", f"s_sub_u32 s{sRB}, s{sRB}, 1024\ns_subb_u32 s{sRB+1}, s{sRB+1}, 0",
             f"s_sub_u32 s{sRB+2}, {self.wbytes + 1024}, s93", f"s_mov_b32 s{sRB+3}, 0x20000",
             f"s_and_b32 s93, s{sNj2}, 1", f"s_mul_i32 s{sWn}, s93, {self.NS*65536}", f"s_lshl_b32 s93, s{sWave}, 14", f"s_add_u32 s{sWn}, s{sWn}, s93", f"s_lshl_b32 s{self.sM0}, s{sWave}, 11",
             f"s_lshr_b32 s93, s{sNj2}, 1", f"s_add_u32 s93, s93, s{sMi2}", f"s_and_b32 s93, s93, 3" if self.c.get('jump', 1) else "s_mov_b32 s93, 7"]
        L += [f"s_cmp_eq_u32 s93, {q}\ns_cselect_b32 s{sEW+q}, {D4*65536}, 0" for q in range(4)]
        if self.down: L += [f"s_cmp_eq_u32 s{sWave}, 1\ns_cselect_b32 s{self.sDel}, 16384, 0", f"s_cmp_eq_u32 s{sWave}, 2\ns_cselect_b32 s{self.sDel}, -16384, s{self.sDel}"]
        return L
    def wrap(self, L):
        out = []
        for x in L:
            f = x if callable(x) else (lambda x=x: self.g.e(x))
            f.vm = callable(x); out.append(f)
        return out
    def w_op(self, j):
        e = self.g.e; NS, kb, sp = self.NS, self.kb, self.spec
        jl = (j + 4) % NS; d = kb(jl) - kb(j); E_ = sEW + (j & 3)
        L = [f"s_add_u32 m0, s{self.sM0}, {(j % 16)*8192}"]
        if d == kb(4) - kb(0) and not sp(j) and not sp(jl): L += [f"s_add_u32 s93, s{sWn}, s{E_}"]
        else:
            x = f"s_cmp_lg_u32 s{E_}, 0\ns_cselect_b32 s93, {d*65536}, 0"
            if sp(j) != sp(jl): L += [x + (f"\ns_cselect_b32 s43, s{self.sDel}, 0" if sp(jl) else f"\ns_cselect_b32 s43, 0, s{self.sDel}"), "s_add_u32 s93, s93, s43"]
            elif sp(j): L += [x, f"s_add_u32 s93, s93, s{self.sDel}"]
            else: L += [x]
            L += [f"s_add_u32 s93, s93, s{sWn}"]
        L += [lambda: e.vm(f"buffer_load_dwordx4 v{vOW2}, {R(sRA)}, s93 offen lds", (self.nm, 'W', j)),
              lambda: e.vm(f"buffer_load_dwordx4 v{vOW2}, {R(sRB)}, s93 offen offset:1024 lds", (self.nm, 'W', j))]
        if j + 1 < NS: L += [f"s_add_u32 s{sWn}, s{sWn}, {(kb(j+1) - kb(j))*65536}"]
        return self.wrap(L)
    def prefetch_ops(self): return [self.w_op(j) for j in range(self.LW)]
    def t_op(self, t):
        e = self.g.e; U, i = t >> 1, t & 1; NU = self.NS//4; L = []
        if i == 0:
            for kk in range(2):
                L += [f"s_add_u32 s{46+kk}, s{sT}, s{sET+kk}"] if U + 1 < NU else [f"s_mul_i32 s{46+kk}, s{sET+kk}, {1-NU}", f"s_add_u32 s{46+kk}, s{46+kk}, s{sT}"]
            L += [f"s_add_u32 s{sT}, s{sT}, 4096"]
        for tt, kk in ([(tt, i) for tt in range(4)] if self.c.get('bykk') else [(tt, kk) for tt in (2*i, 2*i+1) for kk in range(2)]):
            L += [lambda tt=tt, kk=kk: e.vm(f"buffer_load_dwordx4 {ar(aT(U, kk, tt), 4)}, v{vOT+tt}, {R(sWS)}, s{46+kk} offen offset:{1024*kk} sc1", (self.nm, 'T', t))]
        return self.wrap(L)
    def vm_ops(self, q):
        T = self.t_op(q + self.LQ) if q + self.LQ < self.NS//2 else []
        W = [self.w_op(j) for j in (2*q + self.LW, 2*q + self.LW + 1) if j < self.NS]
        return T + [f for w in W for f in w]
    def clear_mailbox(self, e, voff, vt, lo, fill=True):
        e(f"s_lshl_b32 s43, s2, 2\ns_add_u32 s43, s43, s{sWave}\ns_lshl_b32 s43, s43, 12\ns_add_u32 s43, s43, {lo}\ns_add_u32 s43, s43, {self.pb}")
        for r in range(4 if fill else 0): e(f"v_mov_b32 v{vt+r}, -1")
        for q in range(4): e.vm(f"buffer_store_dwordx4 {vr(vt,4)}, v{voff}, {R(sWS)}, s43 offen offset:{1024*q} sc1")
    def setup_ops(self):
        g = self.g; r = Rec(g.e); down = self.down; ap = HPITCH if down else 32768
        r(f"s_and_b32 s43, s{sNj2}, 1")
        if down: r(f"s_and_b32 s{sLine}, s{sMi2}, 14")
        else: r(f"s_lshl_b32 s{sLine}, s{sMi2}, 1")
        r(f"s_add_u32 s{sLine}, s{sLine}, s43\ns_lshl_b32 s{sLine}, s{sLine}, 7\ns_add_u32 s{sLine}, s{sLine}, s{sLo}\ns_add_u32 s{sLine}, s{sLine}, {FL + (H3 if down else H1)*128}")
        r(f"s_mul_i32 s{sT}, s43, {self.NS*1024}\ns_and_b32 s43, s{sWave}, 1\ns_lshl_b32 s44, s43, 11\ns_add_u32 s{sT}, s{sT}, s44")
        r(f"s_lshl_b32 s65, s{sMi2}, 3\ns_lshl_b32 s44, s{sWave}, 1\ns_add_u32 s65, s65, s44\ns_and_b32 s44, s65, -4\ns_mul_i32 s44, s44, {ap}\ns_add_u32 s{sT}, s{sT}, s44")
        r(f"s_add_u32 s{sT}, s{sT}, {g.lo('H' if down else 'O')}\ns_add_u32 s{sT}, s{sT}, {HB if down else OB}")
        r(f"s_lshl_b32 s{sXo}, s65, 15\ns_lshl_b32 s44, s{sNj2}, 11\ns_add_u32 s{sXo}, s{sXo}, s44\ns_add_u32 s{sXo}, s{sXo}, {g.lo('X')}")
        r(f"s_add_u32 s46, s{sXo}, {XB if down else XA}\ns_add_u32 s47, s46, 32768\nv_lshlrev_b32 v{vL16}, 4, v{vL}")
        for tt in range(2):
            for p in range(2): r.vm(f"buffer_load_dwordx4 {vr(vR + (tt*2+p)*4, 4)}, v{vL16}, {R(sWS)}, s{46+tt} offen offset:{1024*p} sc1", (self.nm, 'R'))
        r(f"s_mul_i32 s44, s43, {2*ap}\nv_add_u32 v{vOT+2}, s44, v{vL16}\ns_sub_u32 s44, {2*ap}, s44\nv_add_u32 v{vOT}, s44, v{vL16}\nv_add_u32 v{vOT+3}, {ap}, v{vOT+2}\nv_add_u32 v{vOT+1}, {ap}, v{vOT}")
        return r.ops
    def setup2(self):
        e = self.g.e
        e(f"v_bfe_u32 v{vt}, v{vL}, 2, 3\nv_bfe_u32 v{vt+1}, v{vL}, 3, 2\nv_and_b32 v{vt+2}, 3, v{vL}\nv_lshlrev_b32 v{vt+2}, 3, v{vt+2}\nv_lshl_add_u32 v{vt+2}, v{vt}, 7, v{vt+2}")
        e(f"v_lshrrev_b32 v{vt}, 5, v{vL}\nv_lshl_add_u32 v{vt+2}, v{vt}, 11, v{vt+2}\ns_and_b32 s43, s{sWave}, 1\ns_lshl_b32 s43, s43, 14\nv_add_u32 v{vt+2}, s43, v{vt+2}")
        for t in range(4): e(f"v_xor_b32 v{vt}, {t}, v{vt+1}\nv_lshl_add_u32 v{vW+t}, v{vt}, 5, v{vt+2}\nv_add_u32 v{vW+4+t}, 0x10000, v{vW+t}")
    def setup_et(self):
        self.g.e(f"s_bitcmp1_b32 s{sWave}, 0\ns_cselect_b32 s{sET}, s{sEW+2}, s{sEW}\ns_cselect_b32 s{sET+1}, s{sEW+3}, s{sEW+1}\ns_min_u32 s{sET}, s{sET}, 4096\ns_min_u32 s{sET+1}, s{sET+1}, 4096")
    def init_acc(self):
        e = self.g.e
        e(f"s_lshl_b32 s43, s{sWave}, 11\nv_add_u32 v{vXw}, s43, v{vL16}\nv_xor_b32 v{vXr}, 2048, v{vXw}\ns_mov_b32 s{sTile}, s65")
        for h in range(2):
            for n in range(4):
                for tt in range(4 if h == 0 else 2):
                    for x in range(4): e(f"v_mov_b32 v{acc(h,n,tt)+x}, 0")
        e.wait(vm=(self.nm, 'R'))
        for tt in range(2):
            for n in range(4):
                for h in range(2):
                    src = vR + (tt*2 + (n >> 1))*4 + (n & 1)*2 + h
                    e(f"v_lshlrev_b32 v{acc(1,n,2+tt)+2*h}, 16, v{src}\nv_and_b32 v{acc(1,n,2+tt)+2*h+1}, 0xffff0000, v{src}")
    def pre(self):
        for f in self.setup_ops(): f()
        self.setup2(); self.setup_et(); self.side.acc()
    def window(self, nxt):
        for op in nxt:
            for f in op: f()
        self.side.publish(); self.init_acc()
    def ck_load(self): self.g.e.vm(f"buffer_load_dword v{vCk}, v{vZ}, {R(sWS)}, s{sLine} offen sc1", 'CK5')
    def ck(self, nm):
        e = self.g.e
        e.wait(vm='CK5')
        t = f"v_cmp_gt_u32 vcc, 16, v{vCk}\ns_cbranch_vccz L{nm}_ok"
        e(f"{t}\ns_mov_b32 s43, 0x40000\nL{nm}_sp:\ns_sleep {self.c.get('slp', 10)}\nbuffer_load_dword v{vCk}, v{vZ}, {R(sWS)}, s{sLine} offen sc1\ns_waitcnt vmcnt(0)\n{t}")
        e(f"s_sub_u32 s43, s43, 1\ns_cmp_lg_u32 s43, 0\ns_cbranch_scc1 L{nm}_sp\nL{nm}_ok:\ns_add_u32 s{sLine}, s{sLine}, 2048")
    def main(self, nx, p3=None):
        g = self.g; e = g.e; c = self.c; down = self.down; NS = self.NS; NU = NS//4; nm = self.nm; ND = c.get('ND', 4)
        items = [(U, h) for U in range(NU - ND) for h in range(2)] + [(U, h) for h in range(2) for U in range(NU - ND, NU)]
        def reads(k):
            if k >= len(items): return []
            U, h = items[k]
            return [lambda n=n, kk=kk, j=j: e.ds(f"ds_read_b64_tr_b16 {ar(aW(k, kk, n) + 2*j, 2)}, v{vW + n + (4 if U & 2 else 0)} offset:{(U & 1)*32768 + kk*8192 + j*4096 + h*1024}", (nm, 'F', k, n))
                    for n in range(4) for kk in range(2) for j in range(2)]
        if down:
            self.setup_et(); self.ck("p4a"); g.stamp()
        else:
            g.poll(sLine, 8); self.side.final()
        for t in range(2):
            for f in self.t_op(t): f()
        if down:
            self.setup2(); e.wait(vm=(nm, 'W', 3)); e("s_barrier")
        for f in reads(0): f()
        if down: self.init_acc()
        for t in range(2, self.LQ):
            for f in self.t_op(t): f()
        if down: p3.signal_field('OUT3', 2)
        g.stamp()
        Pk = lambda tt, p: vR + (tt*2 + p)*4
        def cvt(r, h, tt, p):
            for q in range(4):
                a = acc(h, 2*p + (q >> 1), 2 + tt) + 2*(q & 1)
                r(f"v_cvt_pk_bf16_f32 v{Pk(tt,p)+q}, v{a}, v{a+1}")
        def mail_loads(r):
            for q in range(4): r.vm(f"buffer_load_dwordx4 {vr(vM+4*q,4)}, v{vL16}, {R(sWS)}, s45 offen offset:{1024*q} sc1", (nm, 'MB'))
        def xwrites(r, h):
            for n in range(4):
                for tt in range(2): r.ds(f"ds_write_b128 v{vXw}, {vr(acc(h,n,tt),4)} offset:{(n*2+tt)*8192}", (nm, 'XW', h))
        def xreads(r, h):
            for n in range(4):
                for tt in range(2): r.ds(f"ds_read_b128 {vr(vX + (n*2+tt)*4, 4)}, v{vXr} offset:{(n*2+tt)*8192}", (nm, 'XR', h, n))
        kB = len(items) - ND; stream = []
        for k, (U, h) in enumerate(items):
            if down and k % 8 == 0 and k <= 16: e.mark(f"{nm}b{k//8}")
            fill = [[] for _ in range(32)]
            if down and h == 0:
                def bar(U=U):
                    if U + 1 < NU: e.wait(vm=(nm, 'W', 4*U+7), force=True)
                    e("s_barrier")
                fill[0].append(bar)
            for z, f in enumerate(reads(k+1)): fill[2*z if c.get('rsp', 1) else z].append(f)
            if down and k < 16 and k % 8 == 6 - self.LQ: fill[0].append(lambda: self.ck("p4b"))
            if down and k < 16 and k % 8 == 4 - self.LQ: fill[17].append(self.ck_load)
            ops = self.vm_ops(2*U + h) if U < NU - ND else (self.vm_ops(2*U) + self.vm_ops(2*U+1) if h == 0 else [])
            if c.get('even', 1): space(fill, ops, lambda f: f.vm, c.get('first', 3))
            else:
                for z, f in enumerate(ops): fill[1 + (z*30)//len(ops)].append(f)
            if k == kB - 1:
                fill[11].append(lambda: e("s_barrier"))
                r = Rec(e); xwrites(r, 0)
                for z, f in enumerate(r.ops): fill[17 + 2*z].append(f)
            if k == kB:
                r = Rec(e)
                r(f"s_lshl_b32 s45, s2, 2\ns_add_u32 s45, s45, s{sWave}\ns_lshl_b32 s45, s45, 12\ns_xor_b32 s44, s45, {g.px*4*4096}\ns_add_u32 s43, s{sLo}, {self.pb}\ns_add_u32 s44, s44, s43\ns_add_u32 s45, s45, s43")
                r.call(lambda: (e.wait(ds=(nm, 'XW', 0)), e("s_barrier")))
                xreads(r, 0)
                r(f"v_add_u32 v{vXw}, 0x10000, v{vXw}\nv_add_u32 v{vXr}, 0x10000, v{vXr}")
                for p in range(2):
                    r.wait(ds=(nm, 'XR', 0, 2*p+1))
                    for tt in range(2):
                        for n in (2*p, 2*p+1):
                            for x in range(4): r(f"v_add_f32 v{acc(0,n,2+tt)+x}, v{acc(0,n,2+tt)+x}, v{vX+(n*2+tt)*4+x}")
                        cvt(r, 0, tt, p); r.vm(f"buffer_store_dwordx4 {vr(Pk(tt,p),4)}, v{vL16}, {R(sWS)}, s44 offen offset:{1024*(tt*2+p)} sc1")
                stream = r.ops
            pour(fill, stream, 0, 32, cap=c.get('xcap', 2))
            if k == len(items) - 1:
                assert not stream
                r = Rec(e); mail_loads(r)
                for z, f in enumerate(r.ops): fill[c.get('XL', 1) + 2*z].append(f)
                r = Rec(e); xwrites(r, 1)
                for z, f in enumerate(r.ops): fill[17 + 2*z].append(f)
            seq = []; kk = 0
            for i in range(2):
                for n in (range(4) if i == 0 else range(3, -1, -1)):
                    for tt in ((2*i+1, 2*i) if n & 1 else (2*i, 2*i+1)): seq += [(n, tt, kk), (n, tt, 1-kk)]; kk = 1 - kk
            for z, (n, tt, kk) in enumerate(seq):
                tw = h == 0 and z % 16 == 0
                e.wait(vm=(nm, 'T', 2*U + (1 if c.get('bykk') else z//16)) if tw else None, ds=(nm, 'F', k, n | 1), force=tw)
                a = vr(acc(h, n, tt), 4)
                e(f"{MF} {a}, {ar(aW(k, kk, n), 4)}, {ar(aT(U, kk, tt), 4)}, {a}")
                for f in fill[z]: f()
        if down: e.fold([f"{nm}b{k}" for k in range(3)], f"L{nm}_loop", f"s{sCnt}")
        g.stamp()
        e.wait(ds='all'); e("s_barrier"); xreads(e, 1)
        e(f"s_mov_b32 s43, 0x40000\nL{nm}_mb:\ns_waitcnt vmcnt(0)"); e.vm_done = len(e.vmq)
        e(f"v_max3_u32 v{vU}, v{vM}, v{vM+1}, v{vM+2}\nv_max3_u32 v{vU+1}, v{vM+3}, v{vM+4}, v{vM+5}")
        for x in range(5): e(f"v_max3_u32 v{vU + (x&1)}, v{vU + (x&1)}, v{vM+6+2*x}, v{vM+7+2*x}")
        e(f"v_max_u32 v{vU}, v{vU}, v{vU+1}\nv_cmp_eq_u32 vcc, -1, v{vU}\ns_cbranch_vccz L{nm}_mbok")
        mail_loads(e); e(f"s_sub_u32 s43, s43, 1\ns_cmp_lg_u32 s43, 0\ns_cbranch_scc1 L{nm}_mb\ns_waitcnt vmcnt(0)\nL{nm}_mbok:"); e.vm_done = len(e.vmq)
        e(f"s_add_u32 s46, s{sXo}, {XA + g.lp('X') if down else XB}\ns_add_u32 s47, s46, 32768")
        e(f"s_lshl_b32 s48, s{sTile}, 11\ns_lshl_b32 s43, s{sNj2}, 7\ns_add_u32 s48, s48, s43\ns_add_u32 s48, s48, s{sLo}\ns_add_u32 s48, s48, {STA + LP if down else STB}")
        e.wait(ds='all')
        def addp(tt, p):
            A = lambda q: acc(1, 2*p + (q >> 1), 2 + tt) + 2*(q & 1)
            for q in range(4):
                src = vM + (tt*2 + p)*4 + q
                e(f"v_lshlrev_b32 v{vU+2*q}, 16, v{src}\nv_and_b32 v{vU+2*q+1}, 0xffff0000, v{src}")
                e(f"v_pk_add_f32 {vr(A(q),2)}, {vr(A(q),2)}, {vr(vX + ((2*p + (q >> 1))*2 + tt)*4 + 2*(q & 1), 2)}")
            for q in range(4): e(f"v_pk_add_f32 {vr(A(q),2)}, {vr(A(q),2)}, {vr(vU+2*q,2)}")
        if down: e(f"s_cmp_lg_u32 s{sLay}, 0\ns_cbranch_scc1 Lfinal")
        for p in range(2):
            for tt in range(2):
                addp(tt, p); cvt(e, 1, tt, p)
                e.vm(f"buffer_store_dwordx4 {vr(Pk(tt,p),4)}, v{vL16}, {R(sWS)}, s{46+tt} offen offset:{1024*p} sc1", (nm, 'OUT'))
        stats_epilogue(e, Pk, 2, 2, vL, 64, sWS, 48, aux='sc1', sm0=64, tag=(nm, 'OUT'))
        g.stamp()
        if down: e(f"s_lshl_b32 s77, s{sMi2}, 7\ns_add_u32 s77, s77, {FL + H4*128}\ns_mov_b32 s{sLay}, 1\ns_mov_b32 s{sLo}, {hex(LP)}")
        else: e(f"s_lshr_b32 s77, s{sMi2}, 1\ns_lshl_b32 s77, s77, 7\ns_add_u32 s77, s77, s{sLo}\ns_add_u32 s77, s77, {FL + H2*128}")
        g.signal((nm, 'OUT'), 77, nx.pre)
        if not down: self.side.arrive()
        nx.window()
        if not down: return
        e("s_branch Llayer\nLfinal:")
        t = 64
        e(f"v_and_b32 v{t}, 15, v{vL}\nv_lshrrev_b32 v{t+1}, 4, v{vL}\nv_lshrrev_b32 v{t+2}, 1, v{t+1}\nv_and_b32 v{t+1}, 1, v{t+1}\nv_lshl_add_u32 v{t+1}, v{t+1}, 1, v{t+2}")
        e(f"v_and_b32 v{t+2}, 7, v{vL}\nv_xor_b32 v{t+1}, v{t+1}, v{t+2}\nv_lshlrev_b32 v{t+1}, 4, v{t+1}\nv_lshl_add_u32 v{t}, v{t}, 7, v{t+1}\ns_lshl_b32 s43, s{sWave}, 12\nv_add_u32 v{t}, s43, v{t}\nv_xor_b32 v{t+1}, 64, v{t}")
        for p in range(2):
            for tt in range(2):
                addp(tt, p); cvt(e, 1, tt, p); r = Pk(tt, p)
                e(f"s_nop 1\nv_permlane16_swap_b32 v{r}, v{r+2}\nv_permlane16_swap_b32 v{r+1}, v{r+3}")
                e.ds(f"ds_write_b128 v{t+p}, {vr(r,4)} offset:{2048*tt}")
        e(f"v_lshrrev_b32 v{t+3}, 3, v{vL}\nv_xor_b32 v{t+4}, v{t+3}, v{t+2}\nv_lshlrev_b32 v{t+4}, 4, v{t+4}\nv_lshl_add_u32 v{t+4}, v{t+3}, 7, v{t+4}\nv_add_u32 v{t+4}, s43, v{t+4}")
        for q in range(4): e.ds(f"ds_read_b128 {vr(vM+4*q,4)}, v{t+4} offset:{1024*q}", ('FO', q))
        e(f"v_lshlrev_b32 v{t+2}, 4, v{t+2}\nv_lshl_add_u32 v{t+2}, v{t+3}, 12, v{t+2}")
        e(f"s_and_b32 s43, s{sTile}, 63\ns_lshl_b32 s43, s43, 16\ns_lshr_b32 s46, s{sTile}, 6\ns_lshl_b32 s46, s46, 11\ns_add_u32 s46, s46, s43\ns_lshl_b32 s43, s{sNj2}, 7\ns_add_u32 s46, s46, s43")
        for q in range(4):
            e.wait(ds=('FO', q))
            e(f"buffer_store_dwordx4 {vr(vM+4*q,4)}, v{t+2}, {R(sOut)}, s46 offen {c.get('faux', 'sc1')}\ns_add_u32 s46, s46, 32768")
        g.stamp()
```

```python
from mg import *
sSide, sDst, sOn = 100, 101, 3
sWhen, sWoT, sPh = 88, 89, 90
sSr = 84
aS = 176
vOff = 238; vAcc, vT = 224, 232
CSX = 139264 + 4096
class Side:
    def __init__(self, g): self.g = g
    def skip(self):
        l = self.g.lab("sd"); self.g.e(f"s_cmp_eq_u32 s{sOn}, 0\ns_cbranch_scc1 {l}"); return l
    def setup(self):
        e = self.g.e
        e(f"s_lshr_b32 s46, s2, 3\ns_cmp_ge_u32 s46, 14\ns_cselect_b32 s44, 14, 0\ns_cselect_b32 s45, 1, 0")
        e(f"s_cselect_b32 s{sSr}, s{sWu}, s{sWg}\ns_cselect_b32 s{sSr+1}, s{sWu+1}, s{sWg+1}\ns_mov_b32 s{sSr+2}, {D*F*2}\ns_mov_b32 s{sSr+3}, 0x20000")
        e(f"s_sub_u32 s44, s46, s44\ns_bfe_u32 s47, s2, 0x20001\ns_mul_i32 s47, s47, 14\ns_add_u32 s44, s44, s47\ns_and_b32 s47, s2, 1")
        e(f"s_lshl_b32 s48, s47, 1\ns_add_u32 s48, s48, s45\ns_mul_i32 s48, s48, {F*4}\ns_lshl_b32 s49, s44, 8\ns_add_u32 s48, s48, s49\ns_add_u32 s{sDst}, s48, {CSG}")
        e(f"s_lshl_b32 s47, s47, 2\ns_add_u32 s47, s47, s{sWave}\ns_mul_i32 s47, s47, {64*2*F}\ns_lshl_b32 s44, s44, 7\ns_add_u32 s{sSide}, s47, s44")
        e(f"s_cmp_lt_u32 s46, 28\ns_cselect_b32 s{sOn}, 1, 0\ns_cmp_eq_u32 s{sLay}, 0\ns_cselect_b32 s{sOn}, s{sOn}, 0")
        e(f"v_lshrrev_b32 v{vOff}, 3, v{vL}\nv_mul_u32_u24 v{vOff}, {2*F}, v{vOff}\nv_and_b32 v{vOff+1}, 7, v{vL}\nv_lshl_add_u32 v{vOff}, v{vOff+1}, 4, v{vOff}")
        e(f"s_cmp_eq_u32 s{sOn}, 0\ns_cselect_b32 s43, 0x40000000, 0\nv_or_b32 v{vOff}, s43, v{vOff}\nv_lshlrev_b32 v{vOff+1}, 4, v{vL}")
        e(f"s_lshl_b32 s43, s2, 2\ns_add_u32 s43, s43, s{sWave}\ns_lshl_b32 s{sWoT}, s43, 11")
        e(f"s_mul_i32 s43, s46, 43\ns_lshr_b32 s43, s43, 8\ns_mul_i32 s43, s43, 6\ns_sub_u32 s43, s46, s43\ns_add_u32 s43, s43, 5")
        if self.g.cfg.get('sidesync'): e("s_mov_b32 s43, 10")
        e(f"s_cmp_eq_u32 s{sLay}, 0\ns_cselect_b32 s{sWhen}, s43, 63\ns_mov_b32 s{sPh}, 0")
    def disable(self):
        self.g.e(f"s_mov_b32 s{sSr}, s{sWg}\ns_mov_b32 s{sSr+1}, s{sWg+1}\ns_mov_b32 s{sSr+2}, {D*F*2}\ns_mov_b32 s{sSr+3}, 0x20000\ns_mov_b32 s{sOn}, 0\ns_mov_b32 s{sWhen}, 63\ns_mov_b32 s{sSide}, 0\nv_mov_b32 v{vOff}, 0x40000000")
    def loads_tracked(self):
        r = Rec(self.g.e)
        for q in range(8):
            r.vm(f"buffer_load_dwordx4 {ar(aS+32+4*q,4)}, v{vOff}, {R(sSr)}, s{sSide} offen"); r(f"s_add_u32 s{sSide}, s{sSide}, {8*2*F}")
        return r.ops
    def hook(self, sSt, k):
        self.g.e(f"s_cmp_eq_u32 s{sSt}, s{sWhen}\ns_cbranch_scc0 Lside_skip{k}\ns_call_b64 s[78:79], Lside_sub\nLside_skip{k}:")
    def subroutine(self, p2):
        e = self.g.e; ret = f"s_add_u32 s{sWhen}, s{sWhen}, 3\ns_add_u32 s{sPh}, s{sPh}, 1\ns_setpc_b64 s[78:79]"
        e(f"Lside_sub:\ns_cmp_eq_u32 s{sPh}, 1\ns_cbranch_scc0 Lside_l")
        e(f"s_cmp_lg_u32 s{sWave}, 0\ns_cbranch_scc1 Lside_a\ns_and_b32 s43, s2, 1\ns_lshl_b32 s43, s43, 7"); self.g.arrive(sDbg, 43); e(f"Lside_a:\n{ret}")
        e(f"Lside_l:\n{'s_nop 0' if self.g.cfg.get('nowo') else f'buffer_load_dwordx4 a[240:243], v{vOff+1}, {R(sWo)}, s{sWoT} offen'}\ns_add_u32 s{sWoT}, s{sWoT}, 1024\ns_cmp_eq_u32 s{sPh}, 0\ns_cbranch_scc0 Lside_b")
        for b in range(2):
            for q in range(0 if self.g.cfg.get('noside') else 8): e(f"buffer_load_dwordx4 {ar(aS+32*b+4*q,4)}, v{vOff}, {R(sSr)}, s{sSide} offen {self.g.cfg.get('sideaux', '')}\ns_add_u32 s{sSide}, s{sSide}, {8*2*F}")
            if b == 0: e(f"s_add_u32 s{sSide}, s{sSide}, {(512-64)*2*F}\n{ret}\nLside_b:")
            else: e(f"s_mov_b32 s{sWhen}, 63\ns_setpc_b64 s[78:79]")
    def half(self, b):
        e = self.g.e
        for q in range(8):
            for r in range(4): e(f"v_accvgpr_read_b32 v{vT+4+r}, a{aS+32*b+4*q+r}")
            self.g.colsum_acc(vT+4, 1, vAcc, vT, b == 0 and q == 0)
    def acc(self):
        l = self.skip(); self.half(0); self.g.e(f"{l}:")
    def publish(self):
        l = self.skip(); self.half(1); self.g.colsum_publish(vAcc, vT, CSX); self.g.e(f"{l}:")
    def final(self):
        e = self.g.e
        e(f"s_cmp_eq_u32 s{sWave}, 1\ns_cselect_b32 s{sOn}, s{sOn}, 0")
        l = self.skip(); self.g.colsum_final(vT, CSX, sDst); e(f"{l}:")
    def arrive(self):
        l = self.skip(); self.g.e(f"s_bfe_u32 s43, s2, 0x20001\ns_lshl_b32 s43, s43, 7\ns_add_u32 s43, s43, {FL + HC*128}"); self.g.arrive(sWS, 43); self.g.e(f"{l}:")
```

```python
import re
from mg import *
from p1 import P1
from p3 import P3
from side import Side
from pk import PK
from p24 import P24
from p4s import P4S

def build(cfg):
    g = G(cfg); e = g.e
    p1, p2, p3, p4 = P1(g), (PK if cfg.get('p2k', 0) else P24)(g, False), P3(g), PK(g, True) if cfg.get('p4k', 0) else P4S(g)
    p1.p4 = p4
    p1.side = p2.side = Side(g)
    if g.diag: e("s_memtime s[96:97]\ns_memrealtime s[98:99]")
    srds = [(sAs, 0, S*D*2), (sWq, 8, D*3*D*2), (sWS, 72, WS_BYTES), (sWo, 16, D*D*2), (sWg, 32, D*F*2), (sWu, 40, D*F*2), (sWd, 48, F*D*2), (sOut, 56, S*D*2), (sDbg, 64, 256)]
    e(f"s_cmp_lt_u32 s2, 256\ns_cbranch_scc1 Lgo\ns_endpgm\nLgo:")
    for r, off, n in srds[:2]: e(f"s_load_dwordx2 s[{r}:{r+1}], s[0:1], {off}")
    e(f"s_getpc_b64 s[44:45]\nLpc0:\ns_bfe_u32 s43, s2, 0x40003\ns_lshl_b32 s43, s43, 12\nv_lshl_add_u32 v2, v0, 4, s43\ns_and_b32 s44, s44, 0xffffff80")
    if cfg.get('touch', 1): e.vm("global_load_dwordx4 a[240:243], v2, s[44:45]")
    e(f"v_lshrrev_b32 v1, 6, v0\nv_and_b32 v{vL}, 63, v0\nv_readfirstlane_b32 s{sWave}, v1\nv_mov_b32 v{vZ}, 0")
    for r, off, n in srds[:2]: e(f"s_mov_b32 s{r+2}, {hex(n)}\ns_mov_b32 s{r+3}, 0x20000")
    e(f"s_and_b32 s44, s2, 1\ns_bfe_u32 s45, s2, 0x20001\ns_lshr_b32 s46, s2, 3")
    e(f"s_lshl_b32 s47, s44, 3\ns_and_b32 s43, s46, 7\ns_add_u32 s{sMi1}, s47, s43\ns_lshl_b32 s43, s45, 2\ns_lshr_b32 s{sHj}, s46, 3\ns_add_u32 s{sHj}, s{sHj}, s43")
    def kernargs():
        e("s_waitcnt lgkmcnt(0)")
        if g.diag: e("v_mov_b32 v254, 0\nv_mov_b32 v255, 0\nv_writelane_b32 v254, s96, 0\nv_writelane_b32 v255, s98, 0\ns_mov_b32 s95, 1")
        if cfg.get('st0'): g.stamp()
    def more():
        for r, off, n in srds[2:]: e(f"s_load_dwordx2 s[{r}:{r+1}], s[0:1], {off}")
    def rest():
        for r, off, n in srds[2:]: e(f"s_mov_b32 s{r+2}, {hex(n)}\ns_mov_b32 s{r+3}, 0x20000")
        e(f"s_mov_b32 s{sLay}, 0\ns_mov_b32 s{sLo}, 0")
        e(f"s_and_b32 s44, s2, 1\ns_bfe_u32 s45, s2, 0x20001\ns_lshr_b32 s46, s2, 3")
        e(f"s_lshl_b32 s47, s44, 3")
        if g.px == 32:
            e(f"s_and_b32 s43, s45, 1\ns_lshl_b32 s43, s43, 2\ns_add_u32 s{sMi2}, s47, s43\ns_and_b32 s48, s46, 3\ns_add_u32 s{sMi2}, s{sMi2}, s48")
            e(f"s_lshr_b32 s43, s45, 1\ns_lshl_b32 s43, s43, 3\ns_lshr_b32 s49, s46, 2\ns_add_u32 s{sNj2}, s43, s49")
        else:
            e(f"s_lshr_b32 s43, s45, 1\ns_lshl_b32 s43, s43, 2\ns_add_u32 s{sMi2}, s47, s43\ns_and_b32 s48, s46, 3\ns_add_u32 s{sMi2}, s{sMi2}, s48")
            e(f"s_and_b32 s43, s45, 1\ns_lshr_b32 s49, s46, 2\ns_lshl_b32 s{sNj2}, s49, 1\ns_add_u32 s{sNj2}, s{sNj2}, s43")
        e(f"s_lshl_b32 s43, s44, 2\ns_add_u32 s{sMi3}, s43, s48\ns_lshl_b32 s43, s45, 3\ns_add_u32 s{sNj3}, s43, s49")
        e(f"v_lshrrev_b32 v2, 3, v{vL}\nv_bfe_u32 v3, v{vL}, 1, 2\nv_lshrrev_b32 v4, 4, v{vL}\nv_xor_b32 v3, v3, v4\nv_and_b32 v4, 1, v{vL}")
        e(f"v_lshlrev_b32 v2, 11, v2\nv_lshl_add_u32 v2, v3, 5, v2\nv_lshl_add_u32 v{vOW2}, v4, 4, v2\ns_waitcnt lgkmcnt(0)")
    p1.prep_and_start(kernargs, more, rest)
    e("s_branch Lp1_common")
    e("Llayer:")
    p1.start_l2()
    e("Lp1_common:")
    p1.main(p2)
    p2.main(p3)
    p3.main(p4)
    p4.main(p1, p3)
    e("Lend:")
    if g.diag:
        e("s_waitcnt vmcnt(0)"); g.stamp()
        e(f"s_lshl_b32 s43, s2, 2\ns_add_u32 s43, s43, s{sWave}\ns_lshl_b32 s43, s43, 9\ns_add_u32 s43, s43, {hex(DIAG)}\nv_lshlrev_b32 v0, 3, v{vL}")
        e(f"buffer_store_dwordx2 v[254:255], v0, {R(sWS)}, s43 offen")
    e("s_endpgm")
    p1.side.subroutine(p2)
    e("Lcode_end:\n.fill (Lpc0 + 69632 - Lcode_end)/4, 4, 0xbf810000")
    import opt
    names = [l[:-1] for l in e.L if re.fullmatch(r"L(p\d_loop|mk_\w+):", l)]
    if cfg.get('rep'): print("before", opt.report(e.L, names))
    if cfg.get('pack', 1): e.L, mv = opt.pack(e.L)
    if cfg.get('rep'): print("after ", opt.report(e.L, names))
    for b in opt.check(e.L): print("HAZARD", b)
    hdr = open("/code/" + NAME + ".s.ref").read().split("; Override launch")[0]
    hdr += f"; generated by gen/mega.py (persistent kernel, one workgroup per CU)\n; @launch grid=(256,1,1) block=(256,1,1) lds={LDS_BYTES}\n"
    return hdr + '.amdgcn_target "amdgcn-amd-amdhsa--gfx950"\n.text\n' + entry(NAME + "_kernel") + e.text() + '.section .rodata,"a"\n' + kd(NAME + "_kernel")
if __name__ == "__main__":
    cfg = json.loads(sys.argv[2]) if len(sys.argv) > 2 else {}
    open(sys.argv[1], "w").write(build(cfg))
```

```python
from mg import *
W_RING, A_RING, HALO, PW = 0, 73728, 122880, 139264
CSX = PW + 4096
sHalf, sHd, sAb, sWb, sAi, sMA, sMW, sRs, sRi, sSt, sLead, sA, sW, sW2, sT0, sHt, sHb, sOwn, sHead, sPW = range(57, 77)
Q = lambda j, t: (j*4 + t - 1)*4
Kc = lambda j, t: 32 + (j*4 + t - 1)*4 if t else 96
V = lambda j, t: 64 + (j*4 + t - 1)*4 if t else 100
kf0, vCq = 104, 108
vT, vH, vW, vOA, vOW, vOH, vCk = 112, 114, 116, 120, 124, 126, 127
vST = 128; bC, bP, bP0, ones = 128, 132, 136, 160
aG, aL, vCS, vRo, vP, vXa, vMuV, vRsV, tmp = 164, 166, 168, 187, 188, 198, 200, 220, 240
aRes = 240
MSK = PW + 6144 + 4096; TBL = PW + 2*6144 + 4096
NSL = 52
fT = lambda b, kk, t: b*88 + kk*20 + t*4
fW = lambda b, kk, n: b*88 + 40 + kk*24 + n*4
class P1:
    def __init__(self, g): self.g = g; self.c = g.cfg.get('p1', {}); self.ntA = self.ntW = ''
    def setup(self, l1):
        e = self.g.e
        e(f"s_lshr_b32 s{sHalf}, s{sWave}, 1\ns_and_b32 s{sHd}, s{sWave}, 1\ns_lshl_b32 s{sT0}, s{sMi1}, 3")
        e(f"s_add_u32 s{sLead}, s{sMi1}, s{sHj}\ns_and_b32 s{sLead}, s{sLead}, 15" if l1 else f"s_mov_b32 s{sLead}, 0")
        e(f"s_lshl_b32 s{sMA}, s{sWave}, 12\ns_mul_i32 s{sMW}, s{sWave}, 6144\ns_add_u32 s{sPW}, s{sMW}, {PW}")
        e(f"s_and_b32 s43, s{sMi1}, 7\ns_cmp_lg_u32 s43, 0\ns_cselect_b32 s43, 1, 0\ns_sub_u32 s{sHt}, s{sT0}, s43")
        e(f"v_lshrrev_b32 v2, 3, v{vL}\nv_bfe_u32 v3, v{vL}, 1, 2\nv_lshrrev_b32 v4, 4, v{vL}\nv_xor_b32 v3, v3, v4\nv_and_b32 v5, 1, v{vL}")
        if l1:
            e(f"v_lshrrev_b32 v6, 5, v{vL}\nv_lshl_add_u32 v6, v6, 2, v2")
            e(f"s_lshl_b32 s43, s{sHalf}, 5\ns_lshl_b32 s44, s{sHd}, 2\ns_add_u32 s43, s43, s44")
        else:
            e(f"v_mov_b32 v6, v2\ns_lshl_b32 s43, s{sWave}, 4")
        e(f"v_mul_u32_u24 v6, 6144, v6\nv_lshl_add_u32 v6, v3, 5, v6\nv_lshl_add_u32 v{vOW}, v5, 4, v6\nv_add_u32 v{vOW+1}, {(16 if l1 else 8)*6144-1024}, v{vOW}")
        e(f"s_mul_i32 s43, s43, 6144\ns_lshl_b32 s{sWb}, s{sHj}, 7\ns_add_u32 s{sWb}, s{sWb}, s43")
        e(f"v_and_b32 v3, 7, v{vL}\ns_lshl_b32 s43, s{sWave}, 1\ns_add_u32 s43, s43, s{sT0}")
        if l1:
            for q in range(4):
                e(f"v_add_u32 v5, {4*(q&1)}, v4\nv_xor_b32 v5, v5, v3\nv_lshlrev_b32 v5, 4, v5\nv_lshl_add_u32 v5, v2, 12, v5\nv_add_u32 v{vOA+q}, {q*(32768-1024)}, v5")
            e(f"v_and_b32 v5, 6, v2\nv_xor_b32 v5, v5, v3\nv_lshlrev_b32 v5, 4, v5\nv_lshl_add_u32 v5, v2, 12, v5\nv_add_u32 v{vOH}, 32768, v5")
            e(f"s_lshr_b32 s44, s{sMi1}, 3\ns_lshl_b32 s44, s44, 11\ns_and_b32 s43, s43, 63\ns_lshl_b32 s43, s43, 16\ns_add_u32 s{sAb}, s43, s44")
            e(f"s_and_b32 s43, s{sHt}, 63\ns_lshl_b32 s43, s43, 16\ns_add_u32 s{sHb}, s43, s44\ns_movk_i32 s{sAi}, 128")
        else:
            e(f"v_lshlrev_b32 v{vOA}, 4, v{vL}\nv_mov_b32 v{vOA+1}, v{vOA}\nv_add_u32 v{vOA+2}, {32768-2048}, v{vOA}\nv_add_u32 v{vOA+3}, {32768-2048}, v{vOA}")
            e(f"v_lshlrev_b32 v5, 8, v2\nv_lshl_add_u32 v5, v3, 4, v5\nv_add_u32 v{vOH}, 128, v5")
            e(f"s_lshl_b32 s43, s43, 15\ns_mov_b32 s44, {XA + self.g.lp('X')}\ns_add_u32 s{sAb}, s43, s44\ns_lshl_b32 s43, s{sHt}, 15\ns_add_u32 s{sHb}, s43, s44\ns_movk_i32 s{sAi}, 2048")
    def setup_reads(self, l1):
        e = self.g.e
        e(f"v_and_b32 v2, 15, v{vL}\nv_lshrrev_b32 v3, 4, v{vL}\nv_and_b32 v4, 7, v{vL}")
        if l1:
            e(f"v_lshrrev_b32 v5, 1, v2\nv_xor_b32 v5, v5, v3\nv_lshlrev_b32 v5, 4, v5\nv_lshl_add_u32 v6, v2, 7, v5\nv_xor_b32 v7, 64, v6")
            e(f"v_and_b32 v5, 6, v4\nv_xor_b32 v5, v5, v3\nv_lshlrev_b32 v5, 4, v5\nv_lshl_add_u32 v8, v4, 7, v5\nv_xor_b32 v9, 64, v8")
        else:
            e(f"v_lshlrev_b32 v6, 4, v{vL}\nv_add_u32 v7, 1024, v6\nv_lshlrev_b32 v5, 7, v3\nv_lshl_add_u32 v8, v4, 4, v5\nv_add_u32 v9, 512, v8")
        e(f"s_lshl_b32 s43, s{sHalf}, 13\ns_add_u32 s43, s43, {A_RING}\nv_add_u32 v{vT}, s43, v6\nv_add_u32 v{vT+1}, s43, v7")
        e(f"v_add_u32 v{vH}, {HALO}, v8\nv_add_u32 v{vH+1}, {HALO}, v9")
        e(f"s_lshl_b32 s43, s{sMi2}, 3\ns_lshl_b32 s44, s{sWave}, 1\ns_add_u32 s43, s43, s44")
        if l1:
            e(f"v_lshlrev_b32 v{vRo}, 12, v2\nv_and_b32 v5, 1, v3\nv_lshl_add_u32 v{vRo}, v5, 5, v{vRo}\nv_lshrrev_b32 v5, 1, v3\nv_lshl_add_u32 v{vRo}, v5, 4, v{vRo}")
            e(f"s_lshr_b32 s44, s43, 6\ns_lshl_b32 s44, s44, 11\ns_and_b32 s43, s43, 63\ns_lshl_b32 s43, s43, 16\ns_add_u32 s43, s43, s44\ns_lshl_b32 s44, s{sNj2}, 7\ns_add_u32 s{sRs}, s43, s44\ns_movk_i32 s{sRi}, 64")
        else:
            e(f"v_mov_b32 v{vRo}, v6\ns_lshl_b32 s43, s43, 15\ns_lshl_b32 s44, s{sNj2}, 11\ns_add_u32 s43, s43, s44\ns_add_u32 s{sRs}, s43, {XA + self.g.lp('X')}\ns_movk_i32 s{sRi}, 1024")
        e(f"v_lshrrev_b32 v2, 2, v{vL}\nv_bfe_u32 v3, v{vL}, 3, 2\nv_and_b32 v4, 3, v{vL}\nv_lshlrev_b32 v4, 3, v4\nv_lshl_add_u32 v4, v2, 7, v4")
        e(f"s_lshl_b32 s43, s{sHd}, 1\ns_or_b32 s43, s43, s{sHalf}\nv_xor_b32 v5, s43, v3\nv_lshl_add_u32 v{vW}, v5, 5, v4\nv_xor_b32 v5, 1, v5\nv_lshl_add_u32 v{vW+1}, v5, 5, v4")
        e(f"v_add_u32 v{vW+2}, {2*24576}, v{vW}\nv_add_u32 v{vW+3}, {2*24576}, v{vW+1}")
    def zero_acc(self):
        for r in range(104): self.g.e(f"v_mov_b32 v{r}, 0")
    def sig_static(self, s): return [f"s_add_u32 s44, s{sLead}, {s}", "s_and_b32 s44, s44, 15"]
    def offA(self): return [f"s_mul_i32 s45, s44, s{sAi}", f"s_add_u32 s{sA}, s45, s{sAb}"]
    def offW(self): return [f"s_mul_i32 s45, s44, {64*6144}", f"s_add_u32 s{sW}, s45, s{sWb}", f"s_add_u32 s{sW2}, s{sW}, 4096"]
    def a_ops(self, s):
        e = self.g.e
        return [(f"s_add_u32 m0, s{sMA}, {A_RING + (s % 3)*16384}" if q == 0 else None,
                 lambda q=q: e.vm(f"buffer_load_dwordx4 v{vOA+q}, {R(sAs)}, s{sA} offen offset:{1024*q} sc1 {self.ntA} lds", ('S', s))) for q in range(4)]
    def w_ops(self, s):
        e = self.g.e
        return [(f"s_add_u32 m0, s{sMW}, {W_RING + (s % 3)*24576 + q*1024}" if q in (0, 4) else None,
                 lambda q=q: e.vm(f"buffer_load_dwordx4 v{vOW + (q&1)}, {R(sWq)}, s{sW if q < 4 else sW2} offen offset:{1024*(q&3)} {self.ntW} lds", ('S', s))) for q in range(6)]
    def run(self, pre, ops):
        e = self.g.e
        for x in pre: e(x)
        for m, f in ops:
            if m: e(m + "\ns_nop 0")
            f()
    def prefetch_w(self, a=0, n=3):
        for s in range(a, n): self.run(self.sig_static(s) + self.offW(), self.w_ops(s))
    def halo(self, i):
        e = self.g.e
        e(f"s_add_u32 s44, s{sLead}, s{sWave}\ns_add_u32 s44, s44, {4*i}\ns_and_b32 s44, s44, 15\ns_mul_i32 s44, s44, s{sAi}")
        e(f"s_lshl_b32 s45, s{sWave}, 10\ns_add_u32 m0, s45, {HALO + i*4096}\ns_add_u32 s44, s44, s{sHb}")
        e.vm(f"buffer_load_dwordx4 v{vOH}, {R(sAs)}, s44 offen sc1 lds", ('H', i))
    def first_a(self):
        self.halo(0); self.run(self.sig_static(0) + self.offA(), self.a_ops(0))
    def prep_and_start(self, kernargs, more, rest):
        g = self.g; e = g.e
        self.setup(True)
        kernargs()
        nt = self.c.get('nt0', 0); self.ntA = 'nt' if nt & 1 else ''; self.ntW = 'nt' if nt & 2 else ''
        self.run(self.sig_static(0) + self.offA(), self.a_ops(0)); self.prefetch_w(0, 1); self.halo(0)
        self.ntA = self.ntW = ''
        more(); rest()
        e(f"s_lshr_b32 s43, s2, 7\ns_mul_i32 s43, s43, {LP}\ns_and_b32 s44, s2, 127\ns_lshl_b32 s44, s44, 7\ns_add_u32 s43, s43, s44\ns_add_u32 s43, s43, {FL}")
        e.vm(f"buffer_store_dword v{vZ}, v{vZ}, {R(sWS)}, s43 offen sc1")
        self.setup_reads(True); self.zero_acc(); self.mask_table()
        self.side.setup()
        e(f"s_lshl_b32 s43, s{sHd}, 12\nv_add_u32 v132, s43, v{vT}\nv_add_u32 v133, s43, v{vT+1}")
        e(f"v_and_b32 v128, 15, v{vL}\nv_lshrrev_b32 v129, 4, v{vL}\nv_cmp_eq_u32 vcc, 0, v128\nv_lshlrev_b32 v129, 4, v129\nv_mov_b32 v130, 0x40000000\nv_cndmask_b32 v136, v130, v129, vcc")
        for r in range(4): e(f"v_mov_b32 v{156+r}, 0x3f803f80")
        e(f"s_lshl_b32 s43, s{sWave}, 1\ns_add_u32 s43, s43, s{sT0}\ns_lshl_b32 s48, s43, 11\ns_lshl_b32 s43, s{sLead}, 7\ns_add_u32 s48, s48, s43\ns_add_u32 s48, s48, {STA}")
        e(f"s_lshl_b32 s43, s{sHj}, 2\ns_lshl_b32 s44, s{sHd}, 1\ns_add_u32 s43, s43, s44\ns_add_u32 s43, s43, s{sHalf}\ns_lshl_b32 s43, s43, 6\ns_mul_i32 s49, s{sLead}, {3072*4}\ns_add_u32 s49, s49, s43\ns_add_u32 s49, s49, {CSQ}")
        g.stamp()
        def xreads():
            g.stamp()
            for tt in range(2):
                for p in range(2): e.ds(f"ds_read_b128 {vr(140 + (tt*2+p)*4, 4)}, v{132+p} offset:{2048*tt}", 'PX')
        def prep():
            e.wait(ds='all')
            for kk in range(2):
                for m in range(3): e(f"{MF} {vr(160+4*m,4)}, {ar(fW(0,kk,2*m),4)}, v[156:159], {vr(160+4*m,4) if kk else 0}")
            stats_epilogue(e, lambda tt, p: 140 + (tt*2+p)*4, 2, 2, vL, 192, sWS, 48, aux='sc1', sm0=[80, 82, 92, 46])
            for m in range(3): e.vm(f"buffer_store_dwordx4 {vr(160+4*m,4)}, v136, {R(sWS)}, s49 offen sc1"); e("s_add_u32 s49, s49, 4096")
        self.enter(True, xreads, prep)
    def pre(self):
        e = self.g.e
        e(f"s_mov_b32 s{sAs}, s{sWS}\ns_mov_b32 s{sAs+1}, s{sWS+1}\ns_mov_b32 s{sAs+2}, {hex(WS_BYTES)}")
        self.setup(False); self.prefetch_w(0, self.c.get('wpre', 0)); self.setup_reads(False); self.side.disable()
    def window(self):
        e = self.g.e
        self.prefetch_w(self.c.get('wpre', 0), 3); self.zero_acc()
        e(f"s_lshl_b32 s77, s{sMi1}, 7\ns_add_u32 s77, s77, {FL + H4*128 - 128}\ns_and_b32 s43, s{sMi1}, 7\ns_cmp_eq_u32 s43, 0\ns_cselect_b32 s43, 0x80, 0")
        e(f"v_lshlrev_b32 v249, 7, v{vL}\nv_or_b32 v249, s43, v249")
    def start_l2(self):
        self.g.poll(77, 16, voff=249); self.first_a(); self.enter(False)
    def enter(self, l1, hook=None, hook2=None):
        e = self.g.e; o = self.c.get('ord', 1) if l1 else 0
        if l1 and o == 0: self.prefetch_w(1, 2)
        self.run(self.sig_static(1) + self.offA(), self.a_ops(1))
        e.wait(vm=[('S', 0), ('H', 0)]); e("s_barrier")
        if hook: hook()
        if o == 2: self.prefetch_w(1, 2)
        for f in self.reads(0): f()
        if o == 1: self.prefetch_w(1, 2)
        if o: hook2()
        for h in range(1, 4): self.halo(h)
        if l1: self.prefetch_w(2, 3)
        self.run(self.sig_static(2) + self.offA(), self.a_ops(2))
        if l1 and not o: hook2()
    def reads(self, s):
        e = self.g.e
        sl = s % 3; b = s & 1
        def rt(t, kk):
            def f():
                if t == 0:
                    e.ds(f"ds_read_b128 {ar(fT(b,kk,0),4)}, v{vH+kk} offset:{((s-1) % 6 + 1)*1024 if s else 0}", ('T', s, 0))
                    if s in (6, 12): e(f"v_add_u32 v{vH+kk}, 6144, v{vH+kk}")
                else: e.ds(f"ds_read_b128 {ar(fT(b,kk,t),4)}, v{vT+kk} offset:{sl*16384 + (t-1)*2048}", ('T', s, t))
            return f
        def rw(n, kk, j):
            return lambda: e.ds(f"ds_read_b64_tr_b16 {ar(fW(b,kk,n)+2*j,2)}, v{vW + (n & 1) + (2 if sl == 2 else 0)} offset:{(sl & 1)*24576 + (2*kk+j)*6144 + (n>>1)*2048}", ('W', s, n))
        w = lambda n: [rw(n, kk, j) for kk in range(2) for j in range(2)]
        return w(0) + [rt(t, kk) for t in range(1, 5) for kk in range(2)] + w(1) + [rt(0, 0), rt(0, 1)] + w(2) + w(3) + w(4) + w(5)
    def main(self, p2):
        g = self.g; e = g.e; c = self.c
        BOFF = c.get('BOFF', 10)
        e(f"s_mov_b32 s{sSt}, 4")
        for x in self.sig_static(3) + self.offA(): e(x)
        reads = self.reads
        if g.diag and c.get('xdelay'):
            e(f"s_and_b32 s43, s2, 1\ns_andn2_b32 s43, s43, s{sLay}\ns_cbranch_scc0 Lxd2\ns_mov_b32 s43, {c['xdelay']}\nLxd1:\ns_sleep 4\ns_sub_u32 s43, s43, 1\ns_cmp_lg_u32 s43, 0\ns_cbranch_scc1 Lxd1\nLxd2:")
        g.stamp()
        nxt = dict(enumerate(p2.prefetch_ops()))
        n_epi = c.get('pf_epi', 10)
        S_ = lambda x: (lambda: e(x))
        for s in range(16):
            if s % 6 == 0: e.mark(f"p1b{s//6}")
            S = Slots(NSL)
            def bar(s=s):
                e.wait(vm=('S', s+1) if s < 15 else None, ds='all'); e("s_barrier")
            S.sc[BOFF].append(bar)
            def pfo(pos, j):
                op = nxt.pop(j)
                for z in range(3): S.sc[pos - 3 + z].append(op[z])
                S.ve[pos].insert(0, op[3])
            if s < 15:
                for k, f in enumerate(reads(s+1)): S.ve[BOFF + k].append(f)
            if s + 3 < 16:
                for k, x in enumerate(self.offW()): S.sc[k].append(S_(x))
                if s < 12:
                    for k, x in enumerate(["s_add_u32 s44, s44, 1", "s_and_b32 s44, s44, 15", f"s_add_u32 s{sSt}, s{sSt}, 1"] + self.offA()): S.sc[BOFF + 20 + k].append(S_(x))
                for k, (m, f) in enumerate(self.a_ops(s+3) + self.w_ops(s+3)):
                    pos = BOFF + 2 + 4*k
                    if m: S.sc[pos-1].append(S_(m))
                    S.ve[pos].append(f)
            if s == 12:
                ckl = f"buffer_load_dword v{vCk}, v{tmp}, {R(sDbg)}, 0 offen sc1"
                r = Rec(e); r(f"v_and_b32 v{tmp}, 1, v{vL}\nv_lshlrev_b32 v{tmp}, 7, v{tmp}"); S.pour(r.ops, 0, 2)
                S.ve[2].append(lambda: e.vm(ckl, 'CK'))
                r(f"""s_lshl_b32 s43, s{sHalf}, 2
                s_add_u32 s{sOwn}, s{sT0}, s43
                s_add_u32 s45, s{sLo}, {STA}
                s_lshl_b32 s44, s{sHt}, 11
                s_add_u32 s77, s44, s45
                s_lshl_b32 s44, s{sWave}, 1
                s_add_u32 s44, s44, s{sT0}
                s_lshl_b32 s44, s44, 11
                s_add_u32 s78, s44, s45
                s_lshl_b32 s43, s{sHj}, 1
                s_add_u32 s{sHead}, s43, s{sHd}
                s_lshl_b32 s43, s{sHead}, 7
                s_add_u32 s46, s43, {CSQ}
                s_lshl_b32 s43, s{sHalf}, 6""")
                S.pour(r.ops, 3, 30, cap=0)
                r(f"""v_lshlrev_b32 v{vOA+1}, 3, v{vL}
                v_lshlrev_b32 v{vOA}, 4, v{vL}
                v_xor_b32 v{vOH}, s43, v{vOA}
                v_add_u32 v{vOH}, s{sPW}, v{vOH}
                v_bfe_u32 v{vOA+2}, v{vL}, 3, 2
                v_lshrrev_b32 v{vOA+3}, 5, v{vL}
                v_mad_u32_u24 v{vOA+2}, v{vOA+3}, 3, v{vOA+2}
                v_and_b32 v{vOA+3}, 7, v{vL}
                v_lshlrev_b32 v{vOA+3}, 4, v{vOA+3}
                v_lshl_add_u32 v{vOA+2}, v{vOA+2}, 12, v{vOA+3}""")
                S.pour(r.ops, 30, 46)
                S.sc[47].append(lambda: g.check(vCk, ckl, 128, 'CK'))
            if s == 13:
                for p in range(4):
                    S.sc[6*p].append(lambda p=p: e(f"s_cmp_lg_u32 s{sLay}, 0\ns_cbranch_scc1 Lp1_csl{p}\n" + "".join(
                        f"buffer_load_dwordx4 {vr(vMuV+8*p+4*z,4)}, v{vOA+2}, {R(sWS)}, s46 offen sc1\ns_add_u32 s46, s46, {2*3072*4}\n" for z in range(2)) + f"Lp1_csl{p}:"))
                for t in range(3):
                    so, off = (78, t*2048) if t < 2 else (77, 0)
                    for k in range(4): S.ve[16*t + 4*k + 3].append(lambda t=t, k=k, so=so, off=off: e.vm(f"buffer_load_dwordx2 {vr(vST + t*8 + 2*k, 2)}, v{vOA+1}, {R(sWS)}, s{so} offen offset:{off + 512*k} sc1", ('ST', t)))
                r = Rec(e)
                for x in p2.prefetch_setup(): r(x.replace("\n", "\t"))
                S.pour(r.ops, 1, NSL)
                S.pour(self.addr_ops(), 24, NSL)
            if s == 14:
                r = Rec(e); self.p4.clear_mailbox(r, vOA, tmp+4, f"s{sLo}")
                st = r.ops[-4:]; S.pour(r.ops[:-4], 0, 8)
                for k, f in enumerate(st): S.ve[8 + 4*k].append(f)
                for q in range(4):
                    S.ve[24 + 8*q].append(lambda q=q: e.vm(f"buffer_load_dwordx4 {ar(aRes+4*q,4)}, v{vRo}, {R(sAs)}, s{sRs} offen sc1", 'R'))
                    S.sc[25 + 8*q].append(S_(f"s_add_u32 s{sRs}, s{sRs}, s{sRi}" if q != 1 else f"s_lshr_b32 s45, 0x10000, s{sLay}\ns_sub_u32 s45, s45, s{sRi}\ns_add_u32 s{sRs}, s{sRs}, s45"))
                for k in range(c.get('pf14', 0)): pfo(28 + 8*k if k < 3 else 4, 6 + k)
                m1 = self.stat_ops(); S.pour(m1, 6, NSL, partial=True)
            if s == 15:
                for k in range(c.get('pf15', 8)): pfo(3 + (NSL//c.get('pf15', 8))*k, 10 + k if k < 8 else min(nxt))
                S.pour(m1, 0, BOFF - 2)
                m2 = self.table_ops(); S.pour(m2, BOFF, NSL, partial=True)
            seq = []; kk = 0
            for n in range(6):
                ts = [0, 1, 2, 3, 4] if n in (2, 4) else [1, 2, 3, 4]
                if n & 1: ts = ts[::-1]
                for t in ts: seq += [(n, t, kk), (n, t, 1-kk)]; kk = 1 - kk
            b = s & 1
            for k, (n, t, kk) in enumerate(seq):
                e.wait(ds=[('W', s, n), ('T', s, t)])
                a = (Q if n < 2 else Kc if n < 4 else V)(n & 1, t)
                x, y = ar(fW(b, kk, n), 4), ar(fT(b, kk, t), 4)
                if n >= 4: x, y = y, x
                e(f"{MF} {vr(a,4)}, {x}, {y}, {vr(a,4)}")
                S.emit(k)
            if s < 12: self.side.hook(sSt, s % 6)
            if c.get('fine') and s in (2, 5, 8, 11, 13): g.stamp()
        e.fold([f"p1b{k}" for k in range(3)], "Lp1_loop", f"s{sCnt}")
        g.stamp()
        if g.cfg.get('rep'): print("p1 leftover", len(m2))
        e('Lmk_p1epi:')
        for f in m2: f()
        self.epilogue(p2, [nxt[j] for j in sorted(nxt)], n_epi)
    def mask_table(self):
        e = self.g.e; t = 232
        e(f"v_and_b32 v{t+3}, 15, v{vL}\nv_lshrrev_b32 v{t+4}, 4, v{vL}\nv_lshlrev_b32 v{t+4}, 2, v{t+4}\nv_sub_u32 v{t+3}, v{t+3}, v{t+4}\nv_mov_b32 v{t+5}, {fhex(-1e30)}")
        for r in range(4):
            e(f"v_subrev_u32 v{t+6}, {r}, v{t+3}\nv_cmp_gt_u32 vcc, 8, v{t+6}\nv_add_u32 v{t+6}, 16, v{t+6}\nv_cmp_gt_u32 s[78:79], 8, v{t+6}")
            e(f"v_cndmask_b32 v{132+r}, v{t+5}, 0, vcc\ns_nop 0\nv_cndmask_b32 v{136+r}, v{t+5}, 0, s[78:79]")
        e(f"v_lshlrev_b32 v{t}, 4, v{vL}\nv_add_u32 v{t}, {MSK}, v{t}\nds_write_b128 v{t}, v[132:135]\nds_write_b128 v{t}, v[136:139] offset:1024")
    def addr_ops(self):
        r = Rec(self.g.e); g16, t4 = vOW, vOW + 1
        r(f"v_lshrrev_b32 v{tmp}, 4, v{vL}\nv_lshlrev_b32 v{g16}, 4, v{tmp}\nv_and_b32 v{t4}, 15, v{vL}\nv_lshlrev_b32 v{t4}, 2, v{t4}")
        r(f"s_lshl_b32 s43, s{sHalf}, 9\nv_add_u32 v{aG}, {TBL}, v{g16}\nv_add_u32 v{aL}, {TBL}, v{t4}\nv_add_u32 v{aG+1}, s43, v{aG}\nv_add_u32 v{aL+1}, s43, v{aL}")
        r(f"s_lshl_b32 s43, s{sWave}, 1\ns_add_u32 s43, s43, 1\nv_add_u32 v{tmp+1}, s43, v{tmp}\nv_cmp_gt_u32 vcc, 2, v{tmp}\nv_and_b32 v{tmp}, 1, v{tmp}\nv_mul_u32_u24 v{tmp}, 9, v{tmp}")
        r(f"v_cndmask_b32 v{tmp}, v{tmp}, v{tmp+1}, vcc\nv_lshl_add_u32 v{vOA+2}, v{tmp}, 7, v{aL}")
        r(f"v_add_u32 v{g16}, s{sPW}, v{g16}\nv_add_u32 v{t4}, s{sPW}, v{t4}\nv_add_u32 v{vOA+3}, {MSK}, v{vOA}")
        return r.ops
    def stat_ops(self):
        r = Rec(self.g.e); g16, t4 = vOW, vOW + 1
        def css():
            e = self.g.e; e.wait(vm=('ST', 1))
            e(f"s_cmp_lg_u32 s{sLay}, 0\ns_cbranch_scc1 Lp1_css")
            for d in (16, 8, 4):
                for x in range(0, d, 2): e(f"v_pk_add_f32 {vr(vMuV+x,2)}, {vr(vMuV+x,2)}, {vr(vMuV+d+x,2)}")
            for x in range(4): e(f"v_mov_b32 v{vMuV+4+x}, v{vMuV+x}")
            for x in range(4): e(f"v_permlane32_swap_b32 v{vMuV+x}, v{vMuV+4+x}")
            for x in range(4): e(f"v_add_f32 v{vMuV+x}, v{vMuV+x}, v{vMuV+4+x}")
            e(f"ds_write_b128 v{vOH}, {vr(vMuV,4)} offset:1024\nLp1_css:")
        for t in range(3):
            p = vST + t*8
            if t == 1:
                r.call(css)
                for m in range(2):
                    for j in range(2): r.ds(f"ds_read_b128 {vr(vCS + m*8 + j*4, 4)}, v{g16} offset:{1024 + m*128 + 64*j}", 'CSR')
                r.ds(f"ds_read2_b32 {vr(vCS+16,2)}, v{vXa} offset0:64 offset1:80", 'CSR')
            else: r.wait(vm=('ST', t))
            if t == 0: r(f"v_add_u32 v{vXa}, 1024, v{t4}")
            if t == 1:
                r(f"s_xor_b32 s47, s{sWave}, 2\ns_mul_i32 s47, s47, 6144\ns_add_u32 s47, s47, {PW}\ns_add_u32 s49, s47, 3072\ns_add_u32 s79, s47, 2048")
                r(f"s_cmp_eq_u32 s{sHalf}, 0\ts_cselect_b32 s49, s{sPW}, s49\ts_cselect_b32 s79, s47, s79")
                r(f"v_add_u32 v{vXa}, s49, v{vOA+1}\nv_add_u32 v{vXa+1}, s79, v{vOA+1}\nv_add_u32 v{vOA+1}, s{sPW}, v{vOA+1}")
            r(f"v_add_f32 v{p}, v{p}, v{p+2}\nv_add_f32 v{p+1}, v{p+1}, v{p+3}\nv_add_f32 v{p+4}, v{p+4}, v{p+6}\nv_add_f32 v{p+5}, v{p+5}, v{p+7}")
            r(f"v_add_f32 v{p}, v{p}, v{p+4}\nv_add_f32 v{p+1}, v{p+1}, v{p+5}")
        A, B, C, X = vST, vST + 8, vST + 16, vST + 2
        r(f"s_mov_b32 s48, {fhex(1.0/D)}\nv_mov_b32 v{tmp}, {fhex(1e-5)}")
        r(f"v_permlane32_swap_b32 v{B}, v{X}\nv_permlane32_swap_b32 v{B+1}, v{X+1}\nv_permlane32_swap_b32 v{A}, v{C}\nv_permlane32_swap_b32 v{A+1}, v{C+1}")
        r(f"v_add_f32 v{B}, v{B}, v{X}\nv_add_f32 v{A}, v{A}, v{C}\nv_add_f32 v{B+1}, v{B+1}, v{X+1}\nv_add_f32 v{A+1}, v{A+1}, v{C+1}")
        r(f"v_permlane16_swap_b32 v{A}, v{B}\ns_nop 0\nv_permlane16_swap_b32 v{A+1}, v{B+1}\nv_add_f32 v{A}, v{A}, v{B}\nv_add_f32 v{A+1}, v{A+1}, v{B+1}")
        r(f"v_mul_f32 v{A}, {fhex(-1.0/D)}, v{A}\nv_fma_f32 v{A+1}, v{A+1}, s48, v{tmp}\nv_fma_f32 v{A+1}, -v{A}, v{A}, v{A+1}\nv_max_f32 v{A+1}, v{A+1}, v{tmp}\nv_rsq_f32 v{A+1}, v{A+1}\ns_nop 0")
        r.ds(f"ds_write2_b32 v{vOA+2}, v{A}, v{A+1} offset0:0 offset1:16")
        return r.ops
    def table_ops(self):
        r = Rec(self.g.e)
        for t in (1, 2, 3, 4, 0): r.ds(f"ds_read2_b32 {vr(vP+2*t,2)}, v{aL + (t > 0)} offset0:{32*t} offset1:{32*t+16}", 'TP')
        r.ds(f"ds_read_b128 {vr(bC,4)}, v{vOA+3}", 'MK'); r.ds(f"ds_read_b128 {vr(bP,4)}, v{vOA+3} offset:1024", 'MK')
        for t in (0, 4, 1, 2, 3):
            r.ds(f"ds_read_b128 {vr(vMuV+4*t,4)}, v{aG + (t > 0)} offset:{t*128}", 'TB')
            r.ds(f"ds_read_b128 {vr(vRsV+4*t,4)}, v{aG + (t > 0)} offset:{t*128+64}", 'TB')
        r(f"s_and_b32 s43, s{sMi1}, 7\ns_or_b32 s43, s43, s{sHalf}\ts_cselect_b64 s[46:47], -1, 0\nv_mov_b32 v{tmp+5}, {fhex(-1e30)}")
        r.wait(ds='MK')
        for t in (4, 3, 2, 1):
            for j in range(2):
                for x in range(4): r(f"v_fmac_f32 v{Q(j,t)+x}, v{vCS+4*j+x}, v{vP+2*t}")
            for j in range(2):
                for h in range(2): r(f"v_cvt_pk_bf16_f32 v{Q(0,t)+2*j+h}, v{Q(j,t)+2*h}, v{Q(j,t)+2*h+1}")
        for x in range(4): r(f"v_cndmask_b32 v{bP0+x}, v{tmp+5}, v{bP+x}, s[46:47]\nv_mov_b32 v{ones+x}, 0x3f803f80\nv_mul_f32 v{vCq+x}, {fhex(LOG2E*(32 ** -0.5))}, v{vP+2*x+3}")
        return r.ops
    def epilogue(self, p2, nxt, n_epi):
        g = self.g; e = g.e
        left = [n_epi]
        def pf():
            if left[0] > 0 and nxt:
                left[0] -= 1
                for f in nxt.pop(0): f()
        qf = lambda t: Q(0, t); kf = lambda t: Kc(0, t) if t else kf0
        vp = lambda j, t: 140 + j*10 + 2*t
        cb = vCS + 16
        def fold_k(t):
            J = range(2 if t else 1)
            for j in J:
                for h in range(2): e(f"v_pk_fma_f32 {vr(Kc(j,t)+2*h,2)}, {vr(vCS+8+4*j+2*h,2)}, {vr(vP+2*t,2)}, {vr(Kc(j,t)+2*h,2)} op_sel:[0,0,0] op_sel_hi:[1,0,1]")
            for j in J:
                for h in range(2): e(f"v_pk_mul_f32 {vr(Kc(j,t)+2*h,2)}, {vr(Kc(j,t)+2*h,2)}, {vr(vP+2*t,2)} op_sel:[0,1] op_sel_hi:[1,1]")
            for j in J:
                for h in range(2): e(f"v_cvt_pk_bf16_f32 v{Kc(0,t)+2*j+h}, v{Kc(j,t)+2*h}, v{Kc(j,t)+2*h+1}")
        def fold_v(t):
            J = range(2 if t else 1)
            for j in J:
                for h in range(2): e(f"v_pk_fma_f32 {vr(V(j,t)+2*h,2)}, {vr(vMuV+4*t+2*h,2)}, {vr(cb,2)}, {vr(V(j,t)+2*h,2)} op_sel:[0,{j},0] op_sel_hi:[1,{j},1]")
            for j in J:
                for h in range(2): e(f"v_pk_mul_f32 {vr(V(j,t)+2*h,2)}, {vr(V(j,t)+2*h,2)}, {vr(vRsV+4*t+2*h,2)}")
            for j in J:
                for h in range(2): e(f"v_cvt_pk_bf16_f32 v{(vp(j,t) if t else V(0,0))+h}, v{V(j,t)+2*h}, v{V(j,t)+2*h+1}")
        e.wait(ds='all')
        fold_k(0); fold_k(4); fold_v(0); fold_v(4)
        e.ds(f"ds_write2st64_b64 v{vOA+1}, {vr(Kc(0,0),2)}, {vr(V(0,0),2)} offset0:0 offset1:1", 'XW')
        for j in range(2): e.ds(f"ds_write2st64_b64 v{vOA+1}, {vr(Kc(0,4)+2*j,2)}, {vr(vp(j,4),2)} offset0:{4+2*j} offset1:{5+2*j}", 'XW')
        pf(); fold_k(3); pf(); fold_k(2); pf(); fold_k(1)
        e.wait(ds='XW'); e("s_barrier")
        for j in range(2): e.ds(f"ds_read_b64 {vr(kf0+2*j,2)}, v{vXa+j}", 'XR')
        for j in range(2): e.ds(f"ds_read_b64 {vr(vp(j,0),2)}, v{vXa+j} offset:512", 'XR')
        Sp = lambda t: Q(1, t); Sc = lambda t: Kc(1, t)
        for t in (4, 3, 2, 1):
            e(f"{MF} {vr(Sc(t),4)}, {vr(kf(t),4)}, {vr(qf(t),4)}, {vr(bC,4)}")
            if t == 1: e.wait(ds='XR')
            e(f"{MF} {vr(Sp(t),4)}, {vr(kf(t-1),4)}, {vr(qf(t),4)}, {vr(bP0 if t == 1 else bP,4)}")
        pf()
        for t in (1, 2, 3): fold_v(t); pf()
        e(f"s_cmp_eq_u32 s{sHalf}, 0\ns_cbranch_scc1 Lp1_nsw")
        for x in range(10): e(f"v_swap_b32 v{vp(0,0)+x}, v{vp(1,0)+x}")
        e("Lp1_nsw:")
        mx = lambda t: tmp + t - 1
        for k in range(4):
            for t in range(1, 5):
                p, c_ = Sp(t), Sc(t)
                e([f"v_max3_f32 v{mx(t)}, v{p}, v{p+1}, v{p+2}", f"v_max3_f32 v{mx(t)}, v{mx(t)}, v{p+3}, v{c_}", f"v_max3_f32 v{mx(t)}, v{mx(t)}, v{c_+1}, v{c_+2}", f"v_max_f32 v{mx(t)}, v{mx(t)}, v{c_+3}"][k])
        xreduce_g(e, "v_max_f32", [mx(t) for t in range(1, 5)], list(range(tmp+4, tmp+8)))
        for h in range(2): e(f"v_pk_mul_f32 {vr(tmp+2*h,2)}, {vr(tmp+2*h,2)}, {vr(vCq+2*h,2)} neg_lo:[0,1] neg_hi:[0,1]")
        pfr = qf
        for t in range(1, 5):
            z = (t - 1) & 1; cq, mm = (vCq + t - 1) & ~1, mx(t) & ~1
            for b4 in (Sp(t), Sc(t)):
                for h in range(2): e(f"v_pk_fma_f32 {vr(b4+2*h,2)}, {vr(b4+2*h,2)}, {vr(cq,2)}, {vr(mm,2)} op_sel:[0,{z},{z}] op_sel_hi:[1,{z},{z}]")
            for b4 in (Sp(t), Sc(t)):
                for r in range(4): e(f"v_exp_f32 v{b4+r}, v{b4+r}")
            for q, b4 in enumerate((Sp(t), Sc(t))):
                for h in range(2): e(f"v_cvt_pk_bf16_f32 v{pfr(t)+2*q+h}, v{b4+2*h}, v{b4+2*h+1}")
            if t < 3: pf()
        while left[0] > 0 and nxt: pf()
        O = V; Dn = lambda t: Kc(0, t)
        sal = f"s_lshl_b32 s43, s{sOwn}, 15\ns_lshl_b32 s44, s{sHead}, 10\ns_add_u32 s43, s43, s44\ns_add_u32 s43, s43, {g.lo('O')}\ns_add_u32 s46, s43, {OB}".split("\n")
        sal += [f"s_add_u32 s{46+t}, s{46+t-1}, 32768" for t in range(1, 4)]
        sal += f"s_lshl_b32 s77, s{sMi1}, 1\ns_lshr_b32 s43, s{sHj}, 3\ns_add_u32 s77, s77, s43\ns_lshl_b32 s77, s77, 7\ns_add_u32 s77, s77, s{sLo}\ns_add_u32 s77, s77, {FL + H1*128}".split("\n")
        for t in range(1, 5): e(f"{MF} {vr(Dn(t),4)}, {vr(ones,4)}, {vr(pfr(t),4)}, 0\n{sal.pop(0)}\n{sal.pop(0)}")
        for t in range(1, 5):
            for j in range(2):
                e(f"{MF} {vr(O(j,t),4)}, {vr(vp(j,t-1),4)}, {vr(pfr(t),4)}, 0")
                if sal: e(sal.pop(0))
                if t > 2: e(f"v_rcp_f32 v{Dn(2*t+j-5)}, v{Dn(2*t+j-5)}")
        for t in range(1, 5):
            for j in range(2):
                for h in range(2): e(f"v_pk_mul_f32 {vr(O(j,t)+2*h,2)}, {vr(O(j,t)+2*h,2)}, {vr(Dn(t),2)} op_sel:[0,0] op_sel_hi:[1,0]")
            for j in range(2):
                for h in range(2): e(f"v_cvt_pk_bf16_f32 v{Sp(t)+2*j+h}, v{O(j,t)+2*h}, v{O(j,t)+2*h+1}")
            e.vm(f"buffer_store_dwordx4 {vr(Sp(t),4)}, v{vOA}, {R(sWS)}, s{46+t-1} offen sc1", 'OUT')
        e('Lmk_p1end:')
        g.stamp()
        g.signal('OUT', 77, p2.pre)
        p2.window(nxt)
```

```python
from mg import *
sEW, sWn, sM0, sDel, sP = 80, 88, 89, 90, 91
sT, sTile, sXo, sTj = 57, 58, 59, 60
vW, vOT, vR = 40, 48, 52
class P24:
    def __init__(self, g, down):
        self.g = g; self.down = down; self.c = g.cfg.get('p4' if down else 'p2', {})
        c = self.c
        self.NS = 112 if down else 32
        self.PD = 7 if down else c.get('PD', 8); self.NL = c.get('NL', 2 if down else 1)
        self.LT = c.get('LT', 6); self.LW = 21; self.B = 28 if down else 32; self.P = 14 if down else 8
        self.srd = sWd if down else sWo
    def prefetch_setup(self):
        PD, NL = self.PD, self.NL
        L = [f"s_lshl_b32 s{sWn}, s{sNj2}, 7", f"s_lshl_b32 s92, s{sWave}, 14", f"s_add_u32 s{sWn}, s{sWn}, s92", f"s_lshl_b32 s{sM0}, s{sWave}, 10",
             f"s_and_b32 s92, s{sMi2}, 3", f"s_lshl_b32 s{sP}, s92, 19" if self.c.get('rot', 1) else f"s_mov_b32 s{sP}, 0", f"v_add_u32 v186, s{sWn}, v{vOW2}", f"s_mul_i32 s92, s92, {NL if self.down or PD == 4 else 0}", f"s_lshr_b32 s93, s2, 5", "s_add_u32 s92, s92, s93"]
        L += [f"s_cmp_ge_u32 s92, {PD}\ns_cselect_b32 s93, {PD}, 0\ns_sub_u32 s92, s92, s93"]*2
        L += [f"s_lshl_b32 s93, {(1<<NL)-1 if self.c.get('jump', 1) else 0}, s92", f"s_lshr_b32 s92, s93, {PD}", "s_or_b32 s93, s93, s92"]
        L += [f"s_add_u32 s92, s{sP}, {PD*65536}"] + [f"s_bitcmp1_b32 s93, {q}\ns_cselect_b32 s{sEW+q}, s92, s{sP}" for q in range(PD)]
        if self.down: L += [f"s_cmp_eq_u32 s{sWave}, 1\ns_cselect_b32 s{sDel}, 16384, 0", f"s_cmp_eq_u32 s{sWave}, 2\ns_cselect_b32 s{sDel}, -16384, s{sDel}"]
        return L
    def w_op(self, j):
        e = self.g.e; PD, NS = self.PD, self.NS
        dma = lambda: e.vm(f"buffer_load_dwordx4 v{vOW2}, {R(self.srd)}, s92 offen lds", ('W4', self.down, j))
        if self.down:
            L = [f"s_add_u32 m0, s{sM0}, {(j % self.B)*4096}"]
            L += [f"s_add_u32 s92, s{sWn}, s{sEW + j % PD}"] if j < NS - PD or not self.c.get('jump', 1) else [f"s_mul_i32 s92, s{sEW + j % PD}, {1 - NS//PD}", f"s_add_u32 s92, s92, s{sWn}"]
            if j % 7 == 3: L += [f"s_add_u32 s92, s92, s{sDel}"]
            L += [dma, f"s_add_u32 s{sWn}, s{sWn}, {65536 if not (self.c.get('hitW') and j % 14 == 13) else -13*65536}"]
        else:
            dma = lambda: e.vm(f"buffer_load_dwordx4 v186, {R(self.srd)}, s92 offen lds", ('W4', self.down, j))
            L = [f"s_add_u32 m0, s{sM0}, {j*4096}", f"s_add_u32 s92, s{sEW + j % PD}, {j*65536}", "s_and_b32 s92, s92, 0x1fffff", dma]
        return [x if callable(x) else (lambda x=x: e(x)) for x in L]
    def prefetch_ops(self):
        return [self.w_op(j) for j in range(32)]
    def clear_mailbox(self, *a, **k): pass
    def t_op(self, j, tt):
        e = self.g.e; PD, NS = self.PD, self.NS; L = []
        if tt == 0:
            L = [f"s_lshr_b32 s93, s{sEW + j % PD}, 6"]
            if self.down: L += ([] if j < NS - PD else [f"s_mul_i32 s93, s93, {1 - NS//PD}"]) + [f"s_add_u32 s93, s93, s{sT}"]
            else: L += [f"s_add_u32 s93, s93, s{sTj}", "s_and_b32 s93, s93, 0x7fff", f"s_add_u32 s93, s93, s{sT}"]
        L += [lambda: e.vm(f"buffer_load_dwordx4 {ar((j % self.P)*8 + tt*4, 4)}, v{vOT+tt}, {R(sWS)}, s93 offen {self.c.get('taux', 'sc1')}", ('T4', self.down, j))]
        if tt == 1: L += [f"s_add_u32 s{sT if self.down else sTj}, s{sT if self.down else sTj}, {1024 if not (self.c.get('hitT') and j % 14 == 13) else -13*1024}"]
        return [x if callable(x) else (lambda x=x: e(x)) for x in L]
    def vm_ops(self, i):
        ops = []
        if self.down and i + self.LW < self.NS: ops.append(self.w_op(i + self.LW))
        if i + self.LT < self.NS: ops += [self.t_op(i + self.LT, 0), self.t_op(i + self.LT, 1)]
        return ops
    def pre(self):
        g = self.g; e = g.e; down = self.down
        apitch = HPITCH if down else 32768
        e(f"s_lshl_b32 s{sTile}, s{sMi2}, 3\ns_lshl_b32 s43, s{sWave}, 1\ns_add_u32 s{sTile}, s{sTile}, s43")
        e(f"s_lshl_b32 s{sXo}, s{sTile}, 15\ns_lshl_b32 s43, s{sNj2}, 11\ns_add_u32 s{sXo}, s{sXo}, s43\ns_add_u32 s{sXo}, s{sXo}, {g.lo('X')}")
        e(f"v_lshlrev_b32 v{vOT}, 4, v{vL}\nv_add_u32 v{vOT+1}, {apitch}, v{vOT}")
        e.wait(vm='R')
        for x in range(16): e(f"v_accvgpr_read_b32 v{vR+x}, a{240+x}")
        e(f"s_cmp_lg_u32 s{sLay}, 0\ns_cbranch_scc1 Lp2_res")
        for q in range(4): e(f"v_permlane16_swap_b32 v{vR+4*q}, v{vR+4*q+2}\nv_permlane16_swap_b32 v{vR+4*q+1}, v{vR+4*q+3}")
        e("Lp2_res:")
        e(f"s_mul_i32 s{sT}, s{sTile}, {apitch}\ns_add_u32 s{sT}, s{sT}, {g.lo('O')}\ns_add_u32 s{sT}, s{sT}, {HB if down else OB}\ns_mov_b32 s{sTj}, 0")
        e(f"v_lshrrev_b32 v2, 2, v{vL}\nv_bfe_u32 v3, v{vL}, 3, 2\nv_and_b32 v4, 3, v{vL}\nv_lshlrev_b32 v4, 3, v4\nv_lshl_add_u32 v4, v2, 7, v4")
        for t in range(4):
            e(f"v_xor_b32 v5, {t}, v3\nv_lshl_add_u32 v{vW+t}, v5, 5, v4")
            if down: e(f"v_add_u32 v{vW+4+t}, {14*4096}, v{vW+t}")
        if not down: self.side.acc()
    def window(self, nxt):
        g = self.g; e = g.e; down = self.down
        acc = lambda n, tt: (n*2 + tt)*4
        for op in nxt:
            for f in op: f()
        e.wait(vm='R')
        for tt in range(2):
            for n in range(4):
                for h in range(2):
                    src = vR + (tt*2 + (n >> 1))*4 + (n & 1)*2 + h
                    e(f"v_lshlrev_b32 v{acc(n,tt)+2*h}, 16, v{src}\nv_and_b32 v{acc(n,tt)+2*h+1}, 0xffff0000, v{src}")
        if not down: self.side.publish()
        if down: e(f"s_lshr_b32 s77, s{sMi2}, 1\ns_lshl_b32 s77, s77, 7\ns_add_u32 s77, s77, {FL + H3*128}")
        else: e(f"s_lshl_b32 s77, s{sMi2}, 8\ns_add_u32 s77, s77, {FL + H1*128}\nv_lshlrev_b32 v249, 7, v{vL}")
        e(f"s_add_u32 s77, s77, s{sLo}")
    def main(self, nx):
        g = self.g; e = g.e; down = self.down; NS, B, P = self.NS, self.B, self.P
        acc = lambda n, tt: (n*2 + tt)*4
        aW = lambda b, kk, n: 112 + b*32 + kk*16 + n*4
        UB = 14 if down else 4; NU = NS//2; nm = "p4" if down else "p2"
        g.poll(77, 8, voff=249)
        if not down: self.side.final()
        for i in range(-self.LT, 0):
            for op in self.vm_ops(i)[-2:]:
                for f in op: f()
        def reads(u):
            if u >= NU: return []
            ops = []
            for n in range(4):
                for kk in range(2):
                    for j in range(2):
                        def f(n=n, kk=kk, j=j):
                            i = 2*u + kk
                            if down: reg, off = vW + n + (4 if i % B >= 14 else 0), (i % 14)*4096
                            else: reg, off = vW + n, (i % 8)*4096
                            e.ds(f"ds_read_b64_tr_b16 {ar(aW(u & 1, kk, n) + 2*j, 2)}, v{reg} offset:{off + j*2048}", ('F4', down, u, n))
                            if not down and u % 4 == 3 and kk == 1 and j == 1: e(f"v_add_u32 v{reg}, 32768, v{reg}")
                        ops.append(f)
            return ops
        for f in reads(0): f()
        g.stamp()
        for u in range(NU):
            if u % UB == 0: e.mark(f"{nm}b{u//UB}")
            fill = [[] for _ in range(16)]
            if down and u % 2 == 0:
                def bar(u=u):
                    e.wait(vm=[('W4', down, x) for x in range(2*u+2, min(2*u+6, NS))]); e("s_barrier")
                fill[0].append(bar)
            if not down and u == 13: fill[0].append(lambda: e("s_barrier"))
            for k, f in enumerate(reads(u+1)): fill[k].append(f)
            ops = self.vm_ops(2*u) + self.vm_ops(2*u+1)
            for k, op in enumerate(ops):
                pos = 1 + (k*14)//max(len(ops), 1)
                for f in op: fill[pos].append(f)
            seq = []; kk = 0
            for n in range(4):
                for tt in ((1, 0) if n & 1 else (0, 1)): seq += [(n, tt, kk), (n, tt, 1-kk)]; kk = 1 - kk
            for k, (n, tt, kk) in enumerate(seq):
                e.wait(vm=('T4', down, 2*u+1) if k == 0 else None, ds=('F4', down, u, n))
                a = vr(acc(n, tt), 4)
                e(f"{MF} {a}, {ar(aW(u & 1, kk, n), 4)}, {ar(((2*u+kk) % P)*8 + tt*4, 4)}, {a}")
                for f in fill[k]: f()
        e.fold([f"{nm}b{k}" for k in range(4)], f"L{nm}_loop", f"s{sCnt}")
        g.stamp()
        e(f"s_add_u32 s46, s{sXo}, {XA + LP if down else XB}\ns_add_u32 s47, s46, 32768")
        e(f"s_lshl_b32 s48, s{sTile}, 11\ns_lshl_b32 s43, s{sNj2}, 7\ns_add_u32 s48, s48, s43\ns_add_u32 s48, s48, s{sLo}\ns_add_u32 s48, s48, {STA + LP if down else STB}\ns_nop 0")
        Pk = lambda tt, p: vR + (tt*2 + p)*4
        def cvt(tt, p):
            for q in range(4):
                a = acc(2*p + (q >> 1), tt) + 2*(q & 1)
                e(f"v_cvt_pk_bf16_f32 v{Pk(tt,p)+q}, v{a}, v{a+1}")
        if down: e(f"s_cmp_lg_u32 s{sLay}, 0\ns_cbranch_scc1 Lfinal")
        for p in range(2):
            for tt in range(2):
                cvt(tt, p)
                e.vm(f"buffer_store_dwordx4 {vr(Pk(tt,p),4)}, v{vOT}, {R(sWS)}, s{46+tt} offen offset:{1024*p} sc1", 'OUT4')
        stats_epilogue(e, Pk, 2, 2, vL, 72, sWS, 48, aux='sc1', sm0=64, tag='OUT4')
        g.stamp()
        if down: e(f"s_lshl_b32 s77, s{sMi2}, 7\ns_add_u32 s77, s77, {FL + H4*128}")
        else: e(f"s_lshr_b32 s77, s{sMi2}, 1\ns_lshl_b32 s77, s77, 7\ns_add_u32 s77, s77, s{sLo}\ns_add_u32 s77, s77, {FL + H2*128}")
        if down: e(f"s_mov_b32 s{sLay}, 1\ns_mov_b32 s{sLo}, {hex(LP)}")
        g.signal('OUT4', 77, nx.pre)
        if not down: self.side.arrive()
        nx.window()
        if down:
            e("s_branch Llayer\nLfinal:")
            e(f"v_and_b32 v72, 15, v{vL}\nv_lshlrev_b32 v72, 12, v72\nv_bfe_u32 v73, v{vL}, 4, 1\nv_lshl_add_u32 v72, v73, 5, v72\nv_lshrrev_b32 v73, 5, v{vL}\nv_lshl_add_u32 v72, v73, 4, v72")
            e(f"s_and_b32 s43, s{sTile}, 63\ns_lshl_b32 s43, s43, 16\ns_lshr_b32 s46, s{sTile}, 6\ns_lshl_b32 s46, s46, 11\ns_add_u32 s46, s46, s43\ns_lshl_b32 s43, s{sNj2}, 7\ns_add_u32 s46, s46, s43\ns_add_u32 s47, s46, 65536")
            for p in range(2):
                for tt in range(2): cvt(tt, p)
                for tt in range(2):
                    r = Pk(tt, p)
                    if tt == 1: e("s_nop 0")
                    e(f"v_permlane16_swap_b32 v{r}, v{r+2}\nv_permlane16_swap_b32 v{r+1}, v{r+3}")
                    e(f"buffer_store_dwordx4 {vr(r,4)}, v72, {R(sOut)}, s{46+tt} offen offset:{64*p}")
            g.stamp()
```

```python
from mg import *
sOdd, sW, sM0, sGrp, sTch, sPW, sT = 66, 67, 68, 69, 70, 71, 72
vW, vOT, vOW, vTch, vCa, vMu, tm = 224, 231, 232, 236, 237, 238, 242
vC1, vC2, vS2 = vMu, vOW, vTch
aT = lambda s, kk, tt: (192 if s >= 14 else 0) + (s & 1)*32 + kk*16 + tt*4
NWB = 4
aW = lambda L, kk: 64 + (L % NWB)*8 + kk*4
aDum, aC = 96, 104
acc = lambda n, tt: (n*4 + tt)*4
PW3 = 131072
class P3:
    def __init__(self, g): self.g = g; self.c = g.cfg.get('p3', {})
    def w_ops(self, st):
        e = self.g.e; ops = []
        for mat in range(2):
            for q in range(4):
                L = [f"s_add_u32 m0, s{sM0}, {(st & 1)*32768 + mat*16384}", "NOP"] if q == 0 else []
                L += [lambda q=q, mat=mat: e.vm(f"buffer_load_dwordx4 v{vOW+q}, {R((sWg, sWu)[mat])}, s{sW} offen offset:{1024*q} {self.g.cfg.get('waux', '')} lds", ('W3', st))]
                if q == 3 and mat == 1:
                    L += [f"s_add_u32 s{sW}, s{sW}, {64*2*F}"] + ([f"s_xor_b32 s{sM0}, s{sM0}, 0x10000"] if st & 1 else [])
                ops.append(L)
        return ops
    def st_ops(self):
        e = self.g.e; ops = []
        for m in range(2):
            for q in range(4):
                L = [f"s_add_u32 m0, s{sM0}, {32768 + m*16384}", "NOP"] if q == 0 else []
                ops.append(L + [lambda q=q, m=m: e.vm(f"buffer_load_dwordx4 v{vOT}, {R(sWS)}, s{44+m} offen offset:{1024*q} sc1 lds", 'ST3')])
        return ops
    def t_ops(self, st):
        e = self.g.e; ops = []
        for tt in range(4):
            for kk in range(2):
                L = [lambda tt=tt, kk=kk: e.vm(f"buffer_load_dwordx4 {ar(aT(st, kk, tt), 4)}, v{vOT}, {R(sWS)}, s{sT+tt} offen offset:{(st & 1)*2048 + kk*1024} sc1", ('T3', st, tt))]
                if kk == 1 and st & 1: L += [f"s_add_u32 s{sT+tt}, s{sT+tt}, 4096"]
                ops.append(L)
        return ops
    def run(self, ops):
        for op in ops:
            for x in op:
                if callable(x): x()
                else: self.g.e("s_nop 0" if x == "NOP" else x)
    def pre(self):
        g = self.g; e = g.e
        e(f"s_and_b32 s{sOdd}, s{sNj3}, 1")
        e(f"v_lshrrev_b32 v2, 4, v{vL}\nv_bfe_u32 v3, v{vL}, 1, 3\nv_and_b32 v4, 1, v{vL}\nv_lshlrev_b32 v4, 4, v4")
        e(f"v_mul_u32_u24 v5, {2*F}, v2\nv_add_u32 v5, v5, v4\ns_cmp_eq_u32 s{sOdd}, 0\ns_cselect_b32 s44, 7, 0\nv_mov_b32 v7, 0x40000000")
        for i in range(4):
            e(f"v_add_u32 v6, {4*(i&1)}, v2\nv_xor_b32 v6, v6, v3\nv_cmp_eq_u32 vcc, s44, v6\nv_lshl_add_u32 v6, v6, 5, v5\nv_add_u32 v6, {i*4*2*F - 1024*i}, v6")
            e(f"v_cndmask_b32 v{vOW+i}, v6, v7, vcc")
        e(f"s_mul_i32 s{sW}, s{sNj3}, 224\ns_and_b32 s{sW}, s{sW}, 0xffffffc0\ns_mul_i32 s43, s{sWave}, {16*2*F}\ns_add_u32 s{sW}, s{sW}, s43\ns_lshl_b32 s{sM0}, s{sWave}, 12")
        e(f"v_lshlrev_b32 v{vOT}, 4, v{vL}\n{'s_mov_b32 s43, 0x40000000' if self.c.get('nowd') else f's_lshl_b32 s43, s{sLay}, 30'}\nv_or_b32 v{vTch}, s43, v{vOT}\ns_lshl_b32 s43, s2, 2\ns_add_u32 s43, s43, s{sWave}\ns_mul_i32 s{sTch}, s43, 7168")
        e(f"s_lshl_b32 s{sGrp}, s{sMi3}, 2\ns_add_u32 s{sGrp}, s{sGrp}, s{sWave}\ns_lshl_b32 s{sT}, s{sGrp}, 17\ns_add_u32 s{sT}, s{sT}, {g.lo('X')}\ns_add_u32 s{sT}, s{sT}, {XB}")
        for tt in range(1, 4): e(f"s_add_u32 s{sT+tt}, s{sT+tt-1}, 32768")
        e(f"s_lshl_b32 s{sPW}, s{sWave}, 11\ns_add_u32 s{sPW}, s{sPW}, {PW3}")
        e(f"v_lshrrev_b32 v2, 2, v{vL}\nv_and_b32 v3, 7, v2\nv_and_b32 v4, 3, v{vL}\nv_lshlrev_b32 v5, 3, v4\nv_lshl_add_u32 v5, v2, 8, v5")
        e(f"s_lshl_b32 s43, s{sOdd}, 1\ns_cmp_eq_u32 s{sOdd}, 0\ns_cselect_b32 s45, 6, 1")
        for t in range(7):
            if t < 6: e(f"s_add_u32 s46, s43, {t}\nv_xor_b32 v6, s46, v3")
            else: e(f"v_xor_b32 v6, s45, v3")
            e(f"v_lshl_add_u32 v{vW+t}, v6, 5, v5")
        e(f"s_mul_i32 s46, s{sNj3}, 448\ns_add_u32 s46, s46, {CSG}\ns_add_u32 s47, s46, {2*F*4}\ns_lshr_b32 s48, s{sNj3}, 3\ns_lshl_b32 s48, s48, 7\ns_add_u32 s48, s48, {FL + HC*128}")
        e(f"s_lshl_b32 s44, s{sGrp}, 13\ns_add_u32 s44, s44, s{sLo}\ns_add_u32 s44, s44, {STB}\ns_add_u32 s45, s44, 4096")
        for st in range(self.c.get('wpre', 0)): self.run(self.w_ops(st))
    def window(self):
        g = self.g; e = g.e
        for st in range(self.c.get('wpre', 0), self.c.get('NP', 2)): self.run(self.w_ops(st))
        e(f"s_lshl_b32 s77, s{sMi3}, 7\ns_add_u32 s77, s77, s{sLo}\ns_add_u32 s77, s77, {FL + H2*128}")
    def stats_ops(self, fill):
        e = self.g.e; r = Rec(e); t = tm + 4; P = lambda tt: vMu + 2*tt
        r(f"s_add_u32 s43, s{sM0}, 32768\nv_lshlrev_b32 v250, 3, v{vL}\nv_add_u32 v250, s43, v250")
        pour(fill, r.ops, 5, 12)
        rd = lambda dst, tt, k: (lambda: e.ds(f"ds_read_b64 {vr(dst,2)}, v250 offset:{(tt>>1)*16384 + (tt&1)*2048 + k*512}", ('SR', tt, k)))
        fill[13].append(lambda: e.wait(vm='ST3'))
        for tt in range(4): fill[13 + tt].append(rd(P(tt), tt, 0))
        for i in range(12):
            tt, k = i & 3, 1 + (i >> 2); d = t + 2*(i & 1)
            fill[17 + 3*i].append(rd(d, tt, k))
            def add(tt=tt, k=k, d=d):
                e.wait(ds=('SR', tt, k)); e(f"v_add_f32 v{P(tt)}, v{P(tt)}, v{d}\nv_add_f32 v{P(tt)+1}, v{P(tt)+1}, v{d+1}")
            fill[22 + 3*i].append(add)
        A, B, C, D_ = P(0), P(1), P(2), P(3)
        r(f"s_mov_b32 s43, {fhex(1.0/D)}\nv_mov_b32 v250, {fhex(1e-5)}\nv_lshlrev_b32 v{t}, 2, v{vL}\nv_add_u32 v{t}, s{sPW}, v{t}")
        r(f"v_permlane32_swap_b32 v{A}, v{C}\nv_permlane32_swap_b32 v{A+1}, v{C+1}\nv_permlane32_swap_b32 v{B}, v{D_}\nv_permlane32_swap_b32 v{B+1}, v{D_+1}")
        r(f"v_add_f32 v{A}, v{A}, v{C}\nv_add_f32 v{B}, v{B}, v{D_}\nv_add_f32 v{A+1}, v{A+1}, v{C+1}\nv_add_f32 v{B+1}, v{B+1}, v{D_+1}\nv_and_b32 v{t+1}, 0xffffff3f, v{t}")
        r(f"v_permlane16_swap_b32 v{A}, v{B}\nv_permlane16_swap_b32 v{A+1}, v{B+1}\nv_add_f32 v{A}, v{A}, v{B}\nv_add_f32 v{A+1}, v{A+1}, v{B+1}\nv_add_u32 v{t+1}, 1024, v{t+1}")
        r(f"v_mul_f32 v{A}, {fhex(-1.0/D)}, v{A}\nv_fma_f32 v{A+1}, v{A+1}, s43, v250\nv_fma_f32 v{A+1}, -v{A}, v{A}, v{A+1}\nv_max_f32 v{A+1}, v{A+1}, v250\nv_rsq_f32 v{B}, v{A+1}")
        r.ds(f"ds_write_b32 v{t}, v{A} offset:1024"); r.ds(f"ds_write_b32 v{t}, v{A+1} offset:1536")
        r(f"v_mul_f32 v{B}, {fhex(-LOG2E)}, v{B}"); r.ds(f"ds_write_b32 v{t}, v{B} offset:1280")
        for h in range(2): r.ds(f"ds_read2_b32 {vr(vMu+2*h,2)}, v{t+1} offset0:{32*h} offset1:{32*h+16}")
        ckl = f"buffer_load_dword v{vCa}, v{vZ}, {R(sWS)}, s48 offen sc1"
        fill[47].append(lambda: e.vm(ckl, 'CK3'))
        r(f"v_lshrrev_b32 v250, 3, v{vL}\nv_add_u32 v250, s{sOdd}, v250\nv_cmp_ne_u32 vcc, 7, v250\nv_bfe_u32 v{tm}, v{vL}, 2, 1\nv_mul_u32_u24 v{tm}, {F*4}, v{tm}")
        r(f"v_cndmask_b32 v250, 0, v250, vcc\nv_lshl_add_u32 v250, v250, 6, v{tm}\nv_and_b32 v{tm}, 3, v{vL}\nv_lshl_add_u32 v250, v{tm}, 4, v250")
        r.call(lambda: self.g.check(vCa, ckl, 56, 'CK3'))
        for a in range(2): r.vm(f"buffer_load_dwordx4 {vr(tm+4*a,4)}, v250, {R(sWS)}, s{46+a} offen sc1", 'CS3')
        r(f"v_lshrrev_b32 v{vCa}, 4, v{vL}\nv_lshlrev_b32 v{vCa}, 4, v{vCa}\nv_add_u32 v{vCa}, s{sPW}, v{vCa}\nv_add_u32 v250, s{sPW}, v{vOT}")
        pour(fill, r.ops, 56, 112, cap=2); assert not r.ops, len(r.ops)
    def epi_units(self):
        e = self.g.e; U = []
        def ph(i, name):
            if not 0 <= i < 28: return []
            r = Rec(e); t, tt = i >> 2, i & 3
            g_, u = acc(2*t, tt), acc(2*t+1, tt); T = tm + 4*(i & 1)
            sel = tt & 1; c1 = (vC1 + tt) & ~1; c2 = (vC2 + tt) & ~1
            if name == 'a':
                for h in range(2): r(f"v_pk_mul_f32 {vr(T+2*h,2)}, {vr(g_+2*h,2)}, {vr(c1,2)} op_sel:[0,{sel}] op_sel_hi:[1,{sel}]")
            if name == 'b':
                for h in range(2): r(f"v_pk_mul_f32 {vr(g_+2*h,2)}, {vr(g_+2*h,2)}, {vr(u+2*h,2)}")
            if name == 'c':
                for x in range(4): r(f"v_exp_f32 v{T+x}, v{T+x}")
            if name == 'd':
                for h in range(2): r(f"v_pk_fma_f32 {vr(T+2*h,2)}, {vr(T+2*h,2)}, {vr(c2,2)}, {vr(c2,2)} op_sel:[0,{sel},{sel}] op_sel_hi:[1,{sel},{sel}]")
            if name == 'e':
                for x in range(4): r(f"v_rcp_f32 v{T+x}, v{T+x}")
            if name == 'f':
                for h in range(2): r(f"v_pk_mul_f32 {vr(g_+2*h,2)}, {vr(g_+2*h,2)}, {vr(T+2*h,2)}")
            if name == 'g':
                dst = acc(2*(t & ~1) + 1, tt) + 2*(t & 1) if t < 6 else acc(13, tt & ~1) + 2*(tt & 1)
                r(f"v_cvt_pk_bf16_f32 v{dst}, v{g_}, v{g_+1}\nv_cvt_pk_bf16_f32 v{dst+1}, v{g_+2}, v{g_+3}")
                if t < 6 and (t & 1): r.vm(f"buffer_store_dwordx4 {vr(dst-2,4)}, v{vOT}, {R(sWS)}, s{57+tt} offen sc1", ('OUT3', t >> 1)); r(f"s_add_u32 s{57+tt}, s{57+tt}, 16384")
                if t == 6 and (tt & 1):
                    r(f"s_nop 1\nv_permlane32_swap_b32 v{dst-2}, v{dst}\nv_permlane32_swap_b32 v{dst-1}, v{dst+1}")
                    r.vm(f"buffer_store_dwordx4 {vr(dst-2,4)}, v{vS2}, {R(sWS)}, s{61 + (tt>>1)} offen sc1", 'OUT3')
            return r.ops
        for i in range(-1, 30):
            c, e0, e1, g2 = ph(i, 'c'), ph(i-1, 'e'), ph(i, 'e'), ph(i-2, 'g')
            nop = [lambda: e("s_nop 0")] if i in (0, 28) else []
            U.append(dict(v=[e0[1:2], e0[2:3], g2[0:1], g2[1:2], g2[2:] + c[0:1], c[1:2], [], c[2:] + e0[3:] + nop + ph(i, 'd') + ph(i-1, 'f') + ph(i+1, 'a') + ph(i+1, 'b') + e1[0:1]],
                          pre=[], mem=[]))
        return U
    def signal_field(self, tag, f):
        g = self.g; e = g.e; l = g.lab("sgf")
        e.wait(vm=tag); e("s_barrier")
        e(f"s_cmp_lg_u32 s{sWave}, 0\ns_cbranch_scc1 {l}\nv_mov_b32 v250, 1\ns_mov_b64 exec, 1")
        e(f"buffer_atomic_add v250, v{vZ}, {R(sWS)}, s77 offen sc1\ns_mov_b64 exec, -1\n{l}:\ns_add_u32 s77, s77, 2048")
    def signal_last(self):
        self.g.e(f"s_xor_b32 s43, s{sCnt}, 2\ns_or_b32 s43, s43, s{sWave}\ns_cbranch_scc1 Lp3_sgl"); self.g.arrive(sWS, 77); self.g.e("Lp3_sgl:")
    def tail(self, p4, wread1, order):
        g = self.g; e = g.e; c = self.c
        N = 448; S = Slots(N); BASE = 260
        tiles = [(s, 2*p + z) for p, s in order for z in range(2)]
        def place(pos, op):
            pre = True
            for x in op:
                if x == "NOP": continue
                if callable(x): S.ve[pos].append(x); pre = False
                else: S.sc[pos - 1 if pre else pos + 1].append(lambda x=x: e(x))
        EU = self.epi_units()
        for q in range(2, 56):
            for z, f in enumerate(wread1(168 + q, *tiles[q])):
                b = 8*(q - 2); S.ve[b + ((2, 2, 6, 7)[z] if b > BASE else 2*z)].append(f)
        VS = c.get('VS', 5)
        for k, op in enumerate(self.t_ops(13) + self.w_ops(14) + self.t_ops(14) + self.w_ops(15) + self.t_ops(15)): place((VS*k + 2) | 1, op)
        first = {s: next(k for k, (p, s_) in enumerate(order) if s_ == s) for s in (13, 14, 15)}
        for s in (13, 14, 15): S.sc[16*(first[s] - 1)].append(lambda s=s: (e.wait(vm=('W3', s)), e("s_barrier")))
        assert 16*(first[13] - 1) < VS*24
        r = Rec(e); r.wait(vm='CS3')
        for x in range(4): r(f"v_add_f32 v{tm+x}, v{tm+x}, v{tm+4+x}")
        r.ds(f"ds_write_b128 v250, {vr(tm,4)}")
        S.pour(r.ops, 0, 8)
        left = list(range(14)); tau = {}
        def pick(k):
            if k == 15: return True
            for n in left:
                if n >> 1 not in (order[k-1][0], order[k][0], order[k+1][0]):
                    left.remove(n); tau[k] = n
                    if pick(k+1): return True
                    left.append(n); left.sort()
            return False
        assert pick(1) and sorted(tau.values()) == list(range(14))
        for k in range(1, 15):
            n = tau[k]; b = k & 1
            S.ve[16*(k-1) + 9 if k == 1 else 16*(k-1) + 1].append(lambda n=n, b=b: e.ds(f"ds_read_b128 {vr(tm+4*b,4)}, v{vCa} offset:{n*64}", ('CT', n)))
        for k in range(1, 15):
            n = tau[k]; b = k & 1; r = Rec(e); r.wait(ds=('CT', n))
            for tt in range(4):
                for x in range(4): r(f"v_fmac_f32 v{acc(n,tt)+x}, v{tm+4*b+x}, v{vMu+tt}")
            S.pour(r.ops, 16*k, 16*k + 16)
        r = Rec(e)
        for x in p4.prefetch_setup(): r(x.replace("\n", "\t"))
        r(f"s_mul_i32 s43, s{sGrp}, {4*HPITCH}\ns_lshr_b32 s45, s{sNj3}, 4\ns_mul_i32 s45, s45, {56*1024}\ns_add_u32 s43, s43, s45\ns_add_u32 s43, s43, {g.lo('H')}\ns_add_u32 s43, s43, {HB}")
        r(f"s_and_b32 s44, s{sNj3}, 15\ns_lshl_b32 s45, s44, 10\ns_add_u32 s57, s43, s45\ns_lshl_b32 s45, s44, 9\ns_add_u32 s61, s43, s45\ns_add_u32 s61, s61, {48*1024}\ns_add_u32 s62, s61, {2*HPITCH}")
        for tt in range(1, 4): r(f"s_add_u32 s{57+tt}, s{57+tt-1}, {HPITCH}")
        r(f"s_lshl_b32 s77, s{sMi3}, 1\ns_lshr_b32 s43, s{sNj3}, 4\ns_add_u32 s77, s77, s43\ns_lshl_b32 s77, s77, 7\ns_add_u32 s77, s77, s{sLo}\ns_add_u32 s77, s77, {FL + H3*128}")
        su = p4.setup_ops()
        S.pour(r.ops + [f for f in su if getattr(f, 'sc', False)], 20, 200, cap=0)
        nxt = p4.prefetch_ops()
        for k in range(4):
            op = nxt.pop(0); pos = 205 + 12*k
            S.sc[pos-2].append(op[0]); S.sc[pos-1].append(op[1]); S.ve[pos].insert(0, op[2]); S.ve[pos+6].insert(0, op[3])
        r = Rec(e)
        r(f"v_and_b32 v{vS2}, 31, v{vL}\nv_lshlrev_b32 v{vS2}, 4, v{vS2}\nv_lshrrev_b32 v250, 5, v{vL}\ns_mov_b32 s43, {HPITCH}\nv_mad_u32_u24 v{vS2}, v250, s43, v{vS2}")
        r(f"v_and_b32 v250, 15, v{vL}\ns_add_u32 s43, s{sPW}, 1024\nv_lshl_add_u32 v250, v250, 2, s43")
        for z, dst in enumerate((vC1, vC1+2, vC2, vC2+2)): r.ds(f"ds_read2_b32 {vr(dst,2)}, v250 offset0:{64+32*z} offset1:{80+32*z}", 'CC')
        S.pour(r.ops, 240, 252); S.sc[258].append(lambda: e.wait(ds='CC'))
        SA, SB, CL, CK = c.get('SA', 13), c.get('SB', 22), c.get('CL', 17), c.get('CK', 20)
        assert BASE + 8*SB >= 432
        EU[SA+1]['pre'].append(lambda: self.signal_field(('OUT3', 0), 0))
        for k in range(4): EU[SA+1+k]['mem'] += nxt.pop(0)
        EU[SB+1]['pre'].append(lambda: self.signal_field([('OUT3', 1), ('W5', 7)], 1))
        EU[CL+1]['mem'].insert(0, p4.ck_load)
        EU[CK+1]['pre'].append(lambda: p4.ck("p4a"))
        ft = p4.first_t(); nq = c.get('NQ', 5)
        for k in range(nq): EU[CK+1+k]['mem'] += ft[k*len(ft)//nq:(k+1)*len(ft)//nq]
        for k in range(len(nxt)): EU[max(CK + nq, SB) + 1 + k]['mem'] += nxt[k]
        EU[24]['pre'] += p4.reads(0)
        for i in range(-1, 23):
            u = EU[i+1]; b = BASE + 8*i
            S.sc[b] += u['pre']
            z = 0; lastv = -1
            for f in u['mem']:
                if getattr(f, 'sc', False):
                    while S.sc[b+z] and z < 6: z += 1
                    assert z > lastv; S.sc[b+z].append(f)
                else:
                    while z in (2, 3, 6): z += 1
                    S.ve[b+z].append(f); lastv = z; z = min(z + 1, 7)
            for z in range(8): S.ve[b+z] += u['v'][z]
        S.pour([f for f in su if not getattr(f, 'sc', False)], BASE + 8*10, BASE + 8*CK)
        kk = 0; k = 0; seen = set()
        for q, (s, n) in enumerate(tiles):
            if c.get('fine') and q == c['fine']: g.stamp()
            for tt in ((3, 2, 1, 0) if n & 1 else (0, 1, 2, 3)):
                e.wait(vm=('T3', s, tt if s > 12 else 3), ds=('F3', 168 + q))
                for z in (kk, 1 - kk):
                    a = vr(acc(n, tt), 4)
                    e(f"{MF} {a}, {ar(aW(168 + q, z), 4)}, {ar(aT(s, z, tt), 4)}, {a}")
                    S.emit(k); k += 1
                kk = 1 - kk
        g.stamp()
        for u in EU[24:]:
            m = u['mem']; h = (len(m) + 1)//2
            for f in u['pre'] + m[:h] + sum(u['v'][:4], []) + m[h:] + sum(u['v'][4:], []): f()
        for f in p4.init_ops(): f()
        g.stamp(); g.stamp()
    def main(self, p4):
        g = self.g; e = g.e; c = self.c
        DW = c.get('DW', 2); NP = c.get('NP', 2)
        g.poll(77, 32)
        self.run(self.t_ops(0))
        def wread(L): return wread1(L, *divmod(L, 14))
        def wread1(L, s, n):
            ops = []
            for kk in range(2):
                for j in range(2):
                    def f(kk=kk, j=j):
                        if n == 0 and kk == 0 and j == 0 and 0 < s <= 12: e.wait(vm=('W3', s)); e("s_barrier")
                        e.ds(f"ds_read_b64_tr_b16 {ar(aW(L, kk) + 2*j, 2)}, v{vW + (n >> 1)} offset:{(s & 1)*32768 + (n & 1)*16384 + (kk*32 + 16*j)*256}", ('F3', L))
                        if kk == 1 and j == 1 and s & 1 and n & 1 and s < 15: e(f"v_xor_b32 v{vW + (n >> 1)}, 0x10000, v{vW + (n >> 1)}")
                    ops.append(f)
            return ops
        for L in range(DW):
            for f in wread(L): f()
        g.stamp()
        for s in range(12):
            if s in (0, 1, 15): e(f"Lmk_p3s{s}:")
            if c.get('fine') and s in (1, 2, 15): g.stamp()
            if s % 2 == 0: e.mark(f"p3b{s//2}")
            if c.get('fine') and s == 14: g.stamp()
            fill = [[] for _ in range(112)]
            def place(pos, op):
                pre = True
                for x in op:
                    if x == "NOP": continue
                    if callable(x): fill[pos].append(x); pre = False
                    else: fill[pos - 1 if pre else pos + 1].append(lambda x=x: e(x))
            if c.get('burst', 0) and 2 <= s < 14:
                pos = [7*p + z for p in range(16) for z in (range(4) if p % 2 == 0 else range(c.get('b0', 0), c.get('b0', 0) + 3))]
                rd = [f for n in range(14) for f in wread(s*14 + n + DW)]
                for k, f in enumerate(rd): fill[pos[k]].append(f)
            else:
                for n in range(14):
                    for k, f in enumerate(wread(s*14 + n + DW)): fill[n*8 + 2*k].append(f)
            if s < 15:
                TS = c.get('TS', 7)
                for k, op in enumerate(self.t_ops(s+1)): place(((5 if NP == 3 else 4)*k + 9) if s == 0 else TS*k + 3, op)
            if s == 0:
                for k, op in enumerate(self.st_ops()): place(5*k + 49 if NP == 3 else 4*k + 41, op)
                if NP == 2:
                    for k, op in enumerate(self.w_ops(2)): place(4*k + 75, op)
            elif s < 14:
                for k, op in enumerate(self.w_ops(s+2)): place(7*(k+8) + 3, op)
            if s % 2 == 0 or s == 1:
                place(108 if s == 0 else 53, [lambda: e.vm(f"buffer_load_dwordx4 {ar(aDum,4)}, v{vTch}, {R(sWd)}, s{sTch} offen"), f"s_add_u32 s{sTch}, s{sTch}, 1024"])
            if s == 1: self.stats_ops(fill)
            kk = 0
            for n in range(14):
                L = s*14 + n
                k = 0
                for tt in ((3, 2, 1, 0) if n & 1 else (0, 1, 2, 3)):
                    e.wait(vm=('T3', s, tt if s == 0 else 3) if n == 0 else None, ds=('F3', L))
                    for z in (kk, 1 - kk):
                        a = vr(acc(n, tt), 4)
                        e(f"{MF} {a}, {ar(aW(L, z), 4)}, {ar(aT(s, z, tt), 4)}, {'0' if s == 0 and z == kk else a}")
                        for f in fill[n*8 + k]: f()
                        k += 1
                    kk = 1 - kk
        e.mark("p3b6")
        e.fold([f"p3b{k}" for k in range(1, 7)], "Lp3_loop", f"s{sCnt}")
        if c.get('fine'): g.stamp()
        order = [(p, 12) for p in range(7)] + [(p, 13) for p in range(4)] + [(0, 14), (1, 14), (2, 14), (4, 13), (0, 15), (5, 13), (1, 15), (6, 13), (2, 15)]
        order += [(p, s) for p in range(3, 7) for s in (14, 15)]
        self.tail(p4, wread1, order)
```

```python
from common import *
def stats_epilogue(e, P, ntile, nblk, vL, vt, sWS, s_off, tile_stride=2048, aux='', sm0=60, tag=None):
    M = [f"s[{x}:{x+1}]" for x in (sm0 if isinstance(sm0, list) else range(sm0, sm0 + 8, 2))]
    ones = vt; sm = lambda tt: vt + 4 + 8*tt; gr = lambda tt: vt + 8 + 8*tt
    va = vt + 4 + 8*ntile
    for r in range(4): e(f"v_mov_b32 v{ones+r}, 0x3f803f80")
    e(f"v_and_b32 v{va}, 15, v{vL}\nv_lshrrev_b32 v{va+1}, 4, v{vL}")
    for p in range(nblk):
        for tt in range(ntile):
            c = "0" if p == 0 else None
            e(f"v_mfma_f32_16x16x32_bf16 {vr(sm(tt),4)}, {vr(ones,4)}, {vr(P(tt,p),4)}, {c or vr(sm(tt),4)}")
            e(f"v_mfma_f32_16x16x32_bf16 {vr(gr(tt),4)}, {vr(P(tt,p),4)}, {vr(P(tt,p),4)}, {c or vr(gr(tt),4)}")
    e(f"v_lshrrev_b32 v{ones}, 2, v{va}\nv_cmp_eq_u32 {M[0]}, v{ones}, v{va+1}\nv_and_b32 v{ones}, 3, v{va}")
    e(f"v_cmp_eq_u32 {M[1]}, 1, v{ones}\nv_cmp_eq_u32 {M[2]}, 2, v{ones}\nv_cmp_eq_u32 {M[3]}, 3, v{ones}")
    e(f"v_lshlrev_b32 v{va}, 3, v{va}\nv_mov_b32 v{va+1}, 0x7ffffff0\ns_nop 0\nv_cndmask_b32 v{va}, v{va+1}, v{va}, {M[0]}")
    for tt in range(ntile):
        g = gr(tt); o = sm(tt) + 1
        e(f"v_cndmask_b32 v{o}, v{g}, v{g+1}, {M[1]}\nv_cndmask_b32 v{o}, v{o}, v{g+2}, {M[2]}\nv_cndmask_b32 v{o}, v{o}, v{g+3}, {M[3]}")
        e.vm(f"buffer_store_dwordx2 {vr(sm(tt),2)}, v{va}, s[{sWS}:{sWS+3}], s{s_off} offen offset:{tt*tile_stride} {aux}", tag)

def gen_res(name, cfg):
    e = E(); dg = Diag(cfg.get('diag', False))
    down = cfg['down']
    K = F if down else D
    NS = K//32; B = 14 if down else cfg.get('B', 16); P = 7 if down else 8
    LT = cfg.get('LT', 5); LW = cfg.get('LW', 6); SPS = cfg.get('SPS', 2)
    apitch = HPITCH if down else 32768
    abase = HF if down else OF
    sWS, sWt, sOut = 4, 8, 12
    sWave, sMi, sNj, sT, sW, sM0, sCnt, sDel = 24, 25, 26, 28, 29, 30, 31, 27
    vW = 40; vOW = 44; vOT = 45; vL = 47; vR = 48
    aT = 0; aWf = 64
    acc = lambda n, tt: (n*2 + tt)*4
    e(f"{name}:")
    dg.real(e); dg.stamp(e)
    e(f"s_load_dwordx2 s[32:33], s[0:1], {KA_WS}\ns_load_dwordx2 s[36:37], s[0:1], {KA_WD if down else KA_WO}\ns_load_dwordx2 s[38:39], s[0:1], {KA_OUT}")
    e(f"v_lshrrev_b32 v1, 6, v0\nv_and_b32 v{vL}, 63, v0\nv_readfirstlane_b32 s{sWave}, v1")
    mb = cfg.get('mbits', 2)
    e(f"s_and_b32 s34, s2, 7\ns_lshr_b32 s35, s2, 3")
    e(f"s_and_b32 s{sMi}, s34, {(16>>mb)-1}\ns_lshl_b32 s{sMi}, s{sMi}, {mb}\ns_and_b32 s43, s35, {(1<<mb)-1}\ns_add_u32 s{sMi}, s{sMi}, s43")
    e(f"s_lshr_b32 s{sNj}, s34, {4-mb}\ns_lshl_b32 s{sNj}, s{sNj}, {5-mb}\ns_lshr_b32 s43, s35, {mb}\ns_add_u32 s{sNj}, s{sNj}, s43")
    e(f"v_lshrrev_b32 v2, 3, v{vL}\nv_bfe_u32 v3, v{vL}, 1, 2\nv_lshrrev_b32 v4, 4, v{vL}\nv_xor_b32 v3, v3, v4\nv_and_b32 v4, 1, v{vL}")
    e(f"v_lshlrev_b32 v2, 11, v2\nv_lshl_add_u32 v2, v3, 5, v2\nv_lshl_add_u32 v{vOW}, v4, 4, v2")
    e(f"v_lshlrev_b32 v{vOT}, 4, v{vL}\nv_add_u32 v{vOT+1}, {apitch}, v{vOT}")
    e(f"s_lshl_b32 s44, s{sMi}, 3\ns_lshl_b32 s43, s{sWave}, 1\ns_add_u32 s44, s44, s43")
    e(f"s_mul_i32 s{sT}, s44, {apitch}\ns_add_u32 s{sT}, s{sT}, {abase}")
    e(f"s_lshl_b32 s{sW}, s{sNj}, 7\ns_lshl_b32 s43, s{sWave}, 14\ns_add_u32 s{sW}, s{sW}, s43")
    e(f"s_lshl_b32 s{sM0}, s{sWave}, 10")
    if down:
        e(f"s_cmp_eq_u32 s{sWave}, 1\ns_cselect_b32 s{sDel}, 16384, 0\ns_cmp_eq_u32 s{sWave}, 2\ns_cselect_b32 s{sDel}, -16384, s{sDel}")
    e(f"s_lshl_b32 s45, s44, 15\ns_lshl_b32 s43, s{sNj}, 11\ns_add_u32 s45, s45, s43")
    e(f"s_add_u32 s46, s45, s40\ns_add_u32 s49, s46, 32768")
    PD = cfg.get('PD', 0); NL = cfg.get('NL', 2); sET, sEW = 52, 60
    if PD:
        e(f"s_and_b32 s43, s35, {(1<<mb)-1}\ns_mul_i32 s43, s43, {NL}\ns_lshr_b32 s51, s35, {mb}\ns_add_u32 s43, s43, s51")
        for _ in range(3): e(f"s_cmp_ge_u32 s43, {PD}\ns_cselect_b32 s51, {PD}, 0\ns_sub_u32 s43, s43, s51")
        e(f"s_lshl_b32 s51, {(1<<NL)-1}, s43\ns_lshr_b32 s43, s51, {PD}\ns_or_b32 s51, s51, s43")
        for q in range(PD):
            e(f"s_bitcmp1_b32 s51, {q}\ns_cselect_b32 s{sET+q}, {PD*1024}, 0\ns_cselect_b32 s{sEW+q}, {PD*65536}, 0")
    def joff(j, base, arr, tmp):
        if not PD: return base
        if j < NS - PD: e(f"s_add_u32 s{tmp}, s{base}, s{arr + j % PD}")
        else: e(f"s_mul_i32 s{tmp}, s{arr + j % PD}, {1 - NS//PD}\ns_add_u32 s{tmp}, s{tmp}, s{base}")
        return tmp
    e("s_waitcnt lgkmcnt(0)")
    srd(e, sWS, 32, WS_BYTES); srd(e, sWt, 36, K*D*2); srd(e, sOut, 38, S*D*2)
    def w_op(j):
        if not 0 <= j < NS: return None
        def f():
            e(f"s_add_u32 m0, s{sM0}, {(j % B)*4096}")
            so = joff(j, sW, sEW, 43)
            if down and j % 7 == 3: e(f"s_add_u32 s43, s{so}, s{sDel}"); so = 43
            if so == sW: e("s_nop 0")
            e.vm(f"buffer_load_dwordx4 v{vOW}, s[{sWt}:{sWt+3}], s{so} offen lds", ('W', j))
            e(f"s_add_u32 s{sW}, s{sW}, 65536")
        return f
    def t_op(j, tt):
        if not 0 <= j < NS: return None
        def f():
            if tt == 0: joff(j, sT, sET, 51)
            e.vm(f"buffer_load_dwordx4 {ar(aT + (j % P)*8 + tt*4, 4)}, v{vOT+tt}, s[{sWS}:{sWS+3}], s{51 if PD else sT} offen", ('T', j))
            if tt == 1: e(f"s_add_u32 s{sT}, s{sT}, 1024")
        return f
    def vm_ops(i): return [w_op(i + LW), t_op(i + LT, 0), t_op(i + LT, 1)]
    first = True
    for i in range(-max(LT, LW), 0):
        for f in vm_ops(i):
            if f: f()
        if first:
            first = False
            for tt in range(2):
                for p in range(2):
                    e.vm(f"buffer_load_dwordx4 {vr(vR + (tt*2+p)*4, 4)}, v{vOT}, s[{sWS}:{sWS+3}], s{(46,49)[tt]} offen offset:{1024*p}", 'R')
    e(f"v_lshrrev_b32 v2, 2, v{vL}\nv_bfe_u32 v3, v{vL}, 3, 2\nv_and_b32 v4, 3, v{vL}\nv_lshlrev_b32 v4, 3, v4\nv_lshl_add_u32 v4, v2, 7, v4")
    for t in range(4): e(f"v_xor_b32 v5, {t}, v3\nv_lshl_add_u32 v{vW+t}, v5, 5, v4")
    e.wait(vm='R')
    for tt in range(2):
        for n in range(4):
            for h in range(2):
                src = vR + (tt*2 + (n >> 1))*4 + (n & 1)*2 + h
                e(f"v_lshlrev_b32 v{acc(n,tt)+2*h}, 16, v{src}\nv_and_b32 v{acc(n,tt)+2*h+1}, 0xffff0000, v{src}")
    def wreads(i):
        if i >= NS: return []
        ops = []
        for n in range(4):
            for j in range(2):
                def f(n=n, j=j):
                    if n == 0 and j == 0 and i % SPS == 0:
                        e.wait(vm=[('W', x) for x in range(i, i + SPS)]); e("s_barrier")
                    e.ds(f"ds_read_b64_tr_b16 {ar(aWf + (i & 1)*16 + n*4 + 2*j, 2)}, v{vW+n} offset:{(i % B)*4096 + j*2048}", ('F', i, n))
                ops.append(f)
        return ops
    assert B - LW >= SPS + 1 and LT <= P - 1 and LW >= SPS + 1
    for f in wreads(0): f()
    dg.stamp(e)
    for i in range(NS):
        if i % B == 0: e.mark(f"b{i//B}")
        rd = wreads(i + 1); vo = vm_ops(i)
        k = 0
        for n in range(4):
            e.wait(vm=('T', i) if n == 0 else None, ds=('F', i, n))
            for ti in range(2):
                tt = 1 - ti if n & 1 else ti
                a = vr(acc(n, tt), 4)
                e(f"v_mfma_f32_16x16x32_bf16 {a}, {ar(aWf + (i & 1)*16 + n*4, 4)}, {ar(aT + (i % P)*8 + tt*4, 4)}, {a}")
                if rd: rd[k]()
                if k in (1, 3, 5) and vo[k >> 1]: vo[k >> 1]()
                k += 1
    nb = NS//B
    if cfg.get('fold', True) and nb > 2: e.fold([f"b{k}" for k in range(nb)], f"L{name}_loop", f"s{sCnt}")
    dg.stamp(e)
    st_aux = cfg.get('st_aux', '')
    e(f"s_add_u32 s46, s45, s41\ns_add_u32 s49, s46, 32768")
    e(f"s_lshl_b32 s50, s44, 11\ns_lshl_b32 s43, s{sNj}, 7\ns_add_u32 s50, s50, s43\ns_add_u32 s50, s50, s47\ns_nop 1")
    Pk = lambda tt, p: vR + (tt*2 + p)*4
    def cvt(tt, p):
        for q in range(4):
            a = acc(2*p + (q >> 1), tt) + 2*(q & 1)
            e(f"v_cvt_pk_bf16_f32 v{Pk(tt,p)+q}, v{a}, v{a+1}")
    if down: e(f"s_cmp_lg_u32 s48, 0\ns_cbranch_scc1 L{name}_final")
    for p in range(2):
        for tt in range(2):
            cvt(tt, p)
            e.vm(f"buffer_store_dwordx4 {vr(Pk(tt,p),4)}, v{vOT}, s[{sWS}:{sWS+3}], s{(46,49)[tt]} offen offset:{1024*p} {st_aux}")
    stats_epilogue(e, Pk, 2, 2, vL, 64, sWS, 50, aux=st_aux)
    def fin():
        if dg.on:
            n0 = dg.n
            dg.stamp(e); e("s_waitcnt vmcnt(0)"); dg.stamp(e); dg.real(e); dg.flush(e, sWS, 42, sWave, 0)
            dg.n = n0
        e("s_endpgm")
    fin()
    if down:
        e(f"L{name}_final:")
        e(f"v_and_b32 v64, 15, v{vL}\nv_lshlrev_b32 v64, 12, v64\nv_bfe_u32 v65, v{vL}, 4, 1\nv_lshl_add_u32 v64, v65, 5, v64\nv_lshrrev_b32 v65, 5, v{vL}\nv_lshl_add_u32 v64, v65, 4, v64")
        e(f"s_and_b32 s43, s44, 63\ns_lshl_b32 s43, s43, 16\ns_lshr_b32 s46, s44, 6\ns_lshl_b32 s46, s46, 11\ns_add_u32 s46, s46, s43\ns_lshl_b32 s43, s{sNj}, 7\ns_add_u32 s46, s46, s43\ns_add_u32 s49, s46, 65536")
        for p in range(2):
            for tt in range(2): cvt(tt, p)
            for tt in range(2):
                r = Pk(tt, p)
                if tt == 1: e("s_nop 0")
                e(f"v_permlane16_swap_b32 v{r}, v{r+2}\nv_permlane16_swap_b32 v{r+1}, v{r+3}")
                e.vm(f"buffer_store_dwordx4 {vr(r,4)}, v64, s[{sOut}:{sOut+3}], s{(46,49)[tt]} offen offset:{64*p}")
        fin()
    return e.text()
```

```python
import sys, json
from emit import *
from common import fhex, srd, xreduce_g, LOG2E, S, D, F, WS_BYTES, HPITCH
from res import stats_epilogue
NAME = "interleave_layers__sliding_local_dilated__swiglu_ffn__prompt"
LP = 0x2800000
XA, XB, OB, HB, STA, STB, FL = 0, 0x400000, 0x800000, 0xC00000, 0x1A00000, 0x1A40000, 0x1A80000
CSQ, CSG = 0x1AB0000, 0x1AA0000
PB = 0x1B00000
H3S = 4096
DIAG = 0x5000000
H1, HC, H3, HM, H2, H4 = 0, 56, 64, 160, 160, 192
LDS_BYTES = 163840
sWS, sWq, sWo, sWg, sWu, sWd, sAs, sOut, sDbg = 4, 8, 12, 16, 20, 24, 28, 32, 36
sWave, sLay, sLo = 40, 41, 42
sMi1, sHj, sMi2, sNj2, sMi3, sNj3 = 50, 51, 52, 53, 54, 55
sCnt = 56
vL, vOW2, vZ = 253, 252, 251
R = lambda s: f"s[{s}:{s+3}]"
MF = "v_mfma_f32_16x16x32_bf16"

class G:
    def __init__(self, cfg):
        self.cfg = cfg; self.e = E(); self.diag = cfg.get('diag', False); self.nlab = 0; self.backoff = f"s_sleep {cfg['slp']}\n" if cfg.get('slp') else ''; self.px = cfg.get('px', 2); self.q4 = cfg.get('q4', 0); self.SH = cfg.get('SH', 2)
    def lo(self, b): return '0' if b in self.cfg.get('reuse', '') else f's{sLo}'
    def lp(self, b): return 0 if b in self.cfg.get('reuse', '') else LP
    def touch(self, vlane16, dst, track=True):
        if not self.cfg.get('touch2', 0): return
        (self.e.vm if track else self.e)(f"global_load_dwordx4 {dst}, v{vlane16}, s[0:1]")
    def lab(self, p):
        self.nlab += 1; return f"L{p}{self.nlab}"
    def stamp(self):
        if not self.diag: return
        self.e("s_memtime s[96:97]\ns_memrealtime s[98:99]\ns_waitcnt lgkmcnt(0)\nv_writelane_b32 v254, s96, s95\nv_writelane_b32 v255, s98, s95\ns_add_u32 s95, s95, 1".replace(
            "v_writelane_b32 v254, s96, s95\nv_writelane_b32 v255, s98, s95", "s_mov_b32 s94, m0\ns_mov_b32 m0, s95\nv_writelane_b32 v254, s96, m0\nv_writelane_b32 v255, s98, m0\ns_mov_b32 m0, s94"))
    def reset_q(self):
        e = self.e; e.vm_done = len(e.vmq); e.ds_done = len(e.dsq)
    def signal(self, stores, line_s, pre=None):
        e = self.e; l = self.lab("sig")
        if pre: pre()
        e.wait(vm=stores); self.stamp(); e("s_barrier")
        e(f"s_cmp_lg_u32 s{sWave}, 0\ns_cbranch_scc1 {l}\nv_mov_b32 v250, 1\ns_mov_b64 exec, 1")
        e(f"buffer_atomic_add v250, v{vZ}, {R(sWS)}, s{line_s} offen sc1\ns_mov_b64 exec, -1\n{l}:")
    def poll(self, line_s, count, voff=None, nl=2, late=None, keep=0):
        e = self.e; l = self.lab("pol"); d = self.lab("pdn")
        e(f"s_cmp_lg_u32 s{sWave}, 0\ns_cbranch_scc1 {d}\ns_mov_b32 s43, 0x40000\ns_mov_b64 exec, {(1 << nl) - 1 if voff else 1}\n{l}:")
        e(f"buffer_load_dword v250, v{voff or vZ}, {R(sWS)}, s{line_s} offen sc1\ns_waitcnt vmcnt(0)\nv_cmp_gt_u32 vcc, {count}, v250")
        e(f"s_cbranch_vccz {d}x\ns_sub_u32 s43, s43, 1\ns_cmp_lg_u32 s43, 0\ns_cbranch_scc1 {l}\n{d}x:\ns_mov_b64 exec, -1")
        if late:
            n0 = len(e.vmq); late(); assert len(e.vmq) - n0 == keep; del e.vmq[n0:]
        e(f"{d}:\ns_waitcnt vmcnt({keep}) lgkmcnt(0)\ns_barrier")
        self.reset_q(); e.vm_done -= keep; self.stamp()
    def not0(self, f):
        l = self.lab("n0"); self.e(f"s_cmp_eq_u32 s{sWave}, 0\ns_cbranch_scc1 {l}"); f(); self.e(f"{l}:")
    def check(self, vreg, load, count, tag):
        e = self.e; l = self.lab("chk"); d = self.lab("cdn")
        e.wait(vm=tag)
        e(f"v_cmp_gt_u32 vcc, {count}, v{vreg}\ns_cbranch_vccz {d}\ns_mov_b32 s43, 0x40000\n{l}:")
        e(f"{self.backoff}{load}\ns_waitcnt vmcnt(0)\nv_cmp_gt_u32 vcc, {count}, v{vreg}")
        e(f"s_cbranch_vccz {d}\ns_sub_u32 s43, s43, 1\ns_cmp_lg_u32 s43, 0\ns_cbranch_scc1 {l}\n{d}:")
    def arrive(self, srd_, soff):
        self.e(f"v_mov_b32 v250, 1\ns_mov_b64 exec, 1\nbuffer_atomic_add v250, v{vZ}, {R(srd_)}, s{soff} offen sc1\ns_mov_b64 exec, -1")
    def colsum_acc(self, src, n, acc, t, first):
        e = self.e
        for q in range(n):
            for r in range(4):
                s_ = src + 4*q + r
                if first and q == 0: e(f"v_lshlrev_b32 v{acc+2*r}, 16, v{s_}\nv_and_b32 v{acc+2*r+1}, 0xffff0000, v{s_}")
                else: e(f"v_lshlrev_b32 v{t}, 16, v{s_}\nv_and_b32 v{t+1}, 0xffff0000, v{s_}\nv_pk_add_f32 {vr(acc+2*r,2)}, {vr(acc+2*r,2)}, {vr(t,2)}")
    def colsum_publish(self, acc, t, lds):
        e = self.e
        xreduce_g(e, "v_add_f32", list(range(acc, acc+8)), list(range(t, t+8)))
        e(f"v_and_b32 v{t}, 7, v{vL}\ns_lshl_b32 s43, s{sWave}, 8\ns_add_u32 s43, s43, {lds}")
        for r in range(8): e(f"v_add_f32_dpp v{acc+r}, v{acc+r}, v{acc+r} row_ror:8 row_mask:0xf bank_mask:0xf")
        e(f"v_lshl_add_u32 v{t}, v{t}, 5, s43\nds_write_b128 v{t}, {vr(acc,4)}\nds_write_b128 v{t}, {vr(acc+4,4)} offset:16")
    def colsum_final(self, t, lds, dst_s):
        e = self.e
        e(f"v_lshlrev_b32 v{t}, 2, v{vL}\nv_add_u32 v{t+1}, {lds}, v{t}")
        for w in range(4): e(f"ds_read_b32 v{t+2+w}, v{t+1} offset:{256*w}")
        e(f"s_waitcnt lgkmcnt(0)\nv_add_f32 v{t+2}, v{t+2}, v{t+3}\nv_add_f32 v{t+4}, v{t+4}, v{t+5}\nv_add_f32 v{t+2}, v{t+2}, v{t+4}")
        e(f"buffer_store_dword v{t+2}, v{t}, {R(sWS)}, s{dst_s} offen sc1")


class Rec:
    def __init__(self, e): self.e = e; self.ops = []
    def __call__(self, s):
        for x in s.split("\n"):
            x = x.strip()
            if x:
                f = lambda x=x: self.e(x.replace("\t", "\n"))
                f.sc = x.startswith("s_") and "\tv_" not in x; self.ops.append(f)
    def vm(self, s, tag=None): self.ops.append(lambda: self.e.vm(s, tag))
    def ds(self, s, tag=None): self.ops.append(lambda: self.e.ds(s, tag))
    def wait(self, **k):
        f = lambda: self.e.wait(**k)
        f.sc = True; self.ops.append(f)
    def call(self, f): self.ops.append(f)

def pour(fill, ops, lo, hi, cap=2, step=1):
    k = lo
    while ops and k < hi:
        while ops and len(fill[k]) < cap: fill[k].append(ops.pop(0))
        k += step

def space(fill, ops, isvm, first=2):
    n = len(fill); nv = sum(isvm(f) for f in ops)
    if not nv: return
    pend = []; k = 0; prev = 0
    for f in ops:
        if isvm(f):
            pos = min(first + (k*n)//nv, n - 1); k += 1
            for z, x in enumerate(pend): fill[max(prev, pos - len(pend) + z)].append(x)
            pend = []; fill[pos].append(f); prev = pos
        else: pend.append(f)
    for z, x in enumerate(pend): fill[min(prev + 1 + z, n - 1)].append(x)

class Slots:
    def __init__(self, n): self.n = n; self.sc = [[] for _ in range(n)]; self.ve = [[] for _ in range(n)]
    def load(self, k): return max(0, len(self.sc[k]) - 1) + len(self.ve[k])
    def pour(self, ops, lo, hi, cap=2, partial=False):
        k = lo; vec_here = False
        while ops:
            if partial and k >= hi: break
            assert k < hi, ("stream does not fit", len(ops))
            if getattr(ops[0], 'sc', False):
                if not vec_here and not self.sc[k]: self.sc[k].append(ops.pop(0)); continue
                if self.load(k) < cap and (k + 1 >= hi or self.sc[k+1] or (len(ops) > 1 and getattr(ops[1], 'sc', False))): self.ve[k].append(ops.pop(0)); vec_here = True; continue
            elif self.load(k) < cap: self.ve[k].append(ops.pop(0)); vec_here = True; continue
            k += 1; vec_here = False
        return k
    def emit(self, k):
        for f in self.sc[k] + self.ve[k]: f()

def stats_pre(e, vL, vt, sm0):
    va = vt + 20
    e(f"v_and_b32 v{va}, 15, v{vL}\nv_lshrrev_b32 v{va+1}, 4, v{vL}\nv_lshrrev_b32 v{vt}, 2, v{va}\nv_cmp_eq_u32 vcc, v{vt}, v{va+1}\nv_and_b32 v{vt}, 3, v{va}")
    e(f"v_lshlrev_b32 v{va}, 3, v{va}\nv_mov_b32 v{va+1}, 0x7ffffff0\nv_cndmask_b32 v{va}, v{va+1}, v{va}, vcc")
    for i in range(3): e(f"v_cmp_eq_u32 s[{sm0+2*i}:{sm0+2*i+1}], {i+1}, v{vt}")
    for r in range(4): e(f"v_mov_b32 v{vt+r}, 0x3f803f80")
def stats_mfma(e, P, p, vt):
    for tt in (1, 0):
        sm, gr = vr(vt + 4 + 8*tt, 4), vr(vt + 8 + 8*tt, 4)
        e(f"{MF} {gr}, {vr(P(tt,p),4)}, {vr(P(tt,p),4)}, {gr if p else 0}\n{MF} {sm}, {vr(vt,4)}, {vr(P(tt,p),4)}, {sm if p else 0}")
def stats_post(e, vt, sm0, s_off, tag):
    e("s_nop 5")
    for tt in (1, 0):
        g = vt + 8 + 8*tt; o = vt + 5 + 8*tt
        e(f"v_cndmask_b32 v{o}, v{g}, v{g+1}, s[{sm0}:{sm0+1}]\nv_cndmask_b32 v{o}, v{o}, v{g+2}, s[{sm0+2}:{sm0+3}]\nv_cndmask_b32 v{o}, v{o}, v{g+3}, s[{sm0+4}:{sm0+5}]")
        e.vm(f"buffer_store_dwordx2 {vr(o-1,2)}, v{vt+20}, {R(sWS)}, s{s_off} offen offset:{tt*2048} sc1", tag)
```

```python
from mg import *
W_RING, A_RING, HALO, PW = 0, 73728, 122880, 139264
CSX = PW + 4096
sHalf, sHd, sAb, sWb, sAi, sMA, sMW, sRs, sRi, sSt, sLead, sA, sW, sW2, sT0, sHt, sHb, sOwn, sHead, sPW = range(57, 77)
Q = lambda j, t: (j*4 + t - 1)*4
Kc = lambda j, t: 32 + (j*4 + t - 1)*4 if t else 96
V = lambda j, t: 64 + (j*4 + t - 1)*4 if t else 100
vB, vCq, kf0 = 104, 108, 120
vT, vH, vW, vOA, vOW, vOH, vCk = 112, 114, 116, 120, 124, 126, 127
vST = 128; bC, bP, bP0, ones = 128, 132, 136, 160
aG, aL, vCS, vRo, vP, vXa, vMuV, vRsV, tmp = 164, 166, 168, 187, 188, 198, 200, 220, 240
RES = A_RING + 16384
MSK = PW + 6144 + 4096; TBL = PW + 2*6144 + 4096
NSL = 52
fT = lambda b, kk, t: b*88 + kk*20 + t*4
fW = lambda b, kk, n: b*88 + 40 + kk*24 + n*4
class P1:
    def __init__(self, g): self.g = g; self.c = g.cfg.get('p1', {}); self.ntA = self.ntW = ''
    def setup(self, l1):
        e = self.g.e
        e(f"s_lshr_b32 s{sHalf}, s{sWave}, 1\ns_and_b32 s{sHd}, s{sWave}, 1\ns_lshl_b32 s{sT0}, s{sMi1}, 3")
        e(f"s_add_u32 s{sLead}, s{sMi1}, s{sHj}\ns_and_b32 s{sLead}, s{sLead}, 15" if l1 else
          f"s_add_u32 s{sLead}, s{sMi1}, s{sHj}\ns_and_b32 s{sLead}, s{sLead}, {self.c.get('rm', 0)}\ns_lshl_b32 s{sLead}, s{sLead}, {self.c.get('rs', 3)}")
        e(f"s_lshl_b32 s{sMA}, s{sWave}, 12\ns_mul_i32 s{sMW}, s{sWave}, 6144\ns_add_u32 s{sPW}, s{sMW}, {PW}")
        e(f"s_and_b32 s43, s{sMi1}, 7\ns_cmp_lg_u32 s43, 0\ns_cselect_b32 s43, 1, 0\ns_sub_u32 s{sHt}, s{sT0}, s43")
        e(f"v_lshrrev_b32 v2, 3, v{vL}\nv_bfe_u32 v3, v{vL}, 1, 2\nv_lshrrev_b32 v4, 4, v{vL}\nv_xor_b32 v3, v3, v4\nv_and_b32 v5, 1, v{vL}")
        if l1:
            e(f"v_lshrrev_b32 v6, 5, v{vL}\nv_lshl_add_u32 v6, v6, 2, v2")
            e(f"s_lshl_b32 s43, s{sHalf}, 5\ns_lshl_b32 s44, s{sHd}, 2\ns_add_u32 s43, s43, s44")
        else:
            e(f"v_mov_b32 v6, v2\ns_lshl_b32 s43, s{sWave}, 4")
        e(f"v_mul_u32_u24 v6, 6144, v6\nv_lshl_add_u32 v6, v3, 5, v6\nv_lshl_add_u32 v{vOW}, v5, 4, v6\nv_add_u32 v{vOW+1}, {(16 if l1 else 8)*6144-1024}, v{vOW}")
        e(f"s_mul_i32 s43, s43, 6144\ns_lshl_b32 s{sWb}, s{sHj}, 7\ns_add_u32 s{sWb}, s{sWb}, s43")
        e(f"v_and_b32 v3, 7, v{vL}\ns_lshl_b32 s43, s{sWave}, 1\ns_add_u32 s43, s43, s{sT0}")
        if l1:
            for q in range(4):
                e(f"v_add_u32 v5, {4*(q&1)}, v4\nv_xor_b32 v5, v5, v3\nv_lshlrev_b32 v5, 4, v5\nv_lshl_add_u32 v5, v2, 12, v5\nv_add_u32 v{vOA+q}, {q*(32768-1024)}, v5")
            e(f"v_and_b32 v5, 6, v2\nv_xor_b32 v5, v5, v3\nv_lshlrev_b32 v5, 4, v5\nv_lshl_add_u32 v5, v2, 12, v5\nv_add_u32 v{vOH}, 32768, v5")
            e(f"s_lshr_b32 s44, s{sMi1}, 3\ns_lshl_b32 s44, s44, 11\ns_and_b32 s43, s43, 63\ns_lshl_b32 s43, s43, 16\ns_add_u32 s{sAb}, s43, s44")
            e(f"s_and_b32 s43, s{sHt}, 63\ns_lshl_b32 s43, s43, 16\ns_add_u32 s{sHb}, s43, s44\ns_movk_i32 s{sAi}, 128")
        else:
            e(f"v_lshlrev_b32 v{vOA}, 4, v{vL}\nv_mov_b32 v{vOA+1}, v{vOA}\nv_add_u32 v{vOA+2}, {32768-2048}, v{vOA}\nv_add_u32 v{vOA+3}, {32768-2048}, v{vOA}")
            e(f"v_lshlrev_b32 v5, 8, v2\nv_lshl_add_u32 v5, v3, 4, v5\nv_add_u32 v{vOH}, 128, v5")
            e(f"s_lshl_b32 s43, s43, 15\ns_mov_b32 s44, {XA + self.g.lp('X')}\ns_add_u32 s{sAb}, s43, s44\ns_lshl_b32 s43, s{sHt}, 15\ns_add_u32 s{sHb}, s43, s44\ns_movk_i32 s{sAi}, 2048")
    def setup_reads(self, l1):
        e = self.g.e
        e(f"v_and_b32 v2, 15, v{vL}\nv_lshrrev_b32 v3, 4, v{vL}\nv_and_b32 v4, 7, v{vL}")
        if l1:
            e(f"v_lshrrev_b32 v5, 1, v2\nv_xor_b32 v5, v5, v3\nv_lshlrev_b32 v5, 4, v5\nv_lshl_add_u32 v6, v2, 7, v5\nv_xor_b32 v7, 64, v6")
            e(f"v_and_b32 v5, 6, v4\nv_xor_b32 v5, v5, v3\nv_lshlrev_b32 v5, 4, v5\nv_lshl_add_u32 v8, v4, 7, v5\nv_xor_b32 v9, 64, v8")
        else:
            e(f"v_lshlrev_b32 v6, 4, v{vL}\nv_add_u32 v7, 1024, v6\nv_lshlrev_b32 v5, 7, v3\nv_lshl_add_u32 v8, v4, 4, v5\nv_add_u32 v9, 512, v8")
        e(f"s_lshl_b32 s43, s{sHalf}, 13\ns_add_u32 s43, s43, {A_RING}\nv_add_u32 v{vT}, s43, v6\nv_add_u32 v{vT+1}, s43, v7")
        e(f"v_add_u32 v{vH}, {HALO}, v8\nv_add_u32 v{vH+1}, {HALO}, v9")
        e(f"s_lshl_b32 s43, s{sMi2}, 3\ns_lshl_b32 s44, s{sWave}, 1\ns_add_u32 s43, s43, s44")
        if l1:
            e(f"v_lshrrev_b32 v5, 1, v3\nv_lshrrev_b32 v{vRo}, 1, v2\nv_xor_b32 v5, v5, v{vRo}\nv_lshlrev_b32 v5, 4, v5\nv_lshl_add_u32 v{vRo}, v2, 7, v5\nv_and_b32 v5, 1, v3\nv_lshl_add_u32 v{vRo}, v5, 3, v{vRo}")
            e(f"s_lshr_b32 s44, s43, 6\ns_lshl_b32 s44, s44, 11\ns_and_b32 s43, s43, 63\ns_lshl_b32 s43, s43, 16\ns_add_u32 s43, s43, s44\ns_lshl_b32 s44, s{sNj2}, 7\ns_add_u32 s{sRs}, s43, s44")
        else:
            e(f"v_mov_b32 v{vRo}, v6\ns_lshl_b32 s43, s43, 15\ns_lshl_b32 s44, s{sNj2}, 11\ns_add_u32 s43, s43, s44\ns_add_u32 s{sRs}, s43, {XA + self.g.lp('X')}")
        e(f"v_lshrrev_b32 v2, 2, v{vL}\nv_bfe_u32 v3, v{vL}, 3, 2\nv_and_b32 v4, 3, v{vL}\nv_lshlrev_b32 v4, 3, v4\nv_lshl_add_u32 v4, v2, 7, v4")
        e(f"s_lshl_b32 s43, s{sHd}, 1\ns_or_b32 s43, s43, s{sHalf}\nv_xor_b32 v5, s43, v3\nv_lshl_add_u32 v{vW}, v5, 5, v4\nv_xor_b32 v5, 1, v5\nv_lshl_add_u32 v{vW+1}, v5, 5, v4")
        e(f"v_add_u32 v{vW+2}, {2*24576}, v{vW}\nv_add_u32 v{vW+3}, {2*24576}, v{vW+1}")
    def zero_acc(self):
        for r in range(104): self.g.e(f"v_mov_b32 v{r}, 0")
    def sig_static(self, s): return [f"s_add_u32 s44, s{sLead}, {s}", "s_and_b32 s44, s44, 15"]
    def offA(self): return [f"s_mul_i32 s45, s44, s{sAi}", f"s_add_u32 s{sA}, s45, s{sAb}"]
    def offW(self): return [f"s_mul_i32 s45, s44, {64*6144}", f"s_add_u32 s{sW}, s45, s{sWb}", f"s_add_u32 s{sW2}, s{sW}, 4096"]
    def a_ops(self, s):
        e = self.g.e
        return [(f"s_add_u32 m0, s{sMA}, {A_RING + (s % 3)*16384}" if q == 0 else None,
                 lambda q=q: e.vm(f"buffer_load_dwordx4 v{vOA+q}, {R(sAs)}, s{sA} offen offset:{1024*q} sc1 {self.ntA} lds", ('S', s))) for q in range(4)]
    def w_ops(self, s):
        e = self.g.e
        return [(f"s_add_u32 m0, s{sMW}, {W_RING + (s % 3)*24576 + q*1024}" if q in (0, 4) else None,
                 lambda q=q: e.vm(f"buffer_load_dwordx4 v{vOW + (q&1)}, {R(sWq)}, s{sW if q < 4 else sW2} offen offset:{1024*(q&3)} {self.ntW} lds", ('S', s))) for q in range(6)]
    def run(self, pre, ops):
        e = self.g.e
        for x in pre: e(x)
        for m, f in ops:
            if m: e(m + "\ns_nop 0")
            f()
    def prefetch_w(self, a=0, n=3):
        for s in range(a, n): self.run(self.sig_static(s) + self.offW(), self.w_ops(s))
    def halo(self, i):
        e = self.g.e
        e(f"s_add_u32 s44, s{sLead}, s{sWave}\ns_add_u32 s44, s44, {4*i}\ns_and_b32 s44, s44, 15\ns_mul_i32 s44, s44, s{sAi}")
        e(f"s_lshl_b32 s45, s{sWave}, 10\ns_add_u32 m0, s45, {HALO + i*4096}\ns_add_u32 s44, s44, s{sHb}")
        e.vm(f"buffer_load_dwordx4 v{vOH}, {R(sAs)}, s44 offen sc1 lds", ('H', i))
    def first_a(self):
        self.halo(0); self.run(self.sig_static(0) + self.offA(), self.a_ops(0))
    def prep_and_start(self, kernargs, more, rest):
        g = self.g; e = g.e
        self.setup(True)
        kernargs()
        nt = self.c.get('nt0', 0); self.ntA = 'nt' if nt & 1 else ''; self.ntW = 'nt' if nt & 2 else ''
        self.run(self.sig_static(0) + self.offA(), self.a_ops(0)); self.prefetch_w(0, 1); self.halo(0)
        self.ntA = self.ntW = ''
        more(); rest()
        e(f"s_and_b32 s43, s{sWave}, 1\ns_mul_i32 s43, s43, {LP}\ns_lshl_b32 s44, s2, 7\ns_add_u32 s43, s43, s44\ns_add_u32 s43, s43, {FL}")
        e.vm(f"buffer_store_dword v{vZ}, v{vZ}, {R(sWS)}, s43 offen sc1")
        self.setup_reads(True); self.mask_table()
        if not self.c.get('peel', 1): self.zero_acc()
        self.side.setup()
        e(f"s_lshl_b32 s43, s{sHd}, 12\nv_add_u32 v132, s43, v{vT}\nv_add_u32 v133, s43, v{vT+1}")
        e(f"v_and_b32 v128, 15, v{vL}\nv_lshrrev_b32 v129, 4, v{vL}\nv_cmp_eq_u32 vcc, 0, v128\nv_lshlrev_b32 v129, 4, v129\nv_mov_b32 v130, 0x40000000\nv_cndmask_b32 v136, v130, v129, vcc")
        for r in range(4): e(f"v_mov_b32 v{156+r}, 0x3f803f80")
        e(f"s_lshl_b32 s43, s{sWave}, 1\ns_add_u32 s43, s43, s{sT0}\ns_lshl_b32 s48, s43, 11\ns_lshl_b32 s43, s{sLead}, 7\ns_add_u32 s48, s48, s43\ns_add_u32 s48, s48, {STA}")
        e(f"s_lshl_b32 s43, s{sHj}, 2\ns_lshl_b32 s44, s{sHd}, 1\ns_add_u32 s43, s43, s44\ns_add_u32 s43, s43, s{sHalf}\ns_lshl_b32 s43, s43, 6\ns_mul_i32 s49, s{sLead}, {3072*4}\ns_add_u32 s49, s49, s43\ns_add_u32 s49, s49, {CSQ}")
        g.stamp()
        def xreads():
            g.stamp()
            for tt in range(2):
                for p in range(2): e.ds(f"ds_read_b128 {vr(140 + (tt*2+p)*4, 4)}, v{132+p} offset:{2048*tt}", 'PX')
        def prep():
            e.wait(ds='all')
            for kk in range(2):
                for m in range(3): e(f"{MF} {vr(160+4*m,4)}, {ar(fW(0,kk,2*m),4)}, v[156:159], {vr(160+4*m,4) if kk else 0}")
            stats_epilogue(e, lambda tt, p: 140 + (tt*2+p)*4, 2, 2, vL, 192, sWS, 48, aux='sc1', sm0=[80, 82, 92, 46])
            for m in range(3): e.vm(f"buffer_store_dwordx4 {vr(160+4*m,4)}, v136, {R(sWS)}, s49 offen sc1"); e("s_add_u32 s49, s49, 4096")
        if not self.c.get('peel', 1): return self.enter(True, xreads, prep)
        stats_pre(e, vL, 192, 78)
        self.run(self.sig_static(1) + self.offA(), self.a_ops(1))
        e.wait(vm=[('S', 0), ('H', 0)]); e("s_barrier")
        g.stamp()
        for f in self.reads(0): f()
        for tt in range(2):
            for p in range(2): e.ds(f"ds_read_b128 {vr(140 + (tt*2+p)*4, 4)}, v{132+p} offset:{2048*tt}", 'PX')
        self.prefetch_w(1, 2)
        g.stamp()
        spine = [lambda x=x: self.mfma(0, *x, zero=True) for x in self.order()]
        r = Rec(e); Px = lambda tt, p: 140 + (tt*2+p)*4
        for kk in range(2):
            for m in range(3): r(f"{MF} {vr(160+4*m,4)}, {ar(fW(0,kk,2*m),4)}, v[156:159], {vr(160+4*m,4) if kk else 0}")
        stats_mfma(r, Px, 0, 192); stats_mfma(r, Px, 1, 192)
        spine[30:30] = r.ops; N = len(spine); S = Slots(N); B = self.c.get('B0', 16)
        S.sc[B].append(lambda: (e.wait(vm=('S', 1), ds='all'), e("s_barrier")))
        for k, f in enumerate(self.reads(1)): S.ve[B + k].append(f)
        r = Rec(e); real = self.g.e; self.g.e = r
        self.prefetch_w(2, 3); self.run(self.sig_static(2) + self.offA(), self.a_ops(2))
        for h in range(1, 4): self.halo(h)
        n1 = len(r.ops)
        self.run(self.sig_static(3) + self.offA(), self.a_ops(3)); self.prefetch_w(3, 4)
        self.g.e = real
        nv = sum(not getattr(f, 'sc', False) for f in r.ops); k = 0; pos = 0
        for i, f in enumerate(r.ops):
            if getattr(f, 'sc', False): S.ve[pos].append(f)
            else:
                pos = 1 + (k*(N - 3))//nv; k += 1; assert i < n1 or pos > B
                S.ve[pos].append(f)
        r = Rec(e); stats_post(r, 192, 78, 48, None); r.ops.pop(0)
        for m in range(3): r.vm(f"buffer_store_dwordx4 {vr(160+4*m,4)}, v136, {R(sWS)}, s49 offen sc1"); r("s_add_u32 s49, s49, 4096")
        S.pour(r.ops, 51, N, cap=3)
        for k, f in enumerate(spine): f(); S.emit(k)
        for x in self.sig_static(4) + self.offA(): e(x)
        e(f"s_mov_b32 s{sSt}, 5\ns_mov_b32 s{sCnt}, 2")
        self.side.hook(sSt, 9)
        e("s_branch Lp1_u1")
    def pre(self):
        e = self.g.e
        e(f"s_mov_b32 s{sAs}, s{sWS}\ns_mov_b32 s{sAs+1}, s{sWS+1}\ns_mov_b32 s{sAs+2}, {hex(WS_BYTES)}")
        self.setup(False); self.prefetch_w(0, self.c.get('wpre', 0)); self.setup_reads(False); self.side.disable()
    def window(self):
        e = self.g.e
        self.prefetch_w(self.c.get('wpre', 0), 3); self.zero_acc()
        e(f"s_mul_i32 s77, s{sMi1}, {128*self.g.SH}\ns_add_u32 s77, s77, {FL + H4*128 - 128*self.g.SH}\ns_and_b32 s43, s{sMi1}, 7\ns_cmp_eq_u32 s43, 0\ns_cselect_b32 s43, {128*self.g.SH}, 0")
        e(f"v_lshlrev_b32 v249, 7, v{vL}\nv_or_b32 v249, s43, v249")
    def start_l2(self):
        e = self.g.e
        self.g.poll(77, 16//self.g.SH, voff=249, nl=2*self.g.SH)
        self.run(self.sig_static(0) + self.offA(), self.a_ops(0)); self.halo(0)
        self.run(self.sig_static(1) + self.offA(), self.a_ops(1))
        rd = self.reads(0); wr = rd[:4] + rd[12:16] + rd[18:]
        for f in wr: f()
        e.wait(vm=[('S', 0), ('H', 0)]); e("s_barrier")
        for f in rd[4:12] + rd[16:18]: f()
        for h in range(1, 4): self.halo(h)
        self.run(self.sig_static(2) + self.offA(), self.a_ops(2))
        e("s_waitcnt lgkmcnt(0)")
        for t in [('W', 0, 0)]*4 + [('T', 0, 1 + k//2) for k in range(8)] + [('W', 0, 1)]*4 + [('T', 0, 0)]*2 + [('W', 0, 2 + k//4) for k in range(16)]: e.dsq.append(t)
    def enter(self, l1, hook=None, hook2=None):
        e = self.g.e; o = self.c.get('ord', 1) if l1 else 0
        if l1 and o == 0: self.prefetch_w(1, 2)
        self.run(self.sig_static(1) + self.offA(), self.a_ops(1))
        e.wait(vm=[('S', 0), ('H', 0)]); e("s_barrier")
        if hook: hook()
        if o == 2: self.prefetch_w(1, 2)
        for f in self.reads(0): f()
        if o == 1: self.prefetch_w(1, 2)
        if o: hook2()
        for h in range(1, 4): self.halo(h)
        if l1: self.prefetch_w(2, 3)
        self.run(self.sig_static(2) + self.offA(), self.a_ops(2))
        if l1 and not o: hook2()
    def reads(self, s):
        e = self.g.e
        sl = s % 3; b = s & 1
        def rt(t, kk):
            def f():
                if t == 0:
                    e.ds(f"ds_read_b128 {ar(fT(b,kk,0),4)}, v{vH+kk} offset:{((s-1) % 6 + 1)*1024 if s else 0}", ('T', s, 0))
                    if s in (6, 12): e(f"v_add_u32 v{vH+kk}, 6144, v{vH+kk}")
                else: e.ds(f"ds_read_b128 {ar(fT(b,kk,t),4)}, v{vT+kk} offset:{sl*16384 + (t-1)*2048}", ('T', s, t))
            return f
        def rw(n, kk, j):
            return lambda: e.ds(f"ds_read_b64_tr_b16 {ar(fW(b,kk,n)+2*j,2)}, v{vW + (n & 1) + (2 if sl == 2 else 0)} offset:{(sl & 1)*24576 + (2*kk+j)*6144 + (n>>1)*2048}", ('W', s, n))
        w = lambda n: [rw(n, kk, j) for kk in range(2) for j in range(2)]
        return w(0) + [rt(t, kk) for t in range(1, 5) for kk in range(2)] + w(1) + [rt(0, 0), rt(0, 1)] + w(2) + w(3) + w(4) + w(5)
    def order(self):
        seq = []; kk = 0
        for n in range(6):
            ts = [0, 1, 2, 3, 4] if n in (2, 4) else [1, 2, 3, 4]
            if n & 1: ts = ts[::-1]
            for t in ts: seq += [(n, t, kk, True), (n, t, 1-kk, False)]; kk = 1 - kk
        return seq
    def mfma(self, s, n, t, kk, first, zero=False):
        e = self.g.e; b = s & 1
        e.wait(ds=[('W', s, n), ('T', s, t)])
        a = (Q if n < 2 else Kc if n < 4 else V)(n & 1, t)
        x, y = ar(fW(b, kk, n), 4), ar(fT(b, kk, t), 4)
        if n >= 4: x, y = y, x
        e(f"{MF} {vr(a,4)}, {x}, {y}, {0 if zero and first else vr(a,4)}")
    def main(self, p2):
        g = self.g; e = g.e; c = self.c
        BOFF = c.get('BOFF', 10)
        e(f"s_mov_b32 s{sSt}, 4")
        for x in self.sig_static(3) + self.offA(): e(x)
        reads = self.reads
        g.stamp()
        nxt = dict(enumerate(p2.prefetch_ops()))
        n_epi = c.get('pf_epi', 10); assert n_epi + c.get('pf15', 8) <= 22 and not c.get('pf14')
        S_ = lambda x: (lambda: e(x))
        for s in range(16):
            if s % 6 == 0: e.mark(f"p1b{s//6}")
            S = Slots(NSL)
            def bar(s=s):
                e.wait(vm=('S', s+1) if s < 15 else None, ds='all'); e("s_barrier")
            S.sc[BOFF].append(bar)
            def clear(pos):
                if clr and getattr(clr[0], 'sc', False): S.sc[pos].append(clr.pop(0))
                if clr: S.ve[pos].append(clr.pop(0))
            def pfo(pos, j):
                op = nxt.pop(j)
                for z in range(2): S.sc[pos - 2 + z].append(op[z])
                S.ve[pos].insert(0, op[2])
            if s < 15:
                for k, f in enumerate(reads(s+1)): S.ve[BOFF + k].append(f)
            if s + 3 < 16:
                for k, x in enumerate(self.offW()): S.sc[k].append(S_(x))
                if s < 12:
                    for k, x in enumerate(["s_add_u32 s44, s44, 1", "s_and_b32 s44, s44, 15", f"s_add_u32 s{sSt}, s{sSt}, 1"] + self.offA()): S.sc[BOFF + 20 + k].append(S_(x))
                for k, (m, f) in enumerate(self.a_ops(s+3) + self.w_ops(s+3)):
                    pos = BOFF + 2 + 4*k
                    if m: S.sc[pos-1].append(S_(m))
                    S.ve[pos].append(f)
            if s == 12:
                ckl = f"buffer_load_dword v{vCk}, v{tmp}, {R(sDbg)}, 0 offen sc1"
                r = Rec(e); r(f"v_and_b32 v{tmp}, 1, v{vL}\nv_lshlrev_b32 v{tmp}, 7, v{tmp}"); S.pour(r.ops, 0, 2)
                S.ve[2].append(lambda: e.vm(ckl, 'CK'))
                r(f"""s_lshl_b32 s43, s{sHalf}, 2
                s_add_u32 s{sOwn}, s{sT0}, s43
                s_add_u32 s45, s{sLo}, {STA}
                s_lshl_b32 s44, s{sHt}, 11
                s_add_u32 s77, s44, s45
                s_lshl_b32 s44, s{sWave}, 1
                s_add_u32 s44, s44, s{sT0}
                s_lshl_b32 s44, s44, 11
                s_add_u32 s78, s44, s45
                s_lshl_b32 s43, s{sHj}, 1
                s_add_u32 s{sHead}, s43, s{sHd}
                s_lshl_b32 s43, s{sHead}, 7
                s_add_u32 s46, s43, {CSQ}
                s_lshl_b32 s43, s{sHalf}, 6""")
                S.pour(r.ops, 3, 30, cap=0)
                r(f"""v_lshlrev_b32 v{vB+1}, 3, v{vL}
                v_lshlrev_b32 v{vB}, 4, v{vL}
                v_xor_b32 v{vOH}, s43, v{vB}
                v_add_u32 v{vOH}, s{sPW}, v{vOH}
                v_bfe_u32 v{vB+2}, v{vL}, 3, 2
                v_lshrrev_b32 v{vB+3}, 5, v{vL}
                v_mad_u32_u24 v{vB+2}, v{vB+3}, 3, v{vB+2}
                v_and_b32 v{vB+3}, 7, v{vL}
                v_lshlrev_b32 v{vB+3}, 4, v{vB+3}
                v_lshl_add_u32 v{vB+2}, v{vB+2}, 12, v{vB+3}""")
                S.pour(r.ops, 30, 46)
                S.sc[47].append(lambda: g.check(vCk, ckl, 128, 'CK'))
            if s == 13:
                for p in range(4):
                    S.sc[6*p].append(lambda p=p: e(f"s_cmp_lg_u32 s{sLay}, 0\ns_cbranch_scc1 Lp1_csl{p}\n" + "".join(
                        f"buffer_load_dwordx4 {vr(vMuV+8*p+4*z,4)}, v{vB+2}, {R(sWS)}, s46 offen sc1\ns_add_u32 s46, s46, {2*3072*4}\n" for z in range(2)) + f"Lp1_csl{p}:"))
                for t in range(3):
                    so, off = (78, t*2048) if t < 2 else (77, 0)
                    for k in range(4): S.ve[16*t + 4*k + 3].append(lambda t=t, k=k, so=so, off=off: e.vm(f"buffer_load_dwordx2 {vr(vST + t*8 + 2*k, 2)}, v{vB+1}, {R(sWS)}, s{so} offen offset:{off + 512*k} sc1", ('ST', t)))
                r = Rec(e)
                for x in p2.prefetch_setup(): r(x.replace("\n", "\t"))
                S.pour(r.ops, 1, NSL)
                S.pour(self.addr_ops(), 24, NSL)
            if s == 14:
                r = Rec(e)
                if not g.q4: self.p4.clear_mailbox(r, vB, tmp+6, f"s{sLo}")
                clr = r.ops[9:]; S.pour(r.ops[:9], 0, 8)
                for pos in (8, 12, 16, 20, 28, 36, 44): clear(pos)
                S.sc[23].append(S_(f"s_add_u32 m0, s{sMA}, {RES}"))
                for q in range(4): S.ve[24 + 8*q].append(lambda q=q: e.vm(f"buffer_load_dwordx4 v{vOA+q}, {R(sAs)}, s{sRs} offen offset:{1024*q} sc1 lds", 'R'))
                for k in range(c.get('pf14', 0)): pfo(28 + 8*k if k < 3 else 4, 6 + k)
                m1 = self.stat_ops(); S.pour(m1, 6, NSL, partial=True)
            if s == 15:
                for k in range(c.get('pf15', 8)): pfo(3 + (NSL//c.get('pf15', 8))*k, 10 + k if k < 8 else min(nxt))
                for pos in (0, 6, 12, 18, 24): clear(pos)
                assert not clr
                S.pour(m1, 0, BOFF - 2)
                m2 = self.table_ops(); S.pour(m2, BOFF, NSL, partial=True)
            if s in (1, 7): e("Lp1_u1:")
            for k, x in enumerate(self.order()): self.mfma(s, *x); S.emit(k)
            if s < 12: self.side.hook(sSt, s % 6)
            if c.get('fine') and s in (2, 5, 8, 11, 13): g.stamp()
        e.fold([f"p1b{k}" for k in range(3)], "Lp1_loop", f"s{sCnt}")
        g.stamp()
        if g.cfg.get('rep'): print("p1 leftover", len(m2))
        e('Lmk_p1epi:')
        for f in m2: f()
        self.epilogue(p2, [nxt[j] for j in sorted(nxt)], n_epi)
    def mask_table(self):
        e = self.g.e; t = 232
        e(f"v_and_b32 v{t+3}, 15, v{vL}\nv_lshrrev_b32 v{t+4}, 4, v{vL}\nv_lshlrev_b32 v{t+4}, 2, v{t+4}\nv_sub_u32 v{t+3}, v{t+3}, v{t+4}\nv_mov_b32 v{t+5}, {fhex(-1e30)}")
        for r in range(4):
            e(f"v_subrev_u32 v{t+6}, {r}, v{t+3}\nv_cmp_gt_u32 vcc, 8, v{t+6}\nv_add_u32 v{t+6}, 16, v{t+6}\nv_cmp_gt_u32 s[78:79], 8, v{t+6}")
            e(f"v_cndmask_b32 v{132+r}, v{t+5}, 0, vcc\ns_nop 0\nv_cndmask_b32 v{136+r}, v{t+5}, 0, s[78:79]")
        e(f"v_lshlrev_b32 v{t}, 4, v{vL}\nv_add_u32 v{t}, {MSK}, v{t}\nds_write_b128 v{t}, v[132:135]\nds_write_b128 v{t}, v[136:139] offset:1024")
    def addr_ops(self):
        r = Rec(self.g.e); g16, t4 = vOW, vOW + 1
        r(f"v_lshrrev_b32 v{tmp}, 4, v{vL}\nv_lshlrev_b32 v{g16}, 4, v{tmp}\nv_and_b32 v{t4}, 15, v{vL}\nv_lshlrev_b32 v{t4}, 2, v{t4}")
        r(f"s_lshl_b32 s43, s{sHalf}, 9\nv_add_u32 v{aG}, {TBL}, v{g16}\nv_add_u32 v{aL}, {TBL}, v{t4}\nv_add_u32 v{aG+1}, s43, v{aG}\nv_add_u32 v{aL+1}, s43, v{aL}")
        r(f"s_lshl_b32 s43, s{sWave}, 1\ns_add_u32 s43, s43, 1\nv_add_u32 v{tmp+1}, s43, v{tmp}\nv_cmp_gt_u32 vcc, 2, v{tmp}\nv_and_b32 v{tmp}, 1, v{tmp}\nv_mul_u32_u24 v{tmp}, 9, v{tmp}")
        r(f"v_cndmask_b32 v{tmp}, v{tmp}, v{tmp+1}, vcc\nv_lshl_add_u32 v{vB+2}, v{tmp}, 7, v{aL}")
        r(f"v_add_u32 v{g16}, s{sPW}, v{g16}\nv_add_u32 v{t4}, s{sPW}, v{t4}\nv_add_u32 v{vB+3}, {MSK}, v{vB}")
        return r.ops
    def stat_ops(self):
        r = Rec(self.g.e); g16, t4 = vOW, vOW + 1
        def css():
            e = self.g.e; e.wait(vm=('ST', 1))
            e(f"s_cmp_lg_u32 s{sLay}, 0\ns_cbranch_scc1 Lp1_css")
            for d in (16, 8, 4):
                for x in range(0, d, 2): e(f"v_pk_add_f32 {vr(vMuV+x,2)}, {vr(vMuV+x,2)}, {vr(vMuV+d+x,2)}")
            for x in range(4): e(f"v_mov_b32 v{vMuV+4+x}, v{vMuV+x}")
            for x in range(4): e(f"v_permlane32_swap_b32 v{vMuV+x}, v{vMuV+4+x}")
            for x in range(4): e(f"v_add_f32 v{vMuV+x}, v{vMuV+x}, v{vMuV+4+x}")
            e(f"ds_write_b128 v{vOH}, {vr(vMuV,4)} offset:1024\nLp1_css:")
        for t in range(3):
            p = vST + t*8
            if t == 1:
                r.call(css)
                for m in range(2):
                    for j in range(2): r.ds(f"ds_read_b128 {vr(vCS + m*8 + j*4, 4)}, v{g16} offset:{1024 + m*128 + 64*j}", 'CSR')
                r.ds(f"ds_read2_b32 {vr(vCS+16,2)}, v{vXa} offset0:64 offset1:80", 'CSR')
            else: r.wait(vm=('ST', t))
            if t == 0: r(f"v_add_u32 v{vXa}, 1024, v{t4}")
            if t == 1:
                r(f"s_xor_b32 s47, s{sWave}, 2\ns_mul_i32 s47, s47, 6144\ns_add_u32 s47, s47, {PW}\ns_add_u32 s49, s47, 3072\ns_add_u32 s79, s47, 2048")
                r(f"s_cmp_eq_u32 s{sHalf}, 0\ts_cselect_b32 s49, s{sPW}, s49\ts_cselect_b32 s79, s47, s79")
                r(f"v_add_u32 v{vXa}, s49, v{vB+1}\nv_add_u32 v{vXa+1}, s79, v{vB+1}\nv_add_u32 v{vB+1}, s{sPW}, v{vB+1}")
            r(f"v_add_f32 v{p}, v{p}, v{p+2}\nv_add_f32 v{p+1}, v{p+1}, v{p+3}\nv_add_f32 v{p+4}, v{p+4}, v{p+6}\nv_add_f32 v{p+5}, v{p+5}, v{p+7}")
            r(f"v_add_f32 v{p}, v{p}, v{p+4}\nv_add_f32 v{p+1}, v{p+1}, v{p+5}")
        A, B, C, X = vST, vST + 8, vST + 16, vST + 2
        r(f"s_mov_b32 s48, {fhex(1.0/D)}\nv_mov_b32 v{tmp}, {fhex(1e-5)}")
        r(f"v_permlane32_swap_b32 v{B}, v{X}\nv_permlane32_swap_b32 v{B+1}, v{X+1}\nv_permlane32_swap_b32 v{A}, v{C}\nv_permlane32_swap_b32 v{A+1}, v{C+1}")
        r(f"v_add_f32 v{B}, v{B}, v{X}\nv_add_f32 v{A}, v{A}, v{C}\nv_add_f32 v{B+1}, v{B+1}, v{X+1}\nv_add_f32 v{A+1}, v{A+1}, v{C+1}")
        r(f"v_permlane16_swap_b32 v{A}, v{B}\ns_nop 0\nv_permlane16_swap_b32 v{A+1}, v{B+1}\nv_add_f32 v{A}, v{A}, v{B}\nv_add_f32 v{A+1}, v{A+1}, v{B+1}")
        r(f"v_mul_f32 v{A}, {fhex(-1.0/D)}, v{A}\nv_fma_f32 v{A+1}, v{A+1}, s48, v{tmp}\nv_fma_f32 v{A+1}, -v{A}, v{A}, v{A+1}\nv_max_f32 v{A+1}, v{A+1}, v{tmp}\nv_rsq_f32 v{A+1}, v{A+1}\ns_nop 0")
        r.ds(f"ds_write2_b32 v{vB+2}, v{A}, v{A+1} offset0:0 offset1:16")
        return r.ops
    def table_ops(self):
        r = Rec(self.g.e)
        for t in (1, 2, 3, 4, 0): r.ds(f"ds_read2_b32 {vr(vP+2*t,2)}, v{aL + (t > 0)} offset0:{32*t} offset1:{32*t+16}", 'TP')
        r.ds(f"ds_read_b128 {vr(bC,4)}, v{vB+3}", 'MK'); r.ds(f"ds_read_b128 {vr(bP,4)}, v{vB+3} offset:1024", 'MK')
        for t in (0, 4, 1, 2, 3):
            r.ds(f"ds_read_b128 {vr(vMuV+4*t,4)}, v{aG + (t > 0)} offset:{t*128}", 'TB')
            r.ds(f"ds_read_b128 {vr(vRsV+4*t,4)}, v{aG + (t > 0)} offset:{t*128+64}", 'TB')
        r(f"s_and_b32 s43, s{sMi1}, 7\ns_or_b32 s43, s43, s{sHalf}\ts_cselect_b64 s[46:47], -1, 0\nv_mov_b32 v{tmp+5}, {fhex(-1e30)}")
        r.wait(ds='MK')
        for t in (4, 3, 2, 1):
            for j in range(2):
                for x in range(4): r(f"v_fmac_f32 v{Q(j,t)+x}, v{vCS+4*j+x}, v{vP+2*t}")
            for j in range(2):
                for h in range(2): r(f"v_cvt_pk_bf16_f32 v{Q(0,t)+2*j+h}, v{Q(j,t)+2*h}, v{Q(j,t)+2*h+1}")
        for x in range(4): r(f"v_cndmask_b32 v{bP0+x}, v{tmp+5}, v{bP+x}, s[46:47]\nv_mov_b32 v{ones+x}, 0x3f803f80\nv_mul_f32 v{vCq+x}, {fhex(LOG2E*(32 ** -0.5))}, v{vP+2*x+3}")
        return r.ops
    def epilogue(self, p2, nxt, n_epi):
        g = self.g; e = g.e
        left = [n_epi]
        def pf():
            if left[0] > 0 and nxt:
                left[0] -= 1
                for f in nxt.pop(0): f()
        qf = lambda t: Q(0, t); kf = lambda t: Kc(0, t) if t else kf0
        vp = lambda j, t: 140 + j*10 + 2*t
        cb = vCS + 16
        def fold_k(t):
            J = range(2 if t else 1)
            for j in J:
                for h in range(2): e(f"v_pk_fma_f32 {vr(Kc(j,t)+2*h,2)}, {vr(vCS+8+4*j+2*h,2)}, {vr(vP+2*t,2)}, {vr(Kc(j,t)+2*h,2)} op_sel:[0,0,0] op_sel_hi:[1,0,1]")
            for j in J:
                for h in range(2): e(f"v_pk_mul_f32 {vr(Kc(j,t)+2*h,2)}, {vr(Kc(j,t)+2*h,2)}, {vr(vP+2*t,2)} op_sel:[0,1] op_sel_hi:[1,1]")
            for j in J:
                for h in range(2): e(f"v_cvt_pk_bf16_f32 v{Kc(0,t)+2*j+h}, v{Kc(j,t)+2*h}, v{Kc(j,t)+2*h+1}")
        def fold_v(t):
            J = range(2 if t else 1)
            for j in J:
                for h in range(2): e(f"v_pk_fma_f32 {vr(V(j,t)+2*h,2)}, {vr(vMuV+4*t+2*h,2)}, {vr(cb,2)}, {vr(V(j,t)+2*h,2)} op_sel:[0,{j},0] op_sel_hi:[1,{j},1]")
            for j in J:
                for h in range(2): e(f"v_pk_mul_f32 {vr(V(j,t)+2*h,2)}, {vr(V(j,t)+2*h,2)}, {vr(vRsV+4*t+2*h,2)}")
            for j in J:
                for h in range(2): e(f"v_cvt_pk_bf16_f32 v{(vp(j,t) if t else V(0,0))+h}, v{V(j,t)+2*h}, v{V(j,t)+2*h+1}")
        e.wait(ds='all')
        fold_k(0); fold_k(4); fold_v(0); fold_v(4)
        e.ds(f"ds_write2st64_b64 v{vB+1}, {vr(Kc(0,0),2)}, {vr(V(0,0),2)} offset0:0 offset1:1", 'XW')
        for j in range(2): e.ds(f"ds_write2st64_b64 v{vB+1}, {vr(Kc(0,4)+2*j,2)}, {vr(vp(j,4),2)} offset0:{4+2*j} offset1:{5+2*j}", 'XW')
        pf(); fold_k(3); pf(); fold_k(2); pf(); fold_k(1)
        e.wait(ds='XW'); e("s_barrier")
        for j in range(2): e.ds(f"ds_read_b64 {vr(kf0+2*j,2)}, v{vXa+j}", 'XR')
        for j in range(2): e.ds(f"ds_read_b64 {vr(vp(j,0),2)}, v{vXa+j} offset:512", 'XR')
        Sp = lambda t: Q(1, t); Sc = lambda t: Kc(1, t)
        for t in (4, 3, 2, 1):
            e(f"{MF} {vr(Sc(t),4)}, {vr(kf(t),4)}, {vr(qf(t),4)}, {vr(bC,4)}")
            if t == 1: e.wait(ds='XR')
            e(f"{MF} {vr(Sp(t),4)}, {vr(kf(t-1),4)}, {vr(qf(t),4)}, {vr(bP0 if t == 1 else bP,4)}")
        pf()
        for t in (1, 2, 3): fold_v(t); pf()
        e(f"s_cmp_eq_u32 s{sHalf}, 0\ns_cbranch_scc1 Lp1_nsw")
        for x in range(10): e(f"v_swap_b32 v{vp(0,0)+x}, v{vp(1,0)+x}")
        e("Lp1_nsw:")
        mx = lambda t: tmp + t - 1
        for k in range(4):
            for t in range(1, 5):
                p, c_ = Sp(t), Sc(t)
                e([f"v_max3_f32 v{mx(t)}, v{p}, v{p+1}, v{p+2}", f"v_max3_f32 v{mx(t)}, v{mx(t)}, v{p+3}, v{c_}", f"v_max3_f32 v{mx(t)}, v{mx(t)}, v{c_+1}, v{c_+2}", f"v_max_f32 v{mx(t)}, v{mx(t)}, v{c_+3}"][k])
        xreduce_g(e, "v_max_f32", [mx(t) for t in range(1, 5)], list(range(tmp+4, tmp+8)))
        for h in range(2): e(f"v_pk_mul_f32 {vr(tmp+2*h,2)}, {vr(tmp+2*h,2)}, {vr(vCq+2*h,2)} neg_lo:[0,1] neg_hi:[0,1]")
        pfr = qf
        for t in range(1, 5):
            z = (t - 1) & 1; cq, mm = (vCq + t - 1) & ~1, mx(t) & ~1
            for b4 in (Sp(t), Sc(t)):
                for h in range(2): e(f"v_pk_fma_f32 {vr(b4+2*h,2)}, {vr(b4+2*h,2)}, {vr(cq,2)}, {vr(mm,2)} op_sel:[0,{z},{z}] op_sel_hi:[1,{z},{z}]")
            for b4 in (Sp(t), Sc(t)):
                for r in range(4): e(f"v_exp_f32 v{b4+r}, v{b4+r}")
            for q, b4 in enumerate((Sp(t), Sc(t))):
                for h in range(2): e(f"v_cvt_pk_bf16_f32 v{pfr(t)+2*q+h}, v{b4+2*h}, v{b4+2*h+1}")
            if t < 3: pf()
        while left[0] > 0 and nxt: pf()
        O = V; Dn = lambda t: Kc(0, t)
        sal = f"s_lshl_b32 s43, s{sOwn}, 15\ns_lshl_b32 s44, s{sHead}, 10\ns_add_u32 s43, s43, s44\ns_add_u32 s43, s43, {g.lo('O')}\ns_add_u32 s46, s43, {OB}".split("\n")
        sal += [f"s_add_u32 s{46+t}, s{46+t-1}, 32768" for t in range(1, 4)]
        sal += f"s_lshl_b32 s77, s{sMi1}, 1\ns_lshr_b32 s43, s{sHj}, 3\ns_add_u32 s77, s77, s43\ns_lshl_b32 s77, s77, 7\ns_add_u32 s77, s77, s{sLo}\ns_add_u32 s77, s77, {FL + H1*128}".split("\n")
        for t in range(1, 5): e(f"{MF} {vr(Dn(t),4)}, {vr(ones,4)}, {vr(pfr(t),4)}, 0\n{sal.pop(0)}\n{sal.pop(0)}")
        for t in range(1, 5):
            for j in range(2):
                e(f"{MF} {vr(O(j,t),4)}, {vr(vp(j,t-1),4)}, {vr(pfr(t),4)}, 0")
                if sal: e(sal.pop(0))
                if t > 2: e(f"v_rcp_f32 v{Dn(2*t+j-5)}, v{Dn(2*t+j-5)}")
        for t in range(1, 5):
            for j in range(2):
                for h in range(2): e(f"v_pk_mul_f32 {vr(O(j,t)+2*h,2)}, {vr(O(j,t)+2*h,2)}, {vr(Dn(t),2)} op_sel:[0,0] op_sel_hi:[1,0]")
            for j in range(2):
                for h in range(2): e(f"v_cvt_pk_bf16_f32 v{Sp(t)+2*j+h}, v{O(j,t)+2*h}, v{O(j,t)+2*h+1}")
            e.vm(f"buffer_store_dwordx4 {vr(Sp(t),4)}, v{vB}, {R(sWS)}, s{46+t-1} offen sc1", 'OUT')
        e('Lmk_p1end:')
        g.stamp()
        g.signal('OUT', 77, p2.pre)
        p2.window(nxt)
```

```python
from mg import *
from p1 import RES, vRo
sM0, sT, sX, sSt = 89, 57, 58, 60
vW, vOT, vR, vS = 40, 48, 52, 72
acc = lambda n, tt: (n*2 + tt)*4
aT = lambda j, tt: (j % 8)*8 + tt*4
aW = lambda u, kk, n: 112 + (u & 1)*32 + kk*16 + n*4
class P2:
    def __init__(self, g): self.g = g; self.c = g.cfg.get('p2', {}); self.LT = self.c.get('LT', 6)
    def prefetch_setup(self):
        return [f"s_lshl_b32 s92, s{sNj2}, 7", f"s_lshl_b32 s93, s{sWave}, 14", "s_add_u32 s92, s92, s93", f"s_lshl_b32 s{sM0}, s{sWave}, 10", f"v_add_u32 v186, s92, v{vOW2}"]
    def prefetch_ops(self):
        e = self.g.e
        return [[lambda j=j: e(f"s_add_u32 m0, s{sM0}, {j*4096}"), lambda j=j: e(f"s_mov_b32 s92, {j*65536}"),
                 lambda j=j: e.vm(f"buffer_load_dwordx4 v186, {R(sWo)}, s92 offen lds", ('W2', j))] for j in range(32)]
    def t_ops(self, j):
        r = Rec(self.g.e)
        if j < 32:
            if j and j % 4 == 0: r(f"s_add_u32 s{sT}, s{sT}, 4096")
            for tt in range(2): r.vm(f"buffer_load_dwordx4 {ar(aT(j, tt), 4)}, v{vOT+tt}, {R(sWS)}, s{sT} offen offset:{1024*(j & 3)} sc1", ('T2', j))
        return r.ops
    def pre(self):
        g = self.g; e = g.e
        e(f"s_lshl_b32 s44, s{sMi2}, 3\ns_lshl_b32 s43, s{sWave}, 1\ns_add_u32 s44, s44, s43\ns_lshl_b32 s45, s44, 15\ns_add_u32 s{sT}, s45, {g.lo('O')}\ns_add_u32 s{sT}, s{sT}, {OB}")
        e(f"s_lshl_b32 s43, s{sNj2}, 11\ns_add_u32 s45, s45, s43\ns_add_u32 s45, s45, {g.lo('X')}\ns_add_u32 s{sX}, s45, {XB}\ns_add_u32 s{sX+1}, s{sX}, 32768")
        e(f"s_lshl_b32 s44, s44, 11\ns_lshl_b32 s43, s{sNj2}, 7\ns_add_u32 s44, s44, s43\ns_add_u32 s44, s44, s{sLo}\ns_add_u32 s{sSt}, s44, {STB}")
        e(f"v_lshlrev_b32 v{vOT}, 4, v{vL}\nv_add_u32 v{vOT+1}, 32768, v{vOT}")
        e(f"s_cmp_eq_u32 s{sLay}, 0\ns_cselect_b32 s44, 32, 8\ns_cselect_b32 s45, 64, 0x400\ns_lshl_b32 s43, s{sWave}, 12\ns_add_u32 s43, s43, {RES}")
        e(f"v_xor_b32 v3, s44, v{vRo}\nv_xor_b32 v4, s45, v{vRo}\nv_xor_b32 v5, s45, v3\nv_add_u32 v2, s43, v{vRo}\nv_add_u32 v3, s43, v3\nv_add_u32 v4, s43, v4\nv_add_u32 v5, s43, v5")
        e.wait(vm='R')
        for tt in range(2):
            for q in range(4): e.ds(f"ds_read_b64 {vr(vR + tt*8 + 2*q, 2)}, v{2+q} offset:{2048*tt}", 'RR')
        e(f"v_lshrrev_b32 v2, 2, v{vL}\nv_bfe_u32 v3, v{vL}, 3, 2\nv_and_b32 v4, 3, v{vL}\nv_lshlrev_b32 v4, 3, v4\nv_lshl_add_u32 v4, v2, 7, v4")
        for t in range(4): e(f"v_xor_b32 v5, {t}, v3\nv_lshl_add_u32 v{vW+t}, v5, 5, v4")
        self.side.acc(); e.wait(ds='RR')
    def window(self, nxt):
        g = self.g; e = g.e
        for op in nxt:
            for f in op: f()
        for tt in range(2):
            for n in range(4):
                for h in range(2):
                    src = vR + (tt*2 + (n >> 1))*4 + (n & 1)*2 + h
                    e(f"v_lshlrev_b32 v{acc(n,tt)+2*h}, 16, v{src}\nv_and_b32 v{acc(n,tt)+2*h+1}, 0xffff0000, v{src}")
        stats_pre(e, vL, vS, 64)
        self.side.publish()
        e(f"s_lshl_b32 s77, s{sMi2}, 8\ns_add_u32 s77, s77, {FL + H1*128}\nv_lshlrev_b32 v249, 7, v{vL}\ns_add_u32 s77, s77, s{sLo}")
    def main(self, nx):
        g = self.g; e = g.e
        g.poll(77, 8, voff=249)
        for j in range(self.LT):
            for f in self.t_ops(j): f()
        self.side.final()
        def reads(u):
            r = Rec(e)
            for n in range(4 if u < 16 else 0):
                for kk in range(2):
                    for j in range(2): r.ds(f"ds_read_b64_tr_b16 {ar(aW(u, kk, n) + 2*j, 2)}, v{vW+n} offset:{((2*u+kk) % 8)*4096 + j*2048}", ('F2', u, n))
            return r.ops
        for f in reads(0): f()
        e(f"s_and_b32 s43, s{sNj2}, {g.SH-1}\ns_mul_i32 s77, s{sMi2}, {g.SH}\ns_add_u32 s77, s77, s43\ns_lshl_b32 s77, s77, 7\ns_add_u32 s77, s77, s{sLo}\ns_add_u32 s77, s77, {FL + H2*128}")
        g.stamp()
        Pk = lambda tt, p: vR + (tt*2 + p)*4
        def out(r, tt, p):
            for q in range(4):
                a = acc(2*p + (q >> 1), tt) + 2*(q & 1)
                r(f"v_cvt_pk_bf16_f32 v{Pk(tt,p)+q}, v{a}, v{a+1}")
            r.vm(f"buffer_store_dwordx4 {vr(Pk(tt,p),4)}, v{vOT}, {R(sWS)}, s{sX+tt} offen offset:{1024*p} sc1", 'OUT2')
        for u in range(16):
            if u % 4 == 0: e.mark(f"p2b{u//4}")
            S = Slots(16)
            for k, f in enumerate(reads(u+1)): S.ve[k].append(f)
            if u % 4 == 2:
                for n in range(4): S.ve[4*n+3].append(lambda n=n: e(f"v_add_u32 v{vW+n}, 32768, v{vW+n}"))
            k = 1
            for f in self.t_ops(2*u + self.LT) + self.t_ops(2*u + self.LT + 1):
                if getattr(f, 'sc', False): S.sc[k].append(f)
                else: S.ve[k].append(f); k += 4
            if u == 15:
                r = Rec(e); out(r, 1, 0); out(r, 0, 0); S.pour(r.ops, 11, 16)
                for k in (8, 9, 10): S.sc[k].append(lambda: e("s_nop 0"))
            seq = []; kk = 0
            for n in range(4):
                for tt in ((1, 0) if n & 1 else (0, 1)): seq += [(n, tt, kk), (n, tt, 1-kk)]; kk = 1 - kk
            for k, (n, tt, kk) in enumerate(seq):
                e.wait(vm=('T2', 2*u+1) if k == 0 else None, ds=('F2', u, n | 1))
                a = vr(acc(n, tt), 4)
                e(f"{MF} {a}, {ar(aW(u, kk, n), 4)}, {ar(aT(2*u+kk, tt), 4)}, {a}")
                S.emit(k)
        e.fold([f"p2b{k}" for k in range(4)], "Lp2_loop", f"s{sCnt}")
        g.stamp()
        stats_mfma(e, Pk, 0, vS); out(e, 1, 1); out(e, 0, 1); e("s_nop 0"); stats_mfma(e, Pk, 1, vS)
        stats_post(e, vS, 64, sSt, 'OUT2')
        g.stamp()
        g.signal('OUT2', 77, nx.pre)
        self.side.arrive()
        nx.window()
```

```python
from mg import *
sOdd, sW, sM0, sGrp, sTch, sPW, sT = 66, 67, 68, 69, 70, 71, 72
vW, vOT, vOW, vTch, vCa, vMu, tm = 224, 231, 232, 236, 237, 238, 242
vC1, vC2, vS2 = vMu, vOW, vTch
aT = lambda s, kk, tt: (192 if s >= 14 else 0) + (s & 1)*32 + kk*16 + tt*4
NWB = 4
aW = lambda L, kk: 64 + (L % NWB)*8 + kk*4
aDum, aC = 96, 104
acc = lambda n, tt: (n*4 + tt)*4
PW3 = 131072
class P3:
    def __init__(self, g): self.g = g; self.c = g.cfg.get('p3', {})
    def w_ops(self, st):
        e = self.g.e; ops = []
        for mat in range(2):
            for q in range(4):
                L = [f"s_add_u32 m0, s{sM0}, {(st & 1)*32768 + mat*16384}", "NOP"] if q == 0 else []
                L += [lambda q=q, mat=mat: e.vm(f"buffer_load_dwordx4 v{vOW+q}, {R((sWg, sWu)[mat])}, s{sW} offen offset:{1024*q} {self.g.cfg.get('waux', '')} lds", ('W3', st))]
                if q == 3 and mat == 1:
                    L += [f"s_add_u32 s{sW}, s{sW}, {64*2*F}"] + ([f"s_xor_b32 s{sM0}, s{sM0}, 0x10000"] if st & 1 else [])
                ops.append(L)
        return ops
    def st_ops(self):
        e = self.g.e; ops = []
        for m in range(2):
            for q in range(4):
                L = [f"s_add_u32 m0, s{sM0}, {32768 + m*16384}", "NOP"] if q == 0 else []
                ops.append(L + [lambda q=q, m=m: e.vm(f"buffer_load_dwordx4 v{vOT}, {R(sWS)}, s{44+m} offen offset:{1024*q} sc1 lds", 'ST3')])
        return ops
    def t_ops(self, st):
        e = self.g.e; ops = []
        for tt in range(4):
            for kk in range(2):
                L = [lambda tt=tt, kk=kk: e.vm(f"buffer_load_dwordx4 {ar(aT(st, kk, tt), 4)}, v{vOT}, {R(sWS)}, s{sT+tt} offen offset:{(st & 1)*2048 + kk*1024} sc1", ('T3', st, tt))]
                if kk == 1 and st & 1: L += [f"s_add_u32 s{sT+tt}, s{sT+tt}, 4096"]
                ops.append(L)
        return ops
    def run(self, ops):
        for op in ops:
            for x in op:
                if callable(x): x()
                else: self.g.e("s_nop 0" if x == "NOP" else x)
    def pre(self):
        g = self.g; e = g.e
        e(f"s_and_b32 s{sOdd}, s{sNj3}, 1")
        e(f"v_lshrrev_b32 v2, 4, v{vL}\nv_bfe_u32 v3, v{vL}, 1, 3\nv_and_b32 v4, 1, v{vL}\nv_lshlrev_b32 v4, 4, v4")
        e(f"v_mul_u32_u24 v5, {2*F}, v2\nv_add_u32 v5, v5, v4\ns_cmp_eq_u32 s{sOdd}, 0\ns_cselect_b32 s44, 7, 0\nv_mov_b32 v7, 0x40000000")
        for i in range(4):
            e(f"v_add_u32 v6, {4*(i&1)}, v2\nv_xor_b32 v6, v6, v3\nv_cmp_eq_u32 vcc, s44, v6\nv_lshl_add_u32 v6, v6, 5, v5\nv_add_u32 v6, {i*4*2*F - 1024*i}, v6")
            e(f"v_cndmask_b32 v{vOW+i}, v6, v7, vcc")
        e(f"s_mul_i32 s{sW}, s{sNj3}, 224\ns_and_b32 s{sW}, s{sW}, 0xffffffc0\ns_mul_i32 s43, s{sWave}, {16*2*F}\ns_add_u32 s{sW}, s{sW}, s43\ns_lshl_b32 s{sM0}, s{sWave}, 12")
        e(f"v_lshlrev_b32 v{vOT}, 4, v{vL}\n{'s_mov_b32 s43, 0x40000000' if self.c.get('nowd') else f's_lshl_b32 s43, s{sLay}, 30'}\nv_or_b32 v{vTch}, s43, v{vOT}\ns_lshl_b32 s43, s2, 2\ns_add_u32 s43, s43, s{sWave}\ns_mul_i32 s{sTch}, s43, 7168")
        e(f"s_lshl_b32 s{sGrp}, s{sMi3}, 2\ns_add_u32 s{sGrp}, s{sGrp}, s{sWave}\ns_lshl_b32 s{sT}, s{sGrp}, 17\ns_add_u32 s{sT}, s{sT}, {g.lo('X')}\ns_add_u32 s{sT}, s{sT}, {XB}")
        for tt in range(1, 4): e(f"s_add_u32 s{sT+tt}, s{sT+tt-1}, 32768")
        e(f"s_lshl_b32 s{sPW}, s{sWave}, 11\ns_add_u32 s{sPW}, s{sPW}, {PW3}")
        e(f"v_lshrrev_b32 v2, 2, v{vL}\nv_and_b32 v3, 7, v2\nv_and_b32 v4, 3, v{vL}\nv_lshlrev_b32 v5, 3, v4\nv_lshl_add_u32 v5, v2, 8, v5")
        e(f"s_lshl_b32 s43, s{sOdd}, 1\ns_cmp_eq_u32 s{sOdd}, 0\ns_cselect_b32 s45, 6, 1")
        for t in range(7):
            if t < 6: e(f"s_add_u32 s46, s43, {t}\nv_xor_b32 v6, s46, v3")
            else: e(f"v_xor_b32 v6, s45, v3")
            e(f"v_lshl_add_u32 v{vW+t}, v6, 5, v5")
        e(f"s_mul_i32 s46, s{sNj3}, 448\ns_add_u32 s46, s46, {CSG}\ns_add_u32 s47, s46, {2*F*4}\ns_lshr_b32 s48, s{sNj3}, 3\ns_lshl_b32 s48, s48, 7\ns_add_u32 s48, s48, {FL + HC*128}")
        e(f"s_lshl_b32 s44, s{sGrp}, 13\ns_add_u32 s44, s44, s{sLo}\ns_add_u32 s44, s44, {STB}\ns_add_u32 s45, s44, 4096")
        if g.q4:
            e(f"s_lshl_b32 s43, s2, 2\ns_add_u32 s43, s43, s{sWave}\ns_mul_i32 s65, s43, 12288\ns_add_u32 s65, s65, s{sLo}\ns_add_u32 s65, s65, {PB}")
            for x in range(4): e(f"v_accvgpr_write_b32 a{100+x}, -1")
        for st in range(self.c.get('wpre', 0)): self.run(self.w_ops(st))
    def window(self):
        g = self.g; e = g.e
        if self.c.get('late', 0): self.run(self.w_ops(0)); g.not0(lambda: self.run(self.w_ops(1)))
        else:
            for st in range(2): self.run(self.w_ops(st))
        e(f"s_mul_i32 s77, s{sMi3}, {256*g.SH}\ns_add_u32 s77, s77, s{sLo}\ns_add_u32 s77, s77, {FL + H2*128}\nv_lshlrev_b32 v249, 7, v{vL}")
    def stats_ops(self, fill):
        e = self.g.e; r = Rec(e); t = tm + 4; P = lambda tt: vMu + 2*tt
        r(f"s_add_u32 s43, s{sM0}, 32768\nv_lshlrev_b32 v250, 3, v{vL}\nv_add_u32 v250, s43, v250")
        pour(fill, r.ops, 5, 12)
        rd = lambda dst, tt, k: (lambda: e.ds(f"ds_read_b64 {vr(dst,2)}, v250 offset:{(tt>>1)*16384 + (tt&1)*2048 + k*512}", ('SR', tt, k)))
        fill[13].append(lambda: e.wait(vm='ST3'))
        for tt in range(4): fill[13 + tt].append(rd(P(tt), tt, 0))
        for i in range(12):
            tt, k = i & 3, 1 + (i >> 2); d = t + 2*(i & 1)
            fill[17 + 3*i].append(rd(d, tt, k))
            def add(tt=tt, k=k, d=d):
                e.wait(ds=('SR', tt, k)); e(f"v_add_f32 v{P(tt)}, v{P(tt)}, v{d}\nv_add_f32 v{P(tt)+1}, v{P(tt)+1}, v{d+1}")
            fill[22 + 3*i].append(add)
        A, B, C, D_ = P(0), P(1), P(2), P(3)
        r(f"s_mov_b32 s43, {fhex(1.0/D)}\nv_mov_b32 v250, {fhex(1e-5)}\nv_lshlrev_b32 v{t}, 2, v{vL}\nv_add_u32 v{t}, s{sPW}, v{t}")
        r(f"v_permlane32_swap_b32 v{A}, v{C}\nv_permlane32_swap_b32 v{A+1}, v{C+1}\nv_permlane32_swap_b32 v{B}, v{D_}\nv_permlane32_swap_b32 v{B+1}, v{D_+1}")
        r(f"v_add_f32 v{A}, v{A}, v{C}\nv_add_f32 v{B}, v{B}, v{D_}\nv_add_f32 v{A+1}, v{A+1}, v{C+1}\nv_add_f32 v{B+1}, v{B+1}, v{D_+1}\nv_and_b32 v{t+1}, 0xffffff3f, v{t}")
        r(f"v_permlane16_swap_b32 v{A}, v{B}\nv_permlane16_swap_b32 v{A+1}, v{B+1}\nv_add_f32 v{A}, v{A}, v{B}\nv_add_f32 v{A+1}, v{A+1}, v{B+1}\nv_add_u32 v{t+1}, 1024, v{t+1}")
        r(f"v_mul_f32 v{A}, {fhex(-1.0/D)}, v{A}\nv_fma_f32 v{A+1}, v{A+1}, s43, v250\nv_fma_f32 v{A+1}, -v{A}, v{A}, v{A+1}\nv_max_f32 v{A+1}, v{A+1}, v250\nv_rsq_f32 v{B}, v{A+1}")
        r.ds(f"ds_write_b32 v{t}, v{A} offset:1024"); r.ds(f"ds_write_b32 v{t}, v{A+1} offset:1536")
        r(f"v_mul_f32 v{B}, {fhex(-LOG2E)}, v{B}"); r.ds(f"ds_write_b32 v{t}, v{B} offset:1280")
        for h in range(2): r.ds(f"ds_read2_b32 {vr(vMu+2*h,2)}, v{t+1} offset0:{32*h} offset1:{32*h+16}")
        ckl = f"buffer_load_dword v{vCa}, v{vZ}, {R(sWS)}, s48 offen sc1"
        fill[47].append(lambda: e.vm(ckl, 'CK3'))
        r(f"v_lshrrev_b32 v250, 3, v{vL}\nv_add_u32 v250, s{sOdd}, v250\nv_cmp_ne_u32 vcc, 7, v250\nv_bfe_u32 v{tm}, v{vL}, 2, 1\nv_mul_u32_u24 v{tm}, {F*4}, v{tm}")
        r(f"v_cndmask_b32 v250, 0, v250, vcc\nv_lshl_add_u32 v250, v250, 6, v{tm}\nv_and_b32 v{tm}, 3, v{vL}\nv_lshl_add_u32 v250, v{tm}, 4, v250")
        r.call(lambda: self.g.check(vCa, ckl, 56, 'CK3'))
        for a in range(2): r.vm(f"buffer_load_dwordx4 {vr(tm+4*a,4)}, v250, {R(sWS)}, s{46+a} offen sc1", 'CS3')
        r(f"v_lshrrev_b32 v{vCa}, 4, v{vL}\nv_lshlrev_b32 v{vCa}, 4, v{vCa}\nv_add_u32 v{vCa}, s{sPW}, v{vCa}\nv_add_u32 v250, s{sPW}, v{vOT}")
        pour(fill, r.ops, 56, 112, cap=2); assert not r.ops, len(r.ops)
    def epi_units(self):
        e = self.g.e; U = []
        def ph(i, name):
            if not 0 <= i < 28: return []
            r = Rec(e); t, tt = i >> 2, i & 3
            g_, u = acc(2*t, tt), acc(2*t+1, tt); T = tm + 4*(i & 1)
            sel = tt & 1; c1 = (vC1 + tt) & ~1; c2 = (vC2 + tt) & ~1
            if name == 'a':
                for h in range(2): r(f"v_pk_mul_f32 {vr(T+2*h,2)}, {vr(g_+2*h,2)}, {vr(c1,2)} op_sel:[0,{sel}] op_sel_hi:[1,{sel}]")
            if name == 'b':
                for h in range(2): r(f"v_pk_mul_f32 {vr(g_+2*h,2)}, {vr(g_+2*h,2)}, {vr(u+2*h,2)}")
            if name == 'c':
                for x in range(4): r(f"v_exp_f32 v{T+x}, v{T+x}")
            if name == 'd':
                for h in range(2): r(f"v_pk_fma_f32 {vr(T+2*h,2)}, {vr(T+2*h,2)}, {vr(c2,2)}, {vr(c2,2)} op_sel:[0,{sel},{sel}] op_sel_hi:[1,{sel},{sel}]")
            if name == 'e':
                for x in range(4): r(f"v_rcp_f32 v{T+x}, v{T+x}")
            if name == 'f':
                for h in range(2): r(f"v_pk_mul_f32 {vr(g_+2*h,2)}, {vr(g_+2*h,2)}, {vr(T+2*h,2)}")
            if name == 'g':
                dst = acc(2*(t & ~1) + 1, tt) + 2*(t & 1) if t < 6 else acc(13, tt & ~1) + 2*(tt & 1)
                r(f"v_cvt_pk_bf16_f32 v{dst}, v{g_}, v{g_+1}\nv_cvt_pk_bf16_f32 v{dst+1}, v{g_+2}, v{g_+3}")
                if t < 6 and (t & 1): r.vm(f"buffer_store_dwordx4 {vr(dst-2,4)}, v{vOT}, {R(sWS)}, s{57+tt} offen sc1", ('OUT3', t >> 1)); r(f"s_add_u32 s{57+tt}, s{57+tt}, {8192 if self.g.q4 else 16384}")
                if t == 6 and (tt & 1):
                    r(f"s_nop 1\nv_permlane32_swap_b32 v{dst-2}, v{dst}\nv_permlane32_swap_b32 v{dst-1}, v{dst+1}")
                    r.vm(f"buffer_store_dwordx4 {vr(dst-2,4)}, v{vS2}, {R(sWS)}, s{61 + (tt>>1)} offen sc1", 'OUT3')
            return r.ops
        for i in range(-1, 30):
            c, e0, e1, g2 = ph(i, 'c'), ph(i-1, 'e'), ph(i, 'e'), ph(i-2, 'g')
            nop = [lambda: e("s_nop 0")] if i in (0, 28) else []
            U.append(dict(v=[e0[1:2], e0[2:3], g2[0:1], g2[1:2], g2[2:] + c[0:1], c[1:2], [], c[2:] + e0[3:] + nop + ph(i, 'd') + ph(i-1, 'f') + ph(i+1, 'a') + ph(i+1, 'b') + e1[0:1]],
                          pre=[], mem=[]))
        return U
    def signal_field(self, tag, f):
        g = self.g; e = g.e; l = g.lab("sgf")
        e.wait(vm=tag); e("s_barrier")
        e(f"s_cmp_lg_u32 s{sWave}, 0\ns_cbranch_scc1 {l}\nv_mov_b32 v250, 1\ns_mov_b64 exec, 1")
        e(f"buffer_atomic_add v250, v{vZ}, {R(sWS)}, s77 offen sc1\ns_mov_b64 exec, -1\n{l}:\ns_add_u32 s77, s77, {H3S}")
    def signal_last(self):
        self.g.e(f"s_xor_b32 s43, s{sCnt}, 2\ns_or_b32 s43, s43, s{sWave}\ns_cbranch_scc1 Lp3_sgl"); self.g.arrive(sWS, 77); self.g.e("Lp3_sgl:")
    def tail(self, p4, wread1, order):
        g = self.g; e = g.e; c = self.c
        N = 448; S = Slots(N); BASE = 260; LG = 3 if g.q4 else 4
        tiles = [(s, 2*p + z) for p, s in order for z in range(2)]
        def place(pos, op):
            pre = True
            for x in op:
                if x == "NOP": continue
                if callable(x): S.ve[pos].append(x); pre = False
                else: S.sc[pos - 1 if pre else pos + 1].append(lambda x=x: e(x))
        EU = self.epi_units()
        for q in range(2, 56):
            for z, f in enumerate(wread1(168 + q, *tiles[q])):
                b = 8*(q - 2); S.ve[b + ((2, 2, 6, 7)[z] if b > BASE else 2*z)].append(f)
        VS = c.get('VS', 5)
        for k, op in enumerate(self.t_ops(13) + self.w_ops(14) + self.t_ops(14) + self.w_ops(15) + self.t_ops(15)): place((VS*k + 2) | 1, op)
        first = {s: next(k for k, (p, s_) in enumerate(order) if s_ == s) for s in (13, 14, 15)}
        for s in (13, 14, 15): S.sc[16*(first[s] - 1)].append(lambda s=s: (e.wait(vm=('W3', s)), e("s_barrier")))
        assert 16*(first[13] - 1) < VS*24
        if g.q4:
            S.sc[16*(first[14] - 1)].append(lambda: (e(f"s_and_b32 s65, s2, 1\ns_lshr_b32 s88, s2, 3\ns_lshl_b32 s88, s88, 1\ns_add_u32 s65, s65, s88\ns_lshl_b32 s65, s65, 7\ns_add_u32 s65, s65, s{sLo}\ns_add_u32 s65, s65, {FL + HM*128}"),
                                                     e(f"s_cmp_lg_u32 s{sWave}, 0\ns_cbranch_scc1 Lp3_mb"), g.arrive(sWS, 65), e("Lp3_mb:")))
        r = Rec(e); r.wait(vm='CS3')
        for x in range(4): r(f"v_add_f32 v{tm+x}, v{tm+x}, v{tm+4+x}")
        r.ds(f"ds_write_b128 v250, {vr(tm,4)}")
        S.pour(r.ops, 0, 8)
        left = list(range(14)); tau = {}
        def pick(k):
            if k == 15: return True
            for n in left:
                if n >> 1 not in (order[k-1][0], order[k][0], order[k+1][0]):
                    left.remove(n); tau[k] = n
                    if pick(k+1): return True
                    left.append(n); left.sort()
            return False
        assert pick(1) and sorted(tau.values()) == list(range(14))
        for k in range(1, 15):
            n = tau[k]; b = k & 1
            S.ve[16*(k-1) + 9 if k == 1 else 16*(k-1) + 1].append(lambda n=n, b=b: e.ds(f"ds_read_b128 {vr(tm+4*b,4)}, v{vCa} offset:{n*64}", ('CT', n)))
        for k in range(1, 15):
            n = tau[k]; b = k & 1; r = Rec(e); r.wait(ds=('CT', n))
            for tt in range(4):
                for x in range(4): r(f"v_fmac_f32 v{acc(n,tt)+x}, v{tm+4*b+x}, v{vMu+tt}")
            S.pour(r.ops, 16*k, 16*k + 16)
        r = Rec(e)
        for x in p4.prefetch_setup(): r(x.replace("\n", "\t"))
        r(f"s_mul_i32 s43, s{sGrp}, {4*HPITCH}\ns_lshr_b32 s45, s{sNj3}, {LG}\ns_mul_i32 s45, s45, {(7 << LG)*512}\ns_add_u32 s43, s43, s45\ns_add_u32 s43, s43, {g.lo('H')}\ns_add_u32 s43, s43, {HB}")
        r(f"s_and_b32 s44, s{sNj3}, {(1 << LG) - 1}\ns_lshl_b32 s45, s44, 10\ns_add_u32 s57, s43, s45\ns_lshl_b32 s45, s44, 9\ns_add_u32 s61, s43, s45\ns_add_u32 s61, s61, {3072 << LG}\ns_add_u32 s62, s61, {2*HPITCH}")
        for tt in range(1, 4): r(f"s_add_u32 s{57+tt}, s{57+tt-1}, {HPITCH}")
        r(f"s_lshl_b32 s77, s{sMi3}, {5 - LG}\ns_lshr_b32 s43, s{sNj3}, {LG}\ns_add_u32 s77, s77, s43\ns_lshl_b32 s77, s77, 7\ns_add_u32 s77, s77, s{sLo}\ns_add_u32 s77, s77, {FL + H3*128}")
        su = p4.setup_ops()
        S.pour(r.ops + [f for f in su if getattr(f, 'sc', False)], 20, 200, cap=0)
        nxt = p4.prefetch_ops()
        for k in range(4):
            op = nxt.pop(0); pos = 205 + 12*k
            S.sc[pos-2].append(op[0]); S.sc[pos-1].append(op[1]); S.ve[pos].insert(0, op[2]); S.ve[pos+6].insert(0, op[3])
        r = Rec(e)
        r(f"v_and_b32 v{vS2}, 31, v{vL}\nv_lshlrev_b32 v{vS2}, 4, v{vS2}\nv_lshrrev_b32 v250, 5, v{vL}\ns_mov_b32 s43, {HPITCH}\nv_mad_u32_u24 v{vS2}, v250, s43, v{vS2}")
        r(f"v_and_b32 v250, 15, v{vL}\ns_add_u32 s43, s{sPW}, 1024\nv_lshl_add_u32 v250, v250, 2, s43")
        for z, dst in enumerate((vC1, vC1+2, vC2, vC2+2)): r.ds(f"ds_read2_b32 {vr(dst,2)}, v250 offset0:{64+32*z} offset1:{80+32*z}", 'CC')
        S.pour(r.ops, 240, 252); S.sc[258].append(lambda: e.wait(ds='CC'))
        SA, SB, CL, CK = c.get('SA', 13), c.get('SB', 22), c.get('CL', 17), c.get('CK', 20)
        assert BASE + 8*SB >= 432
        EU[SA+1]['pre'].append(lambda: self.signal_field(('OUT3', 0), 0))
        for k in range(4): EU[SA+1+k]['mem'] += nxt.pop(0)
        EU[SB+1]['pre'].append(lambda: self.signal_field([('OUT3', 1), ('W5', 7)], 1))
        EU[CL+1]['mem'].insert(0, p4.ck_load)
        EU[CK+1]['pre'].append(lambda: p4.ck("p4a"))
        ft = p4.first_t(); nq = c.get('NQ', 5)
        if len(ft) == 24: nq = 4
        for k in range(nq): EU[CK+1+k]['mem'] += ft[k*len(ft)//nq:(k+1)*len(ft)//nq]
        for k in range(len(nxt)): EU[max(CK + nq, SB) + 1 + k]['mem'] += nxt[k]
        EU[24]['pre'] += p4.reads(0)
        for i in range(-1, 23):
            u = EU[i+1]; b = BASE + 8*i
            S.sc[b] += u['pre']
            z = 0; lastv = -1
            for f in u['mem']:
                if getattr(f, 'sc', False):
                    while S.sc[b+z] and z < 6: z += 1
                    assert z > lastv; S.sc[b+z].append(f)
                else:
                    while z in (2, 3, 6): z += 1
                    S.ve[b+z].append(f); lastv = z; z = min(z + 1, 7)
            for z in range(8): S.ve[b+z] += u['v'][z]
        S.pour([f for f in su if not getattr(f, 'sc', False)], BASE + 8*10, BASE + 8*CK)
        kk = 0; k = 0; seen = set()
        for q, (s, n) in enumerate(tiles):
            if c.get('fine') and q == c['fine']: g.stamp()
            for tt in ((3, 2, 1, 0) if n & 1 else (0, 1, 2, 3)):
                e.wait(vm=('T3', s, tt if s > 12 else 3), ds=('F3', 168 + q))
                for z in (kk, 1 - kk):
                    a = vr(acc(n, tt), 4)
                    e(f"{MF} {a}, {ar(aW(168 + q, z), 4)}, {ar(aT(s, z, tt), 4)}, {a}")
                    S.emit(k); k += 1
                kk = 1 - kk
        g.stamp()
        for u in EU[24:]:
            m = u['mem']; h = (len(m) + 1)//2
            for f in u['pre'] + m[:h] + sum(u['v'][:4], []) + m[h:] + sum(u['v'][4:], []): f()
        for f in p4.init_ops(): f()
        g.stamp(); g.stamp()
    def main(self, p4):
        g = self.g; e = g.e; c = self.c
        DW = c.get('DW', 2); NP = c.get('NP', 2)
        if c.get('late', 0): g.poll(77, 16//g.SH, voff=249, nl=2*g.SH, late=lambda: self.run(self.w_ops(1)), keep=8)
        else: g.poll(77, 16//g.SH, voff=249, nl=2*g.SH)
        self.run(self.t_ops(0))
        def wread(L): return wread1(L, *divmod(L, 14))
        def wread1(L, s, n):
            ops = []
            for kk in range(2):
                for j in range(2):
                    def f(kk=kk, j=j):
                        if n == 0 and kk == 0 and j == 0 and 0 < s <= 12: e.wait(vm=('W3', s)); e("s_barrier")
                        e.ds(f"ds_read_b64_tr_b16 {ar(aW(L, kk) + 2*j, 2)}, v{vW + (n >> 1)} offset:{(s & 1)*32768 + (n & 1)*16384 + (kk*32 + 16*j)*256}", ('F3', L))
                        if kk == 1 and j == 1 and s & 1 and n & 1 and s < 15: e(f"v_xor_b32 v{vW + (n >> 1)}, 0x10000, v{vW + (n >> 1)}")
                    ops.append(f)
            return ops
        for L in range(DW):
            for f in wread(L): f()
        g.stamp()
        for s in range(12):
            if s in (0, 1, 15): e(f"Lmk_p3s{s}:")
            if c.get('fine') and s in (1, 2, 15): g.stamp()
            if s % 2 == 0: e.mark(f"p3b{s//2}")
            if c.get('fine') and s == 14: g.stamp()
            fill = [[] for _ in range(112)]
            def place(pos, op):
                pre = True
                for x in op:
                    if x == "NOP": continue
                    if callable(x): fill[pos].append(x); pre = False
                    else: fill[pos - 1 if pre else pos + 1].append(lambda x=x: e(x))
            if c.get('burst', 0) and 2 <= s < 14:
                pos = [7*p + z for p in range(16) for z in (range(4) if p % 2 == 0 else range(c.get('b0', 0), c.get('b0', 0) + 3))]
                rd = [f for n in range(14) for f in wread(s*14 + n + DW)]
                for k, f in enumerate(rd): fill[pos[k]].append(f)
            else:
                for n in range(14):
                    for k, f in enumerate(wread(s*14 + n + DW)): fill[n*8 + 2*k].append(f)
            if s < 15:
                TS = c.get('TS', 7)
                for k, op in enumerate(self.t_ops(s+1)): place(((5 if NP == 3 else 4)*k + 9) if s == 0 else TS*k + 3, op)
            if s == 0:
                for k, op in enumerate(self.st_ops()): place(5*k + 49 if NP == 3 else 4*k + 41, op)
                if NP == 2:
                    for k, op in enumerate(self.w_ops(2)): place(4*k + 75, op)
            elif s < 14:
                for k, op in enumerate(self.w_ops(s+2)): place(7*(k+8) + 3, op)
            if s % 2 == 0 or s == 1:
                place(108 if s == 0 else 53, [lambda: e.vm(f"buffer_load_dwordx4 {ar(aDum,4)}, v{vTch}, {R(sWd)}, s{sTch} offen"), f"s_add_u32 s{sTch}, s{sTch}, 1024"])
            if g.q4 and s & 1:
                place(56, [lambda: e.vm(f"buffer_store_dwordx4 a[100:103], v{vOT}, {R(sWS)}, s65 offen sc1")])
                place(84, [lambda: e.vm(f"buffer_store_dwordx4 a[100:103], v{vOT}, {R(sWS)}, s65 offen offset:1024 sc1"), "s_add_u32 s65, s65, 2048"])
            if s == 1: self.stats_ops(fill)
            kk = 0
            for n in range(14):
                L = s*14 + n
                k = 0
                for tt in ((3, 2, 1, 0) if n & 1 else (0, 1, 2, 3)):
                    e.wait(vm=('T3', s, tt if s == 0 else 3) if n == 0 else None, ds=('F3', L))
                    for z in (kk, 1 - kk):
                        a = vr(acc(n, tt), 4)
                        e(f"{MF} {a}, {ar(aW(L, z), 4)}, {ar(aT(s, z, tt), 4)}, {'0' if s == 0 and z == kk else a}")
                        for f in fill[n*8 + k]: f()
                        k += 1
                    kk = 1 - kk
        e.mark("p3b6")
        e.fold([f"p3b{k}" for k in range(1, 7)], "Lp3_loop", f"s{sCnt}")
        if c.get('fine'): g.stamp()
        order = [(p, 12) for p in range(7)] + [(p, 13) for p in range(4)] + [(0, 14), (1, 14), (2, 14), (4, 13), (0, 15), (5, 13), (1, 15), (6, 13), (2, 15)]
        order += [(p, s) for p in range(3, 7) for s in (14, 15)]
        self.tail(p4, wread1, order)
```

```python
from mg import *
sRA, sRB, sWn, sM0, sDel = 80, 84, 92, 79, 78
sTo, sTw, sTile, sXo, sLine = 48, 63, 49, 76, 64
vW, vOT, vCk, vR, vM, vS, vF, vU, vI = 0, 8, 10, 16, 160, 208, 230, 236, 240
NS = 28
aT = lambda j, tt: 64 + ((j + 4) % 8)*8 + tt*4 if tt < 2 else 128 + (j % 16)*8 + (tt - 2)*4
aW = lambda k, kk, n: (k & 1)*32 + kk*16 + n*4
acc = lambda q, n, tt: 32 + (3 - q)*32 + (n*2 + tt)*4
def kb(j): return 7*((j & 7) >> 1) + 4*(j & 1) + (j >> 3) if j < 24 else 7*(j - 24) + 3
class P4Q:
    NQ = 4; LT = 4
    def __init__(self, g):
        self.g = g; self.c = c = g.cfg.get('p4', {}); self.LW = 12
        ND, NE = c.get('ND', 8), c.get('NE', 3)
        it = []
        for u in range(14 - NE): it += [(u, 0, (0, 2)), (u, 1, (1, 3) if u < 14 - ND else (1,))]
        it += [(u, 1, (1,)) for u in range(14 - NE, 14)] + [(u, 0, (q,)) for q in (0, 2) for u in range(14 - NE, 14)] + [(u, 1, (3,)) for u in range(14 - ND, 14)]
        self.items = it; self.ND, self.NE = ND, NE
    def prefetch_setup(self):
        return [f"s_xor_b32 s93, s{sNj2}, 1", "s_lshl_b32 s93, s93, 7", f"s_add_u32 s{sRA}, s{sWd}, s93\ns_addc_u32 s{sRA+1}, s{sWd+1}, 0", f"s_sub_u32 s{sRA+2}, {F*D*2}, s93", f"s_mov_b32 s{sRA+3}, 0x20000",
                f"s_lshl_b32 s93, s{sNj2}, 7", f"s_add_u32 s{sRB}, s{sWd}, s93\ns_addc_u32 s{sRB+1}, s{sWd+1}, 0", f"s_sub_u32 s{sRB}, s{sRB}, 1024\ns_subb_u32 s{sRB+1}, s{sRB+1}, 0",
                f"s_sub_u32 s{sRB+2}, {F*D*2 + 1024}, s93", f"s_mov_b32 s{sRB+3}, 0x20000",
                f"s_lshr_b32 s93, s{sNj3}, 3", f"s_mul_i32 s{sWn}, s93, {NS*65536}", f"s_lshl_b32 s93, s{sWave}, 14", f"s_add_u32 s{sWn}, s{sWn}, s93", f"s_lshl_b32 s{sM0}, s{sWave}, 11",
                f"s_cmp_eq_u32 s{sWave}, 1\ns_cselect_b32 s{sDel}, 16384, 0", f"s_cmp_eq_u32 s{sWave}, 2\ns_cselect_b32 s{sDel}, -16384, s{sDel}"]
    def w_op(self, j):
        r = Rec(self.g.e)
        r(f"s_add_u32 m0, s{sM0}, {(j % 16)*8192}\ns_add_u32 s{sWn}, s{sWn}, {(kb(j) - kb(j-1))*65536 if j else 0}" + (f"\ts_add_u32 s{sWn}, s{sWn}, s{sDel}" if j == 24 else ""))
        r.vm(f"buffer_load_dwordx4 v{vOW2}, {R(sRA)}, s{sWn} offen lds", ('W5', j)); r.vm(f"buffer_load_dwordx4 v{vOW2}, {R(sRB)}, s{sWn} offen offset:1024 lds", ('W5', j))
        return r.ops
    def prefetch_ops(self): return [self.w_op(j) for j in range(self.LW)]
    def t_op(self, u, own):
        r = Rec(self.g.e); s_ = sTw if own else sTo
        if u and u % 2 == 0: r(f"s_add_u32 s{s_}, s{s_}, 4096")
        for tt in range(2):
            for kk in range(2): r.vm(f"buffer_load_dwordx4 {ar(aT(2*u+kk, 2*own+tt), 4)}, v{vOT+tt}, {R(sWS)}, s{s_} offen offset:{1024*((2*u+kk) & 3)} sc1", ('T5', u, own))
        return r.ops
    def first_t(self): return [f for u in range(2) for own in range(2) for f in self.t_op(u, own)]
    def clear_mailbox(self, e, voff, vt, lo):
        e(f"s_lshl_b32 s44, s2, 2\ns_add_u32 s44, s44, s{sWave}\ns_mul_i32 s44, s44, 12288\ns_add_u32 s44, s44, {lo}\ns_add_u32 s44, s44, {PB}")
        for r in range(4): e(f"v_mov_b32 v{vt+r}, -1")
        for q in range(12):
            if q and q % 4 == 0: e("s_add_u32 s44, s44, 4096")
            e.vm(f"buffer_store_dwordx4 {vr(vt,4)}, v{voff}, {R(sWS)}, s44 offen offset:{1024*(q & 3)} sc1")
    def setup_ops(self):
        g = self.g; r = Rec(g.e)
        r(f"s_mov_b32 s{sLine}, s77")
        r(f"s_lshl_b32 s{sTile}, s{sMi2}, 3\ns_lshl_b32 s43, s{sWave}, 1\ns_add_u32 s{sTile}, s{sTile}, s43")
        r(f"s_lshl_b32 s{sXo}, s{sTile}, 15\ns_lshl_b32 s43, s{sNj2}, 11\ns_add_u32 s{sXo}, s{sXo}, s43\ns_add_u32 s{sXo}, s{sXo}, {g.lo('X')}")
        r(f"s_add_u32 s46, s{sXo}, {XB}\ns_add_u32 s47, s46, 32768")
        r(f"s_lshr_b32 s43, s{sNj3}, 3\ns_mul_i32 s43, s43, {NS*1024}\ns_add_u32 s43, s43, {g.lo('H')}\ns_add_u32 s43, s43, {HB}\ns_mul_i32 s{sTw}, s{sTile}, {HPITCH}\ns_add_u32 s{sTw}, s{sTw}, s43")
        r(f"s_xor_b32 s{sTo}, s{sTile}, 8\ns_mul_i32 s{sTo}, s{sTo}, {HPITCH}\ns_add_u32 s{sTo}, s{sTo}, s43")
        r(f"v_lshlrev_b32 v{vOT}, 4, v{vL}\nv_add_u32 v{vOT+1}, {HPITCH}, v{vOT}")
        for tt in range(2):
            for p in range(2): r.vm(f"buffer_load_dwordx4 {vr(vR + (tt*2+p)*4, 4)}, v{vOT}, {R(sWS)}, s{46+tt} offen offset:{1024*p} sc1", 'R5')
        r(f"v_bfe_u32 v11, v{vL}, 2, 3\nv_bfe_u32 v12, v{vL}, 3, 2\nv_and_b32 v13, 3, v{vL}\nv_lshlrev_b32 v13, 3, v13\nv_lshl_add_u32 v13, v11, 7, v13\nv_lshrrev_b32 v11, 5, v{vL}\nv_lshl_add_u32 v13, v11, 11, v13")
        for t in range(4): r(f"v_xor_b32 v11, {t}, v12\nv_lshl_add_u32 v{vW+t}, v11, 5, v13")
        return r.ops
    def init_ops(self): return []
    def ck_load(self): self.g.e.vm(f"buffer_load_dword v{vCk}, v{vZ}, {R(sWS)}, s{sLine} offen sc1", 'CK5')
    def ck(self, nm):
        e = self.g.e
        e.wait(vm='CK5')
        t = f"v_cmp_gt_u32 vcc, 8, v{vCk}\ns_cbranch_vccz L{nm}_ok"
        e(f"{t}\ns_mov_b32 s43, 0x40000\nL{nm}_sp:\ns_sleep {self.c.get('slp', 10)}\nbuffer_load_dword v{vCk}, v{vZ}, {R(sWS)}, s{sLine} offen sc1\ns_waitcnt vmcnt(0)\n{t}")
        e(f"s_sub_u32 s43, s43, 1\ns_cmp_lg_u32 s43, 0\ns_cbranch_scc1 L{nm}_sp\nL{nm}_ok:\ns_add_u32 s{sLine}, s{sLine}, {H3S}")
    def reads(self, k):
        e = self.g.e
        if k >= len(self.items): return []
        u, h, _ = self.items[k]
        return [lambda n=n, kk=kk, j=j, i=2*u+kk: e.ds(f"ds_read_b64_tr_b16 {ar(aW(k, kk, n) + 2*j, 2)}, v{vW + n + (4 if i & 8 else 0)} offset:{(i & 7)*8192 + j*4096 + h*1024}", ('F5', k, n))
                for n in range(4) for kk in range(2) for j in range(2)]
    def main(self, nx, p3):
        g = self.g; e = g.e; c = self.c; items = self.items; ND, NE = self.ND, self.NE
        if not c.get('fine'): g.stamp(); g.stamp()
        st = [0]
        for u, h, qs in items: st.append(st[-1] + 16*len(qs))
        N = st[-1]; S = Slots(N)
        first = lambda f: next(k for k, x in enumerate(items) if f(x)); last = lambda f: max(k for k, x in enumerate(items) if f(x))
        for k in range(len(items)):
            sp = len(items[k][2])
            for z, f in enumerate(self.reads(k+1)): S.ve[st[k] + sp*z].append(f)
        bars = {u: st[first(lambda x: x[:2] == (u, 0))] for u in range(14 - NE)}
        pub = lambda u: bars[min(u - 1, 13 - NE)]
        for u, pos in bars.items():
            S.sc[pos].append(lambda u=u: (e.wait(vm=('W5', 2*u + 3 if u < 13 - NE else 27)), e("s_barrier")))
        use = lambda u, own: min(st[k] + 16*x[2].index(q) for k, x in enumerate(items) for q in x[2] if x[0] == u and q >> 1 == own)
        W = [(self.w_op(j), (bars[(j - 16)//2 + 1] if j >= 16 else 0) + 2, pub(j//2)) for j in range(12, NS)]
        To = [(self.t_op(u, 0), st[last(lambda x: x[0] == u - 4 and min(x[2]) < 2) + 1] if u >= 4 else 0, use(u, 0)) for u in range(2, 14)]
        Tw = [(self.t_op(u, 1), st[last(lambda x: x[0] == u - 8) + 1] if u >= 8 else 0, use(u, 1)) for u in range(2, 14)]
        c1, c2 = c.get('C1', 70), c.get('C2', 300)
        gate = lambda u: c1 + 1 if 4 <= u < 8 else c2 + 1 if u >= 8 else 0
        To = [(o, max(a, gate(u + 2)), b) for u, (o, a, b) in enumerate(To)]; Tw = [(o, max(a, gate(u + 2)), b) for u, (o, a, b) in enumerate(Tw)]
        t = 3.0; VS = c.get('VS', 4.75); slack = []
        while W or To or Tw:
            cand = [q for q in (W, To, Tw) if q and q[0][1] <= int(t) - 2]
            if not cand: t += 1; continue
            q = min(cand, key=lambda q: q[0][2]); ops, _, dl = q.pop(0)
            pre = [f for f in ops if getattr(f, 'sc', False)]
            for z, f in enumerate(pre): S.sc[int(t) - len(pre) + z].append(f)
            for f in ops[len(pre):]: S.ve[int(t)].append(f); t += VS
            slack.append(dl - int(t - VS))
        if g.cfg.get('rep'): print("p4q vm end", t, "of", N, "slack", slack)
        assert min(slack) > 8
        for pos, nm in ((c1, "p4b"), (c2, "p4c")):
            S.ve[pos - 44].append(self.ck_load); S.sc[pos].append(lambda nm=nm: self.ck(nm))
        mbl = f"buffer_load_dword v{vCk}, v{vZ}, {R(sWS)}, s65 offen sc1"
        S.ve[420].append(lambda: e.vm(mbl, 'CKM')); S.sc[470].append(lambda: g.check(vCk, mbl, 4, 'CKM'))
        S.sc[bars[2]].append(lambda: (e(f"s_cmp_lg_u32 s{sWave}, 0\ns_cbranch_scc1 Lp3_sgl"), g.arrive(sWS, 77), e("Lp3_sgl:")))
        Pk = lambda tt, p: vR + (tt*2 + p)*4
        r = Rec(e); r.wait(vm='R5')
        for tt in range(2):
            for n in range(4):
                for h in range(2):
                    src = Pk(tt, n >> 1) + (n & 1)*2 + h
                    r(f"v_lshlrev_b32 v{acc(3,n,tt)+2*h}, 16, v{src}\nv_and_b32 v{acc(3,n,tt)+2*h+1}, 0xffff0000, v{src}")
        S.pour(r.ops, 1, 44)
        for t_ in range(4): r(f"v_add_u32 v{vW+4+t_}, 0x10000, v{vW+t_}")
        r(f"v_and_b32 v11, 15, v{vL}\nv_lshrrev_b32 v12, 4, v{vL}\nv_lshlrev_b32 v12, 2, v12\nv_sub_u32 v11, v11, v12\nv_and_b32 v12, 1, v11\nv_lshlrev_b32 v12, 4, v12\nv_mov_b32 v13, 0x3f80\nv_lshlrev_b32 v12, v12, v13")
        r(f"v_lshrrev_b32 v11, 1, v11\nv_cmp_eq_u32 vcc, 0, v11\nv_mov_b32 v{vI}, 0\nv_mov_b32 v{vI+1}, 0\nv_cndmask_b32 v{vI+2}, 0, v12, vcc\nv_cmp_eq_u32 vcc, 1, v11\nv_mov_b32 v{vI+4}, 0\nv_mov_b32 v{vI+5}, 0\nv_cndmask_b32 v{vI+3}, 0, v12, vcc")
        stats_pre(r, vL, vS, 66)
        f0 = vF
        r(f"v_and_b32 v{f0}, 15, v{vL}\nv_lshrrev_b32 v{f0+1}, 4, v{vL}\nv_lshrrev_b32 v{f0+3}, 1, v{f0+1}\nv_and_b32 v{f0+1}, 1, v{f0+1}\nv_lshl_add_u32 v{f0+1}, v{f0+1}, 1, v{f0+3}")
        r(f"v_and_b32 v{f0+3}, 7, v{vL}\nv_xor_b32 v{f0+1}, v{f0+1}, v{f0+3}\nv_lshlrev_b32 v{f0+1}, 4, v{f0+1}\nv_lshl_add_u32 v{f0}, v{f0}, 7, v{f0+1}\ns_lshl_b32 s45, s{sWave}, 12\nv_add_u32 v{f0}, s45, v{f0}\nv_xor_b32 v{f0+1}, 64, v{f0}")
        r(f"v_lshrrev_b32 v{f0+4}, 3, v{vL}\nv_xor_b32 v{f0+2}, v{f0+4}, v{f0+3}\nv_lshlrev_b32 v{f0+2}, 4, v{f0+2}\nv_lshl_add_u32 v{f0+2}, v{f0+4}, 7, v{f0+2}\nv_add_u32 v{f0+2}, s45, v{f0+2}")
        r(f"v_lshlrev_b32 v{f0+3}, 4, v{f0+3}\nv_lshl_add_u32 v{f0+3}, v{f0+4}, 12, v{f0+3}")
        S.pour(r.ops, c1 + 2, 200)
        r(f"s_add_u32 s45, s{sLo}, {PB}\ns_lshl_b32 s44, s2, 2\ns_add_u32 s44, s44, s{sWave}\ns_mul_i32 s72, s44, 12288\ns_add_u32 s72, s72, s45\ns_add_u32 s73, s72, 4096\ns_add_u32 s74, s72, 8192")
        for d in (1, 2, 3): r(f"s_xor_b32 s{57+d}, s44, {8*d}\ns_mul_i32 s{57+d}, s{57+d}, 12288\ns_add_u32 s{57+d}, s{57+d}, s45\ns_add_u32 s45, s45, 4096")
        r(f"s_add_u32 s46, s{sXo}, {XA + g.lp('X')}\ns_add_u32 s47, s46, 32768")
        r(f"s_lshl_b32 s75, s{sTile}, 11\ns_lshl_b32 s45, s{sNj2}, 7\ns_add_u32 s75, s75, s45\ns_add_u32 s75, s75, {STA + LP}")
        r(f"s_and_b32 s57, s{sTile}, 63\ns_lshl_b32 s57, s57, 16\ns_add_u32 s57, s57, s45\ns_lshr_b32 s45, s{sTile}, 6\ns_lshl_b32 s45, s45, 11\ns_add_u32 s57, s57, s45")
        r(f"s_lshl_b32 s77, s{sMi2}, 7\ns_add_u32 s77, s77, {FL + H4*128}")
        S.pour(r.ops, 200, 400, cap=0)
        def cvt(r, q, tt, p):
            for x in range(4):
                a = acc(q, 2*p + (x >> 1), tt) + 2*(x & 1)
                r(f"v_cvt_pk_bf16_f32 v{Pk(tt,p)+x}, v{a}, v{a+1}")
        done = lambda q: max(st[k] + 16*(x[2].index(q) + 1) for k, x in enumerate(items) if q in x[2])
        for q, d in ((1, 2), (0, 3), (2, 1)):
            for p in range(2):
                for tt in range(2):
                    cvt(r, q, tt, p); r.vm(f"buffer_store_dwordx4 {vr(Pk(tt,p),4)}, v{vOT}, {R(sWS)}, s{71+d} offen offset:{1024*(tt*2+p)} sc1")
            S.pour(r.ops, done(q), done(q) + 16, cap=3)
        def mail_loads(r, ds_):
            for d in ds_:
                for x in range(4): r.vm(f"buffer_load_dwordx4 {vr(vM+16*(d-1)+4*x,4)}, v{vOT}, {R(sWS)}, s{57+d} offen offset:{1024*x} sc1", ('MB', d))
        def mail_add(ds_, nm):
            regs = [vM + 16*(d-1) + x for d in ds_ for x in range(16)]
            def tree(r):
                r(f"v_max3_u32 v{vU}, v{regs[0]}, v{regs[1]}, v{regs[2]}\nv_max3_u32 v{vU+1}, v{regs[3]}, v{regs[4]}, v{regs[5]}")
                for x in range((len(regs) - 6)//2): r(f"v_max3_u32 v{vU + (x&1)}, v{vU + (x&1)}, v{regs[6+2*x]}, v{regs[7+2*x]}")
                r(f"v_max_u32 v{vU}, v{vU}, v{vU+1}\nv_cmp_eq_u32 vcc, -1, v{vU}")
            r = Rec(e); r.wait(vm=('MB', ds_[-1])); tree(r)
            def fin():
                n0 = len(e.vmq)
                e(f"s_cbranch_vccz L{nm}_ok\ns_mov_b32 s43, 0x40000\nL{nm}_sp:\ns_sleep {c.get('mslp', 6)}"); mail_loads(e, ds_); e("s_waitcnt vmcnt(0)"); tree(e)
                e(f"s_cbranch_vccz L{nm}_ok\ns_sub_u32 s43, s43, 1\ns_cmp_lg_u32 s43, 0\ns_cbranch_scc1 L{nm}_sp\nL{nm}_ok:")
                del e.vmq[n0:]
                for n in range(4):
                    for tt in range(2):
                        for d in ds_: e(f"{MF} {vr(acc(3,n,tt),4)}, {vr(vI + 2 - 2*(n & 1), 4)}, {vr(vM + 16*(d-1) + (tt*2 + (n >> 1))*4, 4)}, {vr(acc(3,n,tt),4)}")
            return r.ops, fin
        for d, x in zip((2, 3, 1), c.get('X', (140, 92, 48))):
            mail_loads(r, (d,))
            for z, f in enumerate(r.ops): S.ve[N - x + 2*z].append(f)
            r.ops = []
        Y = c.get('Y', 17)
        ops, fin1 = mail_add((2, 3), "p4m"); S.pour(ops, N - Y - 20, N - Y); S.ve[N - Y].append(fin1)
        ops, fin2 = mail_add((1,), "p4n"); S.pour(ops, N - 6, N)
        S.sc[N - 7].append(lambda: (e.wait(ds='all'), e("s_barrier")))
        k0 = 0; started = set()
        for k, (u, h, qs) in enumerate(items):
            kk = 0
            if c.get('fine') and st[k] in c['fine']: g.stamp()
            for i, q in enumerate(qs):
                for n in (range(4) if i == 0 else range(3, -1, -1)):
                    for tt in ((1, 0) if n & 1 else (0, 1)):
                        for z in (kk, 1 - kk):
                            e.wait(vm=('T5', u, q >> 1), ds=('F5', k, n | 1))
                            a = vr(acc(q, n, tt), 4); cin = a if q == 3 or (q, n, tt) in started else "0"; started.add((q, n, tt))
                            e(f"{MF} {a}, {ar(aW(k, z, n), 4)}, {ar(aT(2*u+z, 2*(q >> 1) + tt), 4)}, {cin}")
                            S.emit(k0); k0 += 1
                        kk = 1 - kk
        fin2()
        g.stamp()
        for p in range(2):
            for tt in range(2): cvt(e, 3, tt, p)
        e(f"s_cmp_eq_u32 s{sLay}, 0\ns_cbranch_scc1 Lp4_mid")
        for tt in range(2):
            for p in range(2): e(f"v_permlane16_swap_b32 v{Pk(tt,p)}, v{Pk(tt,p)+2}\nv_permlane16_swap_b32 v{Pk(tt,p)+1}, v{Pk(tt,p)+3}")
            for p in range(2): e(f"ds_write_b128 v{f0+p}, {vr(Pk(tt,p),4)} offset:{2048*tt}")
            for x in range(2): e(f"ds_read_b128 {vr(vM+8*tt+4*x,4)}, v{f0+2} offset:{2048*tt + 1024*x}")
        for x in range(4):
            e(f"s_waitcnt lgkmcnt({(5, 4, 1, 0)[x]})\nbuffer_store_dwordx4 {vr(vM+4*x,4)}, v{f0+3}, {R(sOut)}, s57 offen sc1\ns_add_u32 s57, s57, 32768")
        g.stamp()
        e("s_branch Lend\nLp4_mid:" if g.diag else "s_endpgm\nLp4_mid:")
        for p in range(2):
            for tt in range(2): e.vm(f"buffer_store_dwordx4 {vr(Pk(tt,p),4)}, v{vOT}, {R(sWS)}, s{46+tt} offen offset:{1024*p} sc1", 'OUT5')
            stats_mfma(e, Pk, p, vS)
        stats_post(e, vS, 66, 75, 'OUT5')
        g.stamp()
        e(f"s_mov_b32 s{sLay}, 1\ns_mov_b32 s{sLo}, {hex(LP)}")
        g.signal('OUT5', 77, nx.pre)
        nx.window()
        e("s_branch Llayer")
```

```python
from mg import *
sRA, sRB, sEW, sWn, sM0, sDel = 80, 84, 88, 92, 79, 78
sET, sT, sTile, sXo, sFld, sLine = 63, 48, 49, 76, 65, 64
vW, vOT, vR, vCk, vM, vU = 0, 8, 16, 10, 96, 112
aT = lambda j, tt: 128 + (j % 16)*8 + tt*4
aW = lambda k, kk, n: (k & 1)*32 + kk*16 + n*4
acc = lambda h, n, tt: 32 + h*32 + (n*2 + tt)*4
NS = 56
def kb(j): return 7*((j & 15) >> 1) + 4*(j & 1) + (j >> 4) if j < 48 else 7*(j - 48) + 3
class P4S:
    NQ = 2
    def __init__(self, g):
        self.g = g; self.c = g.cfg.get('p4', {})
        self.LT = self.c.get('LT', 8); self.LW = self.c.get('LW', 12); self.J = self.c.get('jump', 1); self.PD = self.c.get('PD', 4); self.NL = self.PD//4; self.ND = ND = self.c.get('ND', 8)
        self.items = [(u, h) for u in range(28 - ND) for h in range(2)] + [(u, h) for h in range(2) for u in range(28 - ND, 28)]
    def prefetch_setup(self):
        L = [f"s_xor_b32 s93, s{sNj2}, 1", "s_lshl_b32 s93, s93, 7", f"s_add_u32 s{sRA}, s{sWd}, s93\ns_addc_u32 s{sRA+1}, s{sWd+1}, 0", f"s_sub_u32 s{sRA+2}, {F*D*2}, s93", f"s_mov_b32 s{sRA+3}, 0x20000",
             f"s_lshl_b32 s93, s{sNj2}, 7", f"s_add_u32 s{sRB}, s{sWd}, s93\ns_addc_u32 s{sRB+1}, s{sWd+1}, 0", f"s_sub_u32 s{sRB}, s{sRB}, 1024\ns_subb_u32 s{sRB+1}, s{sRB+1}, 0",
             f"s_sub_u32 s{sRB+2}, {F*D*2 + 1024}, s93", f"s_mov_b32 s{sRB+3}, 0x20000",
             f"s_and_b32 s93, s{sNj2}, 1", f"s_mul_i32 s{sWn}, s93, {56*65536}", f"s_lshl_b32 s93, s{sWave}, 14", f"s_add_u32 s{sWn}, s{sWn}, s93", f"s_lshl_b32 s{sM0}, s{sWave}, 11"]
        if self.J: L += [f"s_lshr_b32 s93, s{sNj2}, 1", f"s_add_u32 s93, s93, s{sMi2}", "s_and_b32 s93, s93, 3"] + [f"s_cmp_eq_u32 s93, {q}\ns_cselect_b32 s{sEW+q}, {14*65536}, 0" for q in range(4)]
        L += [f"s_cmp_eq_u32 s{sWave}, 1\ns_cselect_b32 s{sDel}, 16384, 0", f"s_cmp_eq_u32 s{sWave}, 2\ns_cselect_b32 s{sDel}, -16384, s{sDel}"]
        return L
    def wrap(self, L):
        out = []
        for x in L:
            f = x if callable(x) else (lambda x=x: self.g.e(x))
            f.vm = callable(x); f.sc = not f.vm; out.append(f)
        return out
    def w_op(self, j):
        e = self.g.e; J = self.J; so = 93 if J else sWn
        L = [f"s_add_u32 m0, s{sM0}, {(j % 16)*8192}", f"s_add_u32 s{sWn}, s{sWn}, {(kb(j) - kb(j-1))*65536 if j else 0}"]
        if j == 48: L[1] += f"\ns_add_u32 s{sWn}, s{sWn}, s{sDel}"
        if J:
            jl = (j + 4) % NS; d = kb(jl) - kb(j); E_ = sEW + (j & 3)
            if d == 14: L[1] += f"\ns_add_u32 s93, s{sWn}, s{E_}"
            else:
                x = f"s_cmp_lg_u32 s{E_}, 0\ns_cselect_b32 s93, {d*65536}, 0"
                if (j >= 48) != (jl >= 48): x += f"\ns_cselect_b32 s43, s{sDel}, 0\n{'s_add_u32' if jl >= 48 else 's_sub_u32'} s93, s93, s43"
                L += [x, f"s_add_u32 s93, s93, s{sWn}"]
        L += [lambda: e.vm(f"buffer_load_dwordx4 v{vOW2}, {R(sRA)}, s{so} offen lds", ('W5', j)),
              lambda: e.vm(f"buffer_load_dwordx4 v{vOW2}, {R(sRB)}, s{so} offen offset:1024 lds", ('W5', j))]
        return self.wrap(L)
    def prefetch_ops(self): return [self.w_op(j) for j in range(self.LW)]
    def t_op(self, j):
        e = self.g.e; so = 63 if self.J else sT
        L = [f"s_add_u32 s{sT}, s{sT}, 4096"] if j and j & 3 == 0 else []
        if self.J: L = ["\n".join(L + [f"s_min_u32 s63, s{sEW + (j & 3)}, 4096"] + (["s_mul_i32 s63, s63, -13"] if j + 4 >= NS else []) + [f"s_add_u32 s63, s63, s{sT}"])]
        L += [lambda tt=tt: e.vm(f"buffer_load_dwordx4 {ar(aT(j, tt), 4)}, v{vOT+tt}, {R(sWS)}, s{so} offen offset:{1024*(j & 3)} sc1", ('T5', j)) for tt in range(2)]
        return self.wrap(L)
    def vm_ops(self, i):
        return (self.w_op(i + self.LW) if i + self.LW < NS else []) + (self.t_op(i + self.LT) if i + self.LT < NS else [])
    def clear_mailbox(self, e, voff, vt, lo):
        e(f"s_lshl_b32 s44, s2, 2\ns_add_u32 s44, s44, s{sWave}\ns_lshl_b32 s44, s44, 12\ns_add_u32 s44, s44, {lo}\ns_add_u32 s44, s44, {PB}")
        for r in range(4): e(f"v_mov_b32 v{vt+r}, -1")
        for q in range(4): e.vm(f"buffer_store_dwordx4 {vr(vt,4)}, v{voff}, {R(sWS)}, s44 offen offset:{1024*q} sc1")
    def setup_ops(self):
        r = Rec(self.g.e)
        r(f"s_and_b32 s43, s{sNj2}, 1")
        r(f"s_and_b32 s{sLine}, s{sMi2}, 14\ns_add_u32 s{sLine}, s{sLine}, s43\ns_lshl_b32 s{sLine}, s{sLine}, 7\ns_add_u32 s{sLine}, s{sLine}, s{sLo}\ns_add_u32 s{sLine}, s{sLine}, {FL + H3*128}")
        r(f"s_lshl_b32 s{sTile}, s{sMi2}, 3\ns_lshl_b32 s43, s{sWave}, 1\ns_add_u32 s{sTile}, s{sTile}, s43")
        r(f"s_lshl_b32 s{sXo}, s{sTile}, 15\ns_lshl_b32 s43, s{sNj2}, 11\ns_add_u32 s{sXo}, s{sXo}, s43\ns_add_u32 s{sXo}, s{sXo}, {self.g.lo('X')}")
        r(f"s_add_u32 s46, s{sXo}, {XB}\ns_add_u32 s47, s46, 32768\nv_lshlrev_b32 v{vOT}, 4, v{vL}\nv_add_u32 v{vOT+1}, {HPITCH}, v{vOT}")
        for tt in range(2):
            for p in range(2): r.vm(f"buffer_load_dwordx4 {vr(vR + (tt*2+p)*4, 4)}, v{vOT}, {R(sWS)}, s{46+tt} offen offset:{1024*p} sc1", 'R5')
        r(f"s_mul_i32 s{sT}, s{sTile}, {HPITCH}\ns_and_b32 s43, s{sNj2}, 1\ns_mul_i32 s44, s43, {56*1024}\ns_add_u32 s{sT}, s{sT}, s44\ns_add_u32 s{sT}, s{sT}, {self.g.lo('H')}\ns_add_u32 s{sT}, s{sT}, {HB}")
        r(f"v_bfe_u32 v11, v{vL}, 2, 3\nv_bfe_u32 v12, v{vL}, 3, 2\nv_and_b32 v13, 3, v{vL}\nv_lshlrev_b32 v13, 3, v13\nv_lshl_add_u32 v13, v11, 7, v13\nv_lshrrev_b32 v11, 5, v{vL}\nv_lshl_add_u32 v13, v11, 11, v13")
        for t in range(4): r(f"v_xor_b32 v11, {t}, v12\nv_lshl_add_u32 v{vW+t}, v11, 5, v13\nv_add_u32 v{vW+4+t}, 0x10000, v{vW+t}")
        return r.ops
    def ck_load(self): self.g.e.vm(f"buffer_load_dword v{vCk}, v{vZ}, {R(sWS)}, s{sLine} offen sc1", 'CK5')
    def ck(self, nm):
        e = self.g.e
        e.wait(vm='CK5')
        t = f"v_cmp_gt_u32 vcc, 16, v{vCk}\ns_cbranch_vccz L{nm}_ok"
        e(f"{t}\ns_mov_b32 s43, 0x40000\nL{nm}_sp:\ns_sleep {self.c.get('slp', 10)}\nbuffer_load_dword v{vCk}, v{vZ}, {R(sWS)}, s{sLine} offen sc1\ns_waitcnt vmcnt(0)\n{t}")
        e(f"s_sub_u32 s43, s43, 1\ns_cmp_lg_u32 s43, 0\ns_cbranch_scc1 L{nm}_sp\nL{nm}_ok:\ns_add_u32 s{sLine}, s{sLine}, {H3S}")
    def reads(self, k):
        e = self.g.e
        if k >= len(self.items): return []
        u, h = self.items[k]
        return [lambda n=n, kk=kk, j=j, i=2*u+kk: e.ds(f"ds_read_b64_tr_b16 {ar(aW(k, kk, n) + 2*j, 2)}, v{vW + n + (4 if i & 8 else 0)} offset:{(i & 7)*8192 + j*4096 + h*1024}", ('F5', k, n))
                for n in range(4) for kk in range(2) for j in range(2)]
    def first_t(self): return [f for j in range(self.LT) for f in self.t_op(j)]
    def init_ops(self):
        r = Rec(self.g.e)
        for x in range(0, 32, 2): r(f"v_pk_mul_f32 {vr(32+x,2)}, {vr(vZ-1,2)}, 0 op_sel:[1,0] op_sel_hi:[1,0]")
        r.wait(vm='R5')
        for tt in range(2):
            for n in range(4):
                for h in range(2):
                    src = vR + (tt*2 + (n >> 1))*4 + (n & 1)*2 + h
                    r(f"v_lshlrev_b32 v{acc(1,n,tt)+2*h}, 16, v{src}\nv_and_b32 v{acc(1,n,tt)+2*h+1}, 0xffff0000, v{src}")
        return r.ops
    def main(self, nx, p3):
        g = self.g; e = g.e; c = self.c; ND = self.ND; items = self.items; reads = self.reads
        g.stamp(); g.stamp()
        Pk = lambda tt, p: vR + (tt*2 + p)*4
        def cvt(r, h, tt, p):
            for q in range(4):
                a = acc(h, 2*p + (q >> 1), tt) + 2*(q & 1)
                r(f"v_cvt_pk_bf16_f32 v{Pk(tt,p)+q}, v{a}, v{a+1}")
        def mail_loads(r):
            for q in range(4): r.vm(f"buffer_load_dwordx4 {vr(vM+4*q,4)}, v{vOT}, {R(sWS)}, s45 offen offset:{1024*q} sc1", 'MB')
        def mail_check():
            e(f"s_mov_b32 s43, 0x40000\nLp4_mb:\ns_waitcnt vmcnt(0)")
            e(f"v_max3_u32 v{vU}, v{vM}, v{vM+1}, v{vM+2}\nv_max3_u32 v{vU+1}, v{vM+3}, v{vM+4}, v{vM+5}")
            for x in range(5): e(f"v_max3_u32 v{vU + (x&1)}, v{vU + (x&1)}, v{vM+6+2*x}, v{vM+7+2*x}")
            e(f"v_max_u32 v{vU}, v{vU}, v{vU+1}\nv_cmp_eq_u32 vcc, -1, v{vU}\ns_cbranch_vccz Lp4_mbok")
            mail_loads(e); e(f"s_sub_u32 s43, s43, 1\ns_cmp_lg_u32 s43, 0\ns_cbranch_scc1 Lp4_mb\ns_waitcnt vmcnt(0)\nLp4_mbok:"); e.vm_done = len(e.vmq)
        def out_addr(r):
            r(f"s_add_u32 s46, s{sXo}, {XA + g.lp('X')}\ns_add_u32 s47, s46, 32768")
            r(f"s_lshl_b32 s48, s{sTile}, 11\ns_lshl_b32 s43, s{sNj2}, 7\ns_add_u32 s48, s48, s43\ns_add_u32 s48, s48, {STA + LP}")
            r(f"s_and_b32 s57, s{sTile}, 63\ns_lshl_b32 s57, s57, 16\ns_add_u32 s57, s57, s43\ns_lshr_b32 s43, s{sTile}, 6\ns_lshl_b32 s43, s43, 11\ns_add_u32 s57, s57, s43")
            r(f"s_and_b32 s43, s{sNj2}, {g.SH-1}\ns_mul_i32 s77, s{sMi2}, {g.SH}\ns_add_u32 s77, s77, s43\ns_lshl_b32 s77, s77, 7\ns_add_u32 s77, s77, {FL + H4*128}")
        def final_addr(r):
            r(f"v_and_b32 v152, 15, v{vL}\nv_lshrrev_b32 v153, 4, v{vL}\nv_lshrrev_b32 v155, 1, v153\nv_and_b32 v153, 1, v153\nv_lshl_add_u32 v153, v153, 1, v155")
            r(f"v_and_b32 v155, 7, v{vL}\nv_xor_b32 v153, v153, v155\nv_lshlrev_b32 v153, 4, v153\nv_lshl_add_u32 v152, v152, 7, v153\ns_lshl_b32 s43, s{sWave}, 12\nv_add_u32 v152, s43, v152\nv_xor_b32 v153, 64, v152")
            r(f"v_lshrrev_b32 v156, 3, v{vL}\nv_xor_b32 v154, v156, v155\nv_lshlrev_b32 v154, 4, v154\nv_lshl_add_u32 v154, v156, 7, v154\nv_add_u32 v154, s43, v154")
            r(f"v_lshlrev_b32 v155, 4, v155\nv_lshl_add_u32 v155, v156, 12, v155")
        kB = len(items) - ND
        for k, (u, h) in enumerate(items):
            if k % 16 == 0 and k <= 32: e.mark(f"p4b{k//16}")
            fill = [[] for _ in range(16)]
            if h == 0 and u % 2 == 0:
                def bar(u=u):
                    e.wait(vm=[('W5', x) for x in range(2*u+2, min(2*u+6, NS))], force=True); e("s_barrier")
                    if u % 8 == self.LT//2 + (self.LT//2 & 1) and u < 16: p3.signal_last()
                fill[0].append(bar)
            for z, f in enumerate(reads(k+1)): fill[z].append(f)
            kc = 16 - self.LT - 4*self.J
            if k < 32 and k % 16 == kc: fill[0].append(lambda k=k: self.ck("p4b" if c.get('fold', 1) else f"p4b{k}"))
            if k < 32 and k % 16 == max(kc - 3, 0): fill[0].append(self.ck_load)
            if u < 28 - ND: ops = self.vm_ops(2*u + h)
            else: ops = self.vm_ops(2*u) + self.vm_ops(2*u+1) if h == 0 else []
            if c.get('even', 1): space(fill, ops, lambda f: f.vm, c.get('first', 2))
            else:
                for z, f in enumerate(ops): fill[1 + (z*14)//len(ops)].append(f)
            if k == len(items) - 1: fill[9].append(lambda: (e.wait(ds='all'), e("s_barrier")))
            if k == kB:
                r = Rec(e)
                r(f"s_lshl_b32 s45, s2, 2\ns_add_u32 s45, s45, s{sWave}\ns_lshl_b32 s45, s45, 12\ns_xor_b32 s44, s45, {g.px*4*4096}\ns_add_u32 s43, s{sLo}, {PB}\ns_add_u32 s44, s44, s43\ns_add_u32 s45, s45, s43")
                for p in range(2):
                    for tt in range(2):
                        cvt(r, 0, tt, p); r.vm(f"buffer_store_dwordx4 {vr(Pk(tt,p),4)}, v{vOT}, {R(sWS)}, s44 offen offset:{1024*(tt*2+p)} sc1")
                pour(fill, r.ops, 0, 16, cap=3); assert not r.ops
            if k == kB + 1:
                r = Rec(e); stats_pre(r, vL, 128, 66); pour(fill, r.ops, 0, 16); assert not r.ops
            if k == kB + 2:
                r = Rec(e); final_addr(r); pour(fill, r.ops, 0, 16, cap=3); assert not r.ops
            if k == kB + 3:
                r = Rec(e); out_addr(r); pour(fill, r.ops, 0, 16, cap=3); assert not r.ops
            if k == len(items) - c.get('XL', 3):
                r = Rec(e); mail_loads(r); pour(fill, r.ops, c.get('XO', 4), 16, cap=3, step=2); assert not r.ops
            if k == len(items) - 2: fill[15].append(mail_check)
            if k == len(items) - 1:
                r = Rec(e)
                for p in range(2):
                    for tt in range(2):
                        for q in range(4):
                            src = vM + (tt*2 + p)*4 + q; a = acc(0, 2*p + (q >> 1), tt) + 2*(q & 1)
                            r(f"v_lshlrev_b32 v{a}, 16, v{src}\nv_and_b32 v{a+1}, 0xffff0000, v{src}")
                pour(fill, r.ops, 0, 15, cap=2); pour(fill, r.ops, 15, 16, cap=4); assert not r.ops
            seq = []; kk = 0
            for n in range(4):
                for tt in ((1, 0) if n & 1 else (0, 1)): seq += [(n, tt, kk), (n, tt, 1-kk)]; kk = 1 - kk
            for z, (n, tt, kk) in enumerate(seq):
                e.wait(vm=('T5', 2*u+1) if z == 0 and h == 0 else None, ds=('F5', k, n | 1), force=(z == 0 and h == 0))
                a = vr(acc(h, n, tt), 4)
                e(f"{MF} {a}, {ar(aW(k, kk, n), 4)}, {ar(aT(2*u+kk, tt), 4)}, {a}")
                for f in fill[z]: f()
        if c.get('fold', 1): e.fold([f"p4b{k}" for k in range(3)], "Lp4_loop", f"s{sCnt}")
        g.stamp()
        def addp(tt, p):
            for q in range(4):
                a = 2*(q & 1); n = 2*p + (q >> 1)
                e(f"v_pk_add_f32 {vr(acc(1,n,tt)+a,2)}, {vr(acc(1,n,tt)+a,2)}, {vr(acc(0,n,tt)+a,2)}")
        for p in range(2):
            for tt in (1, 0): addp(tt, p); cvt(e, 1, tt, p)
        e(f"s_cmp_eq_u32 s{sLay}, 0\ns_cbranch_scc1 Lp4_mid")
        for tt in range(2):
            for p in range(2): e(f"v_permlane16_swap_b32 v{Pk(tt,p)}, v{Pk(tt,p)+2}\nv_permlane16_swap_b32 v{Pk(tt,p)+1}, v{Pk(tt,p)+3}")
            for p in range(2): e(f"ds_write_b128 v{152+p}, {vr(Pk(tt,p),4)} offset:{2048*tt}")
            for x in range(2): e(f"ds_read_b128 {vr(vM+8*tt+4*x,4)}, v154 offset:{2048*tt + 1024*x}")
        for x in range(4):
            e(f"s_waitcnt lgkmcnt({(5, 4, 1, 0)[x]})\nbuffer_store_dwordx4 {vr(vM+4*x,4)}, v155, {R(sOut)}, s57 offen sc1\ns_add_u32 s57, s57, 32768")
        g.stamp()
        e("s_branch Lend\nLp4_mid:" if g.diag else "s_endpgm\nLp4_mid:")
        for p in range(2):
            for tt in range(2): e.vm(f"buffer_store_dwordx4 {vr(Pk(tt,p),4)}, v{vOT}, {R(sWS)}, s{46+tt} offen offset:{1024*p} sc1", 'OUT5')
            stats_mfma(e, Pk, p, 128)
        stats_post(e, 128, 66, 48, 'OUT5')
        g.stamp()
        e(f"s_mov_b32 s{sLay}, 1\ns_mov_b32 s{sLo}, {hex(LP)}")
        g.signal('OUT5', 77, nx.pre)
        nx.window()
        e("s_branch Llayer")
```

```python
import re, os
from mg import *
from p1 import P1
from p3 import P3
from side import Side
from p2 import P2
from p4s import P4S
from p4q import P4Q

def build(cfg):
    g = G(cfg); e = g.e
    p1, p2, p3, p4 = P1(g), P2(g), P3(g), (P4Q if g.q4 else P4S)(g)
    p1.p4 = p4
    p1.side = p2.side = Side(g)
    if g.diag: e("s_memtime s[96:97]\ns_memrealtime s[98:99]")
    srds = [(sAs, 0, S*D*2), (sWq, 8, D*3*D*2), (sWS, 72, WS_BYTES), (sWo, 16, D*D*2), (sWg, 32, D*F*2), (sWu, 40, D*F*2), (sWd, 48, F*D*2), (sOut, 56, S*D*2), (sDbg, 64, 256)]
    e(f"s_cmp_lt_u32 s2, 256\ns_cbranch_scc1 Lgo\ns_endpgm\nLgo:")
    for r, off, n in srds[:2]: e(f"s_load_dwordx2 s[{r}:{r+1}], s[0:1], {off}")
    e(f"s_getpc_b64 s[44:45]\nLpc0:\ns_bfe_u32 s43, s2, 0x40003\ns_lshl_b32 s43, s43, 12\nv_lshl_add_u32 v2, v0, 4, s43\ns_and_b32 s44, s44, 0xffffff80")
    if cfg.get('touch', 1): e.vm("global_load_dwordx4 a[240:243], v2, s[44:45]")
    e(f"v_lshrrev_b32 v1, 6, v0\nv_and_b32 v{vL}, 63, v0\nv_readfirstlane_b32 s{sWave}, v1\nv_mov_b32 v{vZ}, 0")
    for r, off, n in srds[:2]: e(f"s_mov_b32 s{r+2}, {hex(n)}\ns_mov_b32 s{r+3}, 0x20000")
    e(f"s_and_b32 s44, s2, 1\ns_bfe_u32 s45, s2, 0x20001\ns_lshr_b32 s46, s2, 3")
    e(f"s_lshl_b32 s47, s44, 3\ns_and_b32 s43, s46, 7\ns_add_u32 s{sMi1}, s47, s43\ns_lshl_b32 s43, s45, 2\ns_lshr_b32 s{sHj}, s46, 3\ns_add_u32 s{sHj}, s{sHj}, s43")
    def kernargs():
        e("s_waitcnt lgkmcnt(0)")
        if g.diag: e("v_mov_b32 v254, 0\nv_mov_b32 v255, 0\nv_writelane_b32 v254, s96, 0\nv_writelane_b32 v255, s98, 0\ns_mov_b32 s95, 1")
        if cfg.get('st0'): g.stamp()
    def more():
        for r, off, n in srds[2:]: e(f"s_load_dwordx2 s[{r}:{r+1}], s[0:1], {off}")
    def rest():
        for r, off, n in srds[2:]: e(f"s_mov_b32 s{r+2}, {hex(n)}\ns_mov_b32 s{r+3}, 0x20000")
        e(f"s_mov_b32 s{sLay}, 0\ns_mov_b32 s{sLo}, 0")
        e(f"s_and_b32 s44, s2, 1\ns_bfe_u32 s45, s2, 0x20001\ns_lshr_b32 s46, s2, 3")
        e(f"s_lshl_b32 s47, s44, 3")
        if g.q4:
            e(f"s_and_b32 s48, s46, 3\ns_lshl_b32 s43, s48, 1\ns_add_u32 s{sMi2}, s47, s43\ns_lshr_b32 s43, s45, 1\ns_xor_b32 s43, s43, s48\ns_and_b32 s43, s43, 1\ns_add_u32 s{sMi2}, s{sMi2}, s43")
            e(f"s_and_b32 s43, s45, 1\ns_lshr_b32 s49, s46, 2\ns_lshl_b32 s{sNj2}, s49, 1\ns_add_u32 s{sNj2}, s{sNj2}, s43")
        elif g.px == 32:
            e(f"s_and_b32 s43, s45, 1\ns_lshl_b32 s43, s43, 2\ns_add_u32 s{sMi2}, s47, s43\ns_and_b32 s48, s46, 3\ns_add_u32 s{sMi2}, s{sMi2}, s48")
            e(f"s_lshr_b32 s43, s45, 1\ns_lshl_b32 s43, s43, 3\ns_lshr_b32 s49, s46, 2\ns_add_u32 s{sNj2}, s43, s49")
        else:
            e(f"s_lshr_b32 s43, s45, 1\ns_lshl_b32 s43, s43, 2\ns_add_u32 s{sMi2}, s47, s43\ns_and_b32 s48, s46, 3\ns_add_u32 s{sMi2}, s{sMi2}, s48")
            e(f"s_and_b32 s43, s45, 1\ns_lshr_b32 s49, s46, 2\ns_lshl_b32 s{sNj2}, s49, 1\ns_add_u32 s{sNj2}, s{sNj2}, s43")
        e(f"s_lshl_b32 s43, s44, 2\ns_add_u32 s{sMi3}, s43, s48\ns_lshl_b32 s43, s45, 3\ns_add_u32 s{sNj3}, s43, s49")
        e(f"v_lshrrev_b32 v2, 3, v{vL}\nv_bfe_u32 v3, v{vL}, 1, 2\nv_lshrrev_b32 v4, 4, v{vL}\nv_xor_b32 v3, v3, v4\nv_and_b32 v4, 1, v{vL}")
        e(f"v_lshlrev_b32 v2, 11, v2\nv_lshl_add_u32 v2, v3, 5, v2\nv_lshl_add_u32 v{vOW2}, v4, 4, v2\ns_waitcnt lgkmcnt(0)")
    p1.prep_and_start(kernargs, more, rest)
    e("s_branch Lp1_common")
    e("Llayer:")
    p1.start_l2()
    e("Lp1_common:")
    p1.main(p2)
    p2.main(p3)
    p3.main(p4)
    p4.main(p1, p3)
    e("Lend:")
    if g.diag:
        e("s_waitcnt vmcnt(0)"); g.stamp()
        e(f"s_lshl_b32 s43, s2, 2\ns_add_u32 s43, s43, s{sWave}\ns_lshl_b32 s43, s43, 9\ns_add_u32 s43, s43, {hex(DIAG)}\nv_lshlrev_b32 v0, 3, v{vL}")
        e(f"buffer_store_dwordx2 v[254:255], v0, {R(sWS)}, s43 offen")
    e("s_endpgm")
    p1.side.subroutine(p2)
    for L in g.colds.values(): e.L += L
    e(f"Lcode_end:\n.fill (Lpc0 + {69632 if g.diag else 65536} - Lcode_end)/4, 4, 0xbf810000")
    import opt
    names = [l[:-1] for l in e.L if re.fullmatch(r"L(p\d_loop|mk_\w+):", l)]
    if cfg.get('rep'): print("before", opt.report(e.L, names))
    if cfg.get('pack', 1): e.L, mv = opt.pack(e.L, cfg.get('bal', 1))
    if cfg.get('rep'): print("after ", opt.report(e.L, names))
    for b in opt.check(e.L): print("HAZARD", b)
    hdr = open(os.path.join(os.path.dirname(os.path.abspath(__file__)), "header.txt")).read().split("; Override launch")[0]
    hdr += f"; generated by gen/mega.py (persistent kernel, one workgroup per CU)\n; @launch grid=(256,1,1) block=(256,1,1) lds={LDS_BYTES}\n"
    return hdr + '.amdgcn_target "amdgcn-amd-amdhsa--gfx950"\n.text\n' + entry(NAME + "_kernel") + e.text() + '.section .rodata,"a"\n' + kd(NAME + "_kernel")
if __name__ == "__main__":
    cfg = json.loads(sys.argv[2]) if len(sys.argv) > 2 else {}
    open(sys.argv[1], "w").write(build(cfg))
```

```python
from mg import *
from p1 import RES, vRo
sM0, sRot, sT, sX, sSt = 89, 88, 57, 58, 60
vW, vOT, vR, vS = 40, 48, 52, 72
acc = lambda n, tt: (n*2 + tt)*4
aW = lambda u, kk, n: 128 + (u & 1)*32 + kk*16 + n*4
class P2:
    def __init__(self, g): self.g = g; self.c = g.cfg.get('p2', {}); self.LT = self.c.get('LT', 6); self.RB = self.c.get('RB', 0); self.P = 8 if self.LT <= 6 else 16
    def aT(self, j, tt): return (j % self.P)*8 + tt*4
    def prefetch_setup(self):
        return [f"s_lshl_b32 s92, s{sNj2}, 7", f"s_lshl_b32 s93, s{sWave}, 14", "s_add_u32 s92, s92, s93", f"s_lshl_b32 s{sM0}, s{sWave}, 10", f"v_add_u32 v186, s92, v{vOW2}",
                f"s_bfe_u32 s{sRot}, s2, {hex(self.RB*0x10000 + 5)}", f"s_lshl_b32 s{sRot}, s{sRot}, {21 - self.RB}"]
    def prefetch_ops(self):
        e = self.g.e
        return [[lambda j=j: e(f"s_add_u32 m0, s{sM0}, {j*4096}"), lambda j=j: e(f"s_xor_b32 s92, s{sRot}, {j*65536}"),
                 lambda j=j: e.vm(f"buffer_load_dwordx4 v186, {R(sWo)}, s92 offen lds", ('W2', j))] for j in range(32)]
    def t_ops(self, j):
        r = Rec(self.g.e)
        if j < 32:
            if j % 4 == 0: r((f"s_add_u32 s{sT}, s{sT}, 4096\t" if j else f"s_lshr_b32 s{sRot}, s{sRot}, 6\t") + f"s_xor_b32 s93, s{sT}, s{sRot}")
            for tt in range(2): r.vm(f"buffer_load_dwordx4 {ar(self.aT(j, tt), 4)}, v{vOT+tt}, {R(sWS)}, s93 offen offset:{1024*(j & 3)} sc1", ('T2', j))
        return r.ops
    def pre(self):
        g = self.g; e = g.e
        e(f"s_lshl_b32 s44, s{sMi2}, 3\ns_lshl_b32 s43, s{sWave}, 1\ns_add_u32 s44, s44, s43\ns_lshl_b32 s45, s44, 15\ns_add_u32 s{sT}, s45, {g.lo('O')}\ns_add_u32 s{sT}, s{sT}, {OB}")
        e(f"s_lshl_b32 s43, s{sNj2}, 11\ns_add_u32 s45, s45, s43\ns_add_u32 s45, s45, {g.lo('X')}\ns_add_u32 s{sX}, s45, {XB}\ns_add_u32 s{sX+1}, s{sX}, 32768")
        e(f"s_lshl_b32 s44, s44, 11\ns_lshl_b32 s43, s{sNj2}, 7\ns_add_u32 s44, s44, s43\ns_add_u32 s44, s44, s{sLo}\ns_add_u32 s{sSt}, s44, {STB}")
        e(f"v_lshlrev_b32 v{vOT}, 4, v{vL}\nv_add_u32 v{vOT+1}, 32768, v{vOT}")
        e(f"s_cmp_eq_u32 s{sLay}, 0\ns_cselect_b32 s44, 32, 8\ns_cselect_b32 s45, 64, 0x400\ns_lshl_b32 s43, s{sWave}, 12\ns_add_u32 s43, s43, {RES}")
        e(f"v_xor_b32 v3, s44, v{vRo}\nv_xor_b32 v4, s45, v{vRo}\nv_xor_b32 v5, s45, v3\nv_add_u32 v2, s43, v{vRo}\nv_add_u32 v3, s43, v3\nv_add_u32 v4, s43, v4\nv_add_u32 v5, s43, v5")
        e.wait(vm='R')
        for tt in range(2):
            for q in range(4): e.ds(f"ds_read_b64 {vr(vR + tt*8 + 2*q, 2)}, v{2+q} offset:{2048*tt}", 'RR')
        e(f"v_lshrrev_b32 v2, 2, v{vL}\nv_bfe_u32 v3, v{vL}, 3, 2\nv_and_b32 v4, 3, v{vL}\nv_lshlrev_b32 v4, 3, v4\nv_lshl_add_u32 v4, v2, 7, v4")
        for t in range(4): e(f"v_xor_b32 v5, {t}, v3\nv_lshl_add_u32 v{vW+t}, v5, 5, v4")
        self.side.acc(); e.wait(ds='RR')
    def window(self, nxt):
        g = self.g; e = g.e
        for op in nxt:
            for f in op: f()
        for tt in range(2):
            for n in range(4):
                for h in range(2):
                    src = vR + (tt*2 + (n >> 1))*4 + (n & 1)*2 + h
                    e(f"v_lshlrev_b32 v{acc(n,tt)+2*h}, 16, v{src}\nv_and_b32 v{acc(n,tt)+2*h+1}, 0xffff0000, v{src}")
        stats_pre(e, vL, vS, 64)
        self.side.publish()
        e(f"s_lshl_b32 s77, s{sMi2}, 8\ns_add_u32 s77, s77, {FL + H1*128}\nv_lshlrev_b32 v249, 7, v{vL}\ns_add_u32 s77, s77, s{sLo}")
    def main(self, nx):
        g = self.g; e = g.e
        g.poll(77, 8, voff=249)
        L0 = self.c.get('L0', self.LT)
        for j in range(L0):
            for f in self.t_ops(j): f()
        self.side.final()
        def reads(u):
            r = Rec(e)
            for n in range(4 if u < 16 else 0):
                for kk in range(2):
                    for j in range(2): r.ds(f"ds_read_b64_tr_b16 {ar(aW(u, kk, n) + 2*j, 2)}, v{vW+n} offset:{((2*u+kk) % 8)*4096 + j*2048}", ('F2', u, n))
            return r.ops
        for f in reads(0): f()
        for j in range(L0, self.LT):
            for f in self.t_ops(j): f()
        e(f"s_and_b32 s43, s{sNj2}, {g.SH-1}\ns_mul_i32 s77, s{sMi2}, {g.SH}\ns_add_u32 s77, s77, s43\ns_lshl_b32 s77, s77, 7\ns_add_u32 s77, s77, s{sLo}\ns_add_u32 s77, s77, {FL + H2*128}")
        g.stamp()
        Pk = lambda tt, p: vR + (tt*2 + p)*4
        def out(r, tt, p):
            for q in range(4):
                a = acc(2*p + (q >> 1), tt) + 2*(q & 1)
                r(f"v_cvt_pk_bf16_f32 v{Pk(tt,p)+q}, v{a}, v{a+1}")
            r.vm(f"buffer_store_dwordx4 {vr(Pk(tt,p),4)}, v{vOT}, {R(sWS)}, s{sX+tt} offen offset:{1024*p} sc1", 'OUT2')
        for u in range(16):
            if u % 4 == 0: e.mark(f"p2b{u//4}")
            S = Slots(16)
            for k, f in enumerate(reads(u+1)): S.ve[k].append(f)
            if u % 4 == 2:
                for n in range(4): S.ve[4*n+3].append(lambda n=n: e(f"v_add_u32 v{vW+n}, 32768, v{vW+n}"))
            k = 1
            for f in self.t_ops(2*u + self.LT) + self.t_ops(2*u + self.LT + 1):
                if getattr(f, 'sc', False): S.sc[k].append(f)
                else: S.ve[k].append(f); k += 4
            if u == 15:
                r = Rec(e); out(r, 1, 0); out(r, 0, 0); S.pour(r.ops, 11, 16)
                for k in (8, 9, 10): S.sc[k].append(lambda: e("s_nop 0"))
            seq = []; kk = 0
            for n in range(4):
                for tt in ((1, 0) if n & 1 else (0, 1)): seq += [(n, tt, kk), (n, tt, 1-kk)]; kk = 1 - kk
            for k, (n, tt, kk) in enumerate(seq):
                e.wait(vm=('T2', 2*u+1) if k == 0 else None, ds=('F2', u, n | 1))
                a = vr(acc(n, tt), 4)
                e(f"{MF} {a}, {ar(aW(u, kk, n), 4)}, {ar(self.aT(2*u+kk, tt), 4)}, {a}")
                S.emit(k)
        if self.P == 8: e.fold([f"p2b{k}" for k in range(4)], "Lp2_loop", f"s{sCnt}")
        g.stamp()
        stats_mfma(e, Pk, 0, vS); out(e, 1, 1); out(e, 0, 1); e("s_nop 0"); stats_mfma(e, Pk, 1, vS)
        stats_post(e, vS, 64, sSt, 'OUT2')
        g.stamp()
        g.signal('OUT2', 77, nx.pre)
        self.side.arrive()
        nx.window()
```

```python
from mg import *
sRA, sRB, sEW, sWn, sM0, sDel = 80, 84, 88, 92, 79, 78
sET, sT, sTile, sXo, sFld, sLine = 63, 48, 49, 76, 65, 64
vW, vOT, vR, vCk, vM, vU = 0, 8, 16, 10, 96, 112
aT = lambda j, tt: 128 + (j % 16)*8 + tt*4
aW = lambda k, kk, n: (k & 1)*32 + kk*16 + n*4
acc = lambda h, n, tt: 32 + h*32 + (n*2 + tt)*4
NS = 56
def kb(j): return 7*((j & 15) >> 1) + 4*(j & 1) + (j >> 4) if j < 48 else 7*(j - 48) + 3
class P4S:
    NQ = 2
    def __init__(self, g):
        self.g = g; self.c = g.cfg.get('p4', {})
        self.LT = self.c.get('LT', 8); self.LW = self.c.get('LW', 12); self.J = self.c.get('jump', 1); self.PD = self.c.get('PD', 4); self.NL = self.PD//4; self.ND = ND = self.c.get('ND', 8)
        self.items = [(u, h) for u in range(28 - ND) for h in range(2)] + [(u, h) for h in range(2) for u in range(28 - ND, 28)]
    def prefetch_setup(self):
        L = [f"s_xor_b32 s93, s{sNj2}, 1", "s_lshl_b32 s93, s93, 7", f"s_add_u32 s{sRA}, s{sWd}, s93\ns_addc_u32 s{sRA+1}, s{sWd+1}, 0", f"s_sub_u32 s{sRA+2}, {F*D*2}, s93", f"s_mov_b32 s{sRA+3}, 0x20000",
             f"s_lshl_b32 s93, s{sNj2}, 7", f"s_add_u32 s{sRB}, s{sWd}, s93\ns_addc_u32 s{sRB+1}, s{sWd+1}, 0", f"s_sub_u32 s{sRB}, s{sRB}, 1024\ns_subb_u32 s{sRB+1}, s{sRB+1}, 0",
             f"s_sub_u32 s{sRB+2}, {F*D*2 + 1024}, s93", f"s_mov_b32 s{sRB+3}, 0x20000",
             f"s_and_b32 s93, s{sNj2}, 1", f"s_mul_i32 s{sWn}, s93, {56*65536}", f"s_lshl_b32 s93, s{sWave}, 14", f"s_add_u32 s{sWn}, s{sWn}, s93", f"s_lshl_b32 s{sM0}, s{sWave}, 11"]
        if self.J == 2: L += [f"s_lshr_b32 s93, s{sNj2}, 1", f"s_add_u32 s93, s93, s{sMi2}", "s_and_b32 s93, s93, 1", f"s_mul_i32 s{sEW}, s93, {28*65536}"]
        elif self.J: L += [f"s_lshr_b32 s93, s{sNj2}, 1", f"s_add_u32 s93, s93, s{sMi2}", "s_and_b32 s93, s93, 3"] + [f"s_cmp_eq_u32 s93, {q}\ns_cselect_b32 s{sEW+q}, {14*65536}, 0" for q in range(4)]
        L += [f"s_cmp_eq_u32 s{sWave}, 1\ns_cselect_b32 s{sDel}, 16384, 0", f"s_cmp_eq_u32 s{sWave}, 2\ns_cselect_b32 s{sDel}, -16384, s{sDel}"]
        return L
    def wrap(self, L):
        out = []
        for x in L:
            f = x if callable(x) else (lambda x=x: self.g.e(x))
            f.vm = callable(x); f.sc = not f.vm; out.append(f)
        return out
    def w_op(self, j):
        e = self.g.e; J = self.J; so = 93 if J else sWn
        L = [f"s_add_u32 m0, s{sM0}, {(j % 16)*8192}", f"s_add_u32 s{sWn}, s{sWn}, {(kb(j) - kb(j-1))*65536 if j else 0}"]
        if j == 48: L[1] += f"\ns_add_u32 s{sWn}, s{sWn}, s{sDel}"
        if J == 2:
            jl = j ^ (8 if j < 48 else 4); assert abs(kb(jl) - kb(j)) == 28
            L[1] += f"\n{'s_add_u32' if jl > j else 's_sub_u32'} s93, s{sWn}, s{sEW}"
        elif J:
            jl = (j + 4) % NS; d = kb(jl) - kb(j); E_ = sEW + (j & 3)
            if d == 14: L[1] += f"\ns_add_u32 s93, s{sWn}, s{E_}"
            else:
                x = f"s_cmp_lg_u32 s{E_}, 0\ns_cselect_b32 s93, {d*65536}, 0"
                if (j >= 48) != (jl >= 48): x += f"\ns_cselect_b32 s43, s{sDel}, 0\n{'s_add_u32' if jl >= 48 else 's_sub_u32'} s93, s93, s43"
                L += [x, f"s_add_u32 s93, s93, s{sWn}"]
        L += [lambda: e.vm(f"buffer_load_dwordx4 v{vOW2}, {R(sRA)}, s{so} offen lds", ('W5', j)),
              lambda: e.vm(f"buffer_load_dwordx4 v{vOW2}, {R(sRB)}, s{so} offen offset:1024 lds", ('W5', j))]
        return self.wrap(L)
    def prefetch_ops(self): return [self.w_op(j) for j in range(self.LW)]
    def t_op(self, j):
        e = self.g.e; so = 63 if self.J else sT
        L = [f"s_add_u32 s{sT}, s{sT}, 4096"] if j and j & 3 == 0 else []
        if self.J == 2:
            if j & 3 == 0: L = ["\n".join(L + [f"s_min_u32 s63, s{sEW}, {8192 if j < 48 else 4096}", f"s_add_u32 s63, s{sT}, s63" if (j ^ (8 if j < 48 else 4)) > j else f"s_sub_u32 s63, s{sT}, s63"])]
        elif self.J: L = ["\n".join(L + [f"s_min_u32 s63, s{sEW + (j & 3)}, 4096"] + (["s_mul_i32 s63, s63, -13"] if j + 4 >= NS else []) + [f"s_add_u32 s63, s63, s{sT}"])]
        L += [lambda tt=tt: e.vm(f"buffer_load_dwordx4 {ar(aT(j, tt), 4)}, v{vOT+tt}, {R(sWS)}, s{so} offen offset:{1024*(j & 3)} sc1", ('T5', j)) for tt in range(2)]
        return self.wrap(L)
    def vm_ops(self, i):
        return (self.w_op(i + self.LW) if i + self.LW < NS else []) + (self.t_op(i + self.LT) if i + self.LT < NS else [])
    def clear_mailbox(self, e, voff, vt, lo):
        e(f"s_lshl_b32 s44, s2, 2\ns_add_u32 s44, s44, s{sWave}\ns_lshl_b32 s44, s44, 12\ns_add_u32 s44, s44, {lo}\ns_add_u32 s44, s44, {PB}")
        for r in range(4): e(f"v_mov_b32 v{vt+r}, -1")
        for q in range(4): e.vm(f"buffer_store_dwordx4 {vr(vt,4)}, v{voff}, {R(sWS)}, s44 offen offset:{1024*q} sc1")
    def setup_ops(self):
        r = Rec(self.g.e)
        r(f"s_and_b32 s43, s{sNj2}, 1")
        r(f"s_and_b32 s{sLine}, s{sMi2}, 14\ns_add_u32 s{sLine}, s{sLine}, s43\ns_lshl_b32 s{sLine}, s{sLine}, 7\ns_add_u32 s{sLine}, s{sLine}, s{sLo}\ns_add_u32 s{sLine}, s{sLine}, {FL + H3*128}")
        r(f"s_lshl_b32 s{sTile}, s{sMi2}, 3\ns_lshl_b32 s43, s{sWave}, 1\ns_add_u32 s{sTile}, s{sTile}, s43")
        r(f"s_lshl_b32 s{sXo}, s{sTile}, 15\ns_lshl_b32 s43, s{sNj2}, 11\ns_add_u32 s{sXo}, s{sXo}, s43\ns_add_u32 s{sXo}, s{sXo}, {self.g.lo('X')}")
        r(f"s_add_u32 s46, s{sXo}, {XB}\ns_add_u32 s47, s46, 32768\nv_lshlrev_b32 v{vOT}, 4, v{vL}\nv_add_u32 v{vOT+1}, {HPITCH}, v{vOT}")
        for tt in range(2):
            for p in range(2): r.vm(f"buffer_load_dwordx4 {vr(vR + (tt*2+p)*4, 4)}, v{vOT}, {R(sWS)}, s{46+tt} offen offset:{1024*p} sc1", 'R5')
        r(f"s_mul_i32 s{sT}, s{sTile}, {HPITCH}\ns_and_b32 s43, s{sNj2}, 1\ns_mul_i32 s44, s43, {56*1024}\ns_add_u32 s{sT}, s{sT}, s44\ns_add_u32 s{sT}, s{sT}, {self.g.lo('H')}\ns_add_u32 s{sT}, s{sT}, {HB}")
        r(f"v_bfe_u32 v11, v{vL}, 2, 3\nv_bfe_u32 v12, v{vL}, 3, 2\nv_and_b32 v13, 3, v{vL}\nv_lshlrev_b32 v13, 3, v13\nv_lshl_add_u32 v13, v11, 7, v13\nv_lshrrev_b32 v11, 5, v{vL}\nv_lshl_add_u32 v13, v11, 11, v13")
        for t in range(4): r(f"v_xor_b32 v11, {t}, v12\nv_lshl_add_u32 v{vW+t}, v11, 5, v13\nv_add_u32 v{vW+4+t}, 0x10000, v{vW+t}")
        return r.ops
    def ck_load(self): self.g.e.vm(f"buffer_load_dword v{vCk}, v{vZ}, {R(sWS)}, s{sLine} offen sc1", 'CK5')
    def ck(self, nm):
        e = self.g.e
        e.wait(vm='CK5')
        t = f"v_cmp_gt_u32 vcc, 16, v{vCk}\ns_cbranch_vccz L{nm}_ok"
        e(f"{t}\ns_mov_b32 s43, 0x40000\nL{nm}_sp:\n{self.g.backoff}buffer_load_dword v{vCk}, v{vZ}, {R(sWS)}, s{sLine} offen sc1\ns_waitcnt vmcnt(0)\n{t}")
        e(f"s_sub_u32 s43, s43, 1\ns_cmp_lg_u32 s43, 0\ns_cbranch_scc1 L{nm}_sp\nL{nm}_ok:\ns_add_u32 s{sLine}, s{sLine}, {H3S}")
    def reads(self, k):
        e = self.g.e
        if k >= len(self.items): return []
        u, h = self.items[k]
        return [lambda n=n, kk=kk, j=j, i=2*u+kk: e.ds(f"ds_read_b64_tr_b16 {ar(aW(k, kk, n) + 2*j, 2)}, v{vW + n + (4 if i & 8 else 0)} offset:{(i & 7)*8192 + j*4096 + h*1024}", ('F5', k, n))
                for n in range(4) for kk in range(2) for j in range(2)]
    def first_t(self): return [f for j in range(self.LT) for f in self.t_op(j)]
    def init_ops(self):
        r = Rec(self.g.e)
        for x in range(0, 32, 2): r(f"v_pk_mul_f32 {vr(32+x,2)}, {vr(vZ-1,2)}, 0 op_sel:[1,0] op_sel_hi:[1,0]")
        r.wait(vm='R5')
        for tt in range(2):
            for n in range(4):
                for h in range(2):
                    src = vR + (tt*2 + (n >> 1))*4 + (n & 1)*2 + h
                    r(f"v_lshlrev_b32 v{acc(1,n,tt)+2*h}, 16, v{src}\nv_and_b32 v{acc(1,n,tt)+2*h+1}, 0xffff0000, v{src}")
        return r.ops
    def main(self, nx, p3):
        g = self.g; e = g.e; c = self.c; ND = self.ND; items = self.items; reads = self.reads
        g.stamp(); g.stamp()
        Pk = lambda tt, p: vR + (tt*2 + p)*4
        def cvt(r, h, tt, p):
            for q in range(4):
                a = acc(h, 2*p + (q >> 1), tt) + 2*(q & 1)
                r(f"v_cvt_pk_bf16_f32 v{Pk(tt,p)+q}, v{a}, v{a+1}")
        def mail_loads(r):
            for q in range(4): r.vm(f"buffer_load_dwordx4 {vr(vM+4*q,4)}, v{vOT}, {R(sWS)}, s45 offen offset:{1024*q} sc1", 'MB')
        def mail_check():
            e(f"s_mov_b32 s43, 0x40000\nLp4_mb:\ns_waitcnt vmcnt(0)")
            e(f"v_max3_u32 v{vU}, v{vM}, v{vM+1}, v{vM+2}\nv_max3_u32 v{vU+1}, v{vM+3}, v{vM+4}, v{vM+5}")
            for x in range(5): e(f"v_max3_u32 v{vU + (x&1)}, v{vU + (x&1)}, v{vM+6+2*x}, v{vM+7+2*x}")
            e(f"v_max_u32 v{vU}, v{vU}, v{vU+1}\nv_cmp_eq_u32 vcc, -1, v{vU}\ns_cbranch_vccz Lp4_mbok")
            mail_loads(e); e(f"s_sub_u32 s43, s43, 1\ns_cmp_lg_u32 s43, 0\ns_cbranch_scc1 Lp4_mb\ns_waitcnt vmcnt(0)\nLp4_mbok:"); e.vm_done = len(e.vmq)
        def out_addr(r):
            r(f"s_add_u32 s46, s{sXo}, {XA + g.lp('X')}\ns_add_u32 s47, s46, 32768")
            r(f"s_lshl_b32 s48, s{sTile}, 11\ns_lshl_b32 s43, s{sNj2}, 7\ns_add_u32 s48, s48, s43\ns_add_u32 s48, s48, {STA + LP}")
            r(f"s_and_b32 s57, s{sTile}, 63\ns_lshl_b32 s57, s57, 16\ns_add_u32 s57, s57, s43\ns_lshr_b32 s43, s{sTile}, 6\ns_lshl_b32 s43, s43, 11\ns_add_u32 s57, s57, s43")
            r(f"s_and_b32 s43, s{sNj2}, {g.SH-1}\ns_mul_i32 s77, s{sMi2}, {g.SH}\ns_add_u32 s77, s77, s43\ns_lshl_b32 s77, s77, 7\ns_add_u32 s77, s77, {FL + H4*128}")
        def final_addr(r):
            r(f"v_and_b32 v152, 15, v{vL}\nv_lshrrev_b32 v153, 4, v{vL}\nv_lshrrev_b32 v155, 1, v153\nv_and_b32 v153, 1, v153\nv_lshl_add_u32 v153, v153, 1, v155")
            r(f"v_and_b32 v155, 7, v{vL}\nv_xor_b32 v153, v153, v155\nv_lshlrev_b32 v153, 4, v153\nv_lshl_add_u32 v152, v152, 7, v153\ns_lshl_b32 s43, s{sWave}, 12\nv_add_u32 v152, s43, v152\nv_xor_b32 v153, 64, v152")
            r(f"v_lshrrev_b32 v156, 3, v{vL}\nv_xor_b32 v154, v156, v155\nv_lshlrev_b32 v154, 4, v154\nv_lshl_add_u32 v154, v156, 7, v154\nv_add_u32 v154, s43, v154")
            r(f"v_lshlrev_b32 v155, 4, v155\nv_lshl_add_u32 v155, v156, 12, v155")
        kB = len(items) - ND
        for k, (u, h) in enumerate(items):
            if k % 16 == 0 and k <= 32: e.mark(f"p4b{k//16}")
            fill = [[] for _ in range(16)]
            if h == 0 and u % 2 == 0:
                def bar(u=u):
                    e.wait(vm=[('W5', x) for x in range(2*u+2, min(2*u+6, NS))], force=True); e("s_barrier")
                    if u % 8 == self.LT//2 + (self.LT//2 & 1) and u < 16: p3.signal_last()
                fill[0].append(bar)
            for z, f in enumerate(reads(k+1)): fill[z].append(f)
            kc = 16 - self.LT - 4*(self.J == 1)
            if k < 32 and k % 16 == kc: fill[0].append(lambda k=k: self.ck("p4b" if c.get('fold', 1) else f"p4b{k}"))
            if k < 32 and k % 16 == max(kc - 3, 0): fill[0].append(self.ck_load)
            if u < 28 - ND: ops = self.vm_ops(2*u + h)
            else: ops = self.vm_ops(2*u) + self.vm_ops(2*u+1) if h == 0 else []
            if c.get('even', 1): space(fill, ops, lambda f: f.vm, c.get('first', 2))
            else:
                for z, f in enumerate(ops): fill[1 + (z*14)//len(ops)].append(f)
            if k == len(items) - 1: fill[9].append(lambda: (e.wait(ds='all'), e("s_barrier")))
            if k == kB:
                r = Rec(e)
                r(f"s_lshl_b32 s45, s2, 2\ns_add_u32 s45, s45, s{sWave}\ns_lshl_b32 s45, s45, 12\ns_xor_b32 s44, s45, {g.px*4*4096}\ns_add_u32 s43, s{sLo}, {PB}\ns_add_u32 s44, s44, s43\ns_add_u32 s45, s45, s43")
                for p in range(2):
                    for tt in range(2):
                        cvt(r, 0, tt, p); r.vm(f"buffer_store_dwordx4 {vr(Pk(tt,p),4)}, v{vOT}, {R(sWS)}, s44 offen offset:{1024*(tt*2+p)} sc1")
                pour(fill, r.ops, 0, 16, cap=3); assert not r.ops
            if k == kB + 1:
                r = Rec(e); stats_pre(r, vL, 128, 66); pour(fill, r.ops, 0, 16); assert not r.ops
            if k == kB + 2:
                r = Rec(e); final_addr(r); pour(fill, r.ops, 0, 16, cap=3); assert not r.ops
            if k == kB + 3:
                r = Rec(e); out_addr(r); pour(fill, r.ops, 0, 16, cap=3); assert not r.ops
            if k == len(items) - c.get('XL', 3):
                r = Rec(e); mail_loads(r); pour(fill, r.ops, c.get('XO', 4), 16, cap=3, step=2); assert not r.ops
            if k == len(items) - 2: fill[15].append(mail_check)
            if k == len(items) - 1:
                r = Rec(e)
                for p in range(2):
                    for tt in range(2):
                        for q in range(4):
                            src = vM + (tt*2 + p)*4 + q; a = acc(0, 2*p + (q >> 1), tt) + 2*(q & 1)
                            r(f"v_lshlrev_b32 v{a}, 16, v{src}\nv_and_b32 v{a+1}, 0xffff0000, v{src}")
                pour(fill, r.ops, 0, 15, cap=2); pour(fill, r.ops, 15, 16, cap=4); assert not r.ops
            seq = []; kk = 0
            for n in range(4):
                for tt in ((1, 0) if n & 1 else (0, 1)): seq += [(n, tt, kk), (n, tt, 1-kk)]; kk = 1 - kk
            for z, (n, tt, kk) in enumerate(seq):
                e.wait(vm=('T5', 2*u+1) if z == 0 and h == 0 else None, ds=('F5', k, n | 1), force=(z == 0 and h == 0))
                a = vr(acc(h, n, tt), 4)
                e(f"{MF} {a}, {ar(aW(k, kk, n), 4)}, {ar(aT(2*u+kk, tt), 4)}, {a}")
                for f in fill[z]: f()
        if c.get('fold', 1): e.fold([f"p4b{k}" for k in range(3)], "Lp4_loop", f"s{sCnt}")
        g.stamp()
        def addp(tt, p):
            for q in range(4):
                a = 2*(q & 1); n = 2*p + (q >> 1)
                e(f"v_pk_add_f32 {vr(acc(1,n,tt)+a,2)}, {vr(acc(1,n,tt)+a,2)}, {vr(acc(0,n,tt)+a,2)}")
        for p in range(2):
            for tt in (1, 0): addp(tt, p); cvt(e, 1, tt, p)
        e(f"s_cmp_eq_u32 s{sLay}, 0\ns_cbranch_scc1 Lp4_mid")
        for tt in range(2):
            for p in range(2): e(f"v_permlane16_swap_b32 v{Pk(tt,p)}, v{Pk(tt,p)+2}\nv_permlane16_swap_b32 v{Pk(tt,p)+1}, v{Pk(tt,p)+3}")
            for p in range(2): e(f"ds_write_b128 v{152+p}, {vr(Pk(tt,p),4)} offset:{2048*tt}")
            for x in range(2): e(f"ds_read_b128 {vr(vM+8*tt+4*x,4)}, v154 offset:{2048*tt + 1024*x}")
        for x in range(4):
            e(f"s_waitcnt lgkmcnt({(5, 4, 1, 0)[x]})\nbuffer_store_dwordx4 {vr(vM+4*x,4)}, v155, {R(sOut)}, s57 offen {c.get('faux', 'nt')}\ns_add_u32 s57, s57, 32768")
        g.stamp()
        e("s_branch Lend\nLp4_mid:" if g.diag else "s_endpgm\nLp4_mid:")
        for p in range(2):
            for tt in range(2): e.vm(f"buffer_store_dwordx4 {vr(Pk(tt,p),4)}, v{vOT}, {R(sWS)}, s{46+tt} offen offset:{1024*p} sc1", 'OUT5')
            stats_mfma(e, Pk, p, 128)
        stats_post(e, 128, 66, 48, 'OUT5')
        g.stamp()
        e(f"s_mov_b32 s{sLay}, 1\ns_mov_b32 s{sLo}, {hex(LP)}")
        g.signal('OUT5', 77, nx.pre)
        nx.window()
        e("s_branch Llayer")
```

```python
class E:
    def __init__(self):
        self.L = []
        self.vmq = []; self.vm_done = 0
        self.dsq = []; self.ds_done = 0
        self.marks = {}; self.merged = 0
    def __call__(self, s):
        for x in s.split("\n"):
            x = x.strip()
            if x: self.L.append(x)
    def vm(self, s, tag=None):
        self.L.append(s); self.vmq.append(tag)
    def ds(self, s, tag=None):
        self.L.append(s); self.dsq.append(tag)
    @staticmethod
    def _need(q, done, tags, cap, force=False):
        if tags is None: return None, done
        if tags == 'all':
            last = len(q) - 1
        else:
            if not isinstance(tags, (list, set)): tags = [tags]
            last = -1
            for t in tags:
                idx = [i for i, x in enumerate(q) if x == t]
                assert idx, f"tag {t} never issued"
                last = max(last, idx[-1])
        if last < done and not force: return None, done
        n = len(q) - 1 - last
        n = min(n, cap)
        return n, max(done, len(q) - n)
    def wait(self, vm=None, ds=None, force=False):
        nv, self.vm_done = self._need(self.vmq, self.vm_done, vm, 63, force)
        nd, self.ds_done = self._need(self.dsq, self.ds_done, ds, 15)
        p = []
        if nv is not None: p.append(f"vmcnt({nv})")
        if nd is not None: p.append(f"lgkmcnt({nd})")
        if p: self.L.append("s_waitcnt " + " ".join(p))
        return bool(p)
    def mark(self, name):
        self.marks[name] = len(self.L)
    def fold(self, names, label, cnt_sgpr, hoist=True, align=3):
        pos = [self.marks[n] for n in names]
        n = len(pos) - 1
        bodies = [self.L[pos[i]:pos[i + 1]] for i in range(n)]
        import re
        body = list(bodies[0])
        for i in range(1, n):
            for k, (a, b) in enumerate(zip(body, bodies[i])):
                if a == b: continue
                if a.startswith("s_waitcnt") and b.startswith("s_waitcnt"):
                    d = {}
                    for nm, v in re.findall(r"(\w+cnt)\((\d+)\)", a + " " + b): d[nm] = min(d.get(nm, 99), int(v))
                    body[k] = "s_waitcnt " + " ".join(f"{nm}({v})" for nm, v in d.items()); self.merged += 1
                else: raise AssertionError(f"fold mismatch body {i}: {a!r} vs {b!r}")
            assert len(body) == len(bodies[i]), f"fold length mismatch body {i}"
        ctl = [f"s_sub_u32 {cnt_sgpr}, {cnt_sgpr}, 1", f"s_cmp_lg_u32 {cnt_sgpr}, 0"]
        mf = [k for k, x in enumerate(body) if x.startswith("v_mfma")]
        safe = lambda x: not x.startswith("s_") or x.startswith(("s_waitcnt", "s_nop", "s_barrier"))
        if hoist and all(safe(x) and not x.endswith(":") for x in body[mf[-2]:]):
            body.insert(mf[-2] + 1, ctl.pop())
            if not any(cnt_sgpr in x or "scc" in x or x.startswith(("s_csel", "s_addc", "s_subb")) or x.endswith(":") for x in body[mf[-3]:mf[-2]]): body.insert(mf[-3] + 1, ctl.pop())
            else: body.insert(mf[-2] + 1, ctl.pop())
        new = [f"s_mov_b32 {cnt_sgpr}, {n}", f".p2align {align}", f"{label}:"] + body + ctl + [f"s_cbranch_scc1 {label}", f"Lmk_{label}_tail:"]
        delta = len(new) - (pos[-1] - pos[0])
        self.L[pos[0]:pos[-1]] = new
        for k, v in self.marks.items():
            if v >= pos[-1]: self.marks[k] = v + delta
    def text(self):
        return "\n".join(("" if l.endswith(":") or l.startswith(".") else "  ") + l for l in self.L) + "\n"

def vr(a, n=1): return f"v{a}" if n == 1 else f"v[{a}:{a+n-1}]"
def ar(a, n=1): return f"a{a}" if n == 1 else f"a[{a}:{a+n-1}]"
def sr(a, n=1): return f"s{a}" if n == 1 else f"s[{a}:{a+n-1}]"

def kd(name, nvgpr=512, accum=256):
    return f""".p2align 6
.amdhsa_kernel {name}
  .amdhsa_next_free_vgpr {nvgpr}
  .amdhsa_next_free_sgpr 102
  .amdhsa_accum_offset {accum}
  .amdhsa_group_segment_fixed_size 0
  .amdhsa_kernarg_size 80
  .amdhsa_user_sgpr_count 2
  .amdhsa_user_sgpr_kernarg_segment_ptr 1
  .amdhsa_system_sgpr_workgroup_id_x 1
  .amdhsa_float_denorm_mode_32 3
.end_amdhsa_kernel
"""
def entry(name):
    return f".globl {name}\n.p2align 8\n.type {name},@function\n{name}:\n"
```

```python
import sys, json
from emit import *
from common import fhex, srd, xreduce_g, LOG2E, S, D, F, WS_BYTES, HPITCH
from res import stats_epilogue
NAME = "interleave_layers__sliding_local_dilated__swiglu_ffn__prompt"
LP = 0x2800000
XA, XB, OB, HB, STA, STB, FL = 0, 0x400000, 0x800000, 0xC00000, 0x1A00000, 0x1A40000, 0x1A80000
CSQ, CSG = 0x1AB0000, 0x1AA0000
PB = 0x1B00000
H3S = 4096
DIAG = 0x5000000
H1, H2, HC, H3, HM, H4 = 0, 32, 56, 64, 160, 224
LDS_BYTES = 163840
sWS, sWq, sWo, sWg, sWu, sWd, sAs, sOut, sDbg = 4, 8, 12, 16, 20, 24, 28, 32, 36
sWave, sLay, sLo = 40, 41, 42
sMi1, sHj, sMi2, sNj2, sMi3, sNj3 = 50, 51, 52, 53, 54, 55
sCnt = 56
vL, vOW2, vZ = 253, 252, 251
R = lambda s: f"s[{s}:{s+3}]"
MF = "v_mfma_f32_16x16x32_bf16"

class G:
    def __init__(self, cfg):
        self.cfg = cfg; self.e = E(); self.diag = cfg.get('diag', False); self.nlab = 0; self.colds = {}; self.backoff = f"s_sleep {cfg['slp']}\n" if cfg.get('slp') else ''; self.px = cfg.get('px', 2); self.q4 = cfg.get('q4', 0); self.sf = cfg.get('sf', 1) and not self.q4; self.SH = 1
    def lo(self, b): return '0' if b in self.cfg.get('reuse', '') else f's{sLo}'
    def lp(self, b): return 0 if b in self.cfg.get('reuse', '') else LP
    def touch(self, vlane16, dst, track=True):
        if not self.cfg.get('touch2', 0): return
        (self.e.vm if track else self.e)(f"global_load_dwordx4 {dst}, v{vlane16}, s[0:1]")
    def cold(self, branch, body, name=None):
        e = self.e; name = name or self.lab("c")
        e(f"{branch} {name}_c\n{name}_r:")
        if name in self.colds: return
        L, nv, nd, dv, dd = e.L, len(e.vmq), len(e.dsq), e.vm_done, e.ds_done
        e.L = []; e(f"{name}_c:"); body(); e(f"s_branch {name}_r")
        self.colds[name] = e.L; e.L = L; del e.vmq[nv:]; del e.dsq[nd:]; e.vm_done, e.ds_done = dv, dd
    def spin(self, load, test, name):
        e = self.e; e(f"s_mov_b32 s43, 0x40000\n{name}_s:\n{self.backoff}"); load(); e("s_waitcnt vmcnt(0)"); test()
        e(f"s_cbranch_vccz {name}_r\ns_sub_u32 s43, s43, 1\ns_cmp_lg_u32 s43, 0\ns_cbranch_scc1 {name}_s")
    def lab(self, p):
        self.nlab += 1; return f"L{p}{self.nlab}"
    def stamp(self):
        if not self.diag: return
        self.e("s_memtime s[96:97]\ns_memrealtime s[98:99]\ns_waitcnt lgkmcnt(0)\nv_writelane_b32 v254, s96, s95\nv_writelane_b32 v255, s98, s95\ns_add_u32 s95, s95, 1".replace(
            "v_writelane_b32 v254, s96, s95\nv_writelane_b32 v255, s98, s95", "s_mov_b32 s94, m0\ns_mov_b32 m0, s95\nv_writelane_b32 v254, s96, m0\nv_writelane_b32 v255, s98, m0\ns_mov_b32 m0, s94"))
    def reset_q(self):
        e = self.e; e.vm_done = len(e.vmq); e.ds_done = len(e.dsq)
    def signal(self, stores, line_s, pre=None):
        e = self.e; l = self.lab("sig")
        if pre: pre()
        e.wait(vm=stores); self.stamp(); e("s_barrier")
        e(f"s_cmp_lg_u32 s{sWave}, 0\ns_cbranch_scc1 {l}\nv_mov_b32 v250, 1\ns_mov_b64 exec, 1")
        e(f"buffer_atomic_add v250, v{vZ}, {R(sWS)}, s{line_s} offen sc1\ns_mov_b64 exec, -1\n{l}:")
    def poll(self, line_s, count, voff=None, nl=2, late=None, keep=0):
        e = self.e; l = self.lab("pol"); d = self.lab("pdn")
        e(f"s_cmp_lg_u32 s{sWave}, 0\ns_cbranch_scc1 {d}\ns_mov_b32 s43, 0x40000\ns_mov_b64 exec, {(1 << nl) - 1 if voff else 1}\n{l}:")
        ld = "v_mov_b32 v250, 0\nbuffer_atomic_add" if self.cfg.get('patom', 1) else "buffer_load_dword"
        e(f"{ld} v250, v{voff or vZ}, {R(sWS)}, s{line_s} offen {'sc0' if self.cfg.get('patom', 1) else ''} sc1\ns_waitcnt vmcnt(0)\nv_cmp_gt_u32 vcc, {count}, v250")
        e(f"s_cbranch_vccz {d}x\ns_sub_u32 s43, s43, 1\ns_cmp_lg_u32 s43, 0\ns_cbranch_scc1 {l}\n{d}x:\ns_mov_b64 exec, -1")
        if late:
            n0 = len(e.vmq); late(); assert len(e.vmq) - n0 == keep; del e.vmq[n0:]
        e(f"{d}:\ns_waitcnt vmcnt({keep}) lgkmcnt(0)\ns_barrier")
        self.reset_q(); e.vm_done -= keep; self.stamp()
    def not0(self, f):
        l = self.lab("n0"); self.e(f"s_cmp_eq_u32 s{sWave}, 0\ns_cbranch_scc1 {l}"); f(); self.e(f"{l}:")
    def check(self, vreg, load, count, tag, name=None):
        e = self.e; name = name or self.lab("chk"); test = lambda: e(f"v_cmp_gt_u32 vcc, {count}, v{vreg}")
        e.wait(vm=tag); test()
        self.cold("s_cbranch_vccnz", lambda: self.spin(lambda: e(load), test, name), name)
    def arrive(self, srd_, soff):
        self.e(f"v_mov_b32 v250, 1\ns_mov_b64 exec, 1\nbuffer_atomic_add v250, v{vZ}, {R(srd_)}, s{soff} offen sc1\ns_mov_b64 exec, -1")
    def colsum_acc(self, src, n, acc, t, first):
        e = self.e
        for q in range(n):
            for r in range(4):
                s_ = src + 4*q + r
                if first and q == 0: e(f"v_lshlrev_b32 v{acc+2*r}, 16, v{s_}\nv_and_b32 v{acc+2*r+1}, 0xffff0000, v{s_}")
                else: e(f"v_lshlrev_b32 v{t}, 16, v{s_}\nv_and_b32 v{t+1}, 0xffff0000, v{s_}\nv_pk_add_f32 {vr(acc+2*r,2)}, {vr(acc+2*r,2)}, {vr(t,2)}")
    def colsum_publish(self, acc, t, lds):
        e = self.e
        xreduce_g(e, "v_add_f32", list(range(acc, acc+8)), list(range(t, t+8)))
        e(f"v_and_b32 v{t}, 7, v{vL}\ns_lshl_b32 s43, s{sWave}, 8\ns_add_u32 s43, s43, {lds}")
        for r in range(8): e(f"v_add_f32_dpp v{acc+r}, v{acc+r}, v{acc+r} row_ror:8 row_mask:0xf bank_mask:0xf")
        e(f"v_lshl_add_u32 v{t}, v{t}, 5, s43\nds_write_b128 v{t}, {vr(acc,4)}\nds_write_b128 v{t}, {vr(acc+4,4)} offset:16")
    def colsum_final(self, t, lds, dst_s):
        e = self.e
        e(f"v_lshlrev_b32 v{t}, 2, v{vL}\nv_add_u32 v{t+1}, {lds}, v{t}")
        for w in range(4): e(f"ds_read_b32 v{t+2+w}, v{t+1} offset:{256*w}")
        e(f"s_waitcnt lgkmcnt(0)\nv_add_f32 v{t+2}, v{t+2}, v{t+3}\nv_add_f32 v{t+4}, v{t+4}, v{t+5}\nv_add_f32 v{t+2}, v{t+2}, v{t+4}")
        e(f"buffer_store_dword v{t+2}, v{t}, {R(sWS)}, s{dst_s} offen sc1")


def W2(f):
    f.w = 2; return f
class Rec:
    def __init__(self, e): self.e = e; self.ops = []
    def __call__(self, s):
        for x in s.split("\n"):
            x = x.strip()
            if x:
                f = lambda x=x: self.e(x.replace("\t", "\n"))
                f.sc = x.startswith("s_") and "\tv_" not in x; f.tr = x.startswith(("v_exp", "v_rcp", "v_rsq")); self.ops.append(f)
    def vm(self, s, tag=None): self.ops.append(W2(lambda: self.e.vm(s, tag)))
    def ds(self, s, tag=None): self.ops.append(lambda: self.e.ds(s, tag))
    def wait(self, **k):
        f = lambda: self.e.wait(**k)
        f.sc = True; self.ops.append(f)
    def call(self, f): self.ops.append(f)

def pour(fill, ops, lo, hi, cap=2, step=1):
    k = lo
    while ops and k < hi:
        while ops and len(fill[k]) < cap: fill[k].append(ops.pop(0))
        k += step

def space(fill, ops, isvm, first=2):
    n = len(fill); nv = sum(isvm(f) for f in ops)
    if not nv: return
    pend = []; k = 0; prev = 0
    for f in ops:
        if isvm(f):
            pos = min(first + (k*n)//nv, n - 1); k += 1
            for z, x in enumerate(pend): fill[max(prev, pos - len(pend) + z)].append(x)
            pend = []; fill[pos].append(f); prev = pos
        else: pend.append(f)
    for z, x in enumerate(pend): fill[min(prev + 1 + z, n - 1)].append(x)

class Slots:
    def __init__(self, n): self.n = n; self.sc = [[] for _ in range(n)]; self.ve = [[] for _ in range(n)]
    def load(self, k): return max(0, len(self.sc[k]) - 1) + sum(getattr(f, 'w', 1) for f in self.ve[k])
    def pour(self, ops, lo, hi, cap=2, partial=False):
        k = lo; vec_here = False
        while ops:
            if partial and k >= hi: break
            assert k < hi, ("stream does not fit", len(ops))
            if getattr(ops[0], 'sc', False):
                if not vec_here and not self.sc[k]: self.sc[k].append(ops.pop(0)); continue
                if self.load(k) < cap and (k + 1 >= hi or self.sc[k+1] or (len(ops) > 1 and getattr(ops[1], 'sc', False))): self.ve[k].append(ops.pop(0)); vec_here = True; continue
            elif self.load(k) + getattr(ops[0], 'w', 1) <= max(cap, 2): self.ve[k].append(ops.pop(0)); vec_here = True; continue
            k += 1; vec_here = False
        return k
    def emit(self, k):
        for f in self.sc[k] + self.ve[k]: f()

def stats_pre(e, vL, vt, sm0):
    va = vt + 20
    e(f"v_and_b32 v{va}, 15, v{vL}\nv_lshrrev_b32 v{va+1}, 4, v{vL}\nv_lshrrev_b32 v{vt}, 2, v{va}\nv_cmp_eq_u32 vcc, v{vt}, v{va+1}\nv_and_b32 v{vt}, 3, v{va}")
    e(f"v_lshlrev_b32 v{va}, 3, v{va}\nv_mov_b32 v{va+1}, 0x7ffffff0\nv_cndmask_b32 v{va}, v{va+1}, v{va}, vcc")
    for i in range(3): e(f"v_cmp_eq_u32 s[{sm0+2*i}:{sm0+2*i+1}], {i+1}, v{vt}")
    for r in range(4): e(f"v_mov_b32 v{vt+r}, 0x3f803f80")
def stats_mfma(e, P, p, vt):
    for tt in (1, 0):
        sm, gr = vr(vt + 4 + 8*tt, 4), vr(vt + 8 + 8*tt, 4)
        e(f"{MF} {gr}, {vr(P(tt,p),4)}, {vr(P(tt,p),4)}, {gr if p else 0}\n{MF} {sm}, {vr(vt,4)}, {vr(P(tt,p),4)}, {sm if p else 0}")
def stats_post(e, vt, sm0, s_off, tag):
    e("s_nop 5")
    for tt in (1, 0):
        g = vt + 8 + 8*tt; o = vt + 5 + 8*tt
        e(f"v_cndmask_b32 v{o}, v{g}, v{g+1}, s[{sm0}:{sm0+1}]\nv_cndmask_b32 v{o}, v{o}, v{g+2}, s[{sm0+2}:{sm0+3}]\nv_cndmask_b32 v{o}, v{o}, v{g+3}, s[{sm0+4}:{sm0+5}]")
        e.vm(f"buffer_store_dwordx2 {vr(o-1,2)}, v{vt+20}, {R(sWS)}, s{s_off} offen offset:{tt*2048} sc1", tag)
```

```python
import re
def regs(tok):
    m = re.fullmatch(r"-?(?:abs\()?([sva])\[(\d+):(\d+)\]\)?", tok)
    if m: return {m.group(1) + str(i) for i in range(int(m.group(2)), int(m.group(3)) + 1)}
    m = re.fullmatch(r"-?(?:abs\()?([sva]\d+)\)?", tok)
    if m: return {m.group(1)}
    if tok in ("m0", "vcc", "exec"): return {tok}
    return set()
class I:
    def __init__(s, t):
        s.t = t; p = t.split(None, 1); s.op = p[0]
        a = [x.strip() for x in p[1].split(",")] if len(p) > 1 else []
        if a: a[-1:] = a[-1].split()
        s.a = a; op = s.op
        s.mfma = op.startswith("v_mfma"); s.wait = op == "s_waitcnt"
        s.ctl = t.endswith(":") or t.startswith(".") or op in ("s_barrier", "s_endpgm", "s_sleep", "s_setpc_b64", "s_call_b64", "s_getpc_b64") or op.startswith(("s_cbranch", "s_branch", "s_load", "s_memtime", "s_memreal"))
        s.ds = op.startswith("ds_"); s.vm = op.startswith(("buffer_", "global_"))
        s.valu = op.startswith("v_") and not s.mfma
        s.salu = op.startswith("s_") and not s.ctl and not s.wait and op != "s_nop"
        s.nop = op == "s_nop"
        s.trans = bool(re.match(r"v_(exp|rcp|rsq|log|sqrt)_", op)); s.pk = op.startswith("v_pk_")
        R = [regs(x) for x in a]; allr = set().union(*R) if R else set()
        s.lds = s.vm and "lds" in a
        if s.salu:
            if op.startswith(("s_cmp", "s_bitcmp")): s.w, s.r = {"scc"}, allr
            else:
                s.w, s.r = set(R[0]), set().union(*R[1:]) if len(R) > 1 else set()
                if not op.startswith(("s_mov", "s_mul_i32", "s_cselect")): s.w |= {"scc"}
                if op.startswith(("s_cselect", "s_addc", "s_subb")): s.r |= {"scc"}
        elif s.valu or s.mfma:
            s.w, s.r = set(R[0]), set().union(*R[1:]) if len(R) > 1 else set()
            if op.startswith(("v_fmac", "v_writelane")): s.r |= R[0]
            if op.startswith(("v_permlane", "v_swap")): s.w, s.r = set(allr), set(allr)
            s.r |= {"exec"}
        elif s.ds:
            if op.startswith("ds_read"): s.w, s.r = set(R[0]), set().union(*R[1:])
            else: s.w, s.r = set(), allr
            s.r |= {"exec"}
        elif s.vm:
            if "load" in op and not s.lds: s.w, s.r = set(R[0]), set().union(*R[1:])
            else: s.w, s.r = set(), allr
            s.r |= {"exec"} | ({"m0"} if s.lds else set())
        else: s.w, s.r = set(), allr
    @property
    def scalar(s): return s.salu or s.wait or s.nop
def gap_cost(g):
    t = 4; prev = None
    for x in g:
        if (x.ds or x.vm) and prev is not None: t += 8 if prev.valu else 4 if (prev.ds and x.ds) else 0
        prev = x
        if x.scalar or x.ctl:
            if x.ctl and (x.t.endswith(":") or x.t.startswith(".")): continue
            t += 4*(int(x.a[0]) + 1) if x.nop else 4
        else:
            t = max(t, 28 if x.pk else 8) + (8 if x.trans or x.vm else 4)
    return max(t, 16)
def cnts(w): return {k: int(v) for k, v in re.findall(r"(\w+cnt)\((\d+)\)", w.t)}
def pack(L, bal=True):
    P = [I(t) for t in L]
    idx = [i for i, x in enumerate(P) if x.mfma]
    gaps = [P[:idx[0]]] + [P[a+1:b] for a, b in zip(idx, idx[1:] + [len(P)])]
    M = [P[i] for i in idx]
    moved = 0
    for _ in range(2):
        for k in range(1, len(gaps) - 1):
            g = gaps[k]
            if len(g) > 20 or gap_cost(g) <= 16: continue
            if g and not (g[0].scalar or g[0].ctl):
                j = next((j for j, x in enumerate(g) if x.scalar or x.ctl), None)
                if j is not None and not g[j].ctl and not g[j].nop:
                    x = g[j]; front = g[:j]; ok = False
                    if x.salu: ok = all(not (x.w & (v.r | v.w)) and not (x.r & v.w) for v in front) and not ("m0" in x.w and front[0].lds)
                    else:
                        c = cnts(x); nv = sum(v.vm for v in front); nd = sum(v.ds for v in front)
                        if c.get("vmcnt", 99) >= nv and c.get("lgkmcnt", 99) >= nd:
                            x = I("s_waitcnt " + " ".join(f"{n}({v - (nv if n == 'vmcnt' else nd)})" for n, v in c.items())); ok = True
                    n = [x] + front + g[j+1:]
                    if ok and gap_cost(n) < gap_cost(g): gaps[k] = g = n; moved += 1
            for j in range(1, len(g)):
                x = g[j]; i = j
                if not (x.ds or x.vm): continue
                while i > 0 and g[i-1].valu and not (x.r & g[i-1].w) and not (x.w & (g[i-1].r | g[i-1].w)): i -= 1
                if i < j and not (i > 0 and x.lds and "m0" in g[i-1].w):
                    n = g[:i] + [x] + g[i:j] + g[j+1:]
                    if gap_cost(n) < gap_cost(g): gaps[k] = g = n; moved += 1
            nx = gaps[k+1]
            if gap_cost(g) > 16 and g[-1].salu and "exec" not in g[-1].w and len(nx) <= 8 and not ("m0" in g[-1].w and nx and nx[0].lds):
                if gap_cost(g[:-1]) + gap_cost([g[-1]] + nx) < gap_cost(g) + gap_cost(nx):
                    gaps[k+1] = [g[-1]] + nx; gaps[k] = g[:-1]; moved += 1
    if bal: moved += balance(gaps, M)
    out = [x.t for x in gaps[0]]
    for m, g in zip(M, gaps[1:]): out += [m.t] + [x.t for x in g]
    return out, moved
def indep(a, b): return not (a.w & (b.r | b.w)) and not (a.r & b.w)
def lower(w, x):
    c = cnts(w); k = "vmcnt" if x.vm else "lgkmcnt" if x.ds else None
    if k in c:
        if c[k] == 0: return None
        c[k] -= 1
    return I("s_waitcnt " + " ".join(f"{n}({v})" for n, v in c.items()))
def sink(g, m, nx):
    j = max((i for i, x in enumerate(g) if not x.scalar), default=None)
    if j is None or g[j].ctl: return None
    x = g[j]; rest = []
    for y in g[j+1:]:
        if y.nop or (y.salu and not indep(x, y)): return None
        y = lower(y, x) if y.wait else y
        if y is None: return None
        rest.append(y)
    if not indep(x, m): return None
    head = []
    for y in nx:
        if not y.scalar or y.nop or (y.salu and not indep(x, y)): break
        y2 = lower(y, x) if y.wait else y
        if y2 is None: break
        head.append(y2)
    tail = nx[len(head):]
    if x.valu:
        k = 0
        while k < len(tail) and (tail[k].ds or tail[k].vm) and indep(x, tail[k]): k += 1
        return g[:j] + rest, head + tail[:k] + [x] + tail[k:]
    return g[:j] + rest, head + [x] + tail
def hoist(pv, m, g):
    j = next((i for i, x in enumerate(g) if not x.scalar), None)
    if j is None or g[j].ctl: return None
    x = g[j]
    if any(not y.salu or not indep(x, y) for y in g[:j]) or not indep(x, m): return None
    k = len(pv)
    if x.ds or x.vm:
        while k > 0 and pv[k-1].valu and indep(x, pv[k-1]): k -= 1
    return pv[:k] + [x] + pv[k:], g[:j] + g[j+1:]
def balance(gaps, M):
    moved = 0
    def ok(k):
        lo, hi = max(1, k - 8), min(len(gaps) - 1, k + 9); P = []
        for i in range(lo, hi): P += [M[i-1]] + gaps[i][:40]
        return not check_p([x for x in P if not (x.t.endswith(":") or x.t.startswith("."))])
    for _ in range(4):
        for k in range(2, len(gaps) - 2):
            if len(gaps[k]) > 20 or gap_cost(gaps[k]) <= 16: continue
            for d in (1, -1):
                a, b = (k, k+1) if d == 1 else (k-1, k)
                if len(gaps[k+d]) > 20: continue
                r = sink(gaps[a], M[a], gaps[b]) if d == 1 else hoist(gaps[a], M[a], gaps[b])
                if r is None: continue
                old = gaps[a], gaps[b]; gain = gap_cost(old[0]) + gap_cost(old[1]) - gap_cost(r[0]) - gap_cost(r[1])
                chain = None
                if gain == 0 and gap_cost(r[0 if d == 1 else 1]) < gap_cost(gaps[k]):
                    c = k + 2*d
                    if 1 < c < len(gaps) - 1 and len(gaps[c]) <= 20:
                        r2 = sink(r[1], M[b], gaps[c]) if d == 1 else hoist(gaps[c], M[c], r[0])
                        if r2 and gap_cost(r2[0]) + gap_cost(r2[1]) < gap_cost(r[1 if d == 1 else 0]) + gap_cost(gaps[c]): chain = (c, r2)
                if gain <= 0 and not chain: continue
                gaps[a], gaps[b] = r
                if chain:
                    c, r2 = chain; oc = gaps[c]
                    if d == 1: gaps[b], gaps[c] = r2
                    else: gaps[c], gaps[a] = r2
                if ok(k): moved += 1; break
                gaps[a], gaps[b] = old
                if chain: gaps[chain[0]] = oc
    return moved
def report(L, names):
    P = [I(t) for t in L]; cur = None; res = {}; g = None
    def close():
        if g is not None and cur and len(g) <= 30:
            r = res.setdefault(cur, [0, 0]); r[0] += 1; r[1] += gap_cost(g)
    for x in P:
        if x.mfma: close(); g = []
        else:
            if x.t.rstrip(":") in names: close(); g = None; cur = x.t.rstrip(":")
            elif g is not None: g.append(x)
    return {k: (n, c, c - 16*n) for k, (n, c) in res.items()}
def check(L):
    return check_p([I(t) for t in L if not (t.endswith(":") or t.startswith(".") or t.startswith(";"))])
def check_p(P):
    bad = []
    for i, x in enumerate(P):
        d = 0
        for y in P[i+1:i+14]:
            need = 0; vw = {r for r in x.w if r[0] in "va" and r != "vcc"}; sw = x.w - vw - {"scc"}
            if x.mfma:
                if y.mfma:
                    c = regs(y.a[3]); ab = regs(y.a[1]) | regs(y.a[2])
                    if vw & ab: need = 8
                    elif vw & c and vw != c: need = 6
                elif (y.valu or y.ds or y.vm) and vw & (y.r | y.w): need = 8
                elif y.valu and regs(x.a[3]) & y.w: need = 3
            elif x.valu:
                if y.mfma and vw & y.r: need = 2
                if y.op.startswith("v_permlane") and vw & y.r: need = 2
                if "_dpp" in y.op and vw & y.r: need = 2
                if y.op.startswith(("v_readfirstlane", "v_readlane")) and vw & y.r: need = 1
                if x.trans and y.valu and not y.trans and vw & y.r: need = 1
                if y.valu and sw & y.r: need = 2
                if y.vm and sw & y.r: need = 5
            elif x.salu and "m0" in x.w and y.lds: need = 1
            elif x.vm and "store_dwordx4" in x.op and y.valu and regs(x.a[0]) & y.w: need = 2
            if d < need: bad.append((i, x.t, y.t, d, need))
            if y.op in ("s_branch", "s_endpgm", "s_setpc_b64"): break
            d += int(y.a[0]) + 1 if y.nop else 1
    return bad
```

```python
from mg import *
W_RING, A_RING, HALO, PW = 0, 73728, 122880, 139264
CSX = PW + 4096
sHalf, sHd, sAb, sWb, sAi, sMA, sMW, sRs, sRi, sSt, sLead, sA, sW, sW2, sT0, sHt, sHb, sOwn, sHead, sPW = range(57, 77)
Q = lambda j, t: (j*4 + t - 1)*4
Kc = lambda j, t: 32 + (j*4 + t - 1)*4 if t else 96
V = lambda j, t: 64 + (j*4 + t - 1)*4 if t else 100
vB, vCq, kf0 = 104, 108, 120
vT, vH, vW, vOA, vOW, vOH, vCk = 112, 114, 116, 120, 124, 126, 127
vST = 128; bC, bP, bP0, ones = 128, 132, 136, 160
aG, aL, vCS, vRo, vP, vXa, vMuV, vRsV, tmp = 164, 166, 168, 187, 188, 198, 200, 220, 240
RES = A_RING + 16384
MSK = PW + 6144 + 4096; TBL = PW + 2*6144 + 4096
NSL = 52
fT = lambda b, kk, t: b*88 + kk*20 + t*4
fW = lambda b, kk, n: b*88 + 40 + kk*24 + n*4
class P1:
    def __init__(self, g): self.g = g; self.c = g.cfg.get('p1', {}); self.ntA = self.ntW = ''
    def setup(self, l1):
        e = self.g.e
        e(f"s_lshr_b32 s{sHalf}, s{sWave}, 1\ns_and_b32 s{sHd}, s{sWave}, 1\ns_lshl_b32 s{sT0}, s{sMi1}, 3")
        e(f"s_add_u32 s{sLead}, s{sMi1}, s{sHj}\ns_and_b32 s{sLead}, s{sLead}, 15" if l1 else
          f"s_add_u32 s{sLead}, s{sMi1}, s{sHj}\ns_and_b32 s{sLead}, s{sLead}, {self.c.get('rm', 0)}\ns_lshl_b32 s{sLead}, s{sLead}, {self.c.get('rs', 3)}")
        e(f"s_lshl_b32 s{sMA}, s{sWave}, 12\ns_mul_i32 s{sMW}, s{sWave}, 6144\ns_add_u32 s{sPW}, s{sMW}, {PW}")
        e(f"s_and_b32 s43, s{sMi1}, 7\ns_cmp_lg_u32 s43, 0\ns_cselect_b32 s43, 1, 0\ns_sub_u32 s{sHt}, s{sT0}, s43")
        e(f"v_lshrrev_b32 v2, 3, v{vL}\nv_bfe_u32 v3, v{vL}, 1, 2\nv_lshrrev_b32 v4, 4, v{vL}\nv_xor_b32 v3, v3, v4\nv_and_b32 v5, 1, v{vL}")
        if l1:
            e(f"v_lshrrev_b32 v6, 5, v{vL}\nv_lshl_add_u32 v6, v6, 2, v2")
            e(f"s_lshl_b32 s43, s{sHalf}, 5\ns_lshl_b32 s44, s{sHd}, 2\ns_add_u32 s43, s43, s44")
        else:
            e(f"v_mov_b32 v6, v2\ns_lshl_b32 s43, s{sWave}, 4")
        e(f"v_mul_u32_u24 v6, 6144, v6\nv_lshl_add_u32 v6, v3, 5, v6\nv_lshl_add_u32 v{vOW}, v5, 4, v6\nv_add_u32 v{vOW+1}, {(16 if l1 else 8)*6144-1024}, v{vOW}")
        e(f"s_mul_i32 s43, s43, 6144\ns_lshl_b32 s{sWb}, s{sHj}, 7\ns_add_u32 s{sWb}, s{sWb}, s43")
        e(f"v_and_b32 v3, 7, v{vL}\ns_lshl_b32 s43, s{sWave}, 1\ns_add_u32 s43, s43, s{sT0}")
        if l1:
            for q in range(4):
                e(f"v_add_u32 v5, {4*(q&1)}, v4\nv_xor_b32 v5, v5, v3\nv_lshlrev_b32 v5, 4, v5\nv_lshl_add_u32 v5, v2, 12, v5\nv_add_u32 v{vOA+q}, {q*(32768-1024)}, v5")
            e(f"v_and_b32 v5, 6, v2\nv_xor_b32 v5, v5, v3\nv_lshlrev_b32 v5, 4, v5\nv_lshl_add_u32 v5, v2, 12, v5\nv_add_u32 v{vOH}, 32768, v5")
            e(f"s_lshr_b32 s44, s{sMi1}, 3\ns_lshl_b32 s44, s44, 11\ns_and_b32 s43, s43, 63\ns_lshl_b32 s43, s43, 16\ns_add_u32 s{sAb}, s43, s44")
            e(f"s_and_b32 s43, s{sHt}, 63\ns_lshl_b32 s43, s43, 16\ns_add_u32 s{sHb}, s43, s44\ns_movk_i32 s{sAi}, 128")
        else:
            e(f"v_lshlrev_b32 v{vOA}, 4, v{vL}\nv_mov_b32 v{vOA+1}, v{vOA}\nv_add_u32 v{vOA+2}, {32768-2048}, v{vOA}\nv_add_u32 v{vOA+3}, {32768-2048}, v{vOA}")
            e(f"v_lshlrev_b32 v5, 8, v2\nv_lshl_add_u32 v5, v3, 4, v5\nv_add_u32 v{vOH}, 128, v5")
            e(f"s_lshl_b32 s43, s43, 15\ns_mov_b32 s44, {XA + self.g.lp('X')}\ns_add_u32 s{sAb}, s43, s44\ns_lshl_b32 s43, s{sHt}, 15\ns_add_u32 s{sHb}, s43, s44\ns_movk_i32 s{sAi}, 2048")
    def setup_reads(self, l1):
        e = self.g.e
        e(f"v_and_b32 v2, 15, v{vL}\nv_lshrrev_b32 v3, 4, v{vL}\nv_and_b32 v4, 7, v{vL}")
        if l1:
            e(f"v_lshrrev_b32 v5, 1, v2\nv_xor_b32 v5, v5, v3\nv_lshlrev_b32 v5, 4, v5\nv_lshl_add_u32 v6, v2, 7, v5\nv_xor_b32 v7, 64, v6")
            e(f"v_and_b32 v5, 6, v4\nv_xor_b32 v5, v5, v3\nv_lshlrev_b32 v5, 4, v5\nv_lshl_add_u32 v8, v4, 7, v5\nv_xor_b32 v9, 64, v8")
        else:
            e(f"v_lshlrev_b32 v6, 4, v{vL}\nv_add_u32 v7, 1024, v6\nv_lshlrev_b32 v5, 7, v3\nv_lshl_add_u32 v8, v4, 4, v5\nv_add_u32 v9, 512, v8")
        e(f"s_lshl_b32 s43, s{sHalf}, 13\ns_add_u32 s43, s43, {A_RING}\nv_add_u32 v{vT}, s43, v6\nv_add_u32 v{vT+1}, s43, v7")
        e(f"v_add_u32 v{vH}, {HALO}, v8\nv_add_u32 v{vH+1}, {HALO}, v9")
        e(f"s_lshl_b32 s43, s{sMi2}, 3\ns_lshl_b32 s44, s{sWave}, 1\ns_add_u32 s43, s43, s44")
        if l1:
            e(f"v_lshrrev_b32 v5, 1, v3\nv_lshrrev_b32 v{vRo}, 1, v2\nv_xor_b32 v5, v5, v{vRo}\nv_lshlrev_b32 v5, 4, v5\nv_lshl_add_u32 v{vRo}, v2, 7, v5\nv_and_b32 v5, 1, v3\nv_lshl_add_u32 v{vRo}, v5, 3, v{vRo}")
            e(f"s_lshr_b32 s44, s43, 6\ns_lshl_b32 s44, s44, 11\ns_and_b32 s43, s43, 63\ns_lshl_b32 s43, s43, 16\ns_add_u32 s43, s43, s44\ns_lshl_b32 s44, s{sNj2}, 7\ns_add_u32 s{sRs}, s43, s44")
        else:
            e(f"v_mov_b32 v{vRo}, v6\ns_lshl_b32 s43, s43, 15\ns_lshl_b32 s44, s{sNj2}, 11\ns_add_u32 s43, s43, s44\ns_add_u32 s{sRs}, s43, {XA + self.g.lp('X')}")
        e(f"v_lshrrev_b32 v2, 2, v{vL}\nv_bfe_u32 v3, v{vL}, 3, 2\nv_and_b32 v4, 3, v{vL}\nv_lshlrev_b32 v4, 3, v4\nv_lshl_add_u32 v4, v2, 7, v4")
        e(f"s_lshl_b32 s43, s{sHd}, 1\ns_or_b32 s43, s43, s{sHalf}\nv_xor_b32 v5, s43, v3\nv_lshl_add_u32 v{vW}, v5, 5, v4\nv_xor_b32 v5, 1, v5\nv_lshl_add_u32 v{vW+1}, v5, 5, v4")
        e(f"v_add_u32 v{vW+2}, {2*24576}, v{vW}\nv_add_u32 v{vW+3}, {2*24576}, v{vW+1}")
    def zero_acc(self):
        for r in range(104): self.g.e(f"v_mov_b32 v{r}, 0")
    def sig_static(self, s): return [f"s_add_u32 s44, s{sLead}, {s}", "s_and_b32 s44, s44, 15"]
    def offA(self): return [f"s_mul_i32 s45, s44, s{sAi}", f"s_add_u32 s{sA}, s45, s{sAb}"]
    def offW(self): return [f"s_mul_i32 s45, s44, {64*6144}", f"s_add_u32 s{sW}, s45, s{sWb}", f"s_add_u32 s{sW2}, s{sW}, 4096"]
    def a_ops(self, s):
        e = self.g.e
        return [(f"s_add_u32 m0, s{sMA}, {A_RING + (s % 3)*16384}" if q == 0 else None,
                 lambda q=q: e.vm(f"buffer_load_dwordx4 v{vOA+q}, {R(sAs)}, s{sA} offen offset:{1024*q} sc1 {self.ntA} lds", ('S', s))) for q in range(4)]
    def w_ops(self, s):
        e = self.g.e
        return [(f"s_add_u32 m0, s{sMW}, {W_RING + (s % 3)*24576 + q*1024}" if q in (0, 4) else None,
                 lambda q=q: e.vm(f"buffer_load_dwordx4 v{vOW + (q&1)}, {R(sWq)}, s{sW if q < 4 else sW2} offen offset:{1024*(q&3)} {self.ntW} lds", ('S', s))) for q in range(6)]
    def run(self, pre, ops):
        e = self.g.e
        for x in pre: e(x)
        for m, f in ops:
            if m: e(m + "\ns_nop 0")
            f()
    def prefetch_w(self, a=0, n=3):
        for s in range(a, n): self.run(self.sig_static(s) + self.offW(), self.w_ops(s))
    def halo(self, i):
        e = self.g.e
        e(f"s_add_u32 s44, s{sLead}, s{sWave}\ns_add_u32 s44, s44, {4*i}\ns_and_b32 s44, s44, 15\ns_mul_i32 s44, s44, s{sAi}")
        e(f"s_lshl_b32 s45, s{sWave}, 10\ns_add_u32 m0, s45, {HALO + i*4096}\ns_add_u32 s44, s44, s{sHb}")
        e.vm(f"buffer_load_dwordx4 v{vOH}, {R(sAs)}, s44 offen sc1 lds", ('H', i))
    def first_a(self):
        self.halo(0); self.run(self.sig_static(0) + self.offA(), self.a_ops(0))
    def prep_and_start(self, kernargs, more, rest):
        g = self.g; e = g.e
        self.setup(True)
        kernargs()
        nt = self.c.get('nt0', 0); self.ntA = 'nt' if nt & 1 else ''; self.ntW = 'nt' if nt & 2 else ''
        self.run(self.sig_static(0) + self.offA(), self.a_ops(0)); self.prefetch_w(0, 1); self.halo(0)
        self.ntA = self.ntW = ''
        more(); rest()
        e(f"s_and_b32 s43, s{sWave}, 1\ns_mul_i32 s43, s43, {LP}\ns_lshl_b32 s44, s2, 7\ns_add_u32 s43, s43, s44\ns_add_u32 s43, s43, {FL}")
        e.vm(f"buffer_store_dword v{vZ}, v{vZ}, {R(sWS)}, s43 offen sc1")
        self.setup_reads(True); self.mask_table()
        if not self.c.get('peel', 1): self.zero_acc()
        self.side.setup()
        e(f"s_lshl_b32 s43, s{sHd}, 12\nv_add_u32 v132, s43, v{vT}\nv_add_u32 v133, s43, v{vT+1}")
        e(f"v_and_b32 v128, 15, v{vL}\nv_lshrrev_b32 v129, 4, v{vL}\nv_cmp_eq_u32 vcc, 0, v128\nv_lshlrev_b32 v129, 4, v129\nv_mov_b32 v130, 0x40000000\nv_cndmask_b32 v136, v130, v129, vcc")
        for r in range(4): e(f"v_mov_b32 v{156+r}, 0x3f803f80")
        e(f"s_lshl_b32 s43, s{sWave}, 1\ns_add_u32 s43, s43, s{sT0}\ns_lshl_b32 s48, s43, 11\ns_lshl_b32 s43, s{sLead}, 7\ns_add_u32 s48, s48, s43\ns_add_u32 s48, s48, {STA}")
        e(f"s_lshl_b32 s43, s{sHj}, 2\ns_lshl_b32 s44, s{sHd}, 1\ns_add_u32 s43, s43, s44\ns_add_u32 s43, s43, s{sHalf}\ns_lshl_b32 s43, s43, 6\ns_mul_i32 s49, s{sLead}, {3072*4}\ns_add_u32 s49, s49, s43\ns_add_u32 s49, s49, {CSQ}")
        g.stamp()
        def xreads():
            g.stamp()
            for tt in range(2):
                for p in range(2): e.ds(f"ds_read_b128 {vr(140 + (tt*2+p)*4, 4)}, v{132+p} offset:{2048*tt}", 'PX')
        def prep():
            e.wait(ds='all')
            for kk in range(2):
                for m in range(3): e(f"{MF} {vr(160+4*m,4)}, {ar(fW(0,kk,2*m),4)}, v[156:159], {vr(160+4*m,4) if kk else 0}")
            stats_epilogue(e, lambda tt, p: 140 + (tt*2+p)*4, 2, 2, vL, 192, sWS, 48, aux='sc1', sm0=[80, 82, 92, 46])
            for m in range(3): e.vm(f"buffer_store_dwordx4 {vr(160+4*m,4)}, v136, {R(sWS)}, s49 offen sc1"); e("s_add_u32 s49, s49, 4096")
        if not self.c.get('peel', 1): return self.enter(True, xreads, prep)
        stats_pre(e, vL, 192, 78)
        self.run(self.sig_static(1) + self.offA(), self.a_ops(1))
        e.wait(vm=[('S', 0), ('H', 0)]); e("s_barrier")
        g.stamp()
        for f in self.reads(0): f()
        for tt in range(2):
            for p in range(2): e.ds(f"ds_read_b128 {vr(140 + (tt*2+p)*4, 4)}, v{132+p} offset:{2048*tt}", 'PX')
        self.prefetch_w(1, 2)
        g.stamp()
        spine = [lambda x=x: self.mfma(0, *x, zero=True) for x in self.order()]
        r = Rec(e); Px = lambda tt, p: 140 + (tt*2+p)*4
        for kk in range(2):
            for m in range(3): r(f"{MF} {vr(160+4*m,4)}, {ar(fW(0,kk,2*m),4)}, v[156:159], {vr(160+4*m,4) if kk else 0}")
        stats_mfma(r, Px, 0, 192); stats_mfma(r, Px, 1, 192)
        spine[30:30] = r.ops; N = len(spine); S = Slots(N); B = self.c.get('B0', 16)
        S.sc[B].append(lambda: (e.wait(vm=('S', 1), ds='all'), e("s_barrier")))
        for k, f in enumerate(self.reads(1)): S.ve[B + k].append(f)
        r = Rec(e); real = self.g.e; self.g.e = r
        self.prefetch_w(2, 3); self.run(self.sig_static(2) + self.offA(), self.a_ops(2))
        for h in range(1, 4): self.halo(h)
        n1 = len(r.ops)
        self.run(self.sig_static(3) + self.offA(), self.a_ops(3)); self.prefetch_w(3, 4)
        self.g.e = real
        nv = sum(not getattr(f, 'sc', False) for f in r.ops); k = 0; pos = 0
        for i, f in enumerate(r.ops):
            if getattr(f, 'sc', False): S.ve[pos].append(f)
            else:
                pos = 1 + (k*(N - 3))//nv; k += 1; assert i < n1 or pos > B
                S.ve[pos].append(f)
        r = Rec(e); stats_post(r, 192, 78, 48, None); r.ops.pop(0)
        for m in range(3): r.vm(f"buffer_store_dwordx4 {vr(160+4*m,4)}, v136, {R(sWS)}, s49 offen sc1"); r("s_add_u32 s49, s49, 4096")
        S.pour(r.ops, 51, N, cap=3)
        for k, f in enumerate(spine): f(); S.emit(k)
        for x in self.sig_static(4) + self.offA(): e(x)
        e(f"s_mov_b32 s{sSt}, 5\ns_mov_b32 s{sCnt}, 2")
        self.side.hook(sSt, 9)
        e("s_branch Lp1_u1")
    def pre(self):
        e = self.g.e
        e(f"s_mov_b32 s{sAs}, s{sWS}\ns_mov_b32 s{sAs+1}, s{sWS+1}\ns_mov_b32 s{sAs+2}, {hex(WS_BYTES)}")
        self.setup(False); self.prefetch_w(0, self.c.get('wpre', 0)); self.setup_reads(False); self.side.disable()
    def window(self):
        e = self.g.e
        self.prefetch_w(self.c.get('wpre', 0), 3); self.zero_acc()
        e(f"s_mul_i32 s77, s{sMi1}, {128*self.g.SH}\ns_add_u32 s77, s77, {FL + H4*128 - 128*self.g.SH}\ns_and_b32 s43, s{sMi1}, 7\ns_cmp_eq_u32 s43, 0\ns_cselect_b32 s43, {128*self.g.SH}, 0")
        e(f"v_lshlrev_b32 v249, 7, v{vL}\nv_or_b32 v249, s43, v249")
    def start_l2(self):
        e = self.g.e
        self.g.poll(77, 16//self.g.SH, voff=249, nl=2*self.g.SH)
        self.run(self.sig_static(0) + self.offA(), self.a_ops(0)); self.halo(0)
        self.run(self.sig_static(1) + self.offA(), self.a_ops(1))
        rd = self.reads(0); wr = rd[:4] + rd[12:16] + rd[18:]
        for f in wr: f()
        e.wait(vm=[('S', 0), ('H', 0)]); e("s_barrier")
        for f in rd[4:12] + rd[16:18]: f()
        for h in range(1, 4): self.halo(h)
        self.run(self.sig_static(2) + self.offA(), self.a_ops(2))
        e("s_waitcnt lgkmcnt(0)")
        for t in [('W', 0, 0)]*4 + [('T', 0, 1 + k//2) for k in range(8)] + [('W', 0, 1)]*4 + [('T', 0, 0)]*2 + [('W', 0, 2 + k//4) for k in range(16)]: e.dsq.append(t)
    def enter(self, l1, hook=None, hook2=None):
        e = self.g.e; o = self.c.get('ord', 1) if l1 else 0
        if l1 and o == 0: self.prefetch_w(1, 2)
        self.run(self.sig_static(1) + self.offA(), self.a_ops(1))
        e.wait(vm=[('S', 0), ('H', 0)]); e("s_barrier")
        if hook: hook()
        if o == 2: self.prefetch_w(1, 2)
        for f in self.reads(0): f()
        if o == 1: self.prefetch_w(1, 2)
        if o: hook2()
        for h in range(1, 4): self.halo(h)
        if l1: self.prefetch_w(2, 3)
        self.run(self.sig_static(2) + self.offA(), self.a_ops(2))
        if l1 and not o: hook2()
    def reads(self, s):
        e = self.g.e
        sl = s % 3; b = s & 1
        def rt(t, kk):
            def f():
                if t == 0:
                    e.ds(f"ds_read_b128 {ar(fT(b,kk,0),4)}, v{vH+kk} offset:{((s-1) % 6 + 1)*1024 if s else 0}", ('T', s, 0))
                    if s in (6, 12): e(f"v_add_u32 v{vH+kk}, 6144, v{vH+kk}")
                else: e.ds(f"ds_read_b128 {ar(fT(b,kk,t),4)}, v{vT+kk} offset:{sl*16384 + (t-1)*2048}", ('T', s, t))
            return f
        def rw(n, kk, j):
            return lambda: e.ds(f"ds_read_b64_tr_b16 {ar(fW(b,kk,n)+2*j,2)}, v{vW + (n & 1) + (2 if sl == 2 else 0)} offset:{(sl & 1)*24576 + (2*kk+j)*6144 + (n>>1)*2048}", ('W', s, n))
        w = lambda n: [rw(n, kk, j) for kk in range(2) for j in range(2)]
        return w(0) + [rt(t, kk) for t in range(1, 5) for kk in range(2)] + w(1) + [rt(0, 0), rt(0, 1)] + w(2) + w(3) + w(4) + w(5)
    def order(self):
        seq = []; kk = 0
        for n in range(6):
            ts = [0, 1, 2, 3, 4] if n in (2, 4) else [1, 2, 3, 4]
            if n & 1: ts = ts[::-1]
            for t in ts: seq += [(n, t, kk, True), (n, t, 1-kk, False)]; kk = 1 - kk
        return seq
    def mfma(self, s, n, t, kk, first, zero=False):
        e = self.g.e; b = s & 1
        e.wait(ds=[('W', s, n), ('T', s, t)])
        a = (Q if n < 2 else Kc if n < 4 else V)(n & 1, t)
        x, y = ar(fW(b, kk, n), 4), ar(fT(b, kk, t), 4)
        if n >= 4: x, y = y, x
        e(f"{MF} {vr(a,4)}, {x}, {y}, {0 if zero and first else vr(a,4)}")
    def main(self, p2):
        g = self.g; e = g.e; c = self.c
        BOFF0 = c.get('BOFF', 4)
        e(f"s_mov_b32 s{sSt}, 4")
        for x in self.sig_static(3) + self.offA(): e(x)
        reads = self.reads
        g.stamp()
        nxt = dict(enumerate(p2.prefetch_ops()))
        n_epi = c.get('pf_epi', 4); assert n_epi + c.get('pf15', 10) <= 22 and not c.get('pf14')
        S_ = lambda x: (lambda: e(x))
        for s in range(16):
            if s % 6 == 0: e.mark(f"p1b{s//6}")
            S = Slots(NSL); BOFF = BOFF0 if s <= 14 else 10
            def bar(s=s):
                e.wait(vm=('S', s+1) if s < 15 else None, ds='all'); e("s_barrier")
            S.sc[BOFF].append(bar)
            def clear(pos):
                if clr and getattr(clr[0], 'sc', False): S.sc[pos].append(clr.pop(0))
                if clr: S.ve[pos].append(clr.pop(0))
            def pfo(pos, j):
                op = nxt.pop(j)
                for z in range(2): S.sc[pos - 2 + z].append(op[z])
                S.ve[pos].insert(0, W2(op[2]))
            own = c.get('own', 1) and s <= 12
            dpos = [BOFF + c.get('d0', 3) + 4*k for k in range(10)] if own else [BOFF + 2 + 4*k for k in range(10)]
            vpos = dpos if own else {13: range(3, 48, 4), 14: (8, 12, 16, 20, 24, 32, 40, 48)}.get(s, ())
            rpos = [k for k in range(BOFF, NSL) if k not in vpos]
            if s < 15:
                for k, f in enumerate(reads(s+1)): S.ve[rpos[k]].append(f)
            if s + 3 < 16:
                for k, x in enumerate(self.offW()): S.sc[k].append(S_(x))
                if s < 12:
                    for k, x in enumerate(["s_add_u32 s44, s44, 1", "s_and_b32 s44, s44, 15", f"s_add_u32 s{sSt}, s{sSt}, 1"] + self.offA()): S.sc[BOFF + 20 + k].append(S_(x))
                for k, (m, f) in enumerate(self.a_ops(s+3) + self.w_ops(s+3)):
                    pos = dpos[k]
                    if m: S.sc[pos-1].append(S_(m))
                    S.ve[pos].append(W2(f))
            if s == 12:
                ckl = f"buffer_load_dword v{vCk}, v{tmp}, {R(sDbg)}, 0 offen sc1"
                r = Rec(e); r(f"v_and_b32 v{tmp}, 1, v{vL}\nv_lshlrev_b32 v{tmp}, 7, v{tmp}"); S.pour(r.ops, 0, 2)
                S.ve[2].append(lambda: e.vm(ckl, 'CK'))
                r(f"""s_lshl_b32 s43, s{sHalf}, 2
                s_add_u32 s{sOwn}, s{sT0}, s43
                s_add_u32 s45, s{sLo}, {STA}
                s_lshl_b32 s44, s{sHt}, 11
                s_add_u32 s77, s44, s45
                s_lshl_b32 s44, s{sWave}, 1
                s_add_u32 s44, s44, s{sT0}
                s_lshl_b32 s44, s44, 11
                s_add_u32 s78, s44, s45
                s_lshl_b32 s43, s{sHj}, 1
                s_add_u32 s{sHead}, s43, s{sHd}
                s_lshl_b32 s43, s{sHead}, 7
                s_add_u32 s46, s43, {CSQ}
                s_lshl_b32 s43, s{sHalf}, 6""")
                S.pour(r.ops, 3, 30, cap=0)
                r(f"""v_lshlrev_b32 v{vB+1}, 3, v{vL}
                v_lshlrev_b32 v{vB}, 4, v{vL}
                v_xor_b32 v{vOH}, s43, v{vB}
                v_add_u32 v{vOH}, s{sPW}, v{vOH}
                v_bfe_u32 v{vB+2}, v{vL}, 3, 2
                v_lshrrev_b32 v{vB+3}, 5, v{vL}
                v_mad_u32_u24 v{vB+2}, v{vB+3}, 3, v{vB+2}
                v_and_b32 v{vB+3}, 7, v{vL}
                v_lshlrev_b32 v{vB+3}, 4, v{vB+3}
                v_lshl_add_u32 v{vB+2}, v{vB+2}, 12, v{vB+3}""")
                S.pour(r.ops, 30, 46)
                S.sc[47].append(lambda: g.check(vCk, ckl, 128, 'CK'))
            if s == 13:
                for p in range(4):
                    S.sc[6*p].append(lambda p=p: (e(f"s_cmp_eq_u32 s{sLay}, 0"), g.cold("s_cbranch_scc1", lambda: e("".join(
                        f"buffer_load_dwordx4 {vr(vMuV+8*p+4*z,4)}, v{vB+2}, {R(sWS)}, s46 offen sc1\ns_add_u32 s46, s46, {2*3072*4}\n" for z in range(2))))))
                for t in range(3):
                    so, off = (78, t*2048) if t < 2 else (77, 0)
                    for k in range(4): S.ve[16*t + 4*k + 3].append(W2(lambda t=t, k=k, so=so, off=off: e.vm(f"buffer_load_dwordx2 {vr(vST + t*8 + 2*k, 2)}, v{vB+1}, {R(sWS)}, s{so} offen offset:{off + 512*k} sc1", ('ST', t))))
                r = Rec(e)
                for x in p2.prefetch_setup(): r(x.replace("\n", "\t"))
                S.pour(r.ops, 1, NSL)
                S.pour(self.addr_ops(), 24, NSL)
            if s == 14:
                r = Rec(e)
                if not g.q4: self.p4.clear_mailbox(r, vB, tmp+6, f"s{sLo}")
                clr = r.ops[9:]; S.pour(r.ops[:9], 0, 8)
                for pos in (8, 12, 16, 20, 28, 36, 44): clear(pos)
                S.sc[23].append(S_(f"s_add_u32 m0, s{sMA}, {RES}"))
                for q in range(4): S.ve[24 + 8*q].append(W2(lambda q=q: e.vm(f"buffer_load_dwordx4 v{vOA+q}, {R(sAs)}, s{sRs} offen offset:{1024*q} sc1 lds", 'R')))
                for k in range(c.get('pf14', 0)): pfo(28 + 8*k if k < 3 else 4, 6 + k)
                m1 = self.stat_ops(); S.pour(m1, 6, NSL, partial=True)
            if s == 15:
                for k in range(c.get('pf15', 10)): pfo(3 + (NSL//c.get('pf15', 10))*k, 10 + k if k < 8 else min(nxt))
                for pos in (0, 6, 12, 18, 24): clear(pos)
                assert not clr
                S.pour(m1, 0, BOFF - 2)
                m2 = self.table_ops(); S.pour(m2, BOFF, NSL, partial=True)
            if s < 12: S.sc[NSL - 4].append(lambda s=s: self.side.hook(sSt, s % 6))
            if s in (1, 7): e("Lp1_u1:")
            for k, x in enumerate(self.order()): self.mfma(s, *x); S.emit(k)
            if c.get('fine') and s in (2, 5, 8, 11, 13): g.stamp()
        e.fold([f"p1b{k}" for k in range(3)], "Lp1_loop", f"s{sCnt}")
        g.stamp()
        if g.cfg.get('rep'): print("p1 leftover", len(m2))
        e('Lmk_p1epi:')
        for f in m2: f()
        self.epilogue(p2, [nxt[j] for j in sorted(nxt)], n_epi)
    def mask_table(self):
        e = self.g.e; t = 232
        e(f"v_and_b32 v{t+3}, 15, v{vL}\nv_lshrrev_b32 v{t+4}, 4, v{vL}\nv_lshlrev_b32 v{t+4}, 2, v{t+4}\nv_sub_u32 v{t+3}, v{t+3}, v{t+4}\nv_mov_b32 v{t+5}, {fhex(-1e30)}")
        for r in range(4):
            e(f"v_subrev_u32 v{t+6}, {r}, v{t+3}\nv_cmp_gt_u32 vcc, 8, v{t+6}\nv_add_u32 v{t+6}, 16, v{t+6}\nv_cmp_gt_u32 s[78:79], 8, v{t+6}")
            e(f"v_cndmask_b32 v{132+r}, v{t+5}, 0, vcc\ns_nop 0\nv_cndmask_b32 v{136+r}, v{t+5}, 0, s[78:79]")
        e(f"v_lshlrev_b32 v{t}, 4, v{vL}\nv_add_u32 v{t}, {MSK}, v{t}\nds_write_b128 v{t}, v[132:135]\nds_write_b128 v{t}, v[136:139] offset:1024")
    def addr_ops(self):
        r = Rec(self.g.e); g16, t4 = vOW, vOW + 1
        r(f"v_lshrrev_b32 v{tmp}, 4, v{vL}\nv_lshlrev_b32 v{g16}, 4, v{tmp}\nv_and_b32 v{t4}, 15, v{vL}\nv_lshlrev_b32 v{t4}, 2, v{t4}")
        r(f"s_lshl_b32 s43, s{sHalf}, 9\nv_add_u32 v{aG}, {TBL}, v{g16}\nv_add_u32 v{aL}, {TBL}, v{t4}\nv_add_u32 v{aG+1}, s43, v{aG}\nv_add_u32 v{aL+1}, s43, v{aL}")
        r(f"s_lshl_b32 s43, s{sWave}, 1\ns_add_u32 s43, s43, 1\nv_add_u32 v{tmp+1}, s43, v{tmp}\nv_cmp_gt_u32 vcc, 2, v{tmp}\nv_and_b32 v{tmp}, 1, v{tmp}\nv_mul_u32_u24 v{tmp}, 9, v{tmp}")
        r(f"v_cndmask_b32 v{tmp}, v{tmp}, v{tmp+1}, vcc\nv_lshl_add_u32 v{vB+2}, v{tmp}, 7, v{aL}")
        r(f"v_add_u32 v{g16}, s{sPW}, v{g16}\nv_add_u32 v{t4}, s{sPW}, v{t4}\nv_add_u32 v{vB+3}, {MSK}, v{vB}")
        return r.ops
    def stat_ops(self):
        r = Rec(self.g.e); g16, t4 = vOW, vOW + 1
        def css():
            e = self.g.e; e.wait(vm=('ST', 1))
            e(f"s_cmp_eq_u32 s{sLay}, 0"); self.g.cold("s_cbranch_scc1", css1)
        def css1():
            e = self.g.e
            for d in (16, 8, 4):
                for x in range(0, d, 2): e(f"v_pk_add_f32 {vr(vMuV+x,2)}, {vr(vMuV+x,2)}, {vr(vMuV+d+x,2)}")
            for x in range(4): e(f"v_mov_b32 v{vMuV+4+x}, v{vMuV+x}")
            for x in range(4): e(f"v_permlane32_swap_b32 v{vMuV+x}, v{vMuV+4+x}")
            for x in range(4): e(f"v_add_f32 v{vMuV+x}, v{vMuV+x}, v{vMuV+4+x}")
            e(f"ds_write_b128 v{vOH}, {vr(vMuV,4)} offset:1024")
        for t in range(3):
            p = vST + t*8
            if t == 1:
                r.call(css)
                for m in range(2):
                    for j in range(2): r.ds(f"ds_read_b128 {vr(vCS + m*8 + j*4, 4)}, v{g16} offset:{1024 + m*128 + 64*j}", 'CSR')
                r.ds(f"ds_read2_b32 {vr(vCS+16,2)}, v{vXa} offset0:64 offset1:80", 'CSR')
            else: r.wait(vm=('ST', t))
            if t == 0: r(f"v_add_u32 v{vXa}, 1024, v{t4}")
            if t == 1:
                r(f"s_xor_b32 s47, s{sWave}, 2\ns_mul_i32 s47, s47, 6144\ns_add_u32 s47, s47, {PW}\ns_add_u32 s49, s47, 3072\ns_add_u32 s79, s47, 2048")
                r(f"s_cmp_eq_u32 s{sHalf}, 0\ts_cselect_b32 s49, s{sPW}, s49\ts_cselect_b32 s79, s47, s79")
                r(f"v_add_u32 v{vXa}, s49, v{vB+1}\nv_add_u32 v{vXa+1}, s79, v{vB+1}\nv_add_u32 v{vB+1}, s{sPW}, v{vB+1}")
            r(f"v_add_f32 v{p}, v{p}, v{p+2}\nv_add_f32 v{p+1}, v{p+1}, v{p+3}\nv_add_f32 v{p+4}, v{p+4}, v{p+6}\nv_add_f32 v{p+5}, v{p+5}, v{p+7}")
            r(f"v_add_f32 v{p}, v{p}, v{p+4}\nv_add_f32 v{p+1}, v{p+1}, v{p+5}")
        A, B, C, X = vST, vST + 8, vST + 16, vST + 2
        r(f"s_mov_b32 s48, {fhex(1.0/D)}\nv_mov_b32 v{tmp}, {fhex(1e-5)}")
        r(f"v_permlane32_swap_b32 v{B}, v{X}\nv_permlane32_swap_b32 v{B+1}, v{X+1}\nv_permlane32_swap_b32 v{A}, v{C}\nv_permlane32_swap_b32 v{A+1}, v{C+1}")
        r(f"v_add_f32 v{B}, v{B}, v{X}\nv_add_f32 v{A}, v{A}, v{C}\nv_add_f32 v{B+1}, v{B+1}, v{X+1}\nv_add_f32 v{A+1}, v{A+1}, v{C+1}")
        r(f"v_permlane16_swap_b32 v{A}, v{B}\ns_nop 0\nv_permlane16_swap_b32 v{A+1}, v{B+1}\nv_add_f32 v{A}, v{A}, v{B}\nv_add_f32 v{A+1}, v{A+1}, v{B+1}")
        r(f"v_mul_f32 v{A}, {fhex(-1.0/D)}, v{A}\nv_fma_f32 v{A+1}, v{A+1}, s48, v{tmp}\nv_fma_f32 v{A+1}, -v{A}, v{A}, v{A+1}\nv_max_f32 v{A+1}, v{A+1}, v{tmp}\nv_rsq_f32 v{A+1}, v{A+1}\ns_nop 0")
        r.ds(f"ds_write2_b32 v{vB+2}, v{A}, v{A+1} offset0:0 offset1:16")
        return r.ops
    def table_ops(self):
        r = Rec(self.g.e)
        for t in (1, 2, 3, 4, 0): r.ds(f"ds_read2_b32 {vr(vP+2*t,2)}, v{aL + (t > 0)} offset0:{32*t} offset1:{32*t+16}", 'TP')
        r.ds(f"ds_read_b128 {vr(bC,4)}, v{vB+3}", 'MK'); r.ds(f"ds_read_b128 {vr(bP,4)}, v{vB+3} offset:1024", 'MK')
        for t in (0, 4, 1, 2, 3):
            r.ds(f"ds_read_b128 {vr(vMuV+4*t,4)}, v{aG + (t > 0)} offset:{t*128}", 'TB')
            r.ds(f"ds_read_b128 {vr(vRsV+4*t,4)}, v{aG + (t > 0)} offset:{t*128+64}", 'TB')
        r(f"s_and_b32 s43, s{sMi1}, 7\ns_or_b32 s43, s43, s{sHalf}\ts_cselect_b64 s[46:47], -1, 0\nv_mov_b32 v{tmp+5}, {fhex(-1e30)}")
        r.wait(ds='MK')
        for t in (4, 3, 2, 1):
            for j in range(2):
                for x in range(4): r(f"v_fmac_f32 v{Q(j,t)+x}, v{vCS+4*j+x}, v{vP+2*t}")
            for j in range(2):
                for h in range(2): r(f"v_cvt_pk_bf16_f32 v{Q(0,t)+2*j+h}, v{Q(j,t)+2*h}, v{Q(j,t)+2*h+1}")
        for x in range(4): r(f"v_cndmask_b32 v{bP0+x}, v{tmp+5}, v{bP+x}, s[46:47]\nv_mov_b32 v{ones+x}, 0x3f803f80\nv_mul_f32 v{vCq+x}, {fhex(LOG2E*(32 ** -0.5))}, v{vP+2*x+3}")
        return r.ops
    def epilogue(self, p2, nxt, n_epi):
        g = self.g; e = g.e
        left = [n_epi]
        def pf():
            if left[0] > 0 and nxt:
                left[0] -= 1
                for f in nxt.pop(0): f()
        qf = lambda t: Q(0, t); kf = lambda t: Kc(0, t) if t else kf0
        vp = lambda j, t: 140 + j*10 + 2*t
        cb = vCS + 16
        def fold_k(t):
            J = range(2 if t else 1)
            for j in J:
                for h in range(2): e(f"v_pk_fma_f32 {vr(Kc(j,t)+2*h,2)}, {vr(vCS+8+4*j+2*h,2)}, {vr(vP+2*t,2)}, {vr(Kc(j,t)+2*h,2)} op_sel:[0,0,0] op_sel_hi:[1,0,1]")
            for j in J:
                for h in range(2): e(f"v_pk_mul_f32 {vr(Kc(j,t)+2*h,2)}, {vr(Kc(j,t)+2*h,2)}, {vr(vP+2*t,2)} op_sel:[0,1] op_sel_hi:[1,1]")
            for j in J:
                for h in range(2): e(f"v_cvt_pk_bf16_f32 v{Kc(0,t)+2*j+h}, v{Kc(j,t)+2*h}, v{Kc(j,t)+2*h+1}")
        def fold_v(t):
            J = range(2 if t else 1)
            for j in J:
                for h in range(2): e(f"v_pk_fma_f32 {vr(V(j,t)+2*h,2)}, {vr(vMuV+4*t+2*h,2)}, {vr(cb,2)}, {vr(V(j,t)+2*h,2)} op_sel:[0,{j},0] op_sel_hi:[1,{j},1]")
            for j in J:
                for h in range(2): e(f"v_pk_mul_f32 {vr(V(j,t)+2*h,2)}, {vr(V(j,t)+2*h,2)}, {vr(vRsV+4*t+2*h,2)}")
            for j in J:
                for h in range(2): e(f"v_cvt_pk_bf16_f32 v{(vp(j,t) if t else V(0,0))+h}, v{V(j,t)+2*h}, v{V(j,t)+2*h+1}")
        e.wait(ds='all')
        fold_k(0); fold_k(4); fold_v(0); fold_v(4)
        e.ds(f"ds_write2st64_b64 v{vB+1}, {vr(Kc(0,0),2)}, {vr(V(0,0),2)} offset0:0 offset1:1", 'XW')
        for j in range(2): e.ds(f"ds_write2st64_b64 v{vB+1}, {vr(Kc(0,4)+2*j,2)}, {vr(vp(j,4),2)} offset0:{4+2*j} offset1:{5+2*j}", 'XW')
        pf(); fold_k(3); pf(); fold_k(2); pf(); fold_k(1)
        e.wait(ds='XW'); e("s_barrier")
        for j in range(2): e.ds(f"ds_read_b64 {vr(kf0+2*j,2)}, v{vXa+j}", 'XR')
        for j in range(2): e.ds(f"ds_read_b64 {vr(vp(j,0),2)}, v{vXa+j} offset:512", 'XR')
        Sp = lambda t: Q(1, t); Sc = lambda t: Kc(1, t)
        for t in (4, 3, 2, 1):
            e(f"{MF} {vr(Sc(t),4)}, {vr(kf(t),4)}, {vr(qf(t),4)}, {vr(bC,4)}")
            if t == 1: e.wait(ds='XR')
            e(f"{MF} {vr(Sp(t),4)}, {vr(kf(t-1),4)}, {vr(qf(t),4)}, {vr(bP0 if t == 1 else bP,4)}")
        pf()
        for t in (1, 2, 3): fold_v(t); pf()
        e(f"s_cmp_eq_u32 s{sHalf}, 0\ns_cbranch_scc1 Lp1_nsw")
        for x in range(10): e(f"v_swap_b32 v{vp(0,0)+x}, v{vp(1,0)+x}")
        e("Lp1_nsw:")
        mx = lambda t: tmp + t - 1
        for k in range(4):
            for t in range(1, 5):
                p, c_ = Sp(t), Sc(t)
                e([f"v_max3_f32 v{mx(t)}, v{p}, v{p+1}, v{p+2}", f"v_max3_f32 v{mx(t)}, v{mx(t)}, v{p+3}, v{c_}", f"v_max3_f32 v{mx(t)}, v{mx(t)}, v{c_+1}, v{c_+2}", f"v_max_f32 v{mx(t)}, v{mx(t)}, v{c_+3}"][k])
        xreduce_g(e, "v_max_f32", [mx(t) for t in range(1, 5)], list(range(tmp+4, tmp+8)))
        for h in range(2): e(f"v_pk_mul_f32 {vr(tmp+2*h,2)}, {vr(tmp+2*h,2)}, {vr(vCq+2*h,2)} neg_lo:[0,1] neg_hi:[0,1]")
        pfr = qf
        for t in range(1, 5):
            z = (t - 1) & 1; cq, mm = (vCq + t - 1) & ~1, mx(t) & ~1
            for b4 in (Sp(t), Sc(t)):
                for h in range(2): e(f"v_pk_fma_f32 {vr(b4+2*h,2)}, {vr(b4+2*h,2)}, {vr(cq,2)}, {vr(mm,2)} op_sel:[0,{z},{z}] op_sel_hi:[1,{z},{z}]")
            for b4 in (Sp(t), Sc(t)):
                for r in range(4): e(f"v_exp_f32 v{b4+r}, v{b4+r}")
            for q, b4 in enumerate((Sp(t), Sc(t))):
                for h in range(2): e(f"v_cvt_pk_bf16_f32 v{pfr(t)+2*q+h}, v{b4+2*h}, v{b4+2*h+1}")
            if t < 3: pf()
        while left[0] > 0 and nxt: pf()
        O = V; Dn = lambda t: Kc(0, t)
        sal = f"s_lshl_b32 s43, s{sOwn}, 15\ns_lshl_b32 s44, s{sHead}, 10\ns_add_u32 s43, s43, s44\ns_add_u32 s43, s43, {g.lo('O')}\ns_add_u32 s46, s43, {OB}".split("\n")
        sal += [f"s_add_u32 s{46+t}, s{46+t-1}, 32768" for t in range(1, 4)]
        sal += f"s_lshl_b32 s77, s{sMi1}, 1\ns_lshr_b32 s43, s{sHj}, 3\ns_add_u32 s77, s77, s43\ns_lshl_b32 s77, s77, 7\ns_add_u32 s77, s77, s{sLo}\ns_add_u32 s77, s77, {FL + H1*128}".split("\n")
        for t in range(1, 5): e(f"{MF} {vr(Dn(t),4)}, {vr(ones,4)}, {vr(pfr(t),4)}, 0\n{sal.pop(0)}\n{sal.pop(0)}")
        for t in range(1, 5):
            for j in range(2):
                e(f"{MF} {vr(O(j,t),4)}, {vr(vp(j,t-1),4)}, {vr(pfr(t),4)}, 0")
                if sal: e(sal.pop(0))
                if t > 2: e(f"v_rcp_f32 v{Dn(2*t+j-5)}, v{Dn(2*t+j-5)}")
        for t in range(1, 5):
            for j in range(2):
                for h in range(2): e(f"v_pk_mul_f32 {vr(O(j,t)+2*h,2)}, {vr(O(j,t)+2*h,2)}, {vr(Dn(t),2)} op_sel:[0,0] op_sel_hi:[1,0]")
            for j in range(2):
                for h in range(2): e(f"v_cvt_pk_bf16_f32 v{Sp(t)+2*j+h}, v{O(j,t)+2*h}, v{O(j,t)+2*h+1}")
            e.vm(f"buffer_store_dwordx4 {vr(Sp(t),4)}, v{vB}, {R(sWS)}, s{46+t-1} offen sc1", 'OUT')
        e('Lmk_p1end:')
        g.stamp()
        g.signal('OUT', 77, p2.pre)
        p2.window(nxt)
```

```python
from mg import *
from p1 import RES, vRo
sM0, sRot, sT, sX, sSt = 89, 88, 57, 58, 60
vW, vOT, vR, vS = 40, 48, 52, 72
acc = lambda n, tt: (n*2 + tt)*4
aW = lambda u, kk, n: 128 + (u & 1)*32 + kk*16 + n*4
class P2:
    def __init__(self, g): self.g = g; self.c = g.cfg.get('p2', {}); self.LT = self.c.get('LT', 6); self.RB = self.c.get('RB', 0); self.P = 8 if self.LT <= 6 else 16
    def aT(self, j, tt): return (j % self.P)*8 + tt*4
    def prefetch_setup(self):
        return [f"s_lshl_b32 s92, s{sNj2}, 7", f"s_lshl_b32 s93, s{sWave}, 14", "s_add_u32 s92, s92, s93", f"s_lshl_b32 s{sM0}, s{sWave}, 10", f"v_add_u32 v186, s92, v{vOW2}",
                f"s_bfe_u32 s{sRot}, s2, {hex(self.RB*0x10000 + 5)}", f"s_lshl_b32 s{sRot}, s{sRot}, {21 - self.RB}"]
    def prefetch_ops(self):
        e = self.g.e
        return [[lambda j=j: e(f"s_add_u32 m0, s{sM0}, {j*4096}"), lambda j=j: e(f"s_xor_b32 s92, s{sRot}, {j*65536}"),
                 lambda j=j: e.vm(f"buffer_load_dwordx4 v186, {R(sWo)}, s92 offen lds", ('W2', j))] for j in range(32)]
    def t_ops(self, j):
        r = Rec(self.g.e)
        if j < 32:
            if j % 4 == 0: r((f"s_add_u32 s{sT}, s{sT}, 4096\t" if j else f"s_lshr_b32 s{sRot}, s{sRot}, 6\t") + f"s_xor_b32 s93, s{sT}, s{sRot}")
            for tt in range(2): r.vm(f"buffer_load_dwordx4 {ar(self.aT(j, tt), 4)}, v{vOT+tt}, {R(sWS)}, s93 offen offset:{1024*(j & 3)} sc1", ('T2', j))
        return r.ops
    def pre(self):
        g = self.g; e = g.e
        e(f"s_lshl_b32 s44, s{sMi2}, 3\ns_lshl_b32 s43, s{sWave}, 1\ns_add_u32 s44, s44, s43\ns_lshl_b32 s45, s44, 15\ns_add_u32 s{sT}, s45, {g.lo('O')}\ns_add_u32 s{sT}, s{sT}, {OB}")
        e(f"s_lshl_b32 s43, s{sNj2}, 11\ns_add_u32 s45, s45, s43\ns_add_u32 s45, s45, {g.lo('X')}\ns_add_u32 s{sX}, s45, {XB}\ns_add_u32 s{sX+1}, s{sX}, 32768")
        e(f"s_lshl_b32 s44, s44, 11\ns_lshl_b32 s43, s{sNj2}, 7\ns_add_u32 s44, s44, s43\ns_add_u32 s44, s44, s{sLo}\ns_add_u32 s{sSt}, s44, {STB}")
        e(f"v_lshlrev_b32 v{vOT}, 4, v{vL}\nv_add_u32 v{vOT+1}, 32768, v{vOT}")
        e(f"s_cmp_eq_u32 s{sLay}, 0\ns_cselect_b32 s44, 32, 8\ns_cselect_b32 s45, 64, 0x400\ns_lshl_b32 s43, s{sWave}, 12\ns_add_u32 s43, s43, {RES}")
        e(f"v_xor_b32 v3, s44, v{vRo}\nv_xor_b32 v4, s45, v{vRo}\nv_xor_b32 v5, s45, v3\nv_add_u32 v2, s43, v{vRo}\nv_add_u32 v3, s43, v3\nv_add_u32 v4, s43, v4\nv_add_u32 v5, s43, v5")
        e.wait(vm='R')
        for tt in range(2):
            for q in range(4): e.ds(f"ds_read_b64 {vr(vR + tt*8 + 2*q, 2)}, v{2+q} offset:{2048*tt}", 'RR')
        e(f"v_lshrrev_b32 v2, 2, v{vL}\nv_bfe_u32 v3, v{vL}, 3, 2\nv_and_b32 v4, 3, v{vL}\nv_lshlrev_b32 v4, 3, v4\nv_lshl_add_u32 v4, v2, 7, v4")
        for t in range(4): e(f"v_xor_b32 v5, {t}, v3\nv_lshl_add_u32 v{vW+t}, v5, 5, v4")
        self.side.acc(); e.wait(ds='RR')
    def window(self, nxt):
        g = self.g; e = g.e
        for op in nxt:
            for f in op: f()
        for tt in range(2):
            for n in range(4):
                for h in range(2):
                    src = vR + (tt*2 + (n >> 1))*4 + (n & 1)*2 + h
                    e(f"v_lshlrev_b32 v{acc(n,tt)+2*h}, 16, v{src}\nv_and_b32 v{acc(n,tt)+2*h+1}, 0xffff0000, v{src}")
        stats_pre(e, vL, vS, 64)
        self.side.publish()
        e(f"s_lshl_b32 s77, s{sMi2}, 8\ns_add_u32 s77, s77, {FL + H1*128}\nv_lshlrev_b32 v249, 7, v{vL}\ns_add_u32 s77, s77, s{sLo}")
    def main(self, nx):
        g = self.g; e = g.e
        g.poll(77, 8, voff=249)
        L0 = self.c.get('L0', self.LT)
        for j in range(L0):
            for f in self.t_ops(j): f()
        self.side.final()
        def reads(u):
            r = Rec(e)
            for n in range(4 if u < 16 else 0):
                for kk in range(2):
                    for j in range(2): r.ds(f"ds_read_b64_tr_b16 {ar(aW(u, kk, n) + 2*j, 2)}, v{vW+n} offset:{((2*u+kk) % 8)*4096 + j*2048}", ('F2', u, n))
            return r.ops
        for f in reads(0): f()
        for j in range(L0, self.LT):
            for f in self.t_ops(j): f()
        e(f"s_and_b32 s43, s{sNj2}, {g.SH-1}\ns_mul_i32 s77, s{sMi2}, {g.SH}\ns_add_u32 s77, s77, s43\ns_lshl_b32 s77, s77, 7\ns_add_u32 s77, s77, s{sLo}\ns_add_u32 s77, s77, {FL + H2*128}")
        g.stamp()
        Pk = lambda tt, p: vR + (tt*2 + p)*4
        def out(r, tt, p):
            for q in range(4):
                a = acc(2*p + (q >> 1), tt) + 2*(q & 1)
                r(f"v_cvt_pk_bf16_f32 v{Pk(tt,p)+q}, v{a}, v{a+1}")
            r.vm(f"buffer_store_dwordx4 {vr(Pk(tt,p),4)}, v{vOT}, {R(sWS)}, s{sX+tt} offen offset:{1024*p} sc1", 'OUT2')
        for u in range(16):
            if u % 4 == 0: e.mark(f"p2b{u//4}")
            S = Slots(16)
            RP = self.c.get('rp', (0, 2, 2, 3)) if u < 13 else (0, 1, 2, 3)
            for k, f in enumerate(reads(u+1)): S.ve[(k & 12) + RP[k & 3]].append(f)
            if u % 4 == 2:
                for n in range(4): S.ve[4*n+3].append(lambda n=n: e(f"v_add_u32 v{vW+n}, 32768, v{vW+n}"))
            k = self.c.get('first', 1)
            for f in self.t_ops(2*u + self.LT) + self.t_ops(2*u + self.LT + 1):
                if getattr(f, 'sc', False): S.sc[k].append(f)
                else: S.ve[k].append(f); k += 4
            if u == 15:
                r = Rec(e); out(r, 1, 0); out(r, 0, 0); S.pour(r.ops, 11, 16, partial=True); S.ve[15] += r.ops
                for k in (8, 9, 10): S.sc[k].append(lambda: e("s_nop 0"))
            seq = []; kk = 0
            for n in range(4):
                for tt in ((1, 0) if n & 1 else (0, 1)): seq += [(n, tt, kk), (n, tt, 1-kk)]; kk = 1 - kk
            for k, (n, tt, kk) in enumerate(seq):
                e.wait(vm=('T2', 2*u+1) if k == 0 else None, ds=('F2', u, n | 1))
                a = vr(acc(n, tt), 4)
                e(f"{MF} {a}, {ar(aW(u, kk, n), 4)}, {ar(self.aT(2*u+kk, tt), 4)}, {a}")
                S.emit(k)
        if self.P == 8: e.fold([f"p2b{k}" for k in range(4)], "Lp2_loop", f"s{sCnt}")
        g.stamp()
        stats_mfma(e, Pk, 0, vS); out(e, 1, 1); out(e, 0, 1); e("s_nop 0"); stats_mfma(e, Pk, 1, vS)
        stats_post(e, vS, 64, sSt, 'OUT2')
        g.stamp()
        g.signal('OUT2', 77, nx.pre)
        self.side.arrive()
        nx.window()
```

```python
from mg import *
sOdd, sW, sM0, sGrp, sTch, sPW, sT = 66, 67, 68, 69, 70, 71, 72
vW, vOT, vOW, vTch, vCa, vMu, tm = 224, 231, 232, 236, 237, 238, 242
vC1, vC2, vS2 = vMu, vOW, vTch
TX = {14: 192, 15: 224}
aT = lambda s, kk, tt: TX.get(s, (s & 1)*32) + kk*16 + tt*4
NWB = 4
aW = lambda L, kk: 64 + (L % NWB)*8 + kk*4
aDum, aC = 96, 104
acc = lambda n, tt: (n*4 + tt)*4
PW3 = 131072
class P3:
    def __init__(self, g): self.g = g; self.c = g.cfg.get('p3', {}); self.merge = g.q4 and g.cfg.get('merge', 1); TX.update({14: 192, 15: 224} if g.q4 else {14: 96, 15: 0})
    def w_ops(self, st):
        e = self.g.e; ops = []
        for mat in range(2):
            for q in range(4):
                L = [f"s_add_u32 m0, s{sM0}, {(st & 1)*32768 + mat*16384}", "NOP"] if q == 0 else []
                L += [lambda q=q, mat=mat: e.vm(f"buffer_load_dwordx4 v{vOW+q}, {R((sWg, sWu)[mat])}, s{sW} offen offset:{1024*q} {self.g.cfg.get('waux', '')} lds", ('W3', st))]
                if q == 3 and mat == 1:
                    L += [f"s_add_u32 s{sW}, s{sW}, {64*2*F}"] + ([f"s_xor_b32 s{sM0}, s{sM0}, 0x10000"] if st & 1 else [])
                ops.append(L)
        return ops
    def st_ops(self):
        e = self.g.e; ops = []
        for m in range(2):
            for q in range(4):
                L = [f"s_add_u32 m0, s{sM0}, {32768 + m*16384}", "NOP"] if q == 0 else []
                ops.append(L + [lambda q=q, m=m: e.vm(f"buffer_load_dwordx4 v{vOT}, {R(sWS)}, s{44+m} offen offset:{1024*q} sc1 lds", 'ST3')])
        return ops
    def t_ops(self, st):
        e = self.g.e; ops = []
        for tt in range(4):
            for kk in range(2):
                L = [lambda tt=tt, kk=kk: e.vm(f"buffer_load_dwordx4 {ar(aT(st, kk, tt), 4)}, v{vOT}, {R(sWS)}, s{sT+tt} offen offset:{(st & 1)*2048 + kk*1024} sc1", ('T3', st, tt))]
                if kk == 1 and st & 1: L += [f"s_add_u32 s{sT+tt}, s{sT+tt}, 4096"]
                ops.append(L)
        return ops
    def run(self, ops):
        for op in ops:
            for x in op:
                if callable(x): x()
                else: self.g.e("s_nop 0" if x == "NOP" else x)
    def pre(self):
        g = self.g; e = g.e
        e(f"s_and_b32 s{sOdd}, s{sNj3}, 1")
        e(f"v_lshrrev_b32 v2, 4, v{vL}\nv_bfe_u32 v3, v{vL}, 1, 3\nv_and_b32 v4, 1, v{vL}\nv_lshlrev_b32 v4, 4, v4")
        e(f"v_mul_u32_u24 v5, {2*F}, v2\nv_add_u32 v5, v5, v4\ns_cmp_eq_u32 s{sOdd}, 0\ns_cselect_b32 s44, 7, 0\nv_mov_b32 v7, 0x40000000")
        for i in range(4):
            e(f"v_add_u32 v6, {4*(i&1)}, v2\nv_xor_b32 v6, v6, v3\nv_cmp_eq_u32 vcc, s44, v6\nv_lshl_add_u32 v6, v6, 5, v5\nv_add_u32 v6, {i*4*2*F - 1024*i}, v6")
            e(f"v_cndmask_b32 v{vOW+i}, v6, v7, vcc")
        e(f"s_mul_i32 s{sW}, s{sNj3}, 224\ns_and_b32 s{sW}, s{sW}, 0xffffffc0\ns_mul_i32 s43, s{sWave}, {16*2*F}\ns_add_u32 s{sW}, s{sW}, s43\ns_lshl_b32 s{sM0}, s{sWave}, 12")
        e(f"v_lshlrev_b32 v{vOT}, 4, v{vL}\n{'s_mov_b32 s43, 0x40000000' if self.c.get('nowd') else f's_lshl_b32 s43, s{sLay}, 30'}\nv_or_b32 v{vTch}, s43, v{vOT}\ns_lshl_b32 s43, s2, 2\ns_add_u32 s43, s43, s{sWave}\ns_mul_i32 s{sTch}, s43, 7168")
        e(f"s_lshl_b32 s{sGrp}, s{sMi3}, 2\ns_add_u32 s{sGrp}, s{sGrp}, s{sWave}\ns_lshl_b32 s{sT}, s{sGrp}, 17\ns_add_u32 s{sT}, s{sT}, {g.lo('X')}\ns_add_u32 s{sT}, s{sT}, {XB}")
        for tt in range(1, 4): e(f"s_add_u32 s{sT+tt}, s{sT+tt-1}, 32768")
        e(f"s_lshl_b32 s{sPW}, s{sWave}, 11\ns_add_u32 s{sPW}, s{sPW}, {PW3}")
        e(f"v_lshrrev_b32 v2, 2, v{vL}\nv_and_b32 v3, 7, v2\nv_and_b32 v4, 3, v{vL}\nv_lshlrev_b32 v5, 3, v4\nv_lshl_add_u32 v5, v2, 8, v5")
        e(f"s_lshl_b32 s43, s{sOdd}, 1\ns_cmp_eq_u32 s{sOdd}, 0\ns_cselect_b32 s45, 6, 1")
        for t in range(7):
            if t < 6: e(f"s_add_u32 s46, s43, {t}\nv_xor_b32 v6, s46, v3")
            else: e(f"v_xor_b32 v6, s45, v3")
            e(f"v_lshl_add_u32 v{vW+t}, v6, 5, v5")
        e(f"s_mul_i32 s46, s{sNj3}, 448\ns_add_u32 s46, s46, {CSG}\ns_add_u32 s47, s46, {2*F*4}\ns_lshr_b32 s48, s{sNj3}, 3\ns_lshl_b32 s48, s48, 7\ns_add_u32 s48, s48, {FL + HC*128}")
        e(f"s_lshl_b32 s44, s{sGrp}, 13\ns_add_u32 s44, s44, s{sLo}\ns_add_u32 s44, s44, {STB}\ns_add_u32 s45, s44, 4096")
        if g.q4:
            e(f"s_lshl_b32 s43, s2, 2\ns_add_u32 s43, s43, s{sWave}\ns_mul_i32 s65, s43, 12288\ns_add_u32 s65, s65, s{sLo}\ns_add_u32 s65, s65, {PB}")
            for x in range(4): e(f"v_accvgpr_write_b32 a{100+x}, -1")
        for st in range(self.c.get('wpre', 0)): self.run(self.w_ops(st))
    def window(self):
        g = self.g; e = g.e
        if self.c.get('late', 0): self.run(self.w_ops(0)); g.not0(lambda: self.run(self.w_ops(1)))
        else:
            for st in range(2): self.run(self.w_ops(st))
        e(f"s_mul_i32 s77, s{sMi3}, {256*g.SH}\ns_add_u32 s77, s77, s{sLo}\ns_add_u32 s77, s77, {FL + H2*128}\nv_lshlrev_b32 v249, 7, v{vL}")
    def stats_ops(self, fill):
        e = self.g.e; r = Rec(e); t = tm + 4; P = lambda tt: vMu + 2*tt
        r(f"s_add_u32 s43, s{sM0}, 32768\nv_lshlrev_b32 v250, 3, v{vL}\nv_add_u32 v250, s43, v250")
        pour(fill, r.ops, 0, 6)
        rd = lambda dst, tt, k: (lambda: e.ds(f"ds_read_b64 {vr(dst,2)}, v250 offset:{(tt>>1)*16384 + (tt&1)*2048 + k*512}", ('SR', tt, k)))
        fill[6].append(lambda: e.wait(vm='ST3'))
        for tt in range(4): fill[6 + tt//2].append(rd(P(tt), tt, 0))
        for i in range(12):
            tt, k = i & 3, 1 + (i >> 2); d = t + 2*(i & 1)
            fill[11 + 4*i].append(rd(d, tt, k))
            fill[16 + 4*i] = [lambda tt=tt, k=k: e.wait(ds=('SR', tt, k))] + fill[16 + 4*i] + [lambda tt=tt, d=d: e(f"v_add_f32 v{P(tt)}, v{P(tt)}, v{d}")]
            fill[17 + 4*i].append(lambda tt=tt, d=d: e(f"v_add_f32 v{P(tt)+1}, v{P(tt)+1}, v{d+1}"))
        A, B, C, D_ = P(0), P(1), P(2), P(3)
        r(f"s_mov_b32 s43, {fhex(1.0/D)}\nv_mov_b32 v250, {fhex(1e-5)}\nv_lshlrev_b32 v{t}, 2, v{vL}\nv_add_u32 v{t}, s{sPW}, v{t}")
        r(f"v_permlane32_swap_b32 v{A}, v{C}\nv_permlane32_swap_b32 v{A+1}, v{C+1}\nv_permlane32_swap_b32 v{B}, v{D_}\nv_permlane32_swap_b32 v{B+1}, v{D_+1}")
        r(f"v_add_f32 v{A}, v{A}, v{C}\nv_add_f32 v{B}, v{B}, v{D_}\nv_add_f32 v{A+1}, v{A+1}, v{C+1}\nv_add_f32 v{B+1}, v{B+1}, v{D_+1}\nv_and_b32 v{t+1}, 0xffffff3f, v{t}")
        r(f"v_permlane16_swap_b32 v{A}, v{B}\nv_permlane16_swap_b32 v{A+1}, v{B+1}\nv_add_f32 v{A}, v{A}, v{B}\nv_add_f32 v{A+1}, v{A+1}, v{B+1}\nv_add_u32 v{t+1}, 1024, v{t+1}")
        r(f"v_mul_f32 v{A}, {fhex(-1.0/D)}, v{A}\nv_fma_f32 v{A+1}, v{A+1}, s43, v250\nv_fma_f32 v{A+1}, -v{A}, v{A}, v{A+1}\nv_max_f32 v{A+1}, v{A+1}, v250\nv_rsq_f32 v{B}, v{A+1}")
        r.ds(f"ds_write_b32 v{t}, v{A} offset:1024"); r.ds(f"ds_write_b32 v{t}, v{A+1} offset:1536")
        r(f"v_mul_f32 v{B}, {fhex(-LOG2E)}, v{B}"); r.ds(f"ds_write_b32 v{t}, v{B} offset:1280")
        for h in range(2): r.ds(f"ds_read2_b32 {vr(vMu+2*h,2)}, v{t+1} offset0:{32*h} offset1:{32*h+16}")
        ckl = f"buffer_load_dword v{vCa}, v{vZ}, {R(sWS)}, s48 offen sc1"
        fill[42] += [lambda: e.vm(ckl, 'CK3'), lambda: None]
        r(f"v_lshrrev_b32 v250, 3, v{vL}\nv_add_u32 v250, s{sOdd}, v250\nv_cmp_ne_u32 vcc, 7, v250\nv_bfe_u32 v{tm}, v{vL}, 2, 1\nv_mul_u32_u24 v{tm}, {F*4}, v{tm}")
        r(f"v_cndmask_b32 v250, 0, v250, vcc\nv_lshl_add_u32 v250, v250, 6, v{tm}\nv_and_b32 v{tm}, 3, v{vL}\nv_lshl_add_u32 v250, v{tm}, 4, v250")
        r.call(lambda: self.g.check(vCa, ckl, 56, 'CK3'))
        for a in range(2): r.vm(f"buffer_load_dwordx4 {vr(tm+4*a,4)}, v250, {R(sWS)}, s{46+a} offen sc1", 'CS3')
        r(f"v_lshrrev_b32 v{vCa}, 4, v{vL}\nv_lshlrev_b32 v{vCa}, 4, v{vCa}\nv_add_u32 v{vCa}, s{sPW}, v{vCa}\nv_add_u32 v250, s{sPW}, v{vOT}")
        pour(fill, r.ops, 62, 112, cap=2); assert not r.ops, len(r.ops)
    def epi_units(self):
        e = self.g.e; U = []
        MG = self.merge
        def ph(i, name, plain=False):
            if not 0 <= i < 28: return []
            r = Rec(e); t, tt = i >> 2, i & 3
            g_, u = acc(2*t, tt), acc(2*t+1, tt); T = tm + 4*(i & 1)
            sel = tt & 1; c1 = (vC1 + tt) & ~1; c2 = (vC2 + tt) & ~1
            if plain:
                for x in range(4): r({'a': f"v_mul_f32 v{T+x}, v{g_+x}, v{vC1+tt}", 'b': f"v_mul_f32 v{g_+x}, v{g_+x}, v{u+x}",
                                      'd': f"v_fma_f32 v{T+x}, v{T+x}, v{vC2+tt}, v{vC2+tt}", 'f': f"v_mul_f32 v{g_+x}, v{g_+x}, v{T+x}"}[name])
                return r.ops
            if name == 'a':
                for h in range(2): r(f"v_pk_mul_f32 {vr(T+2*h,2)}, {vr(g_+2*h,2)}, {vr(c1,2)} op_sel:[0,{sel}] op_sel_hi:[1,{sel}]")
            if name == 'b':
                for h in range(2): r(f"v_pk_mul_f32 {vr(g_+2*h,2)}, {vr(g_+2*h,2)}, {vr(u+2*h,2)}")
            if name == 'c':
                for x in range(4): r(f"v_exp_f32 v{T+x}, v{T+x}")
            if name == 'd':
                for h in range(2): r(f"v_pk_fma_f32 {vr(T+2*h,2)}, {vr(T+2*h,2)}, {vr(c2,2)}, {vr(c2,2)} op_sel:[0,{sel},{sel}] op_sel_hi:[1,{sel},{sel}]")
            if name == 'e':
                for x in range(4): r(f"v_rcp_f32 v{T+x}, v{T+x}")
            if name == 'f':
                for h in range(2): r(f"v_pk_mul_f32 {vr(g_+2*h,2)}, {vr(g_+2*h,2)}, {vr(T+2*h,2)}")
            if name == 'g':
                dst = acc(1 if MG and t >= 4 else 2*(t & ~1) + 1, tt) + 2*(t & 1) if t < 6 else acc(13, tt & ~1) + 2*(tt & 1)
                r(f"v_cvt_pk_bf16_f32 v{dst}, v{g_}, v{g_+1}\nv_cvt_pk_bf16_f32 v{dst+1}, v{g_+2}, v{g_+3}")
                if t < 6 and (t & 1): r.vm(f"buffer_store_dwordx4 {vr(dst-2,4)}, v{vOT}, {R(sWS)}, s{57+tt} offen sc1", ('OUT3', t >> 1)); r(f"s_add_u32 s{57+tt}, s{57+tt}, {8192 if self.g.q4 else 16384}")
                if t == 6 and (tt & 1):
                    r(f"s_nop 1\nv_permlane32_swap_b32 v{dst-2}, v{dst}\nv_permlane32_swap_b32 v{dst-1}, v{dst+1}")
                    r.vm(f"buffer_store_dwordx4 {vr(dst-2,4)}, v{vS2}, {R(sWS)}, s{61 + (tt>>1)} offen sc1", 'OUT3')
            return r.ops
        for i in range(-1, 30):
            c, e0, e1, g2 = ph(i, 'c'), ph(i-1, 'e'), ph(i, 'e'), ph(i-2, 'g')
            pl = MG and i >= 23
            nop = [lambda: e("s_nop 0")] if i in (0, 28) and not pl else []
            U.append(dict(v=[e0[1:2], e0[2:3], g2[0:1], g2[1:2], g2[2:] + c[0:1], c[1:2], [], c[2:] + e0[3:] + nop + ph(i, 'd', pl) + ph(i-1, 'f', pl) + ph(i+1, 'a', pl) + ph(i+1, 'b', pl) + e1[0:1]],
                          pre=[], mem=[]))
        mix = lambda *L: [l[x] for x in range(4) for l in L if x < len(l)]
        g2 = ph(21, 'g'); self.left = mix(ph(22, 'e')[1:], g2[:2]) + g2[2:]
        for i in range(23, 29):
            d = ph(i, 'd', True)
            self.left += mix(ph(i, 'c'), ph(i-1, 'f', True), ph(i, 'b', True) if i > 23 else []) + ph(i-1, 'g') + d[:1] + mix(d[1:], ph(i, 'e'), ph(i+1, 'a', True))
        return U
    def signal_field(self, tag, f):
        g = self.g; e = g.e; l = g.lab("sgf")
        e.wait(vm=tag); e("s_barrier")
        e(f"s_cmp_lg_u32 s{sWave}, 0\ns_cbranch_scc1 {l}\nv_mov_b32 v250, 1\ns_mov_b64 exec, 1")
        e(f"buffer_atomic_add v250, v{vZ}, {R(sWS)}, s77 offen sc1\ns_mov_b64 exec, -1\n{l}:\ns_add_u32 s77, s77, {H3S}")
    def signal_last(self):
        self.g.e(f"s_xor_b32 s43, s{sCnt}, 2\ns_or_b32 s43, s43, s{sWave}"); self.g.cold("s_cbranch_scc0", lambda: self.g.arrive(sWS, 77), "Lp3_sgl")
    def tail(self, p4, wread1, order):
        g = self.g; e = g.e; c = self.c
        N = 448; S = Slots(N); BASE = 260; LG = 3 if g.q4 else 4
        tiles = [(s, 2*p + z) for p, s in order for z in range(2)]
        def place(pos, op):
            pre = True
            for x in op:
                if x == "NOP": continue
                if callable(x): S.ve[pos].append(W2(x)); pre = False
                else: S.sc[pos - 1 if pre else pos + 1].append(lambda x=x: e(x))
        EU = self.epi_units()
        for q in range(2, 56):
            for z, f in enumerate(wread1(168 + q, *tiles[q])):
                b = 8*(q - 2); S.ve[b + ((2, 2, 6, 7) if b > BASE else (0, 1, 4, 5))[z]].append(f)
        VS = c.get('VS', 5)
        for k, op in enumerate(self.t_ops(13) + self.w_ops(14) + self.t_ops(14) + self.w_ops(15) + self.t_ops(15)): place(2 + 4*((VS*k)//4), op)
        first = {s: next(k for k, (p, s_) in enumerate(order) if s_ == s) for s in (13, 14, 15)}
        for s in (13, 14, 15): S.sc[16*(first[s] - 1)].append(lambda s=s: (e.wait(vm=('W3', s)), e("s_barrier")))
        assert 16*(first[13] - 1) < VS*24
        if g.q4:
            S.sc[16*(first[14] - 1)].append(lambda: (e(f"s_and_b32 s65, s2, 1\ns_lshr_b32 s88, s2, 3\ns_lshl_b32 s88, s88, 1\ns_add_u32 s65, s65, s88\ns_lshl_b32 s65, s65, 7\ns_add_u32 s65, s65, s{sLo}\ns_add_u32 s65, s65, {FL + HM*128}"),
                                                     e(f"s_cmp_lg_u32 s{sWave}, 0\ns_cbranch_scc1 Lp3_mb"), g.arrive(sWS, 65), e("Lp3_mb:")))
        nxt = p4.prefetch_ops()
        for k in range(4):
            op = nxt.pop(0); pos = 206 + 12*k
            S.sc[pos-2].append(op[0]); S.sc[pos-1].append(op[1]); S.ve[pos].append(W2(op[2])); S.ve[pos+4].append(W2(op[3]))
        r = Rec(e); r.wait(vm='CS3')
        for x in range(4): r(f"v_add_f32 v{tm+x}, v{tm+x}, v{tm+4+x}")
        r.ds(f"ds_write_b128 v250, {vr(tm,4)}")
        S.pour(r.ops, 0, 8)
        left = list(range(14)); tau = {}
        def pick(k):
            if k == 15: return True
            for n in left:
                if n >> 1 not in (order[k-1][0], order[k][0], order[k+1][0]):
                    left.remove(n); tau[k] = n
                    if pick(k+1): return True
                    left.append(n); left.sort()
            return False
        assert pick(1) and sorted(tau.values()) == list(range(14))
        for k in range(1, 15):
            n = tau[k]; b = k & 1
            S.ve[16*(k-1) + 11 if k == 1 else 16*(k-1) + 3].append(lambda n=n, b=b: e.ds(f"ds_read_b128 {vr(tm+4*b,4)}, v{vCa} offset:{n*64}", ('CT', n)))
        for k in range(1, 15):
            n = tau[k]; b = k & 1; r = Rec(e); r.wait(ds=('CT', n))
            for tt in range(4):
                for x in range(4): r(f"v_fmac_f32 v{acc(n,tt)+x}, v{tm+4*b+x}, v{vMu+tt}")
            S.pour(r.ops, 16*k, 16*k + 16, partial=True); S.ve[16*k + 15] += r.ops
        r = Rec(e)
        for x in p4.prefetch_setup(): r(x.replace("\n", "\t"))
        r(f"s_mul_i32 s43, s{sGrp}, {4*HPITCH}\ns_lshr_b32 s45, s{sNj3}, {LG}\ns_mul_i32 s45, s45, {(7 << LG)*512}\ns_add_u32 s43, s43, s45\ns_add_u32 s43, s43, {g.lo('H')}\ns_add_u32 s43, s43, {HB}")
        r(f"s_and_b32 s44, s{sNj3}, {(1 << LG) - 1}\ns_lshl_b32 s45, s44, 10\ns_add_u32 s57, s43, s45\ns_lshl_b32 s45, s44, 9\ns_add_u32 s61, s43, s45\ns_add_u32 s61, s61, {3072 << LG}\ns_add_u32 s62, s61, {2*HPITCH}")
        for tt in range(1, 4): r(f"s_add_u32 s{57+tt}, s{57+tt-1}, {HPITCH}")
        r(f"s_lshl_b32 s77, s{sMi3}, {5 - LG}\ns_lshr_b32 s43, s{sNj3}, {LG}\ns_add_u32 s77, s77, s43\ns_lshl_b32 s77, s77, 7\ns_add_u32 s77, s77, s{sLo}\ns_add_u32 s77, s77, {FL + H3*128}")
        su = p4.setup_ops()
        S.pour(r.ops + [f for f in su if getattr(f, 'sc', False)], 20, 200, cap=0)
        r = Rec(e)
        r(f"v_and_b32 v{vS2}, 31, v{vL}\nv_lshlrev_b32 v{vS2}, 4, v{vS2}\nv_lshrrev_b32 v250, 5, v{vL}\ns_mov_b32 s43, {HPITCH}\nv_mad_u32_u24 v{vS2}, v250, s43, v{vS2}")
        r(f"v_and_b32 v250, 15, v{vL}\ns_add_u32 s43, s{sPW}, 1024\nv_lshl_add_u32 v250, v250, 2, s43")
        for z, dst in enumerate((vC1, vC1+2, vC2, vC2+2)): r.ds(f"ds_read2_b32 {vr(dst,2)}, v250 offset0:{64+32*z} offset1:{80+32*z}", 'CC')
        S.pour(r.ops, 240, 252); S.sc[258].append(lambda: e.wait(ds='CC'))
        SA, SB, CL, CK = c.get('SA', 13), c.get('SB', 22), c.get('CL', 16 if self.merge else 18), c.get('CK', 19 if self.merge else 21)
        assert BASE + 8*SB >= 432
        EU[SA+1]['pre'].append(lambda: self.signal_field(('OUT3', 0), 0))
        for k in range(4): EU[SA+1+k]['mem'] += nxt.pop(0)
        EU[SB+1]['pre'].append(lambda: self.signal_field([('OUT3', 1), ('W5', 7)], 1))
        EU[CL+1]['mem'].insert(0, p4.ck_load)
        EU[CK+1]['pre'].append(lambda: p4.ck("p4a"))
        ft = p4.first_t(); nq = c.get('NQ', 5)
        nq = max(4, -(-sum(not getattr(f, 'sc', False) for f in ft)//4))
        k = 0
        for f in ft:
            EU[CK + 1 + k//4]['mem'].append(f); k += not getattr(f, 'sc', False)
        for k in range(len(nxt)): EU[min(max(CK + nq, SB) + 1 + k, 30)]['mem'] += nxt[k]
        if self.merge:
            assert CK + nq <= 23 and not nxt
            for pos, f in zip((434, 434, 438, 439, 442, 442, 444, 444, 445, 445, 446, 446, 447, 447, 447, 447), p4.reads(0)): S.ve[pos].append(f)
        else: EU[24]['pre'] += p4.reads(0)
        for i in range(-1, 23):
            u = EU[i+1]; b = BASE + 8*i
            S.sc[b] += u['pre']
            z = 0; lastv = -1
            for f in u['mem']:
                if getattr(f, 'sc', False):
                    while S.sc[b+z] and z < 6: z += 1
                    assert z > lastv; S.sc[b+z].append(f)
                else:
                    while z in (2, 3, 6): z += 1
                    S.ve[b+z].append(f); lastv = z; z = min(z + 1, 7)
            for z in range(8): S.ve[b+z] += u['v'][z]
        vs = [f for f in su if not getattr(f, 'sc', False)]
        for f in vs: f.w = 1
        S.pour(vs, BASE + 8*10, BASE + 8*CK)
        kk = 0; k = 0; seen = set()
        for q, (s, n) in enumerate(tiles):
            if c.get('fine') and q == c['fine']: g.stamp()
            for tt in ((3, 2, 1, 0) if n & 1 else (0, 1, 2, 3)):
                e.wait(vm=('T3', s, tt if s > 12 else 3), ds=('F3', 168 + q))
                for z in (kk, 1 - kk):
                    a = vr(acc(n, tt), 4)
                    e(f"{MF} {a}, {ar(aW(168 + q, z), 4)}, {ar(aT(s, z, tt), 4)}, {a}")
                    S.emit(k); k += 1
                kk = 1 - kk
        g.stamp()
        if self.merge:
            p4.left = self.left; EU = []
        for u in EU[24:]:
            m = u['mem']; h = (len(m) + 1)//2
            for f in u['pre'] + m[:h] + sum(u['v'][:4], []) + m[h:] + sum(u['v'][4:], []): f()
        for f in p4.init_ops(): f()
        g.stamp(); g.stamp()
    def main(self, p4):
        g = self.g; e = g.e; c = self.c
        DW = c.get('DW', 2); NP = c.get('NP', 2)
        if c.get('late', 0): g.poll(77, 16//g.SH, voff=249, nl=2*g.SH, late=lambda: self.run(self.w_ops(1)), keep=8)
        else: g.poll(77, 16//g.SH, voff=249, nl=2*g.SH)
        self.run(self.t_ops(0))
        def wread(L): return wread1(L, *divmod(L, 14))
        def wread1(L, s, n):
            ops = []
            for kk in range(2):
                for j in range(2):
                    def f(kk=kk, j=j):
                        if n == 0 and kk == 0 and j == 0 and 0 < s <= 12: e.wait(vm=('W3', s)); e("s_barrier")
                        e.ds(f"ds_read_b64_tr_b16 {ar(aW(L, kk) + 2*j, 2)}, v{vW + (n >> 1)} offset:{(s & 1)*32768 + (n & 1)*16384 + (kk*32 + 16*j)*256}", ('F3', L))
                        if kk == 1 and j == 1 and s & 1 and n & 1 and s < 15: e(f"v_xor_b32 v{vW + (n >> 1)}, 0x10000, v{vW + (n >> 1)}")
                    ops.append(f)
            return ops
        for L in range(DW):
            for f in wread(L): f()
        g.stamp()
        for s in range(12):
            if s in (0, 1, 15): e(f"Lmk_p3s{s}:")
            if c.get('fine') and s in (1, 2, 15): g.stamp()
            if s % 2 == 0: e.mark(f"p3b{s//2}")
            if c.get('fine') and s == 14: g.stamp()
            fill = [[] for _ in range(112)]
            def place(pos, op):
                pre = True
                for x in op:
                    if x == "NOP": continue
                    if callable(x): fill[pos] += [x, lambda: None]; pre = False
                    else: fill[pos - 1 if pre else pos + 1].append(lambda x=x: e(x))
            if c.get('burst', 0) and 2 <= s < 14:
                pos = [7*p + z for p in range(16) for z in (range(4) if p % 2 == 0 else range(c.get('b0', 0), c.get('b0', 0) + 3))]
                rd = [f for n in range(14) for f in wread(s*14 + n + DW)]
                for k, f in enumerate(rd): fill[pos[k]].append(f)
            else:
                for n in range(14):
                    for k, f in enumerate(wread(s*14 + n + DW)): fill[n*8 + c.get('rp', (0, 1, 4, 5))[k]].append(f)
            if s < 15:
                VP = c.get('vp', [2, 10, 18, 22, 30, 38, 46, 54, 58, 66, 74, 78, 86, 94, 102, 106])
                for k, op in enumerate(self.t_ops(s+1)): place(4*k + 10 if s == 0 else VP[k], op)
            if s == 0:
                for k, op in enumerate(self.st_ops()): place(4*k + 42, op)
                if NP == 2:
                    for k, op in enumerate(self.w_ops(2)): place(4*k + 74, op)
            elif s < 14:
                for k, op in enumerate(self.w_ops(s+2)): place(VP[k+8] if s > 1 else (66, 70, 74, 82, 86, 94, 102, 106)[k], op)
            if s % 2 == 0 or s == 1:
                place(106 if s == 0 else c.get('tp', 50), [lambda: e.vm(f"buffer_load_dwordx4 {ar(aDum,4)}, v{vTch}, {R(sWd)}, s{sTch} offen"), f"s_add_u32 s{sTch}, s{sTch}, 1024"])
            if g.q4 and s & 1:
                place(62, [lambda: e.vm(f"buffer_store_dwordx4 a[100:103], v{vOT}, {R(sWS)}, s65 offen sc1")])
                place(90, [lambda: e.vm(f"buffer_store_dwordx4 a[100:103], v{vOT}, {R(sWS)}, s65 offen offset:1024 sc1"), "s_add_u32 s65, s65, 2048"])
            if s == 1: self.stats_ops(fill)
            kk = 0
            for n in range(14):
                L = s*14 + n
                k = 0
                for tt in ((3, 2, 1, 0) if n & 1 else (0, 1, 2, 3)):
                    e.wait(vm=('T3', s, tt if s == 0 else 3) if n == 0 else None, ds=('F3', L))
                    for z in (kk, 1 - kk):
                        a = vr(acc(n, tt), 4)
                        e(f"{MF} {a}, {ar(aW(L, z), 4)}, {ar(aT(s, z, tt), 4)}, {'0' if s == 0 and z == kk else a}")
                        for f in fill[n*8 + k]: f()
                        k += 1
                    kk = 1 - kk
        e.mark("p3b6")
        e.fold([f"p3b{k}" for k in range(1, 7)], "Lp3_loop", f"s{sCnt}", align=c.get('al', 3))
        if c.get('fine'): g.stamp()
        order = [(p, 12) for p in range(7)] + [(p, 13) for p in range(4)] + [(0, 14), (1, 14), (2, 14), (4, 13), (0, 15), (5, 13), (1, 15), (6, 13), (2, 15)]
        order += [(p, s) for p in range(3, 7) for s in (14, 15)]
        self.tail(p4, wread1, order)
```

```python
from mg import *
sRA, sRB, sWn, sM0, sDel = 80, 84, 92, 79, 78
sTo, sTw, sTile, sXo, sLine = 48, 63, 49, 76, 64
vW, vOT, vCk, vR, vM, vS, vF, vU, vI = 0, 8, 10, 16, 160, 208, 230, 236, 240
NS = 28
aT = lambda j, tt: 64 + ((j + 4) % 8)*8 + tt*4 if tt < 2 else 128 + (j % 16)*8 + (tt - 2)*4
aW = lambda k, kk, n: (k & 1)*32 + kk*16 + n*4
acc = lambda q, n, tt: 32 + (3 - q)*32 + (n*2 + tt)*4
def kb(j): return 7*((j & 7) >> 1) + 4*(j & 1) + (j >> 3) if j < 24 else 7*(j - 24) + 3
class P4Q:
    NQ = 4; LT = 4
    def __init__(self, g):
        self.g = g; self.c = c = g.cfg.get('p4', {}); self.MG = g.cfg.get('merge', 1); self.LW = 8 if self.MG else 12; self.left = []
        ND, NE = c.get('ND', 8), c.get('NE', 4)
        it = []
        for u in range(14 - NE): it += [(u, 0, (0, 2)), (u, 1, (1, 3) if u < 14 - ND else (1,))]
        it += [(u, 1, (1,)) for u in range(14 - NE, 14)] + [(u, 0, (q,)) for q in (0, 2) for u in range(14 - NE, 14)] + [(u, 1, (3,)) for u in range(14 - ND, 14)]
        self.items = it; self.ND, self.NE = ND, NE
    def prefetch_setup(self):
        return [f"s_xor_b32 s93, s{sNj2}, 1", "s_lshl_b32 s93, s93, 7", f"s_add_u32 s{sRA}, s{sWd}, s93\ns_addc_u32 s{sRA+1}, s{sWd+1}, 0", f"s_sub_u32 s{sRA+2}, {F*D*2}, s93", f"s_mov_b32 s{sRA+3}, 0x20000",
                f"s_lshl_b32 s93, s{sNj2}, 7", f"s_add_u32 s{sRB}, s{sWd}, s93\ns_addc_u32 s{sRB+1}, s{sWd+1}, 0", f"s_sub_u32 s{sRB}, s{sRB}, 1024\ns_subb_u32 s{sRB+1}, s{sRB+1}, 0",
                f"s_sub_u32 s{sRB+2}, {F*D*2 + 1024}, s93", f"s_mov_b32 s{sRB+3}, 0x20000",
                f"s_lshr_b32 s93, s{sNj3}, 3", f"s_mul_i32 s{sWn}, s93, {NS*65536}", f"s_lshl_b32 s93, s{sWave}, 14", f"s_add_u32 s{sWn}, s{sWn}, s93", f"s_lshl_b32 s{sM0}, s{sWave}, 11",
                f"s_cmp_eq_u32 s{sWave}, 1\ns_cselect_b32 s{sDel}, 16384, 0", f"s_cmp_eq_u32 s{sWave}, 2\ns_cselect_b32 s{sDel}, -16384, s{sDel}"]
    def w_op(self, j):
        r = Rec(self.g.e)
        r(f"s_add_u32 m0, s{sM0}, {(j % 16)*8192}\ns_add_u32 s{sWn}, s{sWn}, {(kb(j) - kb(j-1))*65536 if j else 0}" + (f"\ts_add_u32 s{sWn}, s{sWn}, s{sDel}" if j == 24 else ""))
        r.vm(f"buffer_load_dwordx4 v{vOW2}, {R(sRA)}, s{sWn} offen lds", ('W5', j)); r.vm(f"buffer_load_dwordx4 v{vOW2}, {R(sRB)}, s{sWn} offen offset:1024 lds", ('W5', j))
        return r.ops
    def prefetch_ops(self): return [self.w_op(j) for j in range(self.LW)]
    def t_op(self, u, own):
        r = Rec(self.g.e); s_ = sTw if own else sTo
        if u and u % 2 == 0: r(f"s_add_u32 s{s_}, s{s_}, 4096")
        for tt in range(2):
            for kk in range(2): r.vm(f"buffer_load_dwordx4 {ar(aT(2*u+kk, 2*own+tt), 4)}, v{vOT+tt}, {R(sWS)}, s{s_} offen offset:{1024*((2*u+kk) & 3)} sc1", ('T5', u, own))
        return r.ops
    def first_t(self): return [f for u in range(2) for own in range(2) for f in self.t_op(u, own)]
    def clear_mailbox(self, e, voff, vt, lo):
        e(f"s_lshl_b32 s44, s2, 2\ns_add_u32 s44, s44, s{sWave}\ns_mul_i32 s44, s44, 12288\ns_add_u32 s44, s44, {lo}\ns_add_u32 s44, s44, {PB}")
        for r in range(4): e(f"v_mov_b32 v{vt+r}, -1")
        for q in range(12):
            if q and q % 4 == 0: e("s_add_u32 s44, s44, 4096")
            e.vm(f"buffer_store_dwordx4 {vr(vt,4)}, v{voff}, {R(sWS)}, s44 offen offset:{1024*(q & 3)} sc1")
    def setup_ops(self):
        g = self.g; r = Rec(g.e)
        r(f"s_mov_b32 s{sLine}, s77")
        r(f"s_lshl_b32 s{sTile}, s{sMi2}, 3\ns_lshl_b32 s43, s{sWave}, 1\ns_add_u32 s{sTile}, s{sTile}, s43")
        r(f"s_lshl_b32 s{sXo}, s{sTile}, 15\ns_lshl_b32 s43, s{sNj2}, 11\ns_add_u32 s{sXo}, s{sXo}, s43\ns_add_u32 s{sXo}, s{sXo}, {g.lo('X')}")
        r(f"s_add_u32 s46, s{sXo}, {XB}\ns_add_u32 s47, s46, 32768")
        r(f"s_lshr_b32 s43, s{sNj3}, 3\ns_mul_i32 s43, s43, {NS*1024}\ns_add_u32 s43, s43, {g.lo('H')}\ns_add_u32 s43, s43, {HB}\ns_mul_i32 s{sTw}, s{sTile}, {HPITCH}\ns_add_u32 s{sTw}, s{sTw}, s43")
        r(f"s_xor_b32 s{sTo}, s{sTile}, 8\ns_mul_i32 s{sTo}, s{sTo}, {HPITCH}\ns_add_u32 s{sTo}, s{sTo}, s43")
        r(f"v_lshlrev_b32 v{vOT}, 4, v{vL}\nv_add_u32 v{vOT+1}, {HPITCH}, v{vOT}")
        r(f"v_bfe_u32 v11, v{vL}, 2, 3\nv_bfe_u32 v12, v{vL}, 3, 2\nv_and_b32 v13, 3, v{vL}\nv_lshlrev_b32 v13, 3, v13\nv_lshl_add_u32 v13, v11, 7, v13\nv_lshrrev_b32 v11, 5, v{vL}\nv_lshl_add_u32 v13, v11, 11, v13")
        for t in range(4): r(f"v_xor_b32 v11, {t}, v12\nv_lshl_add_u32 v{vW+t}, v11, 5, v13")
        return r.ops
    def init_ops(self): return []
    def ck_load(self): self.g.e.vm(f"buffer_load_dword v{vCk}, v{vZ}, {R(sWS)}, s{sLine} offen sc1", 'CK5')
    def ck(self, nm):
        self.g.check(vCk, f"buffer_load_dword v{vCk}, v{vZ}, {R(sWS)}, s{sLine} offen sc1", 8, 'CK5', "L" + nm)
        self.g.e(f"s_add_u32 s{sLine}, s{sLine}, {H3S}")
    def reads(self, k):
        e = self.g.e
        if k >= len(self.items): return []
        u, h, _ = self.items[k]
        return [lambda n=n, kk=kk, j=j, i=2*u+kk: e.ds(f"ds_read_b64_tr_b16 {ar(aW(k, kk, n) + 2*j, 2)}, v{vW + n + (4 if i & 8 else 0)} offset:{(i & 7)*8192 + j*4096 + h*1024}", ('F5', k, n))
                for n in range(4) for kk in range(2) for j in range(2)]
    def main(self, nx, p3):
        g = self.g; e = g.e; c = self.c; items = self.items; ND, NE = self.ND, self.NE
        if not c.get('fine'): g.stamp(); g.stamp()
        st = [0]
        for u, h, qs in items: st.append(st[-1] + 16*len(qs))
        N = st[-1]; S = Slots(N)
        first = lambda f: next(k for k, x in enumerate(items) if f(x)); last = lambda f: max(k for k, x in enumerate(items) if f(x))
        for k in range(len(items)):
            sp = len(items[k][2])
            for z, f in enumerate(self.reads(k+1)): S.ve[st[k] + sp*z].append(f)
        bars = {u: st[first(lambda x: x[:2] == (u, 0))] for u in range(14 - NE)}
        pub = lambda u: bars[min(u - 1, 13 - NE)]
        for u, pos in bars.items():
            S.sc[pos].append(lambda u=u: (e.wait(vm=('W5', 2*u + 3 if u < 13 - NE else 27)), e("s_barrier")))
        use = lambda u, own: min(st[k] + 16*x[2].index(q) for k, x in enumerate(items) for q in x[2] if x[0] == u and q >> 1 == own)
        W = [(self.w_op(j), (bars[(j - 16)//2 + 1] if j >= 16 else 0) + 2, pub(j//2)) for j in range(self.LW, NS)]
        To = [(self.t_op(u, 0), st[last(lambda x: x[0] == u - 4 and min(x[2]) < 2) + 1] if u >= 4 else 0, use(u, 0)) for u in range(2, 14)]
        Tw = [(self.t_op(u, 1), st[last(lambda x: x[0] == u - 8) + 1] if u >= 8 else 0, use(u, 1)) for u in range(2, 14)]
        c1, c2 = c.get('C1', 70), c.get('C2', 350 if self.MG else 300)
        gate = lambda u: c1 + 1 if 4 <= u < 8 else c2 + 1 if u >= 8 else 0
        To = [(o, max(a, gate(u + 2)), b) for u, (o, a, b) in enumerate(To)]; Tw = [(o, max(a, gate(u + 2)), b) for u, (o, a, b) in enumerate(Tw)]
        r = Rec(e)
        for tt in range(2):
            for p in range(2): r.vm(f"buffer_load_dwordx4 {vr(vR + (tt*2+p)*4, 4)}, v{vOT}, {R(sWS)}, s{46+tt} offen offset:{1024*p} sc1", 'R5')
        RS = [(r.ops, c2 - 60, 440)]
        def putv(t, f):
            if S.ve[t] and not S.ve[t+1]: t += 1
            elif S.ve[t] and S.load(t) == 1 and (t + 1) not in st: S.ve[t+1].insert(0, S.ve[t].pop())
            S.ve[t].append(W2(f))
        t = 3.0; VS = c.get('VS', 4.25 if self.MG else 4.5); slack = []
        while W or To or Tw or RS:
            cand = [q for q in (W, To, Tw, RS) if q and q[0][1] <= int(t) - 2]
            if not cand: t += 1; continue
            q = min(cand, key=lambda q: q[0][2]); ops, _, dl = q.pop(0)
            pre = [f for f in ops if getattr(f, 'sc', False)]
            for z, f in enumerate(pre): S.sc[int(t) - len(pre) + z].append(f)
            for f in ops[len(pre):]: putv(int(t), f); t += VS
            slack.append(dl - int(t - VS))
        if g.cfg.get('rep'): print("p4q vm end", t, "of", N, "slack", slack)
        assert min(slack) > 8
        for pos, nm in ((c1, "p4b"), (c2, "p4c")):
            S.ve[pos - 44].append(lambda: self.ck_load()); S.sc[pos].append(lambda nm=nm: self.ck(nm))
        mbl = f"buffer_load_dword v{vCk}, v{vZ}, {R(sWS)}, s65 offen sc1"
        S.ve[420].append(lambda: e.vm(mbl, 'CKM')); S.sc[470].append(lambda: g.check(vCk, mbl, 4, 'CKM'))
        Pk = lambda tt, p: vR + (tt*2 + p)*4
        for f in self.left:
            if getattr(f, 'tr', False): f.w = 2
        r = Rec(e)
        for t_ in range(4): r(f"v_add_u32 v{vW+4+t_}, 0x10000, v{vW+t_}")
        ops = self.left + r.ops; LC = c.get('LC', 24)
        S.pour(ops, 0, LC, cap=3, partial=True); LE = S.pour(ops, LC, 220)
        sig = min(p for p in bars.values() if p >= max(LE + 40, 128))
        if g.cfg.get('rep'): print("p4q left ends", LE, "signal", sig)
        assert sig + 40 <= c2 - 44 and LE < c2 - 60
        S.sc[sig].insert(0, lambda: e.wait(vm='OUT3'))
        S.sc[sig].append(lambda: (e(f"s_cmp_eq_u32 s{sWave}, 0"), g.cold("s_cbranch_scc1", lambda: g.arrive(sWS, 77))))
        r = Rec(e); r.wait(vm='R5')
        for tt in range(2):
            for n in range(4):
                for h in range(2):
                    src = Pk(tt, n >> 1) + (n & 1)*2 + h; a = acc(3, n, tt) + 2*h
                    r(f"v_lshlrev_b32 v14, 16, v{src}\nv_and_b32 v15, 0xffff0000, v{src}\nv_add_f32 v{a}, v{a}, v14\nv_add_f32 v{a+1}, v{a+1}, v15")
        S.pour(r.ops, 472, 600)
        r(f"v_and_b32 v11, 15, v{vL}\nv_lshrrev_b32 v12, 4, v{vL}\nv_lshlrev_b32 v12, 2, v12\nv_sub_u32 v11, v11, v12\nv_and_b32 v12, 1, v11\nv_lshlrev_b32 v12, 4, v12\nv_mov_b32 v13, 0x3f80\nv_lshlrev_b32 v12, v12, v13")
        r(f"v_lshrrev_b32 v11, 1, v11\nv_cmp_eq_u32 vcc, 0, v11\nv_mov_b32 v{vI}, 0\nv_mov_b32 v{vI+1}, 0\nv_cndmask_b32 v{vI+2}, 0, v12, vcc\nv_cmp_eq_u32 vcc, 1, v11\nv_mov_b32 v{vI+4}, 0\nv_mov_b32 v{vI+5}, 0\nv_cndmask_b32 v{vI+3}, 0, v12, vcc")
        stats_pre(r, vL, vS, 66)
        f0 = vF
        r(f"v_and_b32 v{f0}, 15, v{vL}\nv_lshrrev_b32 v{f0+1}, 4, v{vL}\nv_lshrrev_b32 v{f0+3}, 1, v{f0+1}\nv_and_b32 v{f0+1}, 1, v{f0+1}\nv_lshl_add_u32 v{f0+1}, v{f0+1}, 1, v{f0+3}")
        r(f"v_and_b32 v{f0+3}, 7, v{vL}\nv_xor_b32 v{f0+1}, v{f0+1}, v{f0+3}\nv_lshlrev_b32 v{f0+1}, 4, v{f0+1}\nv_lshl_add_u32 v{f0}, v{f0}, 7, v{f0+1}\ns_lshl_b32 s45, s{sWave}, 12\nv_add_u32 v{f0}, s45, v{f0}\nv_xor_b32 v{f0+1}, 64, v{f0}")
        r(f"v_lshrrev_b32 v{f0+4}, 3, v{vL}\nv_xor_b32 v{f0+2}, v{f0+4}, v{f0+3}\nv_lshlrev_b32 v{f0+2}, 4, v{f0+2}\nv_lshl_add_u32 v{f0+2}, v{f0+4}, 7, v{f0+2}\nv_add_u32 v{f0+2}, s45, v{f0+2}")
        r(f"v_lshlrev_b32 v{f0+3}, 4, v{f0+3}\nv_lshl_add_u32 v{f0+3}, v{f0+4}, 12, v{f0+3}")
        S.pour(r.ops, c2 + 2, 468)
        r(f"s_add_u32 s45, s{sLo}, {PB}\ns_lshl_b32 s44, s2, 2\ns_add_u32 s44, s44, s{sWave}\ns_mul_i32 s72, s44, 12288\ns_add_u32 s72, s72, s45\ns_add_u32 s73, s72, 4096\ns_add_u32 s74, s72, 8192")
        for d in (1, 2, 3): r(f"s_xor_b32 s{57+d}, s44, {8*d}\ns_mul_i32 s{57+d}, s{57+d}, 12288\ns_add_u32 s{57+d}, s{57+d}, s45\ns_add_u32 s45, s45, 4096")
        r(f"s_add_u32 s46, s{sXo}, {XA + g.lp('X')}\ns_add_u32 s47, s46, 32768")
        r(f"s_lshl_b32 s75, s{sTile}, 11\ns_lshl_b32 s45, s{sNj2}, 7\ns_add_u32 s75, s75, s45\ns_add_u32 s75, s75, {STA + LP}")
        r(f"s_and_b32 s57, s{sTile}, 63\ns_lshl_b32 s57, s57, 16\ns_add_u32 s57, s57, s45\ns_lshr_b32 s45, s{sTile}, 6\ns_lshl_b32 s45, s45, 11\ns_add_u32 s57, s57, s45")
        r(f"s_lshl_b32 s77, s{sMi2}, 7\ns_add_u32 s77, s77, {FL + H4*128}")
        S.pour(r.ops, 472, 600, cap=0)
        def cvt(r, q, tt, p):
            for x in range(4):
                a = acc(q, 2*p + (x >> 1), tt) + 2*(x & 1)
                r(f"v_cvt_pk_bf16_f32 v{Pk(tt,p)+x}, v{a}, v{a+1}")
        done = lambda q: max(st[k] + 16*(x[2].index(q) + 1) for k, x in enumerate(items) if q in x[2])
        for q, d in ((1, 2), (0, 3), (2, 1)):
            for p in range(2):
                for tt in range(2):
                    cvt(r, q, tt, p); r.vm(f"buffer_store_dwordx4 {vr(Pk(tt,p),4)}, v{vOT}, {R(sWS)}, s{71+d} offen offset:{1024*(tt*2+p)} sc1")
            S.pour(r.ops, done(q), done(q) + 24, cap=3)
        def mail_loads(r, ds_):
            for d in ds_:
                for x in range(4): r.vm(f"buffer_load_dwordx4 {vr(vM+16*(d-1)+4*x,4)}, v{vOT}, {R(sWS)}, s{57+d} offen offset:{1024*x} sc1", ('MB', d))
        def mail_add(ds_, nm):
            regs = [vM + 16*(d-1) + x for d in ds_ for x in range(16)]
            def tree(r):
                r(f"v_max3_u32 v{vU}, v{regs[0]}, v{regs[1]}, v{regs[2]}\nv_max3_u32 v{vU+1}, v{regs[3]}, v{regs[4]}, v{regs[5]}")
                for x in range((len(regs) - 6)//2): r(f"v_max3_u32 v{vU + (x&1)}, v{vU + (x&1)}, v{regs[6+2*x]}, v{regs[7+2*x]}")
                r(f"v_max_u32 v{vU}, v{vU}, v{vU+1}\nv_cmp_eq_u32 vcc, -1, v{vU}")
            r = Rec(e); r.wait(vm=('MB', ds_[-1])); tree(r)
            def fin():
                g.cold("s_cbranch_vccnz", lambda: g.spin(lambda: mail_loads(e, ds_), lambda: tree(e), "L" + nm), "L" + nm)
                for n in range(4):
                    for tt in range(2):
                        for d in ds_: e(f"{MF} {vr(acc(3,n,tt),4)}, {vr(vI + 2 - 2*(n & 1), 4)}, {vr(vM + 16*(d-1) + (tt*2 + (n >> 1))*4, 4)}, {vr(acc(3,n,tt),4)}")
            return r.ops, fin
        for d, x in zip((2, 3, 1), c.get('X', (150, 100, 48))):
            mail_loads(r, (d,))
            for z, f in enumerate(r.ops): putv(N - x + 4*z, f)
            r.ops = []
        Y = c.get('Y', 17)
        ops, fin1 = mail_add((2, 3), "p4m"); S.pour(ops, N - Y - 20, N - Y); S.ve[N - Y].append(fin1)
        ops, fin2 = mail_add((1,), "p4n"); S.pour(ops, N - 6, N)
        S.sc[N - 7].append(lambda: (e.wait(ds='all'), e("s_barrier")))
        k0 = 0; started = set()
        for k, (u, h, qs) in enumerate(items):
            kk = 0
            if c.get('fine') and st[k] in c['fine']: g.stamp()
            for i, q in enumerate(qs):
                for n in (range(4) if i == 0 else range(3, -1, -1)):
                    for tt in ((1, 0) if n & 1 else (0, 1)):
                        for z in (kk, 1 - kk):
                            e.wait(vm=('T5', u, q >> 1), ds=('F5', k, n | 1))
                            a = vr(acc(q, n, tt), 4); cin = a if (q, n, tt) in started else "0"; started.add((q, n, tt))
                            e(f"{MF} {a}, {ar(aW(k, z, n), 4)}, {ar(aT(2*u+z, 2*(q >> 1) + tt), 4)}, {cin}")
                            S.emit(k0); k0 += 1
                        kk = 1 - kk
        fin2(); e("s_nop 0")
        g.stamp()
        for p in range(2):
            for tt in range(2): cvt(e, 3, tt, p)
        e(f"s_cmp_eq_u32 s{sLay}, 0\ns_cbranch_scc1 Lp4_mid")
        for tt in range(2):
            for p in range(2): e(f"v_permlane16_swap_b32 v{Pk(tt,p)}, v{Pk(tt,p)+2}\nv_permlane16_swap_b32 v{Pk(tt,p)+1}, v{Pk(tt,p)+3}")
            for p in range(2): e(f"ds_write_b128 v{f0+p}, {vr(Pk(tt,p),4)} offset:{2048*tt}")
            for x in range(2): e(f"ds_read_b128 {vr(vM+8*tt+4*x,4)}, v{f0+2} offset:{2048*tt + 1024*x}")
        for x in range(4):
            e(f"s_waitcnt lgkmcnt({(5, 4, 1, 0)[x]})\nbuffer_store_dwordx4 {vr(vM+4*x,4)}, v{f0+3}, {R(sOut)}, s57 offen nt\ns_add_u32 s57, s57, 32768")
        g.stamp()
        e("s_branch Lend\nLp4_mid:" if g.diag else "s_endpgm\nLp4_mid:")
        for p in range(2):
            for tt in range(2): e.vm(f"buffer_store_dwordx4 {vr(Pk(tt,p),4)}, v{vOT}, {R(sWS)}, s{46+tt} offen offset:{1024*p} sc1", 'OUT5')
            stats_mfma(e, Pk, p, vS)
        stats_post(e, vS, 66, 75, 'OUT5')
        g.stamp()
        e(f"s_mov_b32 s{sLay}, 1\ns_mov_b32 s{sLo}, {hex(LP)}")
        g.signal('OUT5', 77, nx.pre)
        nx.window()
        e("s_branch Llayer")
```

```python
from mg import *
sRA, sRB, sEW, sWn, sM0, sDel = 80, 84, 88, 92, 79, 78
sET, sT, sTile, sXo, sFld, sLine = 63, 48, 49, 76, 65, 64
vW, vOT, vR, vCk, vM, vU = 0, 8, 16, 10, 96, 112
aT = lambda j, tt: 128 + (j % 16)*8 + tt*4
aW = lambda k, kk, n: (k & 1)*32 + kk*16 + n*4
acc = lambda h, n, tt: 32 + h*32 + (n*2 + tt)*4
NS = 56
def kb(j): return 7*((j & 15) >> 1) + 4*(j & 1) + (j >> 4) if j < 48 else 7*(j - 48) + 3
class P4S:
    NQ = 2
    def __init__(self, g):
        self.g = g; self.c = g.cfg.get('p4', {})
        self.LT = self.c.get('LT', 8); self.LW = self.c.get('LW', 12); self.J = self.c.get('jump', 1); self.PD = self.c.get('PD', 4); self.NL = self.PD//4; self.ND = ND = self.c.get('ND', 7)
        self.items = [(u, h) for u in range(28 - ND) for h in range(2)] + [(u, h) for h in range(2) for u in range(28 - ND, 28)]
    def prefetch_setup(self):
        L = [f"s_xor_b32 s93, s{sNj2}, 1", "s_lshl_b32 s93, s93, 7", f"s_add_u32 s{sRA}, s{sWd}, s93\ns_addc_u32 s{sRA+1}, s{sWd+1}, 0", f"s_sub_u32 s{sRA+2}, {F*D*2}, s93", f"s_mov_b32 s{sRA+3}, 0x20000",
             f"s_lshl_b32 s93, s{sNj2}, 7", f"s_add_u32 s{sRB}, s{sWd}, s93\ns_addc_u32 s{sRB+1}, s{sWd+1}, 0", f"s_sub_u32 s{sRB}, s{sRB}, 1024\ns_subb_u32 s{sRB+1}, s{sRB+1}, 0",
             f"s_sub_u32 s{sRB+2}, {F*D*2 + 1024}, s93", f"s_mov_b32 s{sRB+3}, 0x20000",
             f"s_and_b32 s93, s{sNj2}, 1", f"s_mul_i32 s{sWn}, s93, {56*65536}", f"s_lshl_b32 s93, s{sWave}, 14", f"s_add_u32 s{sWn}, s{sWn}, s93", f"s_lshl_b32 s{sM0}, s{sWave}, 11"]
        if self.J == 2: L += [f"s_lshr_b32 s93, s{sNj2}, 1", f"s_add_u32 s93, s93, s{sMi2}", "s_and_b32 s93, s93, 1", f"s_mul_i32 s{sEW}, s93, {28*65536}"]
        elif self.J: L += [f"s_lshr_b32 s93, s{sNj2}, 1", f"s_add_u32 s93, s93, s{sMi2}", "s_and_b32 s93, s93, 3"] + [f"s_cmp_eq_u32 s93, {q}\ns_cselect_b32 s{sEW+q}, {14*65536}, 0" for q in range(4)]
        L += [f"s_cmp_eq_u32 s{sWave}, 1\ns_cselect_b32 s{sDel}, 16384, 0", f"s_cmp_eq_u32 s{sWave}, 2\ns_cselect_b32 s{sDel}, -16384, s{sDel}"]
        return L
    def wrap(self, L):
        out = []
        for x in L:
            f = x if callable(x) else (lambda x=x: self.g.e(x))
            f.vm = callable(x); f.sc = not f.vm; out.append(f)
        return out
    def w_op(self, j):
        e = self.g.e; J = self.J; so = 93 if J else sWn
        L = [f"s_add_u32 m0, s{sM0}, {(j % 16)*8192}", f"s_add_u32 s{sWn}, s{sWn}, {(kb(j) - kb(j-1))*65536 if j else 0}"]
        if j == 48: L[1] += f"\ns_add_u32 s{sWn}, s{sWn}, s{sDel}"
        if J == 2:
            jl = j ^ (8 if j < 48 else 4); assert abs(kb(jl) - kb(j)) == 28
            L[1] += f"\n{'s_add_u32' if jl > j else 's_sub_u32'} s93, s{sWn}, s{sEW}"
        elif J:
            jl = (j + 4) % NS; d = kb(jl) - kb(j); E_ = sEW + (j & 3)
            if d == 14: L[1] += f"\ns_add_u32 s93, s{sWn}, s{E_}"
            else:
                x = f"s_cmp_lg_u32 s{E_}, 0\ns_cselect_b32 s93, {d*65536}, 0"
                if (j >= 48) != (jl >= 48): x += f"\ns_cselect_b32 s43, s{sDel}, 0\n{'s_add_u32' if jl >= 48 else 's_sub_u32'} s93, s93, s43"
                L += [x, f"s_add_u32 s93, s93, s{sWn}"]
        L += [lambda: e.vm(f"buffer_load_dwordx4 v{vOW2}, {R(sRA)}, s{so} offen lds", ('W5', j)),
              lambda: e.vm(f"buffer_load_dwordx4 v{vOW2}, {R(sRB)}, s{so} offen offset:1024 lds", ('W5', j))]
        return self.wrap(L)
    def prefetch_ops(self): return [self.w_op(j) for j in range(min(self.LW, 12))]
    def t_op(self, j):
        e = self.g.e; so = 63 if self.J else sT
        L = [f"s_add_u32 s{sT}, s{sT}, 4096"] if j and j & 3 == 0 else []
        if self.J == 2:
            if j & 3 == 0: L = ["\n".join(L + [f"s_min_u32 s63, s{sEW}, {8192 if j < 48 else 4096}", f"s_add_u32 s63, s{sT}, s63" if (j ^ (8 if j < 48 else 4)) > j else f"s_sub_u32 s63, s{sT}, s63"])]
        elif self.J: L = ["\n".join(L + [f"s_min_u32 s63, s{sEW + (j & 3)}, 4096"] + (["s_mul_i32 s63, s63, -13"] if j + 4 >= NS else []) + [f"s_add_u32 s63, s63, s{sT}"])]
        L += [lambda tt=tt: e.vm(f"buffer_load_dwordx4 {ar(aT(j, tt), 4)}, v{vOT+tt}, {R(sWS)}, s{so} offen offset:{1024*(j & 3)} sc1", ('T5', j)) for tt in range(2)]
        return self.wrap(L)
    def vm_ops(self, i):
        return (self.w_op(i + self.LW) if i + self.LW < NS else []) + (self.t_op(i + self.LT) if i + self.LT < NS else [])
    def clear_mailbox(self, e, voff, vt, lo):
        e(f"s_lshl_b32 s44, s2, 2\ns_add_u32 s44, s44, s{sWave}\ns_lshl_b32 s44, s44, 12\ns_add_u32 s44, s44, {lo}\ns_add_u32 s44, s44, {PB}")
        for r in range(4): e(f"v_mov_b32 v{vt+r}, -1")
        for q in range(4): e.vm(f"buffer_store_dwordx4 {vr(vt,4)}, v{voff}, {R(sWS)}, s44 offen offset:{1024*q} sc1")
    def setup_ops(self):
        r = Rec(self.g.e)
        r(f"s_and_b32 s43, s{sNj2}, 1")
        r(f"s_and_b32 s{sLine}, s{sMi2}, 14\ns_add_u32 s{sLine}, s{sLine}, s43\ns_lshl_b32 s{sLine}, s{sLine}, 7\ns_add_u32 s{sLine}, s{sLine}, s{sLo}\ns_add_u32 s{sLine}, s{sLine}, {FL + H3*128}")
        r(f"s_lshl_b32 s{sTile}, s{sMi2}, 3\ns_lshl_b32 s43, s{sWave}, 1\ns_add_u32 s{sTile}, s{sTile}, s43")
        r(f"s_lshl_b32 s{sXo}, s{sTile}, 15\ns_lshl_b32 s43, s{sNj2}, 11\ns_add_u32 s{sXo}, s{sXo}, s43\ns_add_u32 s{sXo}, s{sXo}, {self.g.lo('X')}")
        r(f"s_add_u32 s46, s{sXo}, {XB}\ns_add_u32 s47, s46, 32768\nv_lshlrev_b32 v{vOT}, 4, v{vL}\nv_add_u32 v{vOT+1}, {HPITCH}, v{vOT}")
        for tt in range(2):
            for p in range(2): r.vm(f"buffer_load_dwordx4 {vr(vR + (tt*2+p)*4, 4)}, v{vOT}, {R(sWS)}, s{46+tt} offen offset:{1024*p} sc1", 'R5')
        r(f"s_mul_i32 s{sT}, s{sTile}, {HPITCH}\ns_and_b32 s43, s{sNj2}, 1\ns_mul_i32 s44, s43, {56*1024}\ns_add_u32 s{sT}, s{sT}, s44\ns_add_u32 s{sT}, s{sT}, {self.g.lo('H')}\ns_add_u32 s{sT}, s{sT}, {HB}")
        r(f"v_bfe_u32 v11, v{vL}, 2, 3\nv_bfe_u32 v12, v{vL}, 3, 2\nv_and_b32 v13, 3, v{vL}\nv_lshlrev_b32 v13, 3, v13\nv_lshl_add_u32 v13, v11, 7, v13\nv_lshrrev_b32 v11, 5, v{vL}\nv_lshl_add_u32 v13, v11, 11, v13")
        for t in range(4): r(f"v_xor_b32 v11, {t}, v12\nv_lshl_add_u32 v{vW+t}, v11, 5, v13\nv_add_u32 v{vW+4+t}, 0x10000, v{vW+t}")
        return r.ops
    def ck_load(self): self.g.e.vm(f"buffer_load_dword v{vCk}, v{vZ}, {R(sWS)}, s{sLine} offen sc1", 'CK5')
    def ck(self, nm):
        self.g.check(vCk, f"buffer_load_dword v{vCk}, v{vZ}, {R(sWS)}, s{sLine} offen sc1", 16, 'CK5', "L" + nm)
        self.g.e(f"s_add_u32 s{sLine}, s{sLine}, {H3S}")
    def reads(self, k):
        e = self.g.e
        if k >= len(self.items): return []
        u, h = self.items[k]
        return [lambda n=n, kk=kk, j=j, i=2*u+kk: e.ds(f"ds_read_b64_tr_b16 {ar(aW(k, kk, n) + 2*j, 2)}, v{vW + n + (4 if i & 8 else 0)} offset:{(i & 7)*8192 + j*4096 + h*1024}", ('F5', k, n))
                for n in range(4) for kk in range(2) for j in range(2)]
    def first_t(self): return [f for j in range(self.LT) for f in self.t_op(j)]
    def init_ops(self):
        r = Rec(self.g.e)
        for x in range(0, 32, 2): r(f"v_pk_mul_f32 {vr(32+x,2)}, {vr(vZ-1,2)}, 0 op_sel:[1,0] op_sel_hi:[1,0]")
        r.wait(vm='R5')
        for tt in range(2):
            for n in range(4):
                for h in range(2):
                    src = vR + (tt*2 + (n >> 1))*4 + (n & 1)*2 + h
                    r(f"v_lshlrev_b32 v{acc(1,n,tt)+2*h}, 16, v{src}\nv_and_b32 v{acc(1,n,tt)+2*h+1}, 0xffff0000, v{src}")
        return r.ops
    def main(self, nx, p3):
        g = self.g; e = g.e; c = self.c; ND = self.ND; items = self.items; reads = self.reads
        if self.LW > 12:
            e("s_barrier")
            for j in range(12, self.LW):
                for f in self.w_op(j): f()
        g.stamp(); g.stamp()
        Pk = lambda tt, p: vR + (tt*2 + p)*4
        def cvt(r, h, tt, p):
            for q in range(4):
                a = acc(h, 2*p + (q >> 1), tt) + 2*(q & 1)
                r(f"v_cvt_pk_bf16_f32 v{Pk(tt,p)+q}, v{a}, v{a+1}")
        def mail_loads(r):
            for q in range(4): r.vm(f"buffer_load_dwordx4 {vr(vM+4*q,4)}, v{vOT}, {R(sWS)}, s45 offen offset:{1024*q} sc1", 'MB')
        def tree(r):
            r(f"v_max3_u32 v{vU}, v{vM}, v{vM+1}, v{vM+2}\nv_max3_u32 v{vU+1}, v{vM+3}, v{vM+4}, v{vM+5}")
            for x in range(5): r(f"v_max3_u32 v{vU + (x&1)}, v{vU + (x&1)}, v{vM+6+2*x}, v{vM+7+2*x}")
            r(f"v_max_u32 v{vU}, v{vU}, v{vU+1}\nv_cmp_eq_u32 vcc, -1, v{vU}")
        def mail_check():
            e.wait(vm='MB'); tree(e)
            g.cold("s_cbranch_vccnz", lambda: g.spin(lambda: mail_loads(e), lambda: tree(e), "Lp4_mb"), "Lp4_mb")
        def out_addr(r):
            r(f"s_add_u32 s46, s{sXo}, {XA + g.lp('X')}\ns_add_u32 s47, s46, 32768")
            r(f"s_lshl_b32 s48, s{sTile}, 11\ns_lshl_b32 s43, s{sNj2}, 7\ns_add_u32 s48, s48, s43\ns_add_u32 s48, s48, {STA + LP}")
            r(f"s_and_b32 s57, s{sTile}, 63\ns_lshl_b32 s57, s57, 16\ns_add_u32 s57, s57, s43\ns_lshr_b32 s43, s{sTile}, 6\ns_lshl_b32 s43, s43, 11\ns_add_u32 s57, s57, s43")
            r(f"s_and_b32 s43, s{sNj2}, {g.SH-1}\ns_mul_i32 s77, s{sMi2}, {g.SH}\ns_add_u32 s77, s77, s43\ns_lshl_b32 s77, s77, 7\ns_add_u32 s77, s77, {FL + H4*128}")
        def final_addr(r):
            r(f"v_and_b32 v152, 15, v{vL}\nv_lshrrev_b32 v153, 4, v{vL}\nv_lshrrev_b32 v155, 1, v153\nv_and_b32 v153, 1, v153\nv_lshl_add_u32 v153, v153, 1, v155")
            r(f"v_and_b32 v155, 7, v{vL}\nv_xor_b32 v153, v153, v155\nv_lshlrev_b32 v153, 4, v153\nv_lshl_add_u32 v152, v152, 7, v153\ns_lshl_b32 s43, s{sWave}, 12\nv_add_u32 v152, s43, v152\nv_xor_b32 v153, 64, v152")
            r(f"v_lshrrev_b32 v156, 3, v{vL}\nv_xor_b32 v154, v156, v155\nv_lshlrev_b32 v154, 4, v154\nv_lshl_add_u32 v154, v156, 7, v154\nv_add_u32 v154, s43, v154")
            r(f"v_lshlrev_b32 v155, 4, v155\nv_lshl_add_u32 v155, v156, 12, v155")
        kB = len(items) - ND
        for k, (u, h) in enumerate(items):
            if k % 16 == 0 and k <= 32: e.mark(f"p4b{k//16}")
            fill = [[] for _ in range(16)]
            if h == 0 and (u % 2 == 0 or self.LW > 12):
                def bar(u=u):
                    e.wait(vm=[('W5', x) for x in range(2*u+2, min(2*u+6, NS))], force=True); e("s_barrier")
                    if u % 8 == self.LT//2 + (self.LT//2 & 1) and u < 16: p3.signal_last()
                fill[0].append(bar)
            RP = c.get('rp', (0, 1, 3, 3)) if u < 28 - ND else (0, 1, 2, 3)
            for z, f in enumerate(reads(k+1)): fill[(z & 12) + RP[z & 3]].append(f)
            kc = 16 - self.LT - 4*(self.J == 1)
            if k < 32 and k % 16 == kc: fill[0].append(lambda k=k: self.ck("p4b" if c.get('fold', 1) else f"p4b{k}"))
            if k < 32 and k % 16 == max(kc - 3, 0): fill[0].append(self.ck_load)
            if u < 28 - ND: ops = self.vm_ops(2*u + h)
            else: ops = self.vm_ops(2*u) + self.vm_ops(2*u+1) if h == 0 else []
            if c.get('even', 1): space(fill, ops, lambda f: f.vm, c.get('first', 2))
            else:
                for z, f in enumerate(ops): fill[1 + (z*14)//len(ops)].append(f)
            if k == len(items) - 1: fill[9].append(lambda: (e.wait(ds='all'), e("s_barrier")))
            if k == kB:
                r = Rec(e)
                r(f"s_lshl_b32 s45, s2, 2\ns_add_u32 s45, s45, s{sWave}\ns_lshl_b32 s45, s45, 12\ns_xor_b32 s44, s45, {g.px*4*4096}\ns_add_u32 s43, s{sLo}, {PB}\ns_add_u32 s44, s44, s43\ns_add_u32 s45, s45, s43")
                for p in range(2):
                    for tt in range(2):
                        cvt(r, 0, tt, p); r.vm(f"buffer_store_dwordx4 {vr(Pk(tt,p),4)}, v{vOT}, {R(sWS)}, s44 offen offset:{1024*(tt*2+p)} sc1")
                pour(fill, r.ops, 0, 16, cap=3); assert not r.ops
            if k == kB + 1:
                r = Rec(e); stats_pre(r, vL, 128, 66); pour(fill, r.ops, 0, 16); assert not r.ops
            if k == kB + 2:
                r = Rec(e); final_addr(r); pour(fill, r.ops, 0, 16, cap=3); assert not r.ops
            if k == kB + 3:
                r = Rec(e); out_addr(r); pour(fill, r.ops, 0, 16, cap=3); assert not r.ops
            if k == len(items) - c.get('XL', 3):
                r = Rec(e); mail_loads(r); pour(fill, r.ops, c.get('XO', 4), 16, cap=3, step=2); assert not r.ops
            if k == len(items) - 2: fill[15].append(mail_check)
            if k == len(items) - 1:
                r = Rec(e)
                for p in range(2):
                    for tt in range(2):
                        for q in range(4):
                            src = vM + (tt*2 + p)*4 + q; a = acc(0, 2*p + (q >> 1), tt) + 2*(q & 1)
                            r(f"v_lshlrev_b32 v{a}, 16, v{src}\nv_and_b32 v{a+1}, 0xffff0000, v{src}")
                pour(fill, r.ops, 0, 15, cap=2); pour(fill, r.ops, 15, 16, cap=4); assert not r.ops
            seq = []; kk = 0
            for n in range(4):
                for tt in ((1, 0) if n & 1 else (0, 1)): seq += [(n, tt, kk), (n, tt, 1-kk)]; kk = 1 - kk
            for z, (n, tt, kk) in enumerate(seq):
                e.wait(vm=('T5', 2*u+1) if z == 0 and h == 0 else None, ds=('F5', k, n | 1), force=(z == 0 and h == 0))
                a = vr(acc(h, n, tt), 4)
                e(f"{MF} {a}, {ar(aW(k, kk, n), 4)}, {ar(aT(2*u+kk, tt), 4)}, {a}")
                for f in fill[z]: f()
        if c.get('fold', 1): e.fold([f"p4b{k}" for k in range(3)], "Lp4_loop", f"s{sCnt}")
        g.stamp()
        def addp(tt, p):
            for q in range(4):
                a = 2*(q & 1); n = 2*p + (q >> 1)
                e(f"v_pk_add_f32 {vr(acc(1,n,tt)+a,2)}, {vr(acc(1,n,tt)+a,2)}, {vr(acc(0,n,tt)+a,2)}")
        for p in range(2):
            for tt in (1, 0): addp(tt, p); cvt(e, 1, tt, p)
        e(f"s_cmp_eq_u32 s{sLay}, 0\ns_cbranch_scc1 Lp4_mid")
        for tt in range(2):
            for p in range(2): e(f"v_permlane16_swap_b32 v{Pk(tt,p)}, v{Pk(tt,p)+2}\nv_permlane16_swap_b32 v{Pk(tt,p)+1}, v{Pk(tt,p)+3}")
            for p in range(2): e(f"ds_write_b128 v{152+p}, {vr(Pk(tt,p),4)} offset:{2048*tt}")
            for x in range(2): e(f"ds_read_b128 {vr(vM+8*tt+4*x,4)}, v154 offset:{2048*tt + 1024*x}")
        for x in range(4):
            e(f"s_waitcnt lgkmcnt({(5, 4, 1, 0)[x]})\nbuffer_store_dwordx4 {vr(vM+4*x,4)}, v155, {R(sOut)}, s57 offen {c.get('faux', 'nt')}\ns_add_u32 s57, s57, 32768")
        g.stamp()
        e("s_branch Lend\nLp4_mid:" if g.diag else "s_endpgm\nLp4_mid:")
        for p in range(2):
            for tt in range(2): e.vm(f"buffer_store_dwordx4 {vr(Pk(tt,p),4)}, v{vOT}, {R(sWS)}, s{46+tt} offen offset:{1024*p} sc1", 'OUT5')
            stats_mfma(e, Pk, p, 128)
        stats_post(e, 128, 66, 48, 'OUT5')
        g.stamp()
        e(f"s_mov_b32 s{sLay}, 1\ns_mov_b32 s{sLo}, {hex(LP)}")
        g.signal('OUT5', 77, nx.pre)
        nx.window()
        e("s_branch Llayer")
```

```python
from mg import *
sSide, sDst, sOn = 100, 101, 3
sWhen, sWoT, sPh = 88, 89, 90
sSr = 84
aS = 176
vOff = 238; vAcc, vT = 224, 232
CSX = 139264 + 4096
class Side:
    def __init__(self, g): self.g = g
    def skip(self):
        l = self.g.lab("sd"); self.g.e(f"s_cmp_eq_u32 s{sOn}, 0\ns_cbranch_scc1 {l}"); return l
    def setup(self):
        e = self.g.e
        e(f"s_lshr_b32 s46, s2, 3\ns_cmp_ge_u32 s46, 14\ns_cselect_b32 s44, 14, 0\ns_cselect_b32 s45, 1, 0")
        e(f"s_cselect_b32 s{sSr}, s{sWu}, s{sWg}\ns_cselect_b32 s{sSr+1}, s{sWu+1}, s{sWg+1}\ns_mov_b32 s{sSr+2}, {D*F*2}\ns_mov_b32 s{sSr+3}, 0x20000")
        e(f"s_sub_u32 s44, s46, s44\ns_bfe_u32 s47, s2, 0x20001\ns_mul_i32 s47, s47, 14\ns_add_u32 s44, s44, s47\ns_and_b32 s47, s2, 1")
        e(f"s_lshl_b32 s48, s47, 1\ns_add_u32 s48, s48, s45\ns_mul_i32 s48, s48, {F*4}\ns_lshl_b32 s49, s44, 8\ns_add_u32 s48, s48, s49\ns_add_u32 s{sDst}, s48, {CSG}")
        e(f"s_lshl_b32 s47, s47, 2\ns_add_u32 s47, s47, s{sWave}\ns_mul_i32 s47, s47, {64*2*F}\ns_lshl_b32 s44, s44, 7\ns_add_u32 s{sSide}, s47, s44")
        e(f"s_cmp_lt_u32 s46, 28\ns_cselect_b32 s{sOn}, 1, 0\ns_cmp_eq_u32 s{sLay}, 0\ns_cselect_b32 s{sOn}, s{sOn}, 0")
        e(f"v_lshrrev_b32 v{vOff}, 3, v{vL}\nv_mul_u32_u24 v{vOff}, {2*F}, v{vOff}\nv_and_b32 v{vOff+1}, 7, v{vL}\nv_lshl_add_u32 v{vOff}, v{vOff+1}, 4, v{vOff}")
        e(f"s_cmp_eq_u32 s{sOn}, 0\ns_cselect_b32 s43, 0x40000000, 0\nv_or_b32 v{vOff}, s43, v{vOff}\nv_lshlrev_b32 v{vOff+1}, 4, v{vL}")
        e(f"s_lshl_b32 s43, s2, 2\ns_add_u32 s43, s43, s{sWave}\ns_lshl_b32 s{sWoT}, s43, 11")
        e(f"s_mul_i32 s43, s46, 43\ns_lshr_b32 s43, s43, 8\ns_mul_i32 s43, s43, 6\ns_sub_u32 s43, s46, s43\ns_add_u32 s43, s43, 5")
        if self.g.cfg.get('sidesync'): e("s_mov_b32 s43, 10")
        e(f"s_cmp_eq_u32 s{sLay}, 0\ns_cselect_b32 s{sWhen}, s43, 63\ns_mov_b32 s{sPh}, 0")
    def disable(self):
        self.g.e(f"s_mov_b32 s{sSr}, s{sWg}\ns_mov_b32 s{sSr+1}, s{sWg+1}\ns_mov_b32 s{sSr+2}, {D*F*2}\ns_mov_b32 s{sSr+3}, 0x20000\ns_mov_b32 s{sOn}, 0\ns_mov_b32 s{sWhen}, 63\ns_mov_b32 s{sSide}, 0\nv_mov_b32 v{vOff}, 0x40000000")
    def loads_tracked(self):
        r = Rec(self.g.e)
        for q in range(8):
            r.vm(f"buffer_load_dwordx4 {ar(aS+32+4*q,4)}, v{vOff}, {R(sSr)}, s{sSide} offen"); r(f"s_add_u32 s{sSide}, s{sSide}, {8*2*F}")
        return r.ops
    def hook(self, sSt, k):
        self.g.e(f"s_cmp_eq_u32 s{sSt}, s{sWhen}"); self.g.cold("s_cbranch_scc1", lambda: self.g.e("s_call_b64 s[78:79], Lside_sub"), f"Lside_k{k}")
    def subroutine(self, p2):
        e = self.g.e; ret = f"s_add_u32 s{sWhen}, s{sWhen}, 3\ns_add_u32 s{sPh}, s{sPh}, 1\ns_setpc_b64 s[78:79]"
        e(f"Lside_sub:\ns_cmp_eq_u32 s{sPh}, 1\ns_cbranch_scc0 Lside_l")
        e(f"s_cmp_lg_u32 s{sWave}, 0\ns_cbranch_scc1 Lside_a\ns_and_b32 s43, s2, 1\ns_lshl_b32 s43, s43, 7"); self.g.arrive(sDbg, 43); e(f"Lside_a:\n{ret}")
        e(f"Lside_l:\n{'s_nop 0' if self.g.cfg.get('nowo') else f'buffer_load_dwordx4 a[240:243], v{vOff+1}, {R(sWo)}, s{sWoT} offen'}\ns_add_u32 s{sWoT}, s{sWoT}, 1024\ns_cmp_eq_u32 s{sPh}, 0\ns_cbranch_scc0 Lside_b")
        for b in range(2):
            for q in range(0 if self.g.cfg.get('noside') else 8): e(f"buffer_load_dwordx4 {ar(aS+32*b+4*q,4)}, v{vOff}, {R(sSr)}, s{sSide} offen {self.g.cfg.get('sideaux', '')}\ns_add_u32 s{sSide}, s{sSide}, {8*2*F}")
            if b == 0: e(f"s_add_u32 s{sSide}, s{sSide}, {(512-64)*2*F}\n{ret}\nLside_b:")
            else: e(f"s_mov_b32 s{sWhen}, 63\ns_setpc_b64 s[78:79]")
    def half(self, b):
        e = self.g.e
        for q in range(8):
            for r in range(4): e(f"v_accvgpr_read_b32 v{vT+4+r}, a{aS+32*b+4*q+r}")
            self.g.colsum_acc(vT+4, 1, vAcc, vT, b == 0 and q == 0)
    def on(self, body): self.g.e(f"s_cmp_lg_u32 s{sOn}, 0"); self.g.cold("s_cbranch_scc1", body)
    def acc(self):
        self.on(lambda: self.half(0))
    def publish(self): self.on(lambda: (self.half(1), self.g.colsum_publish(vAcc, vT, CSX)))
    def final(self):
        self.g.e(f"s_cmp_eq_u32 s{sWave}, 1\ns_cselect_b32 s{sOn}, s{sOn}, 0")
        self.on(lambda: self.g.colsum_final(vT, CSX, sDst))
    def arrive(self):
        self.on(lambda: (self.g.e(f"s_bfe_u32 s43, s2, 0x20001\ns_lshl_b32 s43, s43, 7\ns_add_u32 s43, s43, {FL + HC*128}"), self.g.arrive(sWS, 43)))
```

```python
from mg import *
W_RING, A_RING, HALO, PW = 0, 73728, 122880, 139264
CSX = PW + 4096
sHalf, sHd, sAb, sWb, sAi, sMA, sMW, sRs, sRi, sSt, sLead, sA, sW, sW2, sT0, sHt, sHb, sOwn, sHead, sPW = range(57, 77)
Q = lambda j, t: (j*4 + t - 1)*4
Kc = lambda j, t: 32 + (j*4 + t - 1)*4 if t else 96
V = lambda j, t: 64 + (j*4 + t - 1)*4 if t else 100
vB, vCq, kf0 = 104, 108, 120
vT, vH, vW, vOA, vOW, vOH, vCk = 112, 114, 116, 120, 124, 126, 127
vST = 128; bC, bP, bP0, ones = 128, 132, 136, 160
aG, aL, vCS, vRo, vP, vXa, vMuV, vRsV, tmp = 164, 166, 168, 187, 188, 198, 200, 220, 240
RES = A_RING + 16384
MSK = PW + 6144 + 4096; TBL = PW + 2*6144 + 4096
NSL = 52
fT = lambda b, kk, t: b*88 + kk*20 + t*4
fW = lambda b, kk, n: b*88 + 40 + kk*24 + n*4
class P1:
    def __init__(self, g): self.g = g; self.c = g.cfg.get('p1', {}); self.ntA = self.ntW = ''
    def setup(self, l1):
        e = self.g.e
        e(f"s_lshr_b32 s{sHalf}, s{sWave}, 1\ns_and_b32 s{sHd}, s{sWave}, 1\ns_lshl_b32 s{sT0}, s{sMi1}, 3")
        e(f"s_add_u32 s{sLead}, s{sMi1}, s{sHj}\ns_and_b32 s{sLead}, s{sLead}, 15" if l1 else
          f"s_add_u32 s{sLead}, s{sMi1}, s{sHj}\ns_and_b32 s{sLead}, s{sLead}, {self.c.get('rm', 0)}\ns_lshl_b32 s{sLead}, s{sLead}, {self.c.get('rs', 3)}")
        e(f"s_lshl_b32 s{sMA}, s{sWave}, 12\ns_mul_i32 s{sMW}, s{sWave}, 6144\ns_add_u32 s{sPW}, s{sMW}, {PW}")
        e(f"s_and_b32 s43, s{sMi1}, 7\ns_cmp_lg_u32 s43, 0\ns_cselect_b32 s43, 1, 0\ns_sub_u32 s{sHt}, s{sT0}, s43")
        e(f"v_lshrrev_b32 v2, 3, v{vL}\nv_bfe_u32 v3, v{vL}, 1, 2\nv_lshrrev_b32 v4, 4, v{vL}\nv_xor_b32 v3, v3, v4\nv_and_b32 v5, 1, v{vL}")
        if l1:
            e(f"v_lshrrev_b32 v6, 5, v{vL}\nv_lshl_add_u32 v6, v6, 2, v2")
            e(f"s_lshl_b32 s43, s{sHalf}, 5\ns_lshl_b32 s44, s{sHd}, 2\ns_add_u32 s43, s43, s44")
        else:
            e(f"v_mov_b32 v6, v2\ns_lshl_b32 s43, s{sWave}, 4")
        e(f"v_mul_u32_u24 v6, 6144, v6\nv_lshl_add_u32 v6, v3, 5, v6\nv_lshl_add_u32 v{vOW}, v5, 4, v6\nv_add_u32 v{vOW+1}, {(16 if l1 else 8)*6144-1024}, v{vOW}")
        e(f"s_mul_i32 s43, s43, 6144\ns_lshl_b32 s{sWb}, s{sHj}, 7\ns_add_u32 s{sWb}, s{sWb}, s43")
        e(f"v_and_b32 v3, 7, v{vL}\ns_lshl_b32 s43, s{sWave}, 1\ns_add_u32 s43, s43, s{sT0}")
        if l1:
            for q in range(4):
                e(f"v_add_u32 v5, {4*(q&1)}, v4\nv_xor_b32 v5, v5, v3\nv_lshlrev_b32 v5, 4, v5\nv_lshl_add_u32 v5, v2, 12, v5\nv_add_u32 v{vOA+q}, {q*(32768-1024)}, v5")
            e(f"v_and_b32 v5, 6, v2\nv_xor_b32 v5, v5, v3\nv_lshlrev_b32 v5, 4, v5\nv_lshl_add_u32 v5, v2, 12, v5\nv_add_u32 v{vOH}, 32768, v5")
            e(f"s_lshr_b32 s44, s{sMi1}, 3\ns_lshl_b32 s44, s44, 11\ns_and_b32 s43, s43, 63\ns_lshl_b32 s43, s43, 16\ns_add_u32 s{sAb}, s43, s44")
            e(f"s_and_b32 s43, s{sHt}, 63\ns_lshl_b32 s43, s43, 16\ns_add_u32 s{sHb}, s43, s44\ns_movk_i32 s{sAi}, 128")
        else:
            e(f"v_lshlrev_b32 v{vOA}, 4, v{vL}\nv_mov_b32 v{vOA+1}, v{vOA}\nv_add_u32 v{vOA+2}, {32768-2048}, v{vOA}\nv_add_u32 v{vOA+3}, {32768-2048}, v{vOA}")
            e(f"v_lshlrev_b32 v5, 8, v2\nv_lshl_add_u32 v5, v3, 4, v5\nv_add_u32 v{vOH}, 128, v5")
            e(f"s_lshl_b32 s43, s43, 15\ns_mov_b32 s44, {XA + self.g.lp('X')}\ns_add_u32 s{sAb}, s43, s44\ns_lshl_b32 s43, s{sHt}, 15\ns_add_u32 s{sHb}, s43, s44\ns_movk_i32 s{sAi}, 2048")
    def setup_reads(self, l1):
        e = self.g.e
        e(f"v_and_b32 v2, 15, v{vL}\nv_lshrrev_b32 v3, 4, v{vL}\nv_and_b32 v4, 7, v{vL}")
        if l1:
            e(f"v_lshrrev_b32 v5, 1, v2\nv_xor_b32 v5, v5, v3\nv_lshlrev_b32 v5, 4, v5\nv_lshl_add_u32 v6, v2, 7, v5\nv_xor_b32 v7, 64, v6")
            e(f"v_and_b32 v5, 6, v4\nv_xor_b32 v5, v5, v3\nv_lshlrev_b32 v5, 4, v5\nv_lshl_add_u32 v8, v4, 7, v5\nv_xor_b32 v9, 64, v8")
        else:
            e(f"v_lshlrev_b32 v6, 4, v{vL}\nv_add_u32 v7, 1024, v6\nv_lshlrev_b32 v5, 7, v3\nv_lshl_add_u32 v8, v4, 4, v5\nv_add_u32 v9, 512, v8")
        e(f"s_lshl_b32 s43, s{sHalf}, 13\ns_add_u32 s43, s43, {A_RING}\nv_add_u32 v{vT}, s43, v6\nv_add_u32 v{vT+1}, s43, v7")
        e(f"v_add_u32 v{vH}, {HALO}, v8\nv_add_u32 v{vH+1}, {HALO}, v9")
        e(f"s_lshl_b32 s43, s{sMi2}, 3\ns_lshl_b32 s44, s{sWave}, 1\ns_add_u32 s43, s43, s44")
        if l1:
            e(f"v_lshrrev_b32 v5, 1, v3\nv_lshrrev_b32 v{vRo}, 1, v2\nv_xor_b32 v5, v5, v{vRo}\nv_lshlrev_b32 v5, 4, v5\nv_lshl_add_u32 v{vRo}, v2, 7, v5\nv_and_b32 v5, 1, v3\nv_lshl_add_u32 v{vRo}, v5, 3, v{vRo}")
            e(f"s_lshr_b32 s44, s43, 6\ns_lshl_b32 s44, s44, 11\ns_and_b32 s43, s43, 63\ns_lshl_b32 s43, s43, 16\ns_add_u32 s43, s43, s44\ns_lshl_b32 s44, s{sNj2}, 7\ns_add_u32 s{sRs}, s43, s44")
        else:
            e(f"v_mov_b32 v{vRo}, v6\ns_lshl_b32 s43, s43, 15\ns_lshl_b32 s44, s{sNj2}, 11\ns_add_u32 s43, s43, s44\ns_add_u32 s{sRs}, s43, {XA + self.g.lp('X')}")
        e(f"v_lshrrev_b32 v2, 2, v{vL}\nv_bfe_u32 v3, v{vL}, 3, 2\nv_and_b32 v4, 3, v{vL}\nv_lshlrev_b32 v4, 3, v4\nv_lshl_add_u32 v4, v2, 7, v4")
        e(f"s_lshl_b32 s43, s{sHd}, 1\ns_or_b32 s43, s43, s{sHalf}\nv_xor_b32 v5, s43, v3\nv_lshl_add_u32 v{vW}, v5, 5, v4\nv_xor_b32 v5, 1, v5\nv_lshl_add_u32 v{vW+1}, v5, 5, v4")
        e(f"v_add_u32 v{vW+2}, {2*24576}, v{vW}\nv_add_u32 v{vW+3}, {2*24576}, v{vW+1}")
    def zero_acc(self):
        for r in range(0, 104, 2): self.g.e(f"v_pk_mul_f32 {vr(r,2)}, {vr(vZ-1,2)}, 0 op_sel:[1,0] op_sel_hi:[1,0]")
    def sig_static(self, s): return [f"s_add_u32 s44, s{sLead}, {s}", "s_and_b32 s44, s44, 15"]
    def offA(self): return [f"s_mul_i32 s45, s44, s{sAi}", f"s_add_u32 s{sA}, s45, s{sAb}"]
    def offW(self): return [f"s_mul_i32 s45, s44, {64*6144}", f"s_add_u32 s{sW}, s45, s{sWb}", f"s_add_u32 s{sW2}, s{sW}, 4096"]
    def a_ops(self, s):
        e = self.g.e
        return [(f"s_add_u32 m0, s{sMA}, {A_RING + (s % 3)*16384}" if q == 0 else None,
                 lambda q=q: e.vm(f"buffer_load_dwordx4 v{vOA+q}, {R(sAs)}, s{sA} offen offset:{1024*q} sc1 {self.ntA} lds", ('S', s))) for q in range(4)]
    def w_ops(self, s):
        e = self.g.e
        return [(f"s_add_u32 m0, s{sMW}, {W_RING + (s % 3)*24576 + q*1024}" if q in (0, 4) else None,
                 lambda q=q: e.vm(f"buffer_load_dwordx4 v{vOW + (q&1)}, {R(sWq)}, s{sW if q < 4 else sW2} offen offset:{1024*(q&3)} {self.ntW} lds", ('S', s))) for q in range(6)]
    def run(self, pre, ops):
        e = self.g.e
        for x in pre: e(x)
        for m, f in ops:
            if m: e(m + "\ns_nop 0")
            f()
    def prefetch_w(self, a=0, n=3):
        for s in range(a, n): self.run(self.sig_static(s) + self.offW(), self.w_ops(s))
    def halo(self, i):
        e = self.g.e
        e(f"s_add_u32 s44, s{sLead}, s{sWave}\ns_add_u32 s44, s44, {4*i}\ns_and_b32 s44, s44, 15\ns_mul_i32 s44, s44, s{sAi}")
        e(f"s_lshl_b32 s45, s{sWave}, 10\ns_add_u32 m0, s45, {HALO + i*4096}\ns_add_u32 s44, s44, s{sHb}")
        e.vm(f"buffer_load_dwordx4 v{vOH}, {R(sAs)}, s44 offen sc1 lds", ('H', i))
    def first_a(self):
        self.halo(0); self.run(self.sig_static(0) + self.offA(), self.a_ops(0))
    def prep_and_start(self, kernargs, more, rest):
        g = self.g; e = g.e
        self.setup(True)
        kernargs()
        nt = self.c.get('nt0', 0); self.ntA = 'nt' if nt & 1 else ''; self.ntW = 'nt' if nt & 2 else ''
        self.run(self.sig_static(0) + self.offA(), self.a_ops(0)); self.prefetch_w(0, 1); self.halo(0)
        self.ntA = self.ntW = ''
        more(); rest()
        e(f"s_and_b32 s43, s{sWave}, 1\ns_mul_i32 s43, s43, {LP}\ns_lshl_b32 s44, s2, 7\ns_add_u32 s43, s43, s44\ns_add_u32 s43, s43, {FL}")
        e.vm(f"buffer_store_dword v{vZ}, v{vZ}, {R(sWS)}, s43 offen sc1")
        self.setup_reads(True); self.mask_table()
        if not self.c.get('peel', 1): self.zero_acc()
        self.side.setup()
        e(f"s_lshl_b32 s43, s{sHd}, 12\nv_add_u32 v132, s43, v{vT}\nv_add_u32 v133, s43, v{vT+1}")
        e(f"v_and_b32 v128, 15, v{vL}\nv_lshrrev_b32 v129, 4, v{vL}\nv_cmp_eq_u32 vcc, 0, v128\nv_lshlrev_b32 v129, 4, v129\nv_mov_b32 v130, 0x40000000\nv_cndmask_b32 v136, v130, v129, vcc")
        for r in range(4): e(f"v_mov_b32 v{156+r}, 0x3f803f80")
        e(f"s_lshl_b32 s43, s{sWave}, 1\ns_add_u32 s43, s43, s{sT0}\ns_lshl_b32 s48, s43, 11\ns_lshl_b32 s43, s{sLead}, 7\ns_add_u32 s48, s48, s43\ns_add_u32 s48, s48, {STA}")
        e(f"s_lshl_b32 s43, s{sHj}, 2\ns_lshl_b32 s44, s{sHd}, 1\ns_add_u32 s43, s43, s44\ns_add_u32 s43, s43, s{sHalf}\ns_lshl_b32 s43, s43, 6\ns_mul_i32 s49, s{sLead}, {3072*4}\ns_add_u32 s49, s49, s43\ns_add_u32 s49, s49, {CSQ}")
        g.stamp()
        def xreads():
            g.stamp()
            for tt in range(2):
                for p in range(2): e.ds(f"ds_read_b128 {vr(140 + (tt*2+p)*4, 4)}, v{132+p} offset:{2048*tt}", 'PX')
        def prep():
            e.wait(ds='all')
            for kk in range(2):
                for m in range(3): e(f"{MF} {vr(160+4*m,4)}, {ar(fW(0,kk,2*m),4)}, v[156:159], {vr(160+4*m,4) if kk else 0}")
            stats_epilogue(e, lambda tt, p: 140 + (tt*2+p)*4, 2, 2, vL, 192, sWS, 48, aux='sc1', sm0=[80, 82, 92, 46])
            for m in range(3): e.vm(f"buffer_store_dwordx4 {vr(160+4*m,4)}, v136, {R(sWS)}, s49 offen sc1"); e("s_add_u32 s49, s49, 4096")
        if not self.c.get('peel', 1): return self.enter(True, xreads, prep)
        stats_pre(e, vL, 192, 78)
        self.run(self.sig_static(1) + self.offA(), self.a_ops(1))
        e.wait(vm=[('S', 0), ('H', 0)]); e("s_barrier")
        g.stamp()
        for f in self.reads(0): f()
        for tt in range(2):
            for p in range(2): e.ds(f"ds_read_b128 {vr(140 + (tt*2+p)*4, 4)}, v{132+p} offset:{2048*tt}", 'PX')
        self.prefetch_w(1, 2)
        g.stamp()
        spine = [lambda x=x: self.mfma(0, *x, zero=True) for x in self.order()]
        r = Rec(e); Px = lambda tt, p: 140 + (tt*2+p)*4
        for kk in range(2):
            for m in range(3): r(f"{MF} {vr(160+4*m,4)}, {ar(fW(0,kk,2*m),4)}, v[156:159], {vr(160+4*m,4) if kk else 0}")
        stats_mfma(r, Px, 0, 192); stats_mfma(r, Px, 1, 192)
        spine[30:30] = r.ops; N = len(spine); S = Slots(N); B = self.c.get('B0', 16)
        S.sc[B].append(lambda: (e.wait(vm=('S', 1), ds='all'), e("s_barrier")))
        for k, f in enumerate(self.reads(1)): S.ve[B + k].append(f)
        r = Rec(e); real = self.g.e; self.g.e = r
        self.prefetch_w(2, 3); self.run(self.sig_static(2) + self.offA(), self.a_ops(2))
        for h in range(1, 4): self.halo(h)
        n1 = len(r.ops)
        self.run(self.sig_static(3) + self.offA(), self.a_ops(3)); self.prefetch_w(3, 4)
        self.g.e = real
        nv = sum(not getattr(f, 'sc', False) for f in r.ops); k = 0; pos = 0
        for i, f in enumerate(r.ops):
            if getattr(f, 'sc', False): S.ve[pos].append(f)
            else:
                pos = 1 + (k*(N - 3))//nv; k += 1; assert i < n1 or pos > B
                S.ve[pos].append(f)
        r = Rec(e); stats_post(r, 192, 78, 48, None); r.ops.pop(0)
        for m in range(3): r.vm(f"buffer_store_dwordx4 {vr(160+4*m,4)}, v136, {R(sWS)}, s49 offen sc1"); r("s_add_u32 s49, s49, 4096")
        S.pour(r.ops, 51, N, cap=3)
        for k, f in enumerate(spine): f(); S.emit(k)
        for x in self.sig_static(4) + self.offA(): e(x)
        e(f"s_mov_b32 s{sSt}, 5\ns_mov_b32 s{sCnt}, 2")
        self.side.hook(sSt, 9)
        e("s_branch Lp1_u1")
    def pre(self):
        e = self.g.e
        e(f"s_mov_b32 s{sAs}, s{sWS}\ns_mov_b32 s{sAs+1}, s{sWS+1}\ns_mov_b32 s{sAs+2}, {hex(WS_BYTES)}")
        self.setup(False); self.prefetch_w(0, self.c.get('wpre', 0)); self.setup_reads(False); self.side.disable()
    def window(self):
        e = self.g.e
        W = self.g.cfg.get('win', 0)
        self.prefetch_w(self.c.get('wpre', 0), 1 if W else 3); self.zero_acc()
        e(f"s_mul_i32 s77, s{sMi1}, {128*self.g.SH}\ns_add_u32 s77, s77, {FL + H4*128 - 128*self.g.SH}\ns_and_b32 s43, s{sMi1}, 7\ns_cmp_eq_u32 s43, 0\ns_cselect_b32 s43, {128*self.g.SH}, 0")
        e(f"v_lshlrev_b32 v249, 7, v{vL}\nv_or_b32 v249, s43, v249")
        if W: self.prefetch_w(1, 3)
    def start_l2(self):
        e = self.g.e
        self.g.poll(77, 16//self.g.SH, voff=249, nl=2*self.g.SH)
        self.run(self.sig_static(0) + self.offA(), self.a_ops(0)); self.halo(0)
        self.run(self.sig_static(1) + self.offA(), self.a_ops(1))
        rd = self.reads(0); wr = rd[:4] + rd[12:16] + rd[18:]
        for f in wr: f()
        e.wait(vm=[('S', 0), ('H', 0)]); e("s_barrier")
        for f in rd[4:12] + rd[16:18]: f()
        for h in range(1, 4): self.halo(h)
        self.run(self.sig_static(2) + self.offA(), self.a_ops(2))
        e("s_waitcnt lgkmcnt(0)")
        for t in [('W', 0, 0)]*4 + [('T', 0, 1 + k//2) for k in range(8)] + [('W', 0, 1)]*4 + [('T', 0, 0)]*2 + [('W', 0, 2 + k//4) for k in range(16)]: e.dsq.append(t)
    def enter(self, l1, hook=None, hook2=None):
        e = self.g.e; o = self.c.get('ord', 1) if l1 else 0
        if l1 and o == 0: self.prefetch_w(1, 2)
        self.run(self.sig_static(1) + self.offA(), self.a_ops(1))
        e.wait(vm=[('S', 0), ('H', 0)]); e("s_barrier")
        if hook: hook()
        if o == 2: self.prefetch_w(1, 2)
        for f in self.reads(0): f()
        if o == 1: self.prefetch_w(1, 2)
        if o: hook2()
        for h in range(1, 4): self.halo(h)
        if l1: self.prefetch_w(2, 3)
        self.run(self.sig_static(2) + self.offA(), self.a_ops(2))
        if l1 and not o: hook2()
    def reads(self, s):
        e = self.g.e
        sl = s % 3; b = s & 1
        def rt(t, kk):
            def f():
                if t == 0:
                    e.ds(f"ds_read_b128 {ar(fT(b,kk,0),4)}, v{vH+kk} offset:{((s-1) % 6 + 1)*1024 if s else 0}", ('T', s, 0))
                    if s in (6, 12): e(f"v_add_u32 v{vH+kk}, 6144, v{vH+kk}")
                else: e.ds(f"ds_read_b128 {ar(fT(b,kk,t),4)}, v{vT+kk} offset:{sl*16384 + (t-1)*2048}", ('T', s, t))
            return f
        def rw(n, kk, j):
            return lambda: e.ds(f"ds_read_b64_tr_b16 {ar(fW(b,kk,n)+2*j,2)}, v{vW + (n & 1) + (2 if sl == 2 else 0)} offset:{(sl & 1)*24576 + (2*kk+j)*6144 + (n>>1)*2048}", ('W', s, n))
        w = lambda n: [rw(n, kk, j) for kk in range(2) for j in range(2)]
        return w(0) + [rt(t, kk) for t in range(1, 5) for kk in range(2)] + w(1) + [rt(0, 0), rt(0, 1)] + w(2) + w(3) + w(4) + w(5)
    def order(self):
        seq = []; kk = 0
        for n in range(6):
            ts = [0, 1, 2, 3, 4] if n in (2, 4) else [1, 2, 3, 4]
            if n & 1: ts = ts[::-1]
            for t in ts: seq += [(n, t, kk, True), (n, t, 1-kk, False)]; kk = 1 - kk
        return seq
    def mfma(self, s, n, t, kk, first, zero=False):
        e = self.g.e; b = s & 1
        e.wait(ds=[('W', s, n), ('T', s, t)])
        a = (Q if n < 2 else Kc if n < 4 else V)(n & 1, t)
        x, y = ar(fW(b, kk, n), 4), ar(fT(b, kk, t), 4)
        if n >= 4: x, y = y, x
        e(f"{MF} {vr(a,4)}, {x}, {y}, {0 if zero and first else vr(a,4)}")
    def main(self, p2):
        g = self.g; e = g.e; c = self.c
        BOFF0 = c.get('BOFF', 4)
        e(f"s_mov_b32 s{sSt}, 4")
        for x in self.sig_static(3) + self.offA(): e(x)
        reads = self.reads
        g.stamp()
        nxt = dict(enumerate(p2.prefetch_ops()))
        n_epi = c.get('pf_epi', 4); assert n_epi + c.get('pf15', 10) <= 22 and not c.get('pf14')
        S_ = lambda x: (lambda: e(x))
        for s in range(16):
            if s % 6 == 0: e.mark(f"p1b{s//6}")
            S = Slots(NSL); BOFF = BOFF0 if s <= 14 else 10
            def bar(s=s):
                e.wait(vm=('S', s+1) if s < 15 else None, ds='all'); e("s_barrier")
            S.sc[BOFF].append(bar)
            def clear(pos):
                if clr and getattr(clr[0], 'sc', False): S.sc[pos].append(clr.pop(0))
                if clr: S.ve[pos].append(clr.pop(0))
            def pfo(pos, j):
                op = nxt.pop(j)
                for z in range(2): S.sc[pos - 2 + z].append(op[z])
                S.ve[pos].insert(0, W2(op[2]))
            own = c.get('own', 1) and s <= 12
            dpos = [BOFF + c.get('d0', 3) + 4*k for k in range(10)] if own else [BOFF + 2 + 4*k for k in range(10)]
            vpos = dpos if own else {13: range(3, 48, 4), 14: (8, 12, 16, 20, 24, 32, 40, 48)}.get(s, ())
            rpos = [k for k in range(BOFF, NSL) if k not in vpos]
            if s < 15:
                for k, f in enumerate(reads(s+1)): S.ve[rpos[k]].append(f)
            if s + 3 < 16:
                for k, x in enumerate(self.offW()): S.sc[k].append(S_(x))
                if s < 12:
                    for k, x in enumerate(["s_add_u32 s44, s44, 1", "s_and_b32 s44, s44, 15", f"s_add_u32 s{sSt}, s{sSt}, 1"] + self.offA()): S.sc[BOFF + 20 + k].append(S_(x))
                for k, (m, f) in enumerate(self.a_ops(s+3) + self.w_ops(s+3)):
                    pos = dpos[k]
                    if m: S.sc[pos-1].append(S_(m))
                    S.ve[pos].append(W2(f))
            if s == 12:
                ckl = f"buffer_load_dword v{vCk}, v{tmp}, {R(sDbg)}, 0 offen sc1"
                r = Rec(e); r(f"v_and_b32 v{tmp}, 1, v{vL}\nv_lshlrev_b32 v{tmp}, 7, v{tmp}"); S.pour(r.ops, 0, 2)
                S.ve[2].append(lambda: e.vm(ckl, 'CK'))
                r(f"""s_lshl_b32 s43, s{sHalf}, 2
                s_add_u32 s{sOwn}, s{sT0}, s43
                s_add_u32 s45, s{sLo}, {STA}
                s_lshl_b32 s44, s{sHt}, 11
                s_add_u32 s77, s44, s45
                s_lshl_b32 s44, s{sWave}, 1
                s_add_u32 s44, s44, s{sT0}
                s_lshl_b32 s44, s44, 11
                s_add_u32 s78, s44, s45
                s_lshl_b32 s43, s{sHj}, 1
                s_add_u32 s{sHead}, s43, s{sHd}
                s_lshl_b32 s43, s{sHead}, 7
                s_add_u32 s46, s43, {CSQ}
                s_lshl_b32 s43, s{sHalf}, 6""")
                S.pour(r.ops, 3, 30, cap=0)
                r(f"""v_lshlrev_b32 v{vB+1}, 3, v{vL}
                v_lshlrev_b32 v{vB}, 4, v{vL}
                v_xor_b32 v{vOH}, s43, v{vB}
                v_add_u32 v{vOH}, s{sPW}, v{vOH}
                v_bfe_u32 v{vB+2}, v{vL}, 3, 2
                v_lshrrev_b32 v{vB+3}, 5, v{vL}
                v_mad_u32_u24 v{vB+2}, v{vB+3}, 3, v{vB+2}
                v_and_b32 v{vB+3}, 7, v{vL}
                v_lshlrev_b32 v{vB+3}, 4, v{vB+3}
                v_lshl_add_u32 v{vB+2}, v{vB+2}, 12, v{vB+3}""")
                S.pour(r.ops, 30, 46)
                S.sc[47].append(lambda: g.check(vCk, ckl, 128, 'CK'))
            if s == 13:
                for p in range(4):
                    S.sc[6*p].append(lambda p=p: (e(f"s_cmp_eq_u32 s{sLay}, 0"), g.cold("s_cbranch_scc1", lambda: e("".join(
                        f"buffer_load_dwordx4 {vr(vMuV+8*p+4*z,4)}, v{vB+2}, {R(sWS)}, s46 offen sc1\ns_add_u32 s46, s46, {2*3072*4}\n" for z in range(2))))))
                for t in range(3):
                    so, off = (78, t*2048) if t < 2 else (77, 0)
                    for k in range(4): S.ve[16*t + 4*k + 3].append(W2(lambda t=t, k=k, so=so, off=off: e.vm(f"buffer_load_dwordx2 {vr(vST + t*8 + 2*k, 2)}, v{vB+1}, {R(sWS)}, s{so} offen offset:{off + 512*k} sc1", ('ST', t))))
                r = Rec(e)
                for x in p2.prefetch_setup(): r(x.replace("\n", "\t"))
                S.pour(r.ops, 1, NSL)
                S.pour(self.addr_ops(), 24, NSL)
            if s == 14:
                r = Rec(e)
                if not g.q4: self.p4.clear_mailbox(r, vB, tmp+6, f"s{sLo}")
                clr = r.ops[9:]; S.pour(r.ops[:9], 0, 8)
                for pos in (8, 12, 16, 20, 28, 36, 44): clear(pos)
                S.sc[23].append(S_(f"s_add_u32 m0, s{sMA}, {RES}"))
                for q in range(4): S.ve[24 + 8*q].append(W2(lambda q=q: e.vm(f"buffer_load_dwordx4 v{vOA+q}, {R(sAs)}, s{sRs} offen offset:{1024*q} sc1 lds", 'R')))
                for k in range(c.get('pf14', 0)): pfo(28 + 8*k if k < 3 else 4, 6 + k)
                m1 = self.stat_ops(); S.pour(m1, 6, NSL, partial=True)
            if s == 15:
                for k in range(c.get('pf15', 10)): pfo(3 + (NSL//c.get('pf15', 10))*k, 10 + k if k < 8 else min(nxt))
                for pos in (0, 6, 12, 18, 24): clear(pos)
                assert not clr
                S.pour(m1, 0, BOFF - 2)
                m2 = self.table_ops(); S.pour(m2, BOFF, NSL, partial=True)
            if s < 12: S.sc[NSL - 4].append(lambda s=s: self.side.hook(sSt, s % 6))
            if s in (1, 7): e("Lp1_u1:")
            if g.cfg.get('marks') and s == 14: e("Lmk_p1u14:")
            for k, x in enumerate(self.order()): self.mfma(s, *x); S.emit(k)
            if c.get('fine') and s in (2, 5, 8, 11, 13): g.stamp()
        e.fold([f"p1b{k}" for k in range(3)], "Lp1_loop", f"s{sCnt}")
        g.stamp()
        if g.cfg.get('rep'): print("p1 leftover", len(m2))
        e('Lmk_p1epi:')
        for f in m2: f()
        self.epilogue(p2, [nxt[j] for j in sorted(nxt)], n_epi)
    def mask_table(self):
        e = self.g.e; t = 232
        e(f"v_and_b32 v{t+3}, 15, v{vL}\nv_lshrrev_b32 v{t+4}, 4, v{vL}\nv_lshlrev_b32 v{t+4}, 2, v{t+4}\nv_sub_u32 v{t+3}, v{t+3}, v{t+4}\nv_mov_b32 v{t+5}, {fhex(-1e30)}")
        for r in range(4):
            e(f"v_subrev_u32 v{t+6}, {r}, v{t+3}\nv_cmp_gt_u32 vcc, 8, v{t+6}\nv_add_u32 v{t+6}, 16, v{t+6}\nv_cmp_gt_u32 s[78:79], 8, v{t+6}")
            e(f"v_cndmask_b32 v{132+r}, v{t+5}, 0, vcc\ns_nop 0\nv_cndmask_b32 v{136+r}, v{t+5}, 0, s[78:79]")
        e(f"v_lshlrev_b32 v{t}, 4, v{vL}\nv_add_u32 v{t}, {MSK}, v{t}\nds_write_b128 v{t}, v[132:135]\nds_write_b128 v{t}, v[136:139] offset:1024")
    def addr_ops(self):
        r = Rec(self.g.e); g16, t4 = vOW, vOW + 1
        r(f"v_lshrrev_b32 v{tmp}, 4, v{vL}\nv_lshlrev_b32 v{g16}, 4, v{tmp}\nv_and_b32 v{t4}, 15, v{vL}\nv_lshlrev_b32 v{t4}, 2, v{t4}")
        r(f"s_lshl_b32 s43, s{sHalf}, 9\nv_add_u32 v{aG}, {TBL}, v{g16}\nv_add_u32 v{aL}, {TBL}, v{t4}\nv_add_u32 v{aG+1}, s43, v{aG}\nv_add_u32 v{aL+1}, s43, v{aL}")
        r(f"s_lshl_b32 s43, s{sWave}, 1\ns_add_u32 s43, s43, 1\nv_add_u32 v{tmp+1}, s43, v{tmp}\nv_cmp_gt_u32 vcc, 2, v{tmp}\nv_and_b32 v{tmp}, 1, v{tmp}\nv_mul_u32_u24 v{tmp}, 9, v{tmp}")
        r(f"v_cndmask_b32 v{tmp}, v{tmp}, v{tmp+1}, vcc\nv_lshl_add_u32 v{vB+2}, v{tmp}, 7, v{aL}")
        r(f"v_add_u32 v{g16}, s{sPW}, v{g16}\nv_add_u32 v{t4}, s{sPW}, v{t4}\nv_add_u32 v{vB+3}, {MSK}, v{vB}")
        return r.ops
    def stat_ops(self):
        r = Rec(self.g.e); g16, t4 = vOW, vOW + 1
        def css():
            e = self.g.e; e.wait(vm=('ST', 1))
            e(f"s_cmp_eq_u32 s{sLay}, 0"); self.g.cold("s_cbranch_scc1", css1)
        def css1():
            e = self.g.e
            for d in (16, 8, 4):
                for x in range(0, d, 2): e(f"v_pk_add_f32 {vr(vMuV+x,2)}, {vr(vMuV+x,2)}, {vr(vMuV+d+x,2)}")
            for x in range(4): e(f"v_mov_b32 v{vMuV+4+x}, v{vMuV+x}")
            for x in range(4): e(f"v_permlane32_swap_b32 v{vMuV+x}, v{vMuV+4+x}")
            for x in range(4): e(f"v_add_f32 v{vMuV+x}, v{vMuV+x}, v{vMuV+4+x}")
            e(f"ds_write_b128 v{vOH}, {vr(vMuV,4)} offset:1024")
        for t in range(3):
            p = vST + t*8
            if t == 1:
                r.call(css)
                for m in range(2):
                    for j in range(2): r.ds(f"ds_read_b128 {vr(vCS + m*8 + j*4, 4)}, v{g16} offset:{1024 + m*128 + 64*j}", 'CSR')
                r.ds(f"ds_read2_b32 {vr(vCS+16,2)}, v{vXa} offset0:64 offset1:80", 'CSR')
            else: r.wait(vm=('ST', t))
            if t == 0: r(f"v_add_u32 v{vXa}, 1024, v{t4}")
            if t == 1:
                r(f"s_xor_b32 s47, s{sWave}, 2\ns_mul_i32 s47, s47, 6144\ns_add_u32 s47, s47, {PW}\ns_add_u32 s49, s47, 3072\ns_add_u32 s79, s47, 2048")
                r(f"s_cmp_eq_u32 s{sHalf}, 0\ts_cselect_b32 s49, s{sPW}, s49\ts_cselect_b32 s79, s47, s79")
                r(f"v_add_u32 v{vXa}, s49, v{vB+1}\nv_add_u32 v{vXa+1}, s79, v{vB+1}\nv_add_u32 v{vB+1}, s{sPW}, v{vB+1}")
            r(f"v_add_f32 v{p}, v{p}, v{p+2}\nv_add_f32 v{p+1}, v{p+1}, v{p+3}\nv_add_f32 v{p+4}, v{p+4}, v{p+6}\nv_add_f32 v{p+5}, v{p+5}, v{p+7}")
            r(f"v_add_f32 v{p}, v{p}, v{p+4}\nv_add_f32 v{p+1}, v{p+1}, v{p+5}")
        A, B, C, X = vST, vST + 8, vST + 16, vST + 2
        r(f"s_mov_b32 s48, {fhex(1.0/D)}\nv_mov_b32 v{tmp}, {fhex(1e-5)}")
        r(f"v_permlane32_swap_b32 v{B}, v{X}\nv_permlane32_swap_b32 v{B+1}, v{X+1}\nv_permlane32_swap_b32 v{A}, v{C}\nv_permlane32_swap_b32 v{A+1}, v{C+1}")
        r(f"v_add_f32 v{B}, v{B}, v{X}\nv_add_f32 v{A}, v{A}, v{C}\nv_add_f32 v{B+1}, v{B+1}, v{X+1}\nv_add_f32 v{A+1}, v{A+1}, v{C+1}")
        r(f"v_permlane16_swap_b32 v{A}, v{B}\ns_nop 0\nv_permlane16_swap_b32 v{A+1}, v{B+1}\nv_add_f32 v{A}, v{A}, v{B}\nv_add_f32 v{A+1}, v{A+1}, v{B+1}")
        r(f"v_mul_f32 v{A}, {fhex(-1.0/D)}, v{A}\nv_fma_f32 v{A+1}, v{A+1}, s48, v{tmp}\nv_fma_f32 v{A+1}, -v{A}, v{A}, v{A+1}\nv_max_f32 v{A+1}, v{A+1}, v{tmp}\nv_rsq_f32 v{A+1}, v{A+1}\ns_nop 0")
        r.ds(f"ds_write2_b32 v{vB+2}, v{A}, v{A+1} offset0:0 offset1:16")
        return r.ops
    def table_ops(self):
        r = Rec(self.g.e)
        for t in (1, 2, 3, 4, 0): r.ds(f"ds_read2_b32 {vr(vP+2*t,2)}, v{aL + (t > 0)} offset0:{32*t} offset1:{32*t+16}", 'TP')
        r.ds(f"ds_read_b128 {vr(bC,4)}, v{vB+3}", 'MK'); r.ds(f"ds_read_b128 {vr(bP,4)}, v{vB+3} offset:1024", 'MK')
        for t in (0, 4, 1, 2, 3):
            r.ds(f"ds_read_b128 {vr(vMuV+4*t,4)}, v{aG + (t > 0)} offset:{t*128}", 'TB')
            r.ds(f"ds_read_b128 {vr(vRsV+4*t,4)}, v{aG + (t > 0)} offset:{t*128+64}", 'TB')
        r(f"s_and_b32 s43, s{sMi1}, 7\ns_or_b32 s43, s43, s{sHalf}\ts_cselect_b64 s[46:47], -1, 0\nv_mov_b32 v{tmp+5}, {fhex(-1e30)}")
        r.wait(ds='MK')
        for t in (4, 3, 2, 1):
            for j in range(2):
                for x in range(4): r(f"v_fmac_f32 v{Q(j,t)+x}, v{vCS+4*j+x}, v{vP+2*t}")
            for j in range(2):
                for h in range(2): r(f"v_cvt_pk_bf16_f32 v{Q(0,t)+2*j+h}, v{Q(j,t)+2*h}, v{Q(j,t)+2*h+1}")
        for x in range(4): r(f"v_cndmask_b32 v{bP0+x}, v{tmp+5}, v{bP+x}, s[46:47]\nv_mov_b32 v{ones+x}, 0x3f803f80\nv_mul_f32 v{vCq+x}, {fhex(LOG2E*(32 ** -0.5))}, v{vP+2*x+3}")
        return r.ops
    def epilogue(self, p2, nxt, n_epi):
        g = self.g; e = g.e
        left = [n_epi]
        def pf():
            if left[0] > 0 and nxt:
                left[0] -= 1
                for f in nxt.pop(0): f()
        qf = lambda t: Q(0, t); kf = lambda t: Kc(0, t) if t else kf0
        vp = lambda j, t: 140 + j*10 + 2*t
        cb = vCS + 16
        def fold_k(t):
            J = range(2 if t else 1)
            for j in J:
                for h in range(2): e(f"v_pk_fma_f32 {vr(Kc(j,t)+2*h,2)}, {vr(vCS+8+4*j+2*h,2)}, {vr(vP+2*t,2)}, {vr(Kc(j,t)+2*h,2)} op_sel:[0,0,0] op_sel_hi:[1,0,1]")
            for j in J:
                for h in range(2): e(f"v_pk_mul_f32 {vr(Kc(j,t)+2*h,2)}, {vr(Kc(j,t)+2*h,2)}, {vr(vP+2*t,2)} op_sel:[0,1] op_sel_hi:[1,1]")
            for j in J:
                for h in range(2): e(f"v_cvt_pk_bf16_f32 v{Kc(0,t)+2*j+h}, v{Kc(j,t)+2*h}, v{Kc(j,t)+2*h+1}")
        def fold_v(t):
            J = range(2 if t else 1)
            for j in J:
                for h in range(2): e(f"v_pk_fma_f32 {vr(V(j,t)+2*h,2)}, {vr(vMuV+4*t+2*h,2)}, {vr(cb,2)}, {vr(V(j,t)+2*h,2)} op_sel:[0,{j},0] op_sel_hi:[1,{j},1]")
            for j in J:
                for h in range(2): e(f"v_pk_mul_f32 {vr(V(j,t)+2*h,2)}, {vr(V(j,t)+2*h,2)}, {vr(vRsV+4*t+2*h,2)}")
            for j in J:
                for h in range(2): e(f"v_cvt_pk_bf16_f32 v{(vp(j,t) if t else V(0,0))+h}, v{V(j,t)+2*h}, v{V(j,t)+2*h+1}")
        e.wait(ds='all')
        fold_k(0); fold_k(4); fold_v(0); fold_v(4)
        e.ds(f"ds_write2st64_b64 v{vB+1}, {vr(Kc(0,0),2)}, {vr(V(0,0),2)} offset0:0 offset1:1", 'XW')
        for j in range(2): e.ds(f"ds_write2st64_b64 v{vB+1}, {vr(Kc(0,4)+2*j,2)}, {vr(vp(j,4),2)} offset0:{4+2*j} offset1:{5+2*j}", 'XW')
        pf(); fold_k(3); pf(); fold_k(2); pf(); fold_k(1)
        e.wait(ds='XW'); e("s_barrier")
        for j in range(2): e.ds(f"ds_read_b64 {vr(kf0+2*j,2)}, v{vXa+j}", 'XR')
        for j in range(2): e.ds(f"ds_read_b64 {vr(vp(j,0),2)}, v{vXa+j} offset:512", 'XR')
        Sp = lambda t: Q(1, t); Sc = lambda t: Kc(1, t)
        for t in (4, 3, 2, 1):
            e(f"{MF} {vr(Sc(t),4)}, {vr(kf(t),4)}, {vr(qf(t),4)}, {vr(bC,4)}")
            if t == 1: e.wait(ds='XR')
            e(f"{MF} {vr(Sp(t),4)}, {vr(kf(t-1),4)}, {vr(qf(t),4)}, {vr(bP0 if t == 1 else bP,4)}")
        pf()
        for t in (1, 2, 3): fold_v(t); pf()
        e(f"s_cmp_eq_u32 s{sHalf}, 0\ns_cbranch_scc1 Lp1_nsw")
        for x in range(10): e(f"v_swap_b32 v{vp(0,0)+x}, v{vp(1,0)+x}")
        e("Lp1_nsw:")
        mx = lambda t: tmp + t - 1
        for k in range(4):
            for t in range(1, 5):
                p, c_ = Sp(t), Sc(t)
                e([f"v_max3_f32 v{mx(t)}, v{p}, v{p+1}, v{p+2}", f"v_max3_f32 v{mx(t)}, v{mx(t)}, v{p+3}, v{c_}", f"v_max3_f32 v{mx(t)}, v{mx(t)}, v{c_+1}, v{c_+2}", f"v_max_f32 v{mx(t)}, v{mx(t)}, v{c_+3}"][k])
        xreduce_g(e, "v_max_f32", [mx(t) for t in range(1, 5)], list(range(tmp+4, tmp+8)))
        for h in range(2): e(f"v_pk_mul_f32 {vr(tmp+2*h,2)}, {vr(tmp+2*h,2)}, {vr(vCq+2*h,2)} neg_lo:[0,1] neg_hi:[0,1]")
        pfr = qf
        for t in range(1, 5):
            z = (t - 1) & 1; cq, mm = (vCq + t - 1) & ~1, mx(t) & ~1
            for b4 in (Sp(t), Sc(t)):
                for h in range(2): e(f"v_pk_fma_f32 {vr(b4+2*h,2)}, {vr(b4+2*h,2)}, {vr(cq,2)}, {vr(mm,2)} op_sel:[0,{z},{z}] op_sel_hi:[1,{z},{z}]")
            for b4 in (Sp(t), Sc(t)):
                for r in range(4): e(f"v_exp_f32 v{b4+r}, v{b4+r}")
            for q, b4 in enumerate((Sp(t), Sc(t))):
                for h in range(2): e(f"v_cvt_pk_bf16_f32 v{pfr(t)+2*q+h}, v{b4+2*h}, v{b4+2*h+1}")
            if t < 3: pf()
        while left[0] > 0 and nxt: pf()
        O = V; Dn = lambda t: Kc(0, t)
        sal = f"s_lshl_b32 s43, s{sOwn}, 15\ns_lshl_b32 s44, s{sHead}, 10\ns_add_u32 s43, s43, s44\ns_add_u32 s43, s43, {g.lo('O')}\ns_add_u32 s46, s43, {OB}".split("\n")
        sal += [f"s_add_u32 s{46+t}, s{46+t-1}, 32768" for t in range(1, 4)]
        sal += f"s_lshl_b32 s77, s{sMi1}, 1\ns_lshr_b32 s43, s{sHj}, 3\ns_add_u32 s77, s77, s43\ns_lshl_b32 s77, s77, 7\ns_add_u32 s77, s77, s{sLo}\ns_add_u32 s77, s77, {FL + H1*128}".split("\n")
        for t in range(1, 5): e(f"{MF} {vr(Dn(t),4)}, {vr(ones,4)}, {vr(pfr(t),4)}, 0\n{sal.pop(0)}\n{sal.pop(0)}")
        for t in range(1, 5):
            for j in range(2):
                e(f"{MF} {vr(O(j,t),4)}, {vr(vp(j,t-1),4)}, {vr(pfr(t),4)}, 0")
                if sal: e(sal.pop(0))
                if t > 2: e(f"v_rcp_f32 v{Dn(2*t+j-5)}, v{Dn(2*t+j-5)}")
        for t in range(1, 5):
            for j in range(2):
                for h in range(2): e(f"v_pk_mul_f32 {vr(O(j,t)+2*h,2)}, {vr(O(j,t)+2*h,2)}, {vr(Dn(t),2)} op_sel:[0,0] op_sel_hi:[1,0]")
            for j in range(2):
                for h in range(2): e(f"v_cvt_pk_bf16_f32 v{Sp(t)+2*j+h}, v{O(j,t)+2*h}, v{O(j,t)+2*h+1}")
            e.vm(f"buffer_store_dwordx4 {vr(Sp(t),4)}, v{vB}, {R(sWS)}, s{46+t-1} offen sc1", 'OUT')
        e('Lmk_p1end:')
        g.stamp()
        g.signal('OUT', 77, p2.pre)
        p2.window(nxt)
```

```python
from mg import *
from p1 import RES, vRo
sM0, sRot, sT, sX, sSt = 89, 88, 57, 58, 60
vW, vOT, vR, vS = 40, 48, 52, 72
acc = lambda n, tt: (n*2 + tt)*4
aW = lambda u, kk, n: 128 + (u & 1)*32 + kk*16 + n*4
class P2:
    def __init__(self, g): self.g = g; self.c = g.cfg.get('p2', {}); self.LT = self.c.get('LT', 6); self.RB = self.c.get('RB', 0); self.P = 8 if self.LT <= 6 else 16
    def aT(self, j, tt): return (j % self.P)*8 + tt*4
    def prefetch_setup(self):
        return [f"s_lshl_b32 s92, s{sNj2}, 7", f"s_lshl_b32 s93, s{sWave}, 14", "s_add_u32 s92, s92, s93", f"s_lshl_b32 s{sM0}, s{sWave}, 10", f"v_add_u32 v186, s92, v{vOW2}",
                f"s_bfe_u32 s{sRot}, s2, {hex(self.RB*0x10000 + 5)}", f"s_lshl_b32 s{sRot}, s{sRot}, {21 - self.RB}"]
    def prefetch_ops(self):
        e = self.g.e
        return [[lambda j=j: e(f"s_add_u32 m0, s{sM0}, {j*4096}"), lambda j=j: e(f"s_xor_b32 s92, s{sRot}, {j*65536}"),
                 lambda j=j: e.vm(f"buffer_load_dwordx4 v186, {R(sWo)}, s92 offen lds", ('W2', j))] for j in range(32)]
    def t_ops(self, j):
        r = Rec(self.g.e)
        if j < 32:
            if j % 4 == 0: r((f"s_add_u32 s{sT}, s{sT}, 4096\t" if j else f"s_lshr_b32 s{sRot}, s{sRot}, 6\t") + f"s_xor_b32 s93, s{sT}, s{sRot}")
            for tt in range(2): r.vm(f"buffer_load_dwordx4 {ar(self.aT(j, tt), 4)}, v{vOT+tt}, {R(sWS)}, s93 offen offset:{1024*(j & 3)} sc1", ('T2', j))
        return r.ops
    def pre(self):
        g = self.g; e = g.e
        e(f"s_lshl_b32 s44, s{sMi2}, 3\ns_lshl_b32 s43, s{sWave}, 1\ns_add_u32 s44, s44, s43\ns_lshl_b32 s45, s44, 15\ns_add_u32 s{sT}, s45, {g.lo('O')}\ns_add_u32 s{sT}, s{sT}, {OB}")
        e(f"s_lshl_b32 s43, s{sNj2}, 11\ns_add_u32 s45, s45, s43\ns_add_u32 s45, s45, {g.lo('X')}\ns_add_u32 s{sX}, s45, {XB}\ns_add_u32 s{sX+1}, s{sX}, 32768")
        e(f"s_lshl_b32 s44, s44, 11\ns_lshl_b32 s43, s{sNj2}, 7\ns_add_u32 s44, s44, s43\ns_add_u32 s44, s44, s{sLo}\ns_add_u32 s{sSt}, s44, {STB}")
        e(f"v_lshlrev_b32 v{vOT}, 4, v{vL}\nv_add_u32 v{vOT+1}, 32768, v{vOT}")
        e(f"s_cmp_eq_u32 s{sLay}, 0\ns_cselect_b32 s44, 32, 8\ns_cselect_b32 s45, 64, 0x400\ns_lshl_b32 s43, s{sWave}, 12\ns_add_u32 s43, s43, {RES}")
        e(f"v_xor_b32 v3, s44, v{vRo}\nv_xor_b32 v4, s45, v{vRo}\nv_xor_b32 v5, s45, v3\nv_add_u32 v2, s43, v{vRo}\nv_add_u32 v3, s43, v3\nv_add_u32 v4, s43, v4\nv_add_u32 v5, s43, v5")
        e.wait(vm='R')
        for tt in range(2):
            for q in range(4): e.ds(f"ds_read_b64 {vr(vR + tt*8 + 2*q, 2)}, v{2+q} offset:{2048*tt}", 'RR')
        e(f"v_lshrrev_b32 v2, 2, v{vL}\nv_bfe_u32 v3, v{vL}, 3, 2\nv_and_b32 v4, 3, v{vL}\nv_lshlrev_b32 v4, 3, v4\nv_lshl_add_u32 v4, v2, 7, v4")
        for t in range(4): e(f"v_xor_b32 v5, {t}, v3\nv_lshl_add_u32 v{vW+t}, v5, 5, v4")
        self.side.acc(); e.wait(ds='RR')
    def window(self, nxt):
        g = self.g; e = g.e
        n0 = 8 if g.cfg.get('win', 0) else len(nxt)
        for op in nxt[:n0]:
            for f in op: f()
        for tt in range(2):
            for n in range(4):
                for h in range(2):
                    src = vR + (tt*2 + (n >> 1))*4 + (n & 1)*2 + h
                    e(f"v_lshlrev_b32 v{acc(n,tt)+2*h}, 16, v{src}\nv_and_b32 v{acc(n,tt)+2*h+1}, 0xffff0000, v{src}")
        stats_pre(e, vL, vS, 64)
        self.side.publish()
        e(f"s_lshl_b32 s77, s{sMi2}, 8\ns_add_u32 s77, s77, {FL + H1*128}\nv_lshlrev_b32 v249, 7, v{vL}\ns_add_u32 s77, s77, s{sLo}")
        for op in nxt[n0:]:
            for f in op: f()
    def main(self, nx):
        g = self.g; e = g.e
        g.poll(77, 8, voff=249)
        L0 = self.c.get('L0', self.LT)
        for j in range(L0):
            for f in self.t_ops(j): f()
        self.side.final()
        def reads(u):
            r = Rec(e)
            for n in range(4 if u < 16 else 0):
                for kk in range(2):
                    for j in range(2): r.ds(f"ds_read_b64_tr_b16 {ar(aW(u, kk, n) + 2*j, 2)}, v{vW+n} offset:{((2*u+kk) % 8)*4096 + j*2048}", ('F2', u, n))
            return r.ops
        for f in reads(0): f()
        for j in range(L0, self.LT):
            for f in self.t_ops(j): f()
        e(f"s_and_b32 s43, s{sNj2}, {g.SH-1}\ns_mul_i32 s77, s{sMi2}, {g.SH}\ns_add_u32 s77, s77, s43\ns_lshl_b32 s77, s77, 7\ns_add_u32 s77, s77, s{sLo}\ns_add_u32 s77, s77, {FL + H2*128}")
        g.stamp()
        Pk = lambda tt, p: vR + (tt*2 + p)*4
        def out(r, tt, p):
            for q in range(4):
                a = acc(2*p + (q >> 1), tt) + 2*(q & 1)
                r(f"v_cvt_pk_bf16_f32 v{Pk(tt,p)+q}, v{a}, v{a+1}")
            r.vm(f"buffer_store_dwordx4 {vr(Pk(tt,p),4)}, v{vOT}, {R(sWS)}, s{sX+tt} offen offset:{1024*p} sc1", 'OUT2')
        for u in range(16):
            if u % 4 == 0: e.mark(f"p2b{u//4}")
            S = Slots(16)
            RP = self.c.get('rp', (0, 2, 2, 3)) if u < 13 else (0, 1, 2, 3)
            for k, f in enumerate(reads(u+1)): S.ve[(k & 12) + RP[k & 3]].append(f)
            if u == 13 and nx.c.get('wpre'): S.sc[0].append(lambda: e("s_barrier"))
            if u % 4 == 2:
                for n in range(4): S.ve[4*n+3].append(lambda n=n: e(f"v_add_u32 v{vW+n}, 32768, v{vW+n}"))
            k = self.c.get('first', 1)
            for f in self.t_ops(2*u + self.LT) + self.t_ops(2*u + self.LT + 1):
                if getattr(f, 'sc', False): S.sc[k].append(f)
                else: S.ve[k].append(f); k += 4
            if u == 15:
                r = Rec(e); out(r, 1, 0); out(r, 0, 0); S.pour(r.ops, 11, 16, partial=True); S.ve[15] += r.ops
                for k in (8, 9, 10): S.sc[k].append(lambda: e("s_nop 0"))
            seq = []; kk = 0
            for n in range(4):
                for tt in ((1, 0) if n & 1 else (0, 1)): seq += [(n, tt, kk), (n, tt, 1-kk)]; kk = 1 - kk
            for k, (n, tt, kk) in enumerate(seq):
                e.wait(vm=('T2', 2*u+1) if k == 0 else None, ds=('F2', u, n | 1))
                a = vr(acc(n, tt), 4)
                e(f"{MF} {a}, {ar(aW(u, kk, n), 4)}, {ar(self.aT(2*u+kk, tt), 4)}, {a}")
                S.emit(k)
        if self.P == 8: e.fold([f"p2b{k}" for k in range(4)], "Lp2_loop", f"s{sCnt}")
        g.stamp()
        stats_mfma(e, Pk, 0, vS); out(e, 1, 1); out(e, 0, 1); e("s_nop 0"); stats_mfma(e, Pk, 1, vS)
        stats_post(e, vS, 64, sSt, 'OUT2')
        g.stamp()
        g.signal('OUT2', 77, nx.pre)
        self.side.arrive()
        nx.window()
```

```python
from mg import *
sOdd, sW, sM0, sGrp, sTch, sPW, sT = 66, 67, 68, 69, 70, 71, 72
vW, vOT, vOW, vTch, vCa, vMu, tm = 224, 231, 232, 236, 237, 238, 242
vC1, vC2, vS2 = vMu, vOW, vTch
TX = {14: 192, 15: 224}
aT = lambda s, kk, tt: TX.get(s, (s & 1)*32) + kk*16 + tt*4
NWB = 4
aW = lambda L, kk: 64 + (L % NWB)*8 + kk*4
aDum, aC = 96, 104
acc = lambda n, tt: (n*4 + tt)*4
PW3 = 131072
class P3:
    def __init__(self, g): self.g = g; self.c = g.cfg.get('p3', {}); self.merge = g.q4 and g.cfg.get('merge', 1); TX.update({14: 192, 15: 224} if g.q4 else {14: 96, 15: 0})
    def w_ops(self, st):
        e = self.g.e; ops = []
        for mat in range(2):
            for q in range(4):
                L = [f"s_add_u32 m0, s{sM0}, {(st & 1)*32768 + mat*16384}", "NOP"] if q == 0 else []
                L += [lambda q=q, mat=mat: e.vm(f"buffer_load_dwordx4 v{vOW+q}, {R((sWg, sWu)[mat])}, s{sW} offen offset:{1024*q} {self.g.cfg.get('waux', '')} lds", ('W3', st))]
                if q == 3 and mat == 1:
                    L += [f"s_add_u32 s{sW}, s{sW}, {64*2*F}"] + ([f"s_xor_b32 s{sM0}, s{sM0}, 0x10000"] if st & 1 else [])
                ops.append(L)
        return ops
    def st_ops(self):
        e = self.g.e; ops = []
        for m in range(2):
            for q in range(4):
                L = [f"s_add_u32 m0, s{sM0}, {32768 + m*16384}", "NOP"] if q == 0 else []
                ops.append(L + [lambda q=q, m=m: e.vm(f"buffer_load_dwordx4 v{vOT}, {R(sWS)}, s{44+m} offen offset:{1024*q} sc1 lds", 'ST3')])
        return ops
    def t_ops(self, st):
        e = self.g.e; ops = []
        for tt in range(4):
            for kk in range(2):
                L = [lambda tt=tt, kk=kk: e.vm(f"buffer_load_dwordx4 {ar(aT(st, kk, tt), 4)}, v{vOT}, {R(sWS)}, s{sT+tt} offen offset:{(st & 1)*2048 + kk*1024} sc1", ('T3', st, tt))]
                if kk == 1 and st & 1: L += [f"s_add_u32 s{sT+tt}, s{sT+tt}, 4096"]
                ops.append(L)
        return ops
    def run(self, ops):
        for op in ops:
            for x in op:
                if callable(x): x()
                else: self.g.e("s_nop 0" if x == "NOP" else x)
    def pre(self):
        g = self.g; e = g.e
        e(f"s_and_b32 s{sOdd}, s{sNj3}, 1")
        e(f"v_lshrrev_b32 v2, 4, v{vL}\nv_bfe_u32 v3, v{vL}, 1, 3\nv_and_b32 v4, 1, v{vL}\nv_lshlrev_b32 v4, 4, v4")
        e(f"v_mul_u32_u24 v5, {2*F}, v2\nv_add_u32 v5, v5, v4\ns_cmp_eq_u32 s{sOdd}, 0\ns_cselect_b32 s44, 7, 0\nv_mov_b32 v7, 0x40000000")
        for i in range(4):
            e(f"v_add_u32 v6, {4*(i&1)}, v2\nv_xor_b32 v6, v6, v3\nv_cmp_eq_u32 vcc, s44, v6\nv_lshl_add_u32 v6, v6, 5, v5\nv_add_u32 v6, {i*4*2*F - 1024*i}, v6")
            e(f"v_cndmask_b32 v{vOW+i}, v6, v7, vcc")
        e(f"s_mul_i32 s{sW}, s{sNj3}, 224\ns_and_b32 s{sW}, s{sW}, 0xffffffc0\ns_mul_i32 s43, s{sWave}, {16*2*F}\ns_add_u32 s{sW}, s{sW}, s43\ns_lshl_b32 s{sM0}, s{sWave}, 12")
        e(f"v_lshlrev_b32 v{vOT}, 4, v{vL}\n{'s_mov_b32 s43, 0x40000000' if self.c.get('nowd') else f's_lshl_b32 s43, s{sLay}, 30'}\nv_or_b32 v{vTch}, s43, v{vOT}\ns_lshl_b32 s43, s2, 2\ns_add_u32 s43, s43, s{sWave}\ns_mul_i32 s{sTch}, s43, 7168")
        e(f"s_lshl_b32 s{sGrp}, s{sMi3}, 2\ns_add_u32 s{sGrp}, s{sGrp}, s{sWave}\ns_lshl_b32 s{sT}, s{sGrp}, 17\ns_add_u32 s{sT}, s{sT}, {g.lo('X')}\ns_add_u32 s{sT}, s{sT}, {XB}")
        for tt in range(1, 4): e(f"s_add_u32 s{sT+tt}, s{sT+tt-1}, 32768")
        e(f"s_lshl_b32 s{sPW}, s{sWave}, 11\ns_add_u32 s{sPW}, s{sPW}, {PW3}")
        e(f"v_lshrrev_b32 v2, 2, v{vL}\nv_and_b32 v3, 7, v2\nv_and_b32 v4, 3, v{vL}\nv_lshlrev_b32 v5, 3, v4\nv_lshl_add_u32 v5, v2, 8, v5")
        e(f"s_lshl_b32 s43, s{sOdd}, 1\ns_cmp_eq_u32 s{sOdd}, 0\ns_cselect_b32 s45, 6, 1")
        for t in range(7):
            if t != (0 if g.sf else 6): e(f"s_add_u32 s46, s43, {t - g.sf}\nv_xor_b32 v6, s46, v3")
            else: e(f"v_xor_b32 v6, s45, v3")
            e(f"v_lshl_add_u32 v{vW+t}, v6, 5, v5")
        e(f"s_mul_i32 s46, s{sNj3}, 448\ns_add_u32 s46, s46, {CSG}\ns_add_u32 s47, s46, {2*F*4}\ns_lshr_b32 s48, s{sNj3}, 3\ns_lshl_b32 s48, s48, 7\ns_add_u32 s48, s48, {FL + HC*128}")
        e(f"s_lshl_b32 s44, s{sGrp}, 13\ns_add_u32 s44, s44, s{sLo}\ns_add_u32 s44, s44, {STB}\ns_add_u32 s45, s44, 4096")
        if g.q4:
            e(f"s_lshl_b32 s43, s2, 2\ns_add_u32 s43, s43, s{sWave}\ns_mul_i32 s65, s43, 12288\ns_add_u32 s65, s65, s{sLo}\ns_add_u32 s65, s65, {PB}")
            for x in range(4): e(f"v_accvgpr_write_b32 a{100+x}, -1")
        for st in range(self.c.get('wpre', 0)): self.run(self.w_ops(st))
    def window(self):
        g = self.g; e = g.e
        if self.c.get('late', 1): self.run(self.w_ops(0)); g.not0(lambda: self.run(self.w_ops(1)))
        else:
            for st in range(self.c.get('wpre', 0), 2): self.run(self.w_ops(st))
        e(f"s_mul_i32 s77, s{sMi3}, {256*g.SH}\ns_add_u32 s77, s77, s{sLo}\ns_add_u32 s77, s77, {FL + H2*128}\nv_lshlrev_b32 v249, 7, v{vL}")
    def stats_ops(self, fill):
        e = self.g.e; r = Rec(e); t = tm + 4; P = lambda tt: vMu + 2*tt
        r(f"s_add_u32 s43, s{sM0}, 32768\nv_lshlrev_b32 v250, 3, v{vL}\nv_add_u32 v250, s43, v250")
        pour(fill, r.ops, 0, 6)
        rd = lambda dst, tt, k: (lambda: e.ds(f"ds_read_b64 {vr(dst,2)}, v250 offset:{(tt>>1)*16384 + (tt&1)*2048 + k*512}", ('SR', tt, k)))
        fill[6].append(lambda: e.wait(vm='ST3'))
        for tt in range(4): fill[6 + tt//2].append(rd(P(tt), tt, 0))
        for i in range(12):
            tt, k = i & 3, 1 + (i >> 2); d = t + 2*(i & 1)
            fill[11 + 4*i].append(rd(d, tt, k))
            fill[16 + 4*i] = [lambda tt=tt, k=k: e.wait(ds=('SR', tt, k))] + fill[16 + 4*i] + [lambda tt=tt, d=d: e(f"v_add_f32 v{P(tt)}, v{P(tt)}, v{d}")]
            fill[17 + 4*i].append(lambda tt=tt, d=d: e(f"v_add_f32 v{P(tt)+1}, v{P(tt)+1}, v{d+1}"))
        A, B, C, D_ = P(0), P(1), P(2), P(3)
        r(f"s_mov_b32 s43, {fhex(1.0/D)}\nv_mov_b32 v250, {fhex(1e-5)}\nv_lshlrev_b32 v{t}, 2, v{vL}\nv_add_u32 v{t}, s{sPW}, v{t}")
        r(f"v_permlane32_swap_b32 v{A}, v{C}\nv_permlane32_swap_b32 v{A+1}, v{C+1}\nv_permlane32_swap_b32 v{B}, v{D_}\nv_permlane32_swap_b32 v{B+1}, v{D_+1}")
        r(f"v_add_f32 v{A}, v{A}, v{C}\nv_add_f32 v{B}, v{B}, v{D_}\nv_add_f32 v{A+1}, v{A+1}, v{C+1}\nv_add_f32 v{B+1}, v{B+1}, v{D_+1}\nv_and_b32 v{t+1}, 0xffffff3f, v{t}")
        r(f"v_permlane16_swap_b32 v{A}, v{B}\nv_permlane16_swap_b32 v{A+1}, v{B+1}\nv_add_f32 v{A}, v{A}, v{B}\nv_add_f32 v{A+1}, v{A+1}, v{B+1}\nv_add_u32 v{t+1}, 1024, v{t+1}")
        r(f"v_mul_f32 v{A}, {fhex(-1.0/D)}, v{A}\nv_fma_f32 v{A+1}, v{A+1}, s43, v250\nv_fma_f32 v{A+1}, -v{A}, v{A}, v{A+1}\nv_max_f32 v{A+1}, v{A+1}, v250\nv_rsq_f32 v{B}, v{A+1}")
        r.ds(f"ds_write_b32 v{t}, v{A} offset:1024"); r.ds(f"ds_write_b32 v{t}, v{A+1} offset:1536")
        r(f"v_mul_f32 v{B}, {fhex(-LOG2E)}, v{B}"); r.ds(f"ds_write_b32 v{t}, v{B} offset:1280")
        for h in range(2): r.ds(f"ds_read2_b32 {vr(vMu+2*h,2)}, v{t+1} offset0:{32*h} offset1:{32*h+16}")
        ckl = f"buffer_load_dword v{vCa}, v{vZ}, {R(sWS)}, s48 offen sc1"
        fill[42] += [lambda: e.vm(ckl, 'CK3'), lambda: None]
        r(f"v_lshrrev_b32 v250, 3, v{vL}\nv_add_u32 v250, s{sOdd}, v250\n{'v_add_u32 v250, -1, v250' if self.g.sf else 'v_cmp_ne_u32 vcc, 7, v250'}\nv_bfe_u32 v{tm}, v{vL}, 2, 1\nv_mul_u32_u24 v{tm}, {F*4}, v{tm}")
        r(f"{'v_min_u32 v250, 6, v250' if self.g.sf else 'v_cndmask_b32 v250, 0, v250, vcc'}\nv_lshl_add_u32 v250, v250, 6, v{tm}\nv_and_b32 v{tm}, 3, v{vL}\nv_lshl_add_u32 v250, v{tm}, 4, v250")
        r.call(lambda: self.g.check(vCa, ckl, 56, 'CK3'))
        for a in range(2): r.vm(f"buffer_load_dwordx4 {vr(tm+4*a,4)}, v250, {R(sWS)}, s{46+a} offen sc1", 'CS3')
        r(f"v_lshrrev_b32 v{vCa}, 4, v{vL}\nv_lshlrev_b32 v{vCa}, 4, v{vCa}\nv_add_u32 v{vCa}, s{sPW}, v{vCa}\nv_add_u32 v250, s{sPW}, v{vOT}")
        pour(fill, r.ops, 62, 112, cap=2); assert not r.ops, len(r.ops)
    def epi_units(self):
        e = self.g.e; U = []
        MG = self.merge
        def ph(i, name, plain=False):
            if not 0 <= i < 28: return []
            r = Rec(e); t, tt = i >> 2, i & 3
            g_, u = acc(2*t, tt), acc(2*t+1, tt); T = tm + 4*(i & 1)
            sel = tt & 1; c1 = (vC1 + tt) & ~1; c2 = (vC2 + tt) & ~1
            if plain:
                for x in range(4): r({'a': f"v_mul_f32 v{T+x}, v{g_+x}, v{vC1+tt}", 'b': f"v_mul_f32 v{g_+x}, v{g_+x}, v{u+x}",
                                      'd': f"v_fma_f32 v{T+x}, v{T+x}, v{vC2+tt}, v{vC2+tt}", 'f': f"v_mul_f32 v{g_+x}, v{g_+x}, v{T+x}"}[name])
                return r.ops
            if name == 'a':
                for h in range(2): r(f"v_pk_mul_f32 {vr(T+2*h,2)}, {vr(g_+2*h,2)}, {vr(c1,2)} op_sel:[0,{sel}] op_sel_hi:[1,{sel}]")
            if name == 'b':
                for h in range(2): r(f"v_pk_mul_f32 {vr(g_+2*h,2)}, {vr(g_+2*h,2)}, {vr(u+2*h,2)}")
            if name == 'c':
                for x in range(4): r(f"v_exp_f32 v{T+x}, v{T+x}")
            if name == 'd':
                for h in range(2): r(f"v_pk_fma_f32 {vr(T+2*h,2)}, {vr(T+2*h,2)}, {vr(c2,2)}, {vr(c2,2)} op_sel:[0,{sel},{sel}] op_sel_hi:[1,{sel},{sel}]")
            if name == 'e':
                for x in range(4): r(f"v_rcp_f32 v{T+x}, v{T+x}")
            if name == 'f':
                for h in range(2): r(f"v_pk_mul_f32 {vr(g_+2*h,2)}, {vr(g_+2*h,2)}, {vr(T+2*h,2)}")
            if name == 'g':
                SF = int(self.g.sf); sp = t == (0 if SF else 6); t -= SF
                dst = acc(1 if SF else 13, tt & ~1) + 2*(tt & 1) if sp else acc(1 if MG and t >= 4 else 2*((t & ~1) + SF) + 1, tt) + 2*(t & 1)
                r(f"v_cvt_pk_bf16_f32 v{dst}, v{g_}, v{g_+1}\nv_cvt_pk_bf16_f32 v{dst+1}, v{g_+2}, v{g_+3}")
                if not sp and (t & 1): r.vm(f"buffer_store_dwordx4 {vr(dst-2,4)}, v{vOT}, {R(sWS)}, s{57+tt} offen sc1", ('OUT3', t >> 1)); r(f"s_add_u32 s{57+tt}, s{57+tt}, {8192 if self.g.q4 else 16384}")
                if sp and (tt & 1):
                    r(f"s_nop 1\nv_permlane32_swap_b32 v{dst-2}, v{dst}\nv_permlane32_swap_b32 v{dst-1}, v{dst+1}")
                    r.vm(f"buffer_store_dwordx4 {vr(dst-2,4)}, v{vS2}, {R(sWS)}, s{61 + (tt>>1)} offen sc1", 'OUT3')
            return r.ops
        for i in range(-1, 30):
            c, e0, e1, g2 = ph(i, 'c'), ph(i-1, 'e'), ph(i, 'e'), ph(i-2, 'g')
            pl = MG and i >= 23
            nop = [lambda: e("s_nop 0")] if i in (0, 28) and not pl else []
            U.append(dict(v=[e0[1:2], e0[2:3], g2[0:1], g2[1:2], g2[2:] + c[0:1], c[1:2], [], c[2:] + e0[3:] + nop + ph(i, 'd', pl) + ph(i-1, 'f', pl) + ph(i+1, 'a', pl) + ph(i+1, 'b', pl) + e1[0:1]],
                          pre=[], mem=[]))
        mix = lambda *L: [l[x] for x in range(4) for l in L if x < len(l)]
        g2 = ph(21, 'g'); self.left = mix(ph(22, 'e')[1:], g2[:2]) + g2[2:]
        for i in range(23, 29):
            d = ph(i, 'd', True)
            self.left += mix(ph(i, 'c'), ph(i-1, 'f', True), ph(i, 'b', True) if i > 23 else []) + ph(i-1, 'g') + d[:1] + mix(d[1:], ph(i, 'e'), ph(i+1, 'a', True))
        return U
    def signal_field(self, tag, f):
        g = self.g; e = g.e; l = g.lab("sgf")
        e.wait(vm=tag); e("s_barrier")
        e(f"s_cmp_lg_u32 s{sWave}, 0\ns_cbranch_scc1 {l}\nv_mov_b32 v250, 1\ns_mov_b64 exec, 1")
        e(f"buffer_atomic_add v250, v{vZ}, {R(sWS)}, s77 offen sc1\ns_mov_b64 exec, -1\n{l}:\ns_add_u32 s77, s77, {H3S}")
    def signal_last(self):
        self.g.e(f"s_xor_b32 s43, s{sCnt}, 2\ns_or_b32 s43, s43, s{sWave}"); self.g.cold("s_cbranch_scc0", lambda: self.g.arrive(sWS, 77), "Lp3_sgl")
    def tail(self, p4, wread1, order):
        g = self.g; e = g.e; c = self.c
        N = 448; S = Slots(N); BASE = 260; LG = 3 if g.q4 else 4
        tiles = [(s, 2*p + z) for p, s in order for z in range(2)]
        def place(pos, op):
            pre = True
            for x in op:
                if x == "NOP": continue
                if callable(x): S.ve[pos].append(W2(x)); pre = False
                else: S.sc[pos - 1 if pre else pos + 1].append(lambda x=x: e(x))
        EU = self.epi_units()
        for q in range(2, 56):
            for z, f in enumerate(wread1(168 + q, *tiles[q])):
                b = 8*(q - 2); S.ve[b + ((2, 2, 6, 7) if b > BASE else (0, 1, 4, 5))[z]].append(f)
        VS = c.get('VS', 5)
        for k, op in enumerate(self.t_ops(13) + self.w_ops(14) + self.t_ops(14) + self.w_ops(15) + self.t_ops(15)): place(2 + 4*((VS*k)//4), op)
        first = {s: next(k for k, (p, s_) in enumerate(order) if s_ == s) for s in (13, 14, 15)}
        for s in (13, 14, 15): S.sc[16*(first[s] - 1)].append(lambda s=s: (e.wait(vm=('W3', s)), e("s_barrier")))
        assert 16*(first[13] - 1) < VS*24
        if g.q4:
            S.sc[16*(first[14] - 1)].append(lambda: (e(f"s_and_b32 s65, s2, 1\ns_lshr_b32 s88, s2, 3\ns_lshl_b32 s88, s88, 1\ns_add_u32 s65, s65, s88\ns_lshl_b32 s65, s65, 7\ns_add_u32 s65, s65, s{sLo}\ns_add_u32 s65, s65, {FL + HM*128}"),
                                                     e(f"s_cmp_lg_u32 s{sWave}, 0\ns_cbranch_scc1 Lp3_mb"), g.arrive(sWS, 65), e("Lp3_mb:")))
        nxt = p4.prefetch_ops()
        for k in range(4):
            op = nxt.pop(0); pos = 206 + 12*k
            S.sc[pos-2].append(op[0]); S.sc[pos-1].append(op[1]); S.ve[pos].append(W2(op[2])); S.ve[pos+4].append(W2(op[3]))
        r = Rec(e); r.wait(vm='CS3')
        for x in range(4): r(f"v_add_f32 v{tm+x}, v{tm+x}, v{tm+4+x}")
        r.ds(f"ds_write_b128 v250, {vr(tm,4)}")
        S.pour(r.ops, 0, 8)
        left = list(range(14)); tau = {}
        def pick(k):
            if k == 15: return True
            for n in left:
                if n >> 1 not in (order[k-1][0], order[k][0], order[k+1][0]):
                    left.remove(n); tau[k] = n
                    if pick(k+1): return True
                    left.append(n); left.sort()
            return False
        assert pick(1) and sorted(tau.values()) == list(range(14))
        for k in range(1, 15):
            n = tau[k]; b = k & 1
            S.ve[16*(k-1) + 11 if k == 1 else 16*(k-1) + 3].append(lambda n=n, b=b: e.ds(f"ds_read_b128 {vr(tm+4*b,4)}, v{vCa} offset:{n*64}", ('CT', n)))
        for k in range(1, 15):
            n = tau[k]; b = k & 1; r = Rec(e); r.wait(ds=('CT', n))
            for tt in range(4):
                for x in range(4): r(f"v_fmac_f32 v{acc(n,tt)+x}, v{tm+4*b+x}, v{vMu+tt}")
            S.pour(r.ops, 16*k, 16*k + 16, partial=True); S.ve[16*k + 15] += r.ops
        r = Rec(e)
        for x in p4.prefetch_setup(): r(x.replace("\n", "\t"))
        r(f"s_mul_i32 s43, s{sGrp}, {4*HPITCH}\ns_lshr_b32 s45, s{sNj3}, {LG}\ns_mul_i32 s45, s45, {(7 << LG)*512}\ns_add_u32 s43, s43, s45\ns_add_u32 s43, s43, {g.lo('H')}\ns_add_u32 s43, s43, {HB}")
        r(f"s_and_b32 s44, s{sNj3}, {(1 << LG) - 1}\ns_lshl_b32 s45, s44, 10\ns_add_u32 s57, s43, s45\ns_lshl_b32 s45, s44, 9\ns_add_u32 s61, s43, s45\n{'s_add_u32 s57, s57, 8192' if g.sf else f's_add_u32 s61, s61, {3072 << LG}'}\ns_add_u32 s62, s61, {2*HPITCH}")
        for tt in range(1, 4): r(f"s_add_u32 s{57+tt}, s{57+tt-1}, {HPITCH}")
        r(f"s_lshl_b32 s77, s{sMi3}, {5 - LG}\ns_lshr_b32 s43, s{sNj3}, {LG}\ns_add_u32 s77, s77, s43\ns_lshl_b32 s77, s77, 7\ns_add_u32 s77, s77, s{sLo}\ns_add_u32 s77, s77, {FL + H3*128}")
        su = p4.setup_ops()
        S.pour(r.ops + [f for f in su if getattr(f, 'sc', False)], 20, 200, cap=0)
        r = Rec(e)
        r(f"v_and_b32 v{vS2}, 31, v{vL}\nv_lshlrev_b32 v{vS2}, 4, v{vS2}\nv_lshrrev_b32 v250, 5, v{vL}\ns_mov_b32 s43, {HPITCH}\nv_mad_u32_u24 v{vS2}, v250, s43, v{vS2}")
        r(f"v_and_b32 v250, 15, v{vL}\ns_add_u32 s43, s{sPW}, 1024\nv_lshl_add_u32 v250, v250, 2, s43")
        for z, dst in enumerate((vC1, vC1+2, vC2, vC2+2)): r.ds(f"ds_read2_b32 {vr(dst,2)}, v250 offset0:{64+32*z} offset1:{80+32*z}", 'CC')
        S.pour(r.ops, 240, 252); S.sc[258].append(lambda: e.wait(ds='CC'))
        SA, SB, CL, CK = c.get('SA', 13), c.get('SB', 22), c.get('CL', 16 if self.merge else 18), c.get('CK', 19 if self.merge else 21)
        if g.sf: SA, S1, CL, CK = c.get('SA', 9), c.get('S1', 17), c.get('CL', 14), c.get('CK', 17)
        assert BASE + 8*SB >= 432 and BASE + 8*SA >= 16*19
        EU[SA+1]['pre'].append(lambda: self.signal_field('OUT3' if g.sf else ('OUT3', 0), 0))
        for k in range(4): EU[SA+1+k]['mem'] += nxt.pop(0)
        if g.sf:
            EU[S1+1]['pre'].append(lambda: self.signal_field([('OUT3', 0), ('W5', 7)], 1))
            EU[SB+1]['pre'].append(lambda: e("s_barrier"))
            EU[c.get('C2', 23 if p4.LT == 8 else 21)+1]['mem'].append(p4.ck_load)
            if p4.LT > 8:
                K2 = c.get('K2', 25); EU[K2+1]['pre'].append(lambda: p4.ck("p4a2"))
                for j in range(8, p4.LT): EU[min(K2 + 1 + j - 8, 30)]['late'] = EU[min(K2 + 1 + j - 8, 30)].get('late', []) + p4.t_op(j)
        else: EU[SB+1]['pre'].append(lambda: self.signal_field([('OUT3', 1), ('W5', 7)], 1))
        EU[CL+1]['mem'].insert(0, p4.ck_load)
        EU[CK+1]['pre'].append(lambda: p4.ck("p4a"))
        ft = p4.first_t(); nq = c.get('NQ', 5)
        nq = max(4, -(-sum(not getattr(f, 'sc', False) for f in ft)//4))
        k = 0
        for f in ft:
            EU[CK + 1 + k//4]['mem'].append(f); k += not getattr(f, 'sc', False)
        for k in range(len(nxt)): EU[min(max(CK + nq, SB) + 1 + k, 30)]['mem'] += nxt[k]
        if self.merge:
            assert CK + nq <= 23 and not nxt
            for pos, f in zip((434, 434, 438, 439, 442, 442, 444, 444, 445, 445, 446, 446, 447, 447, 447, 447), p4.reads(0)): S.ve[pos].append(f)
        else: EU[24]['pre'] += p4.reads(0)
        for i in range(-1, 23):
            u = EU[i+1]; b = BASE + 8*i
            S.sc[b] += u['pre']
            z = 0; lastv = -1
            for f in u['mem']:
                if getattr(f, 'sc', False):
                    while S.sc[b+z] and z < 6: z += 1
                    assert z > lastv; S.sc[b+z].append(f)
                else:
                    while z in (2, 3, 6): z += 1
                    S.ve[b+z].append(f); lastv = z; z = min(z + 1, 7)
            for z in range(8): S.ve[b+z] += u['v'][z]
        vs = [f for f in su if not getattr(f, 'sc', False)]
        for f in vs: f.w = 1
        S.pour(vs, BASE + 8*(6 if g.sf else 10), BASE + 8*CK)
        kk = 0; k = 0; seen = set()
        for q, (s, n) in enumerate(tiles):
            if g.cfg.get('marks') and q in (32, 44): e(f'Lmk_p3q{q}:')
            if c.get('fine') and q == c['fine']: g.stamp()
            for tt in ((3, 2, 1, 0) if n & 1 else (0, 1, 2, 3)):
                e.wait(vm=('T3', s, tt if s > 12 else 3), ds=('F3', 168 + q))
                for z in (kk, 1 - kk):
                    a = vr(acc(n, tt), 4)
                    e(f"{MF} {a}, {ar(aW(168 + q, z), 4)}, {ar(aT(s, z, tt), 4)}, {a}")
                    S.emit(k); k += 1
                kk = 1 - kk
        if g.cfg.get('marks'): e('Lmk_p3q56:')
        g.stamp()
        if self.merge:
            p4.left = self.left; EU = []
        for u in EU[24:]:
            m = u['mem'] + u.get('late', []); h = (len(m) + 1)//2
            for f in u['pre'] + m[:h] + sum(u['v'][:4], []) + m[h:] + sum(u['v'][4:], []): f()
        for f in p4.init_ops(): f()
        g.stamp(); g.stamp()
    def main(self, p4):
        g = self.g; e = g.e; c = self.c
        DW = c.get('DW', 2); NP = c.get('NP', 2)
        if c.get('late', 1): g.poll(77, 16//g.SH, voff=249, nl=2*g.SH, late=lambda: self.run(self.w_ops(1)), keep=8)
        else: g.poll(77, 16//g.SH, voff=249, nl=2*g.SH)
        self.run(self.t_ops(0))
        def wread(L): return wread1(L, *divmod(L, 14))
        def wread1(L, s, n):
            ops = []
            for kk in range(2):
                for j in range(2):
                    def f(kk=kk, j=j):
                        if n == 0 and kk == 0 and j == 0 and 0 < s <= 12: e.wait(vm=('W3', s)); e("s_barrier")
                        e.ds(f"ds_read_b64_tr_b16 {ar(aW(L, kk) + 2*j, 2)}, v{vW + (n >> 1)} offset:{(s & 1)*32768 + (n & 1)*16384 + (kk*32 + 16*j)*256}", ('F3', L))
                        if kk == 1 and j == 1 and s & 1 and n & 1 and s < 15: e(f"v_xor_b32 v{vW + (n >> 1)}, 0x10000, v{vW + (n >> 1)}")
                    ops.append(f)
            return ops
        for L in range(DW):
            for f in wread(L): f()
        g.stamp()
        for s in range(12):
            if s in (0, 1, 15): e(f"Lmk_p3s{s}:")
            if c.get('fine') and s in (1, 2, 15): g.stamp()
            if s % 2 == 0: e.mark(f"p3b{s//2}")
            if c.get('fine') and s == 14: g.stamp()
            fill = [[] for _ in range(112)]
            def place(pos, op):
                pre = True
                for x in op:
                    if x == "NOP": continue
                    if callable(x): fill[pos] += [x, lambda: None]; pre = False
                    else: fill[pos - 1 if pre else pos + 1].append(lambda x=x: e(x))
            if c.get('burst', 0) and 2 <= s < 14:
                pos = [7*p + z for p in range(16) for z in (range(4) if p % 2 == 0 else range(c.get('b0', 0), c.get('b0', 0) + 3))]
                rd = [f for n in range(14) for f in wread(s*14 + n + DW)]
                for k, f in enumerate(rd): fill[pos[k]].append(f)
            else:
                for n in range(14):
                    for k, f in enumerate(wread(s*14 + n + DW)): fill[n*8 + c.get('rp', (0, 1, 4, 5))[k]].append(f)
            if s < 15:
                VP = c.get('vp', [2, 10, 18, 22, 30, 38, 46, 54, 58, 66, 74, 78, 86, 94, 102, 106])
                for k, op in enumerate(self.t_ops(s+1)): place(4*k + 10 if s == 0 else VP[k], op)
            if s == 0:
                for k, op in enumerate(self.st_ops()): place(4*k + 42, op)
                if NP == 2:
                    for k, op in enumerate(self.w_ops(2)): place(4*k + 74, op)
            elif s < 14:
                for k, op in enumerate(self.w_ops(s+2)): place(VP[k+8] if s > 1 else (66, 70, 74, 82, 86, 94, 102, 106)[k], op)
            if s % 2 == 0 or s == 1:
                place(106 if s == 0 else c.get('tp', 50), [lambda: e.vm(f"buffer_load_dwordx4 {ar(aDum,4)}, v{vTch}, {R(sWd)}, s{sTch} offen"), f"s_add_u32 s{sTch}, s{sTch}, 1024"])
            if g.q4 and s & 1:
                place(62, [lambda: e.vm(f"buffer_store_dwordx4 a[100:103], v{vOT}, {R(sWS)}, s65 offen sc1")])
                place(90, [lambda: e.vm(f"buffer_store_dwordx4 a[100:103], v{vOT}, {R(sWS)}, s65 offen offset:1024 sc1"), "s_add_u32 s65, s65, 2048"])
            if s == 1: self.stats_ops(fill)
            kk = 0
            for n in range(14):
                L = s*14 + n
                k = 0
                for tt in ((3, 2, 1, 0) if n & 1 else (0, 1, 2, 3)):
                    e.wait(vm=('T3', s, tt if s == 0 else 3) if n == 0 else None, ds=('F3', L))
                    for z in (kk, 1 - kk):
                        a = vr(acc(n, tt), 4)
                        e(f"{MF} {a}, {ar(aW(L, z), 4)}, {ar(aT(s, z, tt), 4)}, {'0' if s == 0 and z == kk else a}")
                        for f in fill[n*8 + k]: f()
                        k += 1
                    kk = 1 - kk
        e.mark("p3b6")
        e.fold([f"p3b{k}" for k in range(1, 7)], "Lp3_loop", f"s{sCnt}", align=c.get('al', 3))
        if c.get('fine'): g.stamp()
        order = [(p, 12) for p in range(7)] + [(p, 13) for p in range(4)] + [(0, 14), (1, 14), (2, 14), (4, 13), (0, 15), (5, 13), (1, 15), (6, 13), (2, 15)]
        order += [(p, s) for p in range(3, 7) for s in (14, 15)]
        self.tail(p4, wread1, order)
```

```python
from mg import *
sRA, sRB, sEW, sWn, sM0, sDel = 80, 84, 88, 92, 79, 78
sET, sT, sTile, sXo, sFld, sLine = 63, 48, 49, 76, 65, 64
vW, vOT, vR, vCk, vM, vU = 0, 8, 16, 10, 96, 112
aT = lambda j, tt: 128 + (j % 16)*8 + tt*4
aW = lambda k, kk, n: (k & 1)*32 + kk*16 + n*4
acc = lambda h, n, tt: 32 + h*32 + (n*2 + tt)*4
NS = 56
SF = [0]
def kb(j):
    if SF[0]: j = (j + 48) % 56
    return 7*((j & 15) >> 1) + 4*(j & 1) + (j >> 4) if j < 48 else 7*(j - 48) + 3
def rot(j):
    if SF[0]: return j ^ 4 if j < 8 else 8 + ((j - 8) ^ 8)
    return j ^ (8 if j < 48 else 4)
class P4S:
    NQ = 2
    def __init__(self, g):
        self.g = g; self.c = g.cfg.get('p4', {})
        self.LT = self.c.get('LT', 8); self.LW = self.c.get('LW', 12); self.J = self.c.get('jump', 2 if g.sf else 1); SF[0] = int(g.sf); assert not (g.sf and self.J == 1); self.PD = self.c.get('PD', 4); self.NL = self.PD//4; self.ND = ND = self.c.get('ND', 7)
        self.items = [(u, h) for u in range(28 - ND) for h in range(2)] + [(u, h) for h in range(2) for u in range(28 - ND, 28)]
    def prefetch_setup(self):
        L = [f"s_xor_b32 s93, s{sNj2}, 1", "s_lshl_b32 s93, s93, 7", f"s_add_u32 s{sRA}, s{sWd}, s93\ns_addc_u32 s{sRA+1}, s{sWd+1}, 0", f"s_sub_u32 s{sRA+2}, {F*D*2}, s93", f"s_mov_b32 s{sRA+3}, 0x20000",
             f"s_lshl_b32 s93, s{sNj2}, 7", f"s_add_u32 s{sRB}, s{sWd}, s93\ns_addc_u32 s{sRB+1}, s{sWd+1}, 0", f"s_sub_u32 s{sRB}, s{sRB}, 1024\ns_subb_u32 s{sRB+1}, s{sRB+1}, 0",
             f"s_sub_u32 s{sRB+2}, {F*D*2 + 1024}, s93", f"s_mov_b32 s{sRB+3}, 0x20000",
             f"s_and_b32 s93, s{sNj2}, 1", f"s_mul_i32 s{sWn}, s93, {56*65536}", f"s_lshl_b32 s93, s{sWave}, 14", f"s_add_u32 s{sWn}, s{sWn}, s93", f"s_lshl_b32 s{sM0}, s{sWave}, 11"]
        if self.J == 2: L += [f"s_lshr_b32 s93, s{sNj2}, 1", f"s_add_u32 s93, s93, s{sMi2}", "s_and_b32 s93, s93, 1", f"s_mul_i32 s{sEW}, s93, {28*65536}"]
        elif self.J: L += [f"s_lshr_b32 s93, s{sNj2}, 1", f"s_add_u32 s93, s93, s{sMi2}", "s_and_b32 s93, s93, 3"] + [f"s_cmp_eq_u32 s93, {q}\ns_cselect_b32 s{sEW+q}, {14*65536}, 0" for q in range(4)]
        L += [f"s_cmp_eq_u32 s{sWave}, 1\ns_cselect_b32 s{sDel}, 16384, 0", f"s_cmp_eq_u32 s{sWave}, 2\ns_cselect_b32 s{sDel}, -16384, s{sDel}"]
        return L
    def wrap(self, L):
        out = []
        for x in L:
            f = x if callable(x) else (lambda x=x: self.g.e(x))
            f.vm = callable(x); f.sc = not f.vm; out.append(f)
        return out
    def w_op(self, j):
        e = self.g.e; J = self.J; so = 93 if J else sWn
        L = [f"s_add_u32 m0, s{sM0}, {(j % 16)*8192}", f"s_add_u32 s{sWn}, s{sWn}, {(kb(j) - (kb(j-1) if j else 0))*65536}"]
        if SF[0] and j == 8: L[1] += f"\ns_sub_u32 s{sWn}, s{sWn}, s{sDel}"
        if j == (0 if SF[0] else 48): L[1] += f"\ns_add_u32 s{sWn}, s{sWn}, s{sDel}"
        if J == 2:
            jl = rot(j); assert abs(kb(jl) - kb(j)) == 28
            L[1] += f"\n{'s_add_u32' if jl > j else 's_sub_u32'} s93, s{sWn}, s{sEW}"
        elif J:
            jl = (j + 4) % NS; d = kb(jl) - kb(j); E_ = sEW + (j & 3)
            if d == 14: L[1] += f"\ns_add_u32 s93, s{sWn}, s{E_}"
            else:
                x = f"s_cmp_lg_u32 s{E_}, 0\ns_cselect_b32 s93, {d*65536}, 0"
                if (j >= 48) != (jl >= 48): x += f"\ns_cselect_b32 s43, s{sDel}, 0\n{'s_add_u32' if jl >= 48 else 's_sub_u32'} s93, s93, s43"
                L += [x, f"s_add_u32 s93, s93, s{sWn}"]
        L += [lambda: e.vm(f"buffer_load_dwordx4 v{vOW2}, {R(sRA)}, s{so} offen lds", ('W5', j)),
              lambda: e.vm(f"buffer_load_dwordx4 v{vOW2}, {R(sRB)}, s{so} offen offset:1024 lds", ('W5', j))]
        return self.wrap(L)
    def prefetch_ops(self): return [self.w_op(j) for j in range(min(self.LW, 12))]
    def t_op(self, j):
        e = self.g.e; so = 63 if self.J else sT
        L = [f"s_add_u32 s{sT}, s{sT}, 4096"] if j and j & 3 == 0 else []
        if self.J == 2:
            if j & 3 == 0: L = ["\n".join(L + [f"s_min_u32 s63, s{sEW}, {abs(rot(j) - j)*1024}", f"s_add_u32 s63, s{sT}, s63" if rot(j) > j else f"s_sub_u32 s63, s{sT}, s63"])]
        elif self.J: L = ["\n".join(L + [f"s_min_u32 s63, s{sEW + (j & 3)}, 4096"] + (["s_mul_i32 s63, s63, -13"] if j + 4 >= NS else []) + [f"s_add_u32 s63, s63, s{sT}"])]
        L += [lambda tt=tt: e.vm(f"buffer_load_dwordx4 {ar(aT(j, tt), 4)}, v{vOT+tt}, {R(sWS)}, s{so} offen offset:{1024*(j & 3)} sc1", ('T5', j)) for tt in range(2)]
        return self.wrap(L)
    def vm_ops(self, i):
        return (self.w_op(i + self.LW) if i + self.LW < NS else []) + (self.t_op(i + self.LT) if i + self.LT < NS else [])
    def clear_mailbox(self, e, voff, vt, lo):
        e(f"s_lshl_b32 s44, s2, 2\ns_add_u32 s44, s44, s{sWave}\ns_lshl_b32 s44, s44, 12\ns_add_u32 s44, s44, {lo}\ns_add_u32 s44, s44, {PB}")
        for r in range(4): e(f"v_mov_b32 v{vt+r}, -1")
        for q in range(4): e.vm(f"buffer_store_dwordx4 {vr(vt,4)}, v{voff}, {R(sWS)}, s44 offen offset:{1024*q} sc1")
    def setup_ops(self):
        r = Rec(self.g.e)
        r(f"s_and_b32 s43, s{sNj2}, 1")
        r(f"s_and_b32 s{sLine}, s{sMi2}, 14\ns_add_u32 s{sLine}, s{sLine}, s43\ns_lshl_b32 s{sLine}, s{sLine}, 7\ns_add_u32 s{sLine}, s{sLine}, s{sLo}\ns_add_u32 s{sLine}, s{sLine}, {FL + H3*128}")
        r(f"s_lshl_b32 s{sTile}, s{sMi2}, 3\ns_lshl_b32 s43, s{sWave}, 1\ns_add_u32 s{sTile}, s{sTile}, s43")
        r(f"s_lshl_b32 s{sXo}, s{sTile}, 15\ns_lshl_b32 s43, s{sNj2}, 11\ns_add_u32 s{sXo}, s{sXo}, s43\ns_add_u32 s{sXo}, s{sXo}, {self.g.lo('X')}")
        r(f"s_add_u32 s46, s{sXo}, {XB}\ns_add_u32 s47, s46, 32768\nv_lshlrev_b32 v{vOT}, 4, v{vL}\nv_add_u32 v{vOT+1}, {HPITCH}, v{vOT}")
        for tt in range(2):
            for p in range(2): r.vm(f"buffer_load_dwordx4 {vr(vR + (tt*2+p)*4, 4)}, v{vOT}, {R(sWS)}, s{46+tt} offen offset:{1024*p} sc1", 'R5')
        r(f"s_mul_i32 s{sT}, s{sTile}, {HPITCH}\ns_and_b32 s43, s{sNj2}, 1\ns_mul_i32 s44, s43, {56*1024}\ns_add_u32 s{sT}, s{sT}, s44\ns_add_u32 s{sT}, s{sT}, {self.g.lo('H')}\ns_add_u32 s{sT}, s{sT}, {HB}")
        r(f"v_bfe_u32 v11, v{vL}, 2, 3\nv_bfe_u32 v12, v{vL}, 3, 2\nv_and_b32 v13, 3, v{vL}\nv_lshlrev_b32 v13, 3, v13\nv_lshl_add_u32 v13, v11, 7, v13\nv_lshrrev_b32 v11, 5, v{vL}\nv_lshl_add_u32 v13, v11, 11, v13")
        for t in range(4): r(f"v_xor_b32 v11, {t}, v12\nv_lshl_add_u32 v{vW+t}, v11, 5, v13\nv_add_u32 v{vW+4+t}, 0x10000, v{vW+t}")
        return r.ops
    def ck_load(self): self.g.e.vm(f"buffer_load_dword v{vCk}, v{vZ}, {R(sWS)}, s{sLine} offen sc1", 'CK5')
    def ck(self, nm):
        self.g.check(vCk, f"buffer_load_dword v{vCk}, v{vZ}, {R(sWS)}, s{sLine} offen sc1", 16, 'CK5', "L" + nm)
        if not (SF[0] and self.LT > 8 and nm == "p4b"): self.g.e(f"s_add_u32 s{sLine}, s{sLine}, {H3S}")
    def reads(self, k):
        e = self.g.e
        if k >= len(self.items): return []
        u, h = self.items[k]
        return [lambda n=n, kk=kk, j=j, i=2*u+kk: e.ds(f"ds_read_b64_tr_b16 {ar(aW(k, kk, n) + 2*j, 2)}, v{vW + n + (4 if i & 8 else 0)} offset:{(i & 7)*8192 + j*4096 + h*1024}", ('F5', k, n))
                for n in range(4) for kk in range(2) for j in range(2)]
    def first_t(self): return [f for j in range(8 if SF[0] else self.LT) for f in self.t_op(j)]
    def init_ops(self):
        r = Rec(self.g.e)
        for x in range(0, 32, 2): r(f"v_pk_mul_f32 {vr(32+x,2)}, {vr(vZ-1,2)}, 0 op_sel:[1,0] op_sel_hi:[1,0]")
        r.wait(vm='R5')
        for tt in range(2):
            for n in range(4):
                for h in range(2):
                    src = vR + (tt*2 + (n >> 1))*4 + (n & 1)*2 + h
                    r(f"v_lshlrev_b32 v{acc(1,n,tt)+2*h}, 16, v{src}\nv_and_b32 v{acc(1,n,tt)+2*h+1}, 0xffff0000, v{src}")
        return r.ops
    def main(self, nx, p3):
        g = self.g; e = g.e; c = self.c; ND = self.ND; items = self.items; reads = self.reads
        if self.LW > 12:
            e("s_barrier")
            for j in range(12, self.LW):
                for f in self.w_op(j): f()
        g.stamp(); g.stamp()
        Pk = lambda tt, p: vR + (tt*2 + p)*4
        def cvt(r, h, tt, p):
            for q in range(4):
                a = acc(h, 2*p + (q >> 1), tt) + 2*(q & 1)
                r(f"v_cvt_pk_bf16_f32 v{Pk(tt,p)+q}, v{a}, v{a+1}")
        def mail_loads(r):
            for q in range(4): r.vm(f"buffer_load_dwordx4 {vr(vM+4*q,4)}, v{vOT}, {R(sWS)}, s45 offen offset:{1024*q} sc1", 'MB')
        def tree(r):
            r(f"v_max3_u32 v{vU}, v{vM}, v{vM+1}, v{vM+2}\nv_max3_u32 v{vU+1}, v{vM+3}, v{vM+4}, v{vM+5}")
            for x in range(5): r(f"v_max3_u32 v{vU + (x&1)}, v{vU + (x&1)}, v{vM+6+2*x}, v{vM+7+2*x}")
            r(f"v_max_u32 v{vU}, v{vU}, v{vU+1}\nv_cmp_eq_u32 vcc, -1, v{vU}")
        def mail_check():
            e.wait(vm='MB'); tree(e)
            g.cold("s_cbranch_vccnz", lambda: g.spin(lambda: mail_loads(e), lambda: tree(e), "Lp4_mb"), "Lp4_mb")
        def out_addr(r):
            r(f"s_add_u32 s46, s{sXo}, {XA + g.lp('X')}\ns_add_u32 s47, s46, 32768")
            r(f"s_lshl_b32 s48, s{sTile}, 11\ns_lshl_b32 s43, s{sNj2}, 7\ns_add_u32 s48, s48, s43\ns_add_u32 s48, s48, {STA + LP}")
            r(f"s_and_b32 s57, s{sTile}, 63\ns_lshl_b32 s57, s57, 16\ns_add_u32 s57, s57, s43\ns_lshr_b32 s43, s{sTile}, 6\ns_lshl_b32 s43, s43, 11\ns_add_u32 s57, s57, s43")
            r(f"s_and_b32 s43, s{sNj2}, {g.SH-1}\ns_mul_i32 s77, s{sMi2}, {g.SH}\ns_add_u32 s77, s77, s43\ns_lshl_b32 s77, s77, 7\ns_add_u32 s77, s77, {FL + H4*128}")
        def final_addr(r):
            r(f"v_and_b32 v152, 15, v{vL}\nv_lshrrev_b32 v153, 4, v{vL}\nv_lshrrev_b32 v155, 1, v153\nv_and_b32 v153, 1, v153\nv_lshl_add_u32 v153, v153, 1, v155")
            r(f"v_and_b32 v155, 7, v{vL}\nv_xor_b32 v153, v153, v155\nv_lshlrev_b32 v153, 4, v153\nv_lshl_add_u32 v152, v152, 7, v153\ns_lshl_b32 s43, s{sWave}, 12\nv_add_u32 v152, s43, v152\nv_xor_b32 v153, 64, v152")
            r(f"v_lshrrev_b32 v156, 3, v{vL}\nv_xor_b32 v154, v156, v155\nv_lshlrev_b32 v154, 4, v154\nv_lshl_add_u32 v154, v156, 7, v154\nv_add_u32 v154, s43, v154")
            r(f"v_lshlrev_b32 v155, 4, v155\nv_lshl_add_u32 v155, v156, 12, v155")
        kB = len(items) - ND
        for k, (u, h) in enumerate(items):
            if k % 16 == 0 and k <= 32: e.mark(f"p4b{k//16}")
            if g.cfg.get('marks') and k in (2*(28-ND), kB): e(f'Lmk_p4k{"A" if k < kB else "B"}:')
            fill = [[] for _ in range(16)]
            if h == 0 and (u % 2 == 0 or self.LW > 12):
                def bar(u=u):
                    us = c.get('US', 4) if SF[0] else self.LT//2 + (self.LT//2 & 1)
                    e.wait(vm=[('W5', x) for x in range(2*u+2, min(2*u+6, NS))] + ([('OUT3', 2)] if u == us and SF[0] else []), force=True); e("s_barrier")
                    if u % 8 == us and u < 16: p3.signal_last()
                fill[0].append(bar)
            RP = c.get('rp', (0, 1, 3, 3)) if u < 28 - ND else (0, 1, 2, 3)
            for z, f in enumerate(reads(k+1)): fill[(z & 12) + RP[z & 3]].append(f)
            kc = (8 - self.LT) % 16 if SF[0] else 16 - self.LT - 4*(self.J == 1)
            if k < 32 and k % 16 == kc: fill[0].append(lambda k=k: self.ck("p4b" if c.get('fold', 1) else f"p4b{k}"))
            if k < 32 and k % 16 == ((kc - 3) % 16 if SF[0] else max(kc - 3, 0)): fill[0].append(self.ck_load)
            if u < 28 - ND: ops = self.vm_ops(2*u + h)
            else: ops = self.vm_ops(2*u) + self.vm_ops(2*u+1) if h == 0 else []
            if c.get('even', 1): space(fill, ops, lambda f: f.vm, c.get('first', 2))
            else:
                for z, f in enumerate(ops): fill[1 + (z*14)//len(ops)].append(f)
            if k == len(items) - 1: fill[9].append(lambda: (e.wait(ds='all'), e("s_barrier")))
            if k == kB:
                r = Rec(e)
                r(f"s_lshl_b32 s45, s2, 2\ns_add_u32 s45, s45, s{sWave}\ns_lshl_b32 s45, s45, 12\ns_xor_b32 s44, s45, {g.px*4*4096}\ns_add_u32 s43, s{sLo}, {PB}\ns_add_u32 s44, s44, s43\ns_add_u32 s45, s45, s43")
                for p in range(2):
                    for tt in range(2):
                        cvt(r, 0, tt, p); r.vm(f"buffer_store_dwordx4 {vr(Pk(tt,p),4)}, v{vOT}, {R(sWS)}, s44 offen offset:{1024*(tt*2+p)} sc1")
                pour(fill, r.ops, 0, 16, cap=3); assert not r.ops
            if k == kB + 1:
                r = Rec(e); stats_pre(r, vL, 128, 66); pour(fill, r.ops, 0, 16); assert not r.ops
            if k == kB + 2:
                r = Rec(e); final_addr(r); pour(fill, r.ops, 0, 16, cap=3); assert not r.ops
            if k == kB + 3:
                r = Rec(e); out_addr(r); pour(fill, r.ops, 0, 16, cap=3); assert not r.ops
            if k == len(items) - c.get('XL', 3):
                r = Rec(e); mail_loads(r); pour(fill, r.ops, c.get('XO', 4), 16, cap=3, step=2); assert not r.ops
            if k == len(items) - 2: fill[15].append(mail_check)
            if k == len(items) - 1:
                r = Rec(e)
                for p in range(2):
                    for tt in range(2):
                        for q in range(4):
                            src = vM + (tt*2 + p)*4 + q; a = acc(0, 2*p + (q >> 1), tt) + 2*(q & 1)
                            r(f"v_lshlrev_b32 v{a}, 16, v{src}\nv_and_b32 v{a+1}, 0xffff0000, v{src}")
                pour(fill, r.ops, 0, 15, cap=2); pour(fill, r.ops, 15, 16, cap=4); assert not r.ops
            seq = []; kk = 0
            for n in range(4):
                for tt in ((1, 0) if n & 1 else (0, 1)): seq += [(n, tt, kk), (n, tt, 1-kk)]; kk = 1 - kk
            for z, (n, tt, kk) in enumerate(seq):
                e.wait(vm=('T5', 2*u+1) if z == 0 and h == 0 else None, ds=('F5', k, n | 1), force=(z == 0 and h == 0))
                a = vr(acc(h, n, tt), 4)
                e(f"{MF} {a}, {ar(aW(k, kk, n), 4)}, {ar(aT(2*u+kk, tt), 4)}, {a}")
                for f in fill[z]: f()
        if c.get('fold', 1): e.fold([f"p4b{k}" for k in range(3)], "Lp4_loop", f"s{sCnt}")
        g.stamp()
        if g.cfg.get('marks'): e('Lmk_p4end:')
        def addp(tt, p):
            for q in range(4):
                a = 2*(q & 1); n = 2*p + (q >> 1)
                e(f"v_pk_add_f32 {vr(acc(1,n,tt)+a,2)}, {vr(acc(1,n,tt)+a,2)}, {vr(acc(0,n,tt)+a,2)}")
        for p in range(2):
            for tt in (1, 0): addp(tt, p); cvt(e, 1, tt, p)
        e(f"s_cmp_eq_u32 s{sLay}, 0\ns_cbranch_scc1 Lp4_mid")
        for tt in range(2):
            for p in range(2): e(f"v_permlane16_swap_b32 v{Pk(tt,p)}, v{Pk(tt,p)+2}\nv_permlane16_swap_b32 v{Pk(tt,p)+1}, v{Pk(tt,p)+3}")
            for p in range(2): e(f"ds_write_b128 v{152+p}, {vr(Pk(tt,p),4)} offset:{2048*tt}")
            for x in range(2): e(f"ds_read_b128 {vr(vM+8*tt+4*x,4)}, v154 offset:{2048*tt + 1024*x}")
        for x in range(4):
            e(f"s_waitcnt lgkmcnt({(5, 4, 1, 0)[x]})\nbuffer_store_dwordx4 {vr(vM+4*x,4)}, v155, {R(sOut)}, s57 offen {c.get('faux', 'nt')}\ns_add_u32 s57, s57, 32768")
        g.stamp()
        e("s_branch Lend\nLp4_mid:" if g.diag else "s_endpgm\nLp4_mid:")
        for p in range(2):
            for tt in range(2): e.vm(f"buffer_store_dwordx4 {vr(Pk(tt,p),4)}, v{vOT}, {R(sWS)}, s{46+tt} offen offset:{1024*p} sc1", 'OUT5')
            stats_mfma(e, Pk, p, 128)
        stats_post(e, 128, 66, 48, 'OUT5')
        g.stamp()
        e(f"s_mov_b32 s{sLay}, 1\ns_mov_b32 s{sLo}, {hex(LP)}")
        g.signal('OUT5', 77, nx.pre)
        nx.window()
        e("s_branch Llayer")
```

```python
from mg import *
W_RING, A_RING, HALO, PW = 0, 73728, 122880, 139264
CSX = PW + 4096
sHalf, sHd, sAb, sWb, sAi, sMA, sMW, sRs, sRi, sSt, sLead, sA, sW, sW2, sT0, sHt, sHb, sOwn, sHead, sPW = range(57, 77)
Q = lambda j, t: (j*4 + t - 1)*4
Kc = lambda j, t: 32 + (j*4 + t - 1)*4 if t else 96
V = lambda j, t: 64 + (j*4 + t - 1)*4 if t else 100
vB, vCq, kf0 = 104, 108, 120
vT, vH, vW, vOA, vOW, vOH, vCk = 112, 114, 116, 120, 124, 126, 127
vST = 128; bC, bP, bP0, ones = 128, 132, 136, 160
aG, aL, vCS, vRo, vP, vXa, vMuV, vRsV, tmp = 164, 166, 168, 187, 188, 198, 200, 220, 240
RES = A_RING + 16384
MSK = PW + 6144 + 4096; TBL = PW + 2*6144 + 4096
NSL = 52
fT = lambda b, kk, t: b*88 + kk*20 + t*4
fW = lambda b, kk, n: b*88 + 40 + kk*24 + n*4
class P1:
    def __init__(self, g): self.g = g; self.c = g.cfg.get('p1', {}); self.ntA = self.ntW = ''
    def setup(self, l1):
        e = self.g.e
        e(f"s_lshr_b32 s{sHalf}, s{sWave}, 1\ns_and_b32 s{sHd}, s{sWave}, 1\ns_lshl_b32 s{sT0}, s{sMi1}, 3")
        e(f"s_add_u32 s{sLead}, s{sMi1}, s{sHj}\ns_and_b32 s{sLead}, s{sLead}, 15" if l1 else
          f"s_add_u32 s{sLead}, s{sMi1}, s{sHj}\ns_and_b32 s{sLead}, s{sLead}, {self.c.get('rm', 0)}\ns_lshl_b32 s{sLead}, s{sLead}, {self.c.get('rs', 3)}")
        e(f"s_lshl_b32 s{sMA}, s{sWave}, 12\ns_mul_i32 s{sMW}, s{sWave}, 6144\ns_add_u32 s{sPW}, s{sMW}, {PW}")
        e(f"s_and_b32 s43, s{sMi1}, 7\ns_cmp_lg_u32 s43, 0\ns_cselect_b32 s43, 1, 0\ns_sub_u32 s{sHt}, s{sT0}, s43")
        e(f"v_lshrrev_b32 v2, 3, v{vL}\nv_bfe_u32 v3, v{vL}, 1, 2\nv_lshrrev_b32 v4, 4, v{vL}\nv_xor_b32 v3, v3, v4\nv_and_b32 v5, 1, v{vL}")
        if l1:
            e(f"v_lshrrev_b32 v6, 5, v{vL}\nv_lshl_add_u32 v6, v6, 2, v2")
            e(f"s_lshl_b32 s43, s{sHalf}, 5\ns_lshl_b32 s44, s{sHd}, 2\ns_add_u32 s43, s43, s44")
        else:
            e(f"v_mov_b32 v6, v2\ns_lshl_b32 s43, s{sWave}, 4")
        e(f"v_mul_u32_u24 v6, 6144, v6\nv_lshl_add_u32 v6, v3, 5, v6\nv_lshl_add_u32 v{vOW}, v5, 4, v6\nv_add_u32 v{vOW+1}, {(16 if l1 else 8)*6144-1024}, v{vOW}")
        e(f"s_mul_i32 s43, s43, 6144\ns_lshl_b32 s{sWb}, s{sHj}, 7\ns_add_u32 s{sWb}, s{sWb}, s43")
        e(f"v_and_b32 v3, 7, v{vL}\ns_lshl_b32 s43, s{sWave}, 1\ns_add_u32 s43, s43, s{sT0}")
        if l1:
            for q in range(4):
                e(f"v_add_u32 v5, {4*(q&1)}, v4\nv_xor_b32 v5, v5, v3\nv_lshlrev_b32 v5, 4, v5\nv_lshl_add_u32 v5, v2, 12, v5\nv_add_u32 v{vOA+q}, {q*(32768-1024)}, v5")
            e(f"v_and_b32 v5, 6, v2\nv_xor_b32 v5, v5, v3\nv_lshlrev_b32 v5, 4, v5\nv_lshl_add_u32 v5, v2, 12, v5\nv_add_u32 v{vOH}, 32768, v5")
            e(f"s_lshr_b32 s44, s{sMi1}, 3\ns_lshl_b32 s44, s44, 11\ns_and_b32 s43, s43, 63\ns_lshl_b32 s43, s43, 16\ns_add_u32 s{sAb}, s43, s44")
            e(f"s_and_b32 s43, s{sHt}, 63\ns_lshl_b32 s43, s43, 16\ns_add_u32 s{sHb}, s43, s44\ns_movk_i32 s{sAi}, 128")
        else:
            e(f"v_lshlrev_b32 v{vOA}, 4, v{vL}\nv_mov_b32 v{vOA+1}, v{vOA}\nv_add_u32 v{vOA+2}, {32768-2048}, v{vOA}\nv_add_u32 v{vOA+3}, {32768-2048}, v{vOA}")
            e(f"v_lshlrev_b32 v5, 8, v2\nv_lshl_add_u32 v5, v3, 4, v5\nv_add_u32 v{vOH}, 128, v5")
            e(f"s_lshl_b32 s43, s43, 15\ns_mov_b32 s44, {XA + self.g.lp('X')}\ns_add_u32 s{sAb}, s43, s44\ns_lshl_b32 s43, s{sHt}, 15\ns_add_u32 s{sHb}, s43, s44\ns_movk_i32 s{sAi}, 2048")
    def setup_reads(self, l1):
        e = self.g.e
        e(f"v_and_b32 v2, 15, v{vL}\nv_lshrrev_b32 v3, 4, v{vL}\nv_and_b32 v4, 7, v{vL}")
        if l1:
            e(f"v_lshrrev_b32 v5, 1, v2\nv_xor_b32 v5, v5, v3\nv_lshlrev_b32 v5, 4, v5\nv_lshl_add_u32 v6, v2, 7, v5\nv_xor_b32 v7, 64, v6")
            e(f"v_and_b32 v5, 6, v4\nv_xor_b32 v5, v5, v3\nv_lshlrev_b32 v5, 4, v5\nv_lshl_add_u32 v8, v4, 7, v5\nv_xor_b32 v9, 64, v8")
        else:
            e(f"v_lshlrev_b32 v6, 4, v{vL}\nv_add_u32 v7, 1024, v6\nv_lshlrev_b32 v5, 7, v3\nv_lshl_add_u32 v8, v4, 4, v5\nv_add_u32 v9, 512, v8")
        e(f"s_lshl_b32 s43, s{sHalf}, 13\ns_add_u32 s43, s43, {A_RING}\nv_add_u32 v{vT}, s43, v6\nv_add_u32 v{vT+1}, s43, v7")
        e(f"v_add_u32 v{vH}, {HALO}, v8\nv_add_u32 v{vH+1}, {HALO}, v9")
        e(f"s_lshl_b32 s43, s{sMi2}, 3\ns_lshl_b32 s44, s{sWave}, 1\ns_add_u32 s43, s43, s44")
        if l1:
            e(f"v_lshrrev_b32 v5, 1, v3\nv_lshrrev_b32 v{vRo}, 1, v2\nv_xor_b32 v5, v5, v{vRo}\nv_lshlrev_b32 v5, 4, v5\nv_lshl_add_u32 v{vRo}, v2, 7, v5\nv_and_b32 v5, 1, v3\nv_lshl_add_u32 v{vRo}, v5, 3, v{vRo}")
            e(f"s_lshr_b32 s44, s43, 6\ns_lshl_b32 s44, s44, 11\ns_and_b32 s43, s43, 63\ns_lshl_b32 s43, s43, 16\ns_add_u32 s43, s43, s44\ns_lshl_b32 s44, s{sNj2}, 7\ns_add_u32 s{sRs}, s43, s44")
        else:
            e(f"v_mov_b32 v{vRo}, v6\ns_lshl_b32 s43, s43, 15\ns_lshl_b32 s44, s{sNj2}, 11\ns_add_u32 s43, s43, s44\ns_add_u32 s{sRs}, s43, {XA + self.g.lp('X')}")
        e(f"v_lshrrev_b32 v2, 2, v{vL}\nv_bfe_u32 v3, v{vL}, 3, 2\nv_and_b32 v4, 3, v{vL}\nv_lshlrev_b32 v4, 3, v4\nv_lshl_add_u32 v4, v2, 7, v4")
        e(f"s_lshl_b32 s43, s{sHd}, 1\ns_or_b32 s43, s43, s{sHalf}\nv_xor_b32 v5, s43, v3\nv_lshl_add_u32 v{vW}, v5, 5, v4\nv_xor_b32 v5, 1, v5\nv_lshl_add_u32 v{vW+1}, v5, 5, v4")
        e(f"v_add_u32 v{vW+2}, {2*24576}, v{vW}\nv_add_u32 v{vW+3}, {2*24576}, v{vW+1}")
    def zero_acc(self):
        for r in range(0, 104, 2): self.g.e(f"v_pk_mul_f32 {vr(r,2)}, {vr(vZ-1,2)}, 0 op_sel:[1,0] op_sel_hi:[1,0]")
    def sig_static(self, s): return [f"s_add_u32 s44, s{sLead}, {s}", "s_and_b32 s44, s44, 15"]
    def offA(self): return [f"s_mul_i32 s45, s44, s{sAi}", f"s_add_u32 s{sA}, s45, s{sAb}"]
    def offW(self): return [f"s_mul_i32 s45, s44, {64*6144}", f"s_add_u32 s{sW}, s45, s{sWb}", f"s_add_u32 s{sW2}, s{sW}, 4096"]
    def a_ops(self, s):
        e = self.g.e
        return [(f"s_add_u32 m0, s{sMA}, {A_RING + (s % 3)*16384}" if q == 0 else None,
                 lambda q=q: e.vm(f"buffer_load_dwordx4 v{vOA+q}, {R(sAs)}, s{sA} offen offset:{1024*q} sc1 {self.ntA} lds", ('S', s))) for q in range(4)]
    def w_ops(self, s):
        e = self.g.e
        return [(f"s_add_u32 m0, s{sMW}, {W_RING + (s % 3)*24576 + q*1024}" if q in (0, 4) else None,
                 lambda q=q: e.vm(f"buffer_load_dwordx4 v{vOW + (q&1)}, {R(sWq)}, s{sW if q < 4 else sW2} offen offset:{1024*(q&3)} {self.ntW} lds", ('S', s))) for q in range(6)]
    def run(self, pre, ops):
        e = self.g.e
        for x in pre: e(x)
        for m, f in ops:
            if m: e(m + "\ns_nop 0")
            f()
    def prefetch_w(self, a=0, n=3):
        for s in range(a, n): self.run(self.sig_static(s) + self.offW(), self.w_ops(s))
    def halo(self, i):
        e = self.g.e
        e(f"s_add_u32 s44, s{sLead}, s{sWave}\ns_add_u32 s44, s44, {4*i}\ns_and_b32 s44, s44, 15\ns_mul_i32 s44, s44, s{sAi}")
        e(f"s_lshl_b32 s45, s{sWave}, 10\ns_add_u32 m0, s45, {HALO + i*4096}\ns_add_u32 s44, s44, s{sHb}")
        e.vm(f"buffer_load_dwordx4 v{vOH}, {R(sAs)}, s44 offen sc1 lds", ('H', i))
    def first_a(self):
        self.halo(0); self.run(self.sig_static(0) + self.offA(), self.a_ops(0))
    def prep_and_start(self, kernargs, more, rest):
        g = self.g; e = g.e
        self.setup(True)
        kernargs()
        nt = self.c.get('nt0', 0); self.ntA = 'nt' if nt & 1 else ''; self.ntW = 'nt' if nt & 2 else ''
        self.run(self.sig_static(0) + self.offA(), self.a_ops(0)); self.prefetch_w(0, 1); self.halo(0)
        self.ntA = self.ntW = ''
        more(); rest()
        e(f"s_and_b32 s43, s{sWave}, 1\ns_mul_i32 s43, s43, {LP}\ns_lshl_b32 s44, s2, 7\ns_add_u32 s43, s43, s44\ns_add_u32 s43, s43, {FL}")
        e.vm(f"buffer_store_dword v{vZ}, v{vZ}, {R(sWS)}, s43 offen sc1")
        self.setup_reads(True); self.mask_table()
        if not self.c.get('peel', 1): self.zero_acc()
        self.side.setup()
        e(f"s_lshl_b32 s43, s{sHd}, 12\nv_add_u32 v132, s43, v{vT}\nv_add_u32 v133, s43, v{vT+1}")
        e(f"v_and_b32 v128, 15, v{vL}\nv_lshrrev_b32 v129, 4, v{vL}\nv_cmp_eq_u32 vcc, 0, v128\nv_lshlrev_b32 v129, 4, v129\nv_mov_b32 v130, 0x40000000\nv_cndmask_b32 v136, v130, v129, vcc")
        for r in range(4): e(f"v_mov_b32 v{156+r}, 0x3f803f80")
        e(f"s_lshl_b32 s43, s{sWave}, 1\ns_add_u32 s43, s43, s{sT0}\ns_lshl_b32 s48, s43, 11\ns_lshl_b32 s43, s{sLead}, 7\ns_add_u32 s48, s48, s43\ns_add_u32 s48, s48, {STA}")
        e(f"s_lshl_b32 s43, s{sHj}, 2\ns_lshl_b32 s44, s{sHd}, 1\ns_add_u32 s43, s43, s44\ns_add_u32 s43, s43, s{sHalf}\ns_lshl_b32 s43, s43, 6\ns_mul_i32 s49, s{sLead}, {3072*4}\ns_add_u32 s49, s49, s43\ns_add_u32 s49, s49, {CSQ}")
        g.stamp()
        def xreads():
            g.stamp()
            for tt in range(2):
                for p in range(2): e.ds(f"ds_read_b128 {vr(140 + (tt*2+p)*4, 4)}, v{132+p} offset:{2048*tt}", 'PX')
        def prep():
            e.wait(ds='all')
            for kk in range(2):
                for m in range(3): e(f"{MF} {vr(160+4*m,4)}, {ar(fW(0,kk,2*m),4)}, v[156:159], {vr(160+4*m,4) if kk else 0}")
            stats_epilogue(e, lambda tt, p: 140 + (tt*2+p)*4, 2, 2, vL, 192, sWS, 48, aux='sc1', sm0=[80, 82, 92, 46])
            for m in range(3): e.vm(f"buffer_store_dwordx4 {vr(160+4*m,4)}, v136, {R(sWS)}, s49 offen sc1"); e("s_add_u32 s49, s49, 4096")
        if not self.c.get('peel', 1): return self.enter(True, xreads, prep)
        stats_pre(e, vL, 192, 78)
        self.run(self.sig_static(1) + self.offA(), self.a_ops(1))
        e.wait(vm=[('S', 0), ('H', 0)]); e("s_barrier")
        g.stamp()
        for f in self.reads(0): f()
        for tt in range(2):
            for p in range(2): e.ds(f"ds_read_b128 {vr(140 + (tt*2+p)*4, 4)}, v{132+p} offset:{2048*tt}", 'PX')
        self.prefetch_w(1, 2)
        g.stamp()
        spine = [lambda x=x: self.mfma(0, *x, zero=True) for x in self.order()]
        r = Rec(e); Px = lambda tt, p: 140 + (tt*2+p)*4
        for kk in range(2):
            for m in range(3): r(f"{MF} {vr(160+4*m,4)}, {ar(fW(0,kk,2*m),4)}, v[156:159], {vr(160+4*m,4) if kk else 0}")
        stats_mfma(r, Px, 0, 192); stats_mfma(r, Px, 1, 192)
        spine[30:30] = r.ops; N = len(spine); S = Slots(N); B = self.c.get('B0', 16)
        S.sc[B].append(lambda: (e.wait(vm=('S', 1), ds='all'), e("s_barrier")))
        for k, f in enumerate(self.reads(1)): S.ve[B + k].append(f)
        r = Rec(e); real = self.g.e; self.g.e = r
        self.prefetch_w(2, 3); self.run(self.sig_static(2) + self.offA(), self.a_ops(2))
        for h in range(1, 4): self.halo(h)
        n1 = len(r.ops)
        self.run(self.sig_static(3) + self.offA(), self.a_ops(3)); self.prefetch_w(3, 4)
        self.g.e = real
        nv = sum(not getattr(f, 'sc', False) for f in r.ops); k = 0; pos = 0
        for i, f in enumerate(r.ops):
            if getattr(f, 'sc', False): S.ve[pos].append(f)
            else:
                pos = 1 + (k*(N - 3))//nv; k += 1; assert i < n1 or pos > B
                S.ve[pos].append(f)
        r = Rec(e); stats_post(r, 192, 78, 48, None); r.ops.pop(0)
        for m in range(3): r.vm(f"buffer_store_dwordx4 {vr(160+4*m,4)}, v136, {R(sWS)}, s49 offen sc1"); r("s_add_u32 s49, s49, 4096")
        S.pour(r.ops, 51, N, cap=3)
        for k, f in enumerate(spine): f(); S.emit(k)
        for x in self.sig_static(4) + self.offA(): e(x)
        e(f"s_mov_b32 s{sSt}, 5\ns_mov_b32 s{sCnt}, 2")
        self.side.hook(sSt, 9)
        e("s_branch Lp1_u1")
    def pre(self):
        e = self.g.e
        e(f"s_mov_b32 s{sAs}, s{sWS}\ns_mov_b32 s{sAs+1}, s{sWS+1}\ns_mov_b32 s{sAs+2}, {hex(WS_BYTES)}")
        self.setup(False); self.prefetch_w(0, self.c.get('wpre', 0)); self.setup_reads(False); self.side.disable()
    def window(self):
        e = self.g.e
        W = self.g.cfg.get('win', 0)
        LA = self.c.get('late', 1)
        self.prefetch_w(self.c.get('wpre', 0), 1 if W else 3 - LA); self.zero_acc()
        e(f"s_mul_i32 s77, s{sMi1}, {128*self.g.SH}\ns_add_u32 s77, s77, {FL + H4*128 - 128*self.g.SH}\ns_and_b32 s43, s{sMi1}, 7\ns_cmp_eq_u32 s43, 0\ns_cselect_b32 s43, {128*self.g.SH}, 0")
        e(f"v_lshlrev_b32 v249, 7, v{vL}\nv_or_b32 v249, s43, v249")
        if W: self.prefetch_w(1, 3 - LA)
        if LA: self.g.not0(lambda: self.prefetch_w(3 - LA, 3))
    def start_l2(self):
        e = self.g.e
        LA = self.c.get('late', 1)
        self.g.poll(77, 16//self.g.SH, voff=249, nl=2*self.g.SH, late=(lambda: self.prefetch_w(3 - LA, 3)) if LA else None, keep=6*LA)
        self.run(self.sig_static(0) + self.offA(), self.a_ops(0)); self.halo(0)
        self.run(self.sig_static(1) + self.offA(), self.a_ops(1))
        rd = self.reads(0); wr = rd[:4] + rd[12:16] + rd[18:]
        for f in wr: f()
        e.wait(vm=[('S', 0), ('H', 0)]); e("s_barrier")
        for f in rd[4:12] + rd[16:18]: f()
        for h in range(1, 4): self.halo(h)
        self.run(self.sig_static(2) + self.offA(), self.a_ops(2))
        e("s_waitcnt lgkmcnt(0)")
        for t in [('W', 0, 0)]*4 + [('T', 0, 1 + k//2) for k in range(8)] + [('W', 0, 1)]*4 + [('T', 0, 0)]*2 + [('W', 0, 2 + k//4) for k in range(16)]: e.dsq.append(t)
    def enter(self, l1, hook=None, hook2=None):
        e = self.g.e; o = self.c.get('ord', 1) if l1 else 0
        if l1 and o == 0: self.prefetch_w(1, 2)
        self.run(self.sig_static(1) + self.offA(), self.a_ops(1))
        e.wait(vm=[('S', 0), ('H', 0)]); e("s_barrier")
        if hook: hook()
        if o == 2: self.prefetch_w(1, 2)
        for f in self.reads(0): f()
        if o == 1: self.prefetch_w(1, 2)
        if o: hook2()
        for h in range(1, 4): self.halo(h)
        if l1: self.prefetch_w(2, 3)
        self.run(self.sig_static(2) + self.offA(), self.a_ops(2))
        if l1 and not o: hook2()
    def reads(self, s):
        e = self.g.e
        sl = s % 3; b = s & 1
        def rt(t, kk):
            def f():
                if t == 0:
                    e.ds(f"ds_read_b128 {ar(fT(b,kk,0),4)}, v{vH+kk} offset:{((s-1) % 6 + 1)*1024 if s else 0}", ('T', s, 0))
                    if s in (6, 12): e(f"v_add_u32 v{vH+kk}, 6144, v{vH+kk}")
                else: e.ds(f"ds_read_b128 {ar(fT(b,kk,t),4)}, v{vT+kk} offset:{sl*16384 + (t-1)*2048}", ('T', s, t))
            return f
        def rw(n, kk, j):
            return lambda: e.ds(f"ds_read_b64_tr_b16 {ar(fW(b,kk,n)+2*j,2)}, v{vW + (n & 1) + (2 if sl == 2 else 0)} offset:{(sl & 1)*24576 + (2*kk+j)*6144 + (n>>1)*2048}", ('W', s, n))
        w = lambda n: [rw(n, kk, j) for kk in range(2) for j in range(2)]
        return w(0) + [rt(t, kk) for t in range(1, 5) for kk in range(2)] + w(1) + [rt(0, 0), rt(0, 1)] + w(2) + w(3) + w(4) + w(5)
    def order(self):
        seq = []; kk = 0
        for n in range(6):
            ts = [0, 1, 2, 3, 4] if n in (2, 4) else [1, 2, 3, 4]
            if n & 1: ts = ts[::-1]
            for t in ts: seq += [(n, t, kk, True), (n, t, 1-kk, False)]; kk = 1 - kk
        return seq
    def mfma(self, s, n, t, kk, first, zero=False):
        e = self.g.e; b = s & 1
        e.wait(ds=[('W', s, n), ('T', s, t)])
        a = (Q if n < 2 else Kc if n < 4 else V)(n & 1, t)
        x, y = ar(fW(b, kk, n), 4), ar(fT(b, kk, t), 4)
        if n >= 4: x, y = y, x
        e(f"{MF} {vr(a,4)}, {x}, {y}, {0 if zero and first else vr(a,4)}")
    def main(self, p2):
        g = self.g; e = g.e; c = self.c
        BOFF0 = c.get('BOFF', 4)
        e(f"s_mov_b32 s{sSt}, 4")
        for x in self.sig_static(3) + self.offA(): e(x)
        reads = self.reads
        g.stamp()
        nxt = dict(enumerate(p2.prefetch_ops()))
        n_epi = c.get('pf_epi', 10); assert n_epi + c.get('pf15', 8) <= 22 and not c.get('pf14')
        S_ = lambda x: (lambda: e(x))
        for s in range(16):
            if s % 6 == 0: e.mark(f"p1b{s//6}")
            S = Slots(NSL); BOFF = BOFF0 if s <= 14 else 10
            def bar(s=s):
                e.wait(vm=('S', s+1) if s < 15 else None, ds='all'); e("s_barrier")
            S.sc[BOFF].append(bar)
            def clear(pos):
                if clr and getattr(clr[0], 'sc', False): S.sc[pos].append(clr.pop(0))
                if clr: S.ve[pos].append(clr.pop(0))
            def pfo(pos, j):
                op = nxt.pop(j)
                for z in range(2): S.sc[pos - 2 + z].append(op[z])
                S.ve[pos].insert(0, W2(op[2]))
            own = c.get('own', 1) and s <= 12
            dpos = [BOFF + c.get('d0', 3) + 4*k for k in range(10)] if own else [BOFF + 2 + 4*k for k in range(10)]
            vpos = dpos if own else {13: range(3, 48, 4), 14: (8, 12, 16, 20, 24, 32, 40, 48)}.get(s, ())
            rpos = [k for k in range(BOFF, NSL) if k not in vpos]
            if s < 15:
                for k, f in enumerate(reads(s+1)): S.ve[rpos[k]].append(f)
            if s + 3 < 16:
                for k, x in enumerate(self.offW()): S.sc[k].append(S_(x))
                if s < 12:
                    for k, x in enumerate(["s_add_u32 s44, s44, 1", "s_and_b32 s44, s44, 15", f"s_add_u32 s{sSt}, s{sSt}, 1"] + self.offA()): S.sc[BOFF + 20 + k].append(S_(x))
                for k, (m, f) in enumerate(self.a_ops(s+3) + self.w_ops(s+3)):
                    pos = dpos[k]
                    if m: S.sc[pos-1].append(S_(m))
                    S.ve[pos].append(W2(f))
            if s == 12:
                ckl = f"buffer_load_dword v{vCk}, v{tmp}, {R(sDbg)}, 0 offen sc1"
                r = Rec(e); r(f"v_and_b32 v{tmp}, 1, v{vL}\nv_lshlrev_b32 v{tmp}, 7, v{tmp}"); S.pour(r.ops, 0, 2)
                S.ve[2].append(lambda: e.vm(ckl, 'CK'))
                r(f"""s_lshl_b32 s43, s{sHalf}, 2
                s_add_u32 s{sOwn}, s{sT0}, s43
                s_add_u32 s45, s{sLo}, {STA}
                s_lshl_b32 s44, s{sHt}, 11
                s_add_u32 s77, s44, s45
                s_lshl_b32 s44, s{sWave}, 1
                s_add_u32 s44, s44, s{sT0}
                s_lshl_b32 s44, s44, 11
                s_add_u32 s78, s44, s45
                s_lshl_b32 s43, s{sHj}, 1
                s_add_u32 s{sHead}, s43, s{sHd}
                s_lshl_b32 s43, s{sHead}, 7
                s_add_u32 s46, s43, {CSQ}
                s_lshl_b32 s43, s{sHalf}, 6""")
                S.pour(r.ops, 3, 30, cap=0)
                r(f"""v_lshlrev_b32 v{vB+1}, 3, v{vL}
                v_lshlrev_b32 v{vB}, 4, v{vL}
                v_xor_b32 v{vOH}, s43, v{vB}
                v_add_u32 v{vOH}, s{sPW}, v{vOH}
                v_bfe_u32 v{vB+2}, v{vL}, 3, 2
                v_lshrrev_b32 v{vB+3}, 5, v{vL}
                v_mad_u32_u24 v{vB+2}, v{vB+3}, 3, v{vB+2}
                v_and_b32 v{vB+3}, 7, v{vL}
                v_lshlrev_b32 v{vB+3}, 4, v{vB+3}
                v_lshl_add_u32 v{vB+2}, v{vB+2}, 12, v{vB+3}""")
                S.pour(r.ops, 30, 46)
                S.sc[47].append(lambda: g.check(vCk, ckl, 128, 'CK'))
            if s == 13:
                for p in range(4):
                    S.sc[6*p].append(lambda p=p: (e(f"s_cmp_eq_u32 s{sLay}, 0"), g.cold("s_cbranch_scc1", lambda: e("".join(
                        f"buffer_load_dwordx4 {vr(vMuV+8*p+4*z,4)}, v{vB+2}, {R(sWS)}, s46 offen sc1\ns_add_u32 s46, s46, {2*3072*4}\n" for z in range(2))))))
                for t in range(3):
                    so, off = (78, t*2048) if t < 2 else (77, 0)
                    for k in range(4): S.ve[16*t + 4*k + 3].append(W2(lambda t=t, k=k, so=so, off=off: e.vm(f"buffer_load_dwordx2 {vr(vST + t*8 + 2*k, 2)}, v{vB+1}, {R(sWS)}, s{so} offen offset:{off + 512*k} sc1", ('ST', t))))
                r = Rec(e)
                for x in p2.prefetch_setup(): r(x.replace("\n", "\t"))
                S.pour(r.ops, 1, NSL)
                S.pour(self.addr_ops(), 24, NSL)
            if s == 14:
                r = Rec(e)
                if not g.q4: self.p4.clear_mailbox(r, vB, tmp+6, f"s{sLo}")
                clr = r.ops[9:]; S.pour(r.ops[:9], 0, 8)
                for pos in (8, 12, 16, 20, 28, 36, 44): clear(pos)
                S.sc[23].append(S_(f"s_add_u32 m0, s{sMA}, {RES}"))
                for q in range(4): S.ve[24 + 8*q].append(W2(lambda q=q: e.vm(f"buffer_load_dwordx4 v{vOA+q}, {R(sAs)}, s{sRs} offen offset:{1024*q} sc1 lds", 'R')))
                for k in range(c.get('pf14', 0)): pfo(28 + 8*k if k < 3 else 4, 6 + k)
                m1 = self.stat_ops(); S.pour(m1, 6, NSL, partial=True)
            if s == 15:
                for k in range(c.get('pf15', 8)): pfo(3 + (NSL//c.get('pf15', 8))*k, 10 + k if k < 8 else min(nxt))
                for pos in (0, 6, 12, 18, 24): clear(pos)
                assert not clr
                S.pour(m1, 0, BOFF - 2)
                m2 = self.table_ops(); S.pour(m2, BOFF, NSL, partial=True)
            if s < 12: S.sc[NSL - 4].append(lambda s=s: self.side.hook(sSt, s % 6))
            if s in (1, 7): e("Lp1_u1:")
            if g.cfg.get('marks') and s == 14: e("Lmk_p1u14:")
            for k, x in enumerate(self.order()): self.mfma(s, *x); S.emit(k)
            if c.get('fine') and s in (2, 5, 8, 11, 13): g.stamp()
        e.fold([f"p1b{k}" for k in range(3)], "Lp1_loop", f"s{sCnt}")
        g.stamp()
        if g.cfg.get('rep'): print("p1 leftover", len(m2))
        e('Lmk_p1epi:')
        for f in m2: f()
        self.epilogue(p2, [nxt[j] for j in sorted(nxt)], n_epi)
    def mask_table(self):
        e = self.g.e; t = 232
        e(f"v_and_b32 v{t+3}, 15, v{vL}\nv_lshrrev_b32 v{t+4}, 4, v{vL}\nv_lshlrev_b32 v{t+4}, 2, v{t+4}\nv_sub_u32 v{t+3}, v{t+3}, v{t+4}\nv_mov_b32 v{t+5}, {fhex(-1e30)}")
        for r in range(4):
            e(f"v_subrev_u32 v{t+6}, {r}, v{t+3}\nv_cmp_gt_u32 vcc, 8, v{t+6}\nv_add_u32 v{t+6}, 16, v{t+6}\nv_cmp_gt_u32 s[78:79], 8, v{t+6}")
            e(f"v_cndmask_b32 v{132+r}, v{t+5}, 0, vcc\ns_nop 0\nv_cndmask_b32 v{136+r}, v{t+5}, 0, s[78:79]")
        e(f"v_lshlrev_b32 v{t}, 4, v{vL}\nv_add_u32 v{t}, {MSK}, v{t}\nds_write_b128 v{t}, v[132:135]\nds_write_b128 v{t}, v[136:139] offset:1024")
    def addr_ops(self):
        r = Rec(self.g.e); g16, t4 = vOW, vOW + 1
        r(f"v_lshrrev_b32 v{tmp}, 4, v{vL}\nv_lshlrev_b32 v{g16}, 4, v{tmp}\nv_and_b32 v{t4}, 15, v{vL}\nv_lshlrev_b32 v{t4}, 2, v{t4}")
        r(f"s_lshl_b32 s43, s{sHalf}, 9\nv_add_u32 v{aG}, {TBL}, v{g16}\nv_add_u32 v{aL}, {TBL}, v{t4}\nv_add_u32 v{aG+1}, s43, v{aG}\nv_add_u32 v{aL+1}, s43, v{aL}")
        r(f"s_lshl_b32 s43, s{sWave}, 1\ns_add_u32 s43, s43, 1\nv_add_u32 v{tmp+1}, s43, v{tmp}\nv_cmp_gt_u32 vcc, 2, v{tmp}\nv_and_b32 v{tmp}, 1, v{tmp}\nv_mul_u32_u24 v{tmp}, 9, v{tmp}")
        r(f"v_cndmask_b32 v{tmp}, v{tmp}, v{tmp+1}, vcc\nv_lshl_add_u32 v{vB+2}, v{tmp}, 7, v{aL}")
        r(f"v_add_u32 v{g16}, s{sPW}, v{g16}\nv_add_u32 v{t4}, s{sPW}, v{t4}\nv_add_u32 v{vB+3}, {MSK}, v{vB}")
        return r.ops
    def stat_ops(self):
        r = Rec(self.g.e); g16, t4 = vOW, vOW + 1
        def css():
            e = self.g.e; e.wait(vm=('ST', 1))
            e(f"s_cmp_eq_u32 s{sLay}, 0"); self.g.cold("s_cbranch_scc1", css1)
        def css1():
            e = self.g.e
            for d in (16, 8, 4):
                for x in range(0, d, 2): e(f"v_pk_add_f32 {vr(vMuV+x,2)}, {vr(vMuV+x,2)}, {vr(vMuV+d+x,2)}")
            for x in range(4): e(f"v_mov_b32 v{vMuV+4+x}, v{vMuV+x}")
            for x in range(4): e(f"v_permlane32_swap_b32 v{vMuV+x}, v{vMuV+4+x}")
            for x in range(4): e(f"v_add_f32 v{vMuV+x}, v{vMuV+x}, v{vMuV+4+x}")
            e(f"ds_write_b128 v{vOH}, {vr(vMuV,4)} offset:1024")
        for t in range(3):
            p = vST + t*8
            if t == 1:
                r.call(css)
                for m in range(2):
                    for j in range(2): r.ds(f"ds_read_b128 {vr(vCS + m*8 + j*4, 4)}, v{g16} offset:{1024 + m*128 + 64*j}", 'CSR')
                r.ds(f"ds_read2_b32 {vr(vCS+16,2)}, v{vXa} offset0:64 offset1:80", 'CSR')
            else: r.wait(vm=('ST', t))
            if t == 0: r(f"v_add_u32 v{vXa}, 1024, v{t4}")
            if t == 1:
                r(f"s_xor_b32 s47, s{sWave}, 2\ns_mul_i32 s47, s47, 6144\ns_add_u32 s47, s47, {PW}\ns_add_u32 s49, s47, 3072\ns_add_u32 s79, s47, 2048")
                r(f"s_cmp_eq_u32 s{sHalf}, 0\ts_cselect_b32 s49, s{sPW}, s49\ts_cselect_b32 s79, s47, s79")
                r(f"v_add_u32 v{vXa}, s49, v{vB+1}\nv_add_u32 v{vXa+1}, s79, v{vB+1}\nv_add_u32 v{vB+1}, s{sPW}, v{vB+1}")
            r(f"v_add_f32 v{p}, v{p}, v{p+2}\nv_add_f32 v{p+1}, v{p+1}, v{p+3}\nv_add_f32 v{p+4}, v{p+4}, v{p+6}\nv_add_f32 v{p+5}, v{p+5}, v{p+7}")
            r(f"v_add_f32 v{p}, v{p}, v{p+4}\nv_add_f32 v{p+1}, v{p+1}, v{p+5}")
        A, B, C, X = vST, vST + 8, vST + 16, vST + 2
        r(f"s_mov_b32 s48, {fhex(1.0/D)}\nv_mov_b32 v{tmp}, {fhex(1e-5)}")
        r(f"v_permlane32_swap_b32 v{B}, v{X}\nv_permlane32_swap_b32 v{B+1}, v{X+1}\nv_permlane32_swap_b32 v{A}, v{C}\nv_permlane32_swap_b32 v{A+1}, v{C+1}")
        r(f"v_add_f32 v{B}, v{B}, v{X}\nv_add_f32 v{A}, v{A}, v{C}\nv_add_f32 v{B+1}, v{B+1}, v{X+1}\nv_add_f32 v{A+1}, v{A+1}, v{C+1}")
        r(f"v_permlane16_swap_b32 v{A}, v{B}\ns_nop 0\nv_permlane16_swap_b32 v{A+1}, v{B+1}\nv_add_f32 v{A}, v{A}, v{B}\nv_add_f32 v{A+1}, v{A+1}, v{B+1}")
        r(f"v_mul_f32 v{A}, {fhex(-1.0/D)}, v{A}\nv_fma_f32 v{A+1}, v{A+1}, s48, v{tmp}\nv_fma_f32 v{A+1}, -v{A}, v{A}, v{A+1}\nv_max_f32 v{A+1}, v{A+1}, v{tmp}\nv_rsq_f32 v{A+1}, v{A+1}\ns_nop 0")
        r.ds(f"ds_write2_b32 v{vB+2}, v{A}, v{A+1} offset0:0 offset1:16")
        return r.ops
    def table_ops(self):
        r = Rec(self.g.e)
        for t in (1, 2, 3, 4, 0): r.ds(f"ds_read2_b32 {vr(vP+2*t,2)}, v{aL + (t > 0)} offset0:{32*t} offset1:{32*t+16}", 'TP')
        r.ds(f"ds_read_b128 {vr(bC,4)}, v{vB+3}", 'MK'); r.ds(f"ds_read_b128 {vr(bP,4)}, v{vB+3} offset:1024", 'MK')
        for t in (0, 4, 1, 2, 3):
            r.ds(f"ds_read_b128 {vr(vMuV+4*t,4)}, v{aG + (t > 0)} offset:{t*128}", 'TB')
            r.ds(f"ds_read_b128 {vr(vRsV+4*t,4)}, v{aG + (t > 0)} offset:{t*128+64}", 'TB')
        r(f"s_and_b32 s43, s{sMi1}, 7\ns_or_b32 s43, s43, s{sHalf}\ts_cselect_b64 s[46:47], -1, 0\nv_mov_b32 v{tmp+5}, {fhex(-1e30)}")
        r.wait(ds='MK')
        for t in (4, 3, 2, 1):
            for j in range(2):
                for x in range(4): r(f"v_fmac_f32 v{Q(j,t)+x}, v{vCS+4*j+x}, v{vP+2*t}")
            for j in range(2):
                for h in range(2): r(f"v_cvt_pk_bf16_f32 v{Q(0,t)+2*j+h}, v{Q(j,t)+2*h}, v{Q(j,t)+2*h+1}")
        for x in range(4): r(f"v_cndmask_b32 v{bP0+x}, v{tmp+5}, v{bP+x}, s[46:47]\nv_mov_b32 v{ones+x}, 0x3f803f80\nv_mul_f32 v{vCq+x}, {fhex(LOG2E*(32 ** -0.5))}, v{vP+2*x+3}")
        return r.ops
    def epilogue(self, p2, nxt, n_epi):
        g = self.g; e = g.e
        left = [n_epi]
        def pf():
            if left[0] > 0 and nxt:
                left[0] -= 1
                for f in nxt.pop(0): f()
        qf = lambda t: Q(0, t); kf = lambda t: Kc(0, t) if t else kf0
        vp = lambda j, t: 140 + j*10 + 2*t
        cb = vCS + 16
        def fold_k(t):
            J = range(2 if t else 1)
            for j in J:
                for h in range(2): e(f"v_pk_fma_f32 {vr(Kc(j,t)+2*h,2)}, {vr(vCS+8+4*j+2*h,2)}, {vr(vP+2*t,2)}, {vr(Kc(j,t)+2*h,2)} op_sel:[0,0,0] op_sel_hi:[1,0,1]")
            for j in J:
                for h in range(2): e(f"v_pk_mul_f32 {vr(Kc(j,t)+2*h,2)}, {vr(Kc(j,t)+2*h,2)}, {vr(vP+2*t,2)} op_sel:[0,1] op_sel_hi:[1,1]")
            for j in J:
                for h in range(2): e(f"v_cvt_pk_bf16_f32 v{Kc(0,t)+2*j+h}, v{Kc(j,t)+2*h}, v{Kc(j,t)+2*h+1}")
        def fold_v(t):
            J = range(2 if t else 1)
            for j in J:
                for h in range(2): e(f"v_pk_fma_f32 {vr(V(j,t)+2*h,2)}, {vr(vMuV+4*t+2*h,2)}, {vr(cb,2)}, {vr(V(j,t)+2*h,2)} op_sel:[0,{j},0] op_sel_hi:[1,{j},1]")
            for j in J:
                for h in range(2): e(f"v_pk_mul_f32 {vr(V(j,t)+2*h,2)}, {vr(V(j,t)+2*h,2)}, {vr(vRsV+4*t+2*h,2)}")
            for j in J:
                for h in range(2): e(f"v_cvt_pk_bf16_f32 v{(vp(j,t) if t else V(0,0))+h}, v{V(j,t)+2*h}, v{V(j,t)+2*h+1}")
        e.wait(ds='all')
        fold_k(0); fold_k(4); fold_v(0); fold_v(4)
        e.ds(f"ds_write2st64_b64 v{vB+1}, {vr(Kc(0,0),2)}, {vr(V(0,0),2)} offset0:0 offset1:1", 'XW')
        for j in range(2): e.ds(f"ds_write2st64_b64 v{vB+1}, {vr(Kc(0,4)+2*j,2)}, {vr(vp(j,4),2)} offset0:{4+2*j} offset1:{5+2*j}", 'XW')
        pf(); fold_k(3); pf(); fold_k(2); pf(); fold_k(1)
        e.wait(ds='XW'); e("s_barrier")
        for j in range(2): e.ds(f"ds_read_b64 {vr(kf0+2*j,2)}, v{vXa+j}", 'XR')
        for j in range(2): e.ds(f"ds_read_b64 {vr(vp(j,0),2)}, v{vXa+j} offset:512", 'XR')
        Sp = lambda t: Q(1, t); Sc = lambda t: Kc(1, t)
        for t in (4, 3, 2, 1):
            e(f"{MF} {vr(Sc(t),4)}, {vr(kf(t),4)}, {vr(qf(t),4)}, {vr(bC,4)}")
            if t == 1: e.wait(ds='XR')
            e(f"{MF} {vr(Sp(t),4)}, {vr(kf(t-1),4)}, {vr(qf(t),4)}, {vr(bP0 if t == 1 else bP,4)}")
        pf()
        for t in (1, 2, 3): fold_v(t); pf()
        e(f"s_cmp_eq_u32 s{sHalf}, 0\ns_cbranch_scc1 Lp1_nsw")
        for x in range(10): e(f"v_swap_b32 v{vp(0,0)+x}, v{vp(1,0)+x}")
        e("Lp1_nsw:")
        mx = lambda t: tmp + t - 1
        for k in range(4):
            for t in range(1, 5):
                p, c_ = Sp(t), Sc(t)
                e([f"v_max3_f32 v{mx(t)}, v{p}, v{p+1}, v{p+2}", f"v_max3_f32 v{mx(t)}, v{mx(t)}, v{p+3}, v{c_}", f"v_max3_f32 v{mx(t)}, v{mx(t)}, v{c_+1}, v{c_+2}", f"v_max_f32 v{mx(t)}, v{mx(t)}, v{c_+3}"][k])
        xreduce_g(e, "v_max_f32", [mx(t) for t in range(1, 5)], list(range(tmp+4, tmp+8)))
        for h in range(2): e(f"v_pk_mul_f32 {vr(tmp+2*h,2)}, {vr(tmp+2*h,2)}, {vr(vCq+2*h,2)} neg_lo:[0,1] neg_hi:[0,1]")
        pfr = qf
        for t in range(1, 5):
            z = (t - 1) & 1; cq, mm = (vCq + t - 1) & ~1, mx(t) & ~1
            for b4 in (Sp(t), Sc(t)):
                for h in range(2): e(f"v_pk_fma_f32 {vr(b4+2*h,2)}, {vr(b4+2*h,2)}, {vr(cq,2)}, {vr(mm,2)} op_sel:[0,{z},{z}] op_sel_hi:[1,{z},{z}]")
            for b4 in (Sp(t), Sc(t)):
                for r in range(4): e(f"v_exp_f32 v{b4+r}, v{b4+r}")
            for q, b4 in enumerate((Sp(t), Sc(t))):
                for h in range(2): e(f"v_cvt_pk_bf16_f32 v{pfr(t)+2*q+h}, v{b4+2*h}, v{b4+2*h+1}")
            if t < 3: pf()
        while left[0] > 0 and nxt: pf()
        O = V; Dn = lambda t: Kc(0, t)
        sal = f"s_lshl_b32 s43, s{sOwn}, 15\ns_lshl_b32 s44, s{sHead}, 10\ns_add_u32 s43, s43, s44\ns_add_u32 s43, s43, {g.lo('O')}\ns_add_u32 s46, s43, {OB}".split("\n")
        sal += [f"s_add_u32 s{46+t}, s{46+t-1}, 32768" for t in range(1, 4)]
        sal += f"s_lshl_b32 s77, s{sMi1}, 1\ns_lshr_b32 s43, s{sHj}, 3\ns_add_u32 s77, s77, s43\ns_lshl_b32 s77, s77, 7\ns_add_u32 s77, s77, s{sLo}\ns_add_u32 s77, s77, {FL + H1*128}".split("\n")
        for t in range(1, 5): e(f"{MF} {vr(Dn(t),4)}, {vr(ones,4)}, {vr(pfr(t),4)}, 0\n{sal.pop(0)}\n{sal.pop(0)}")
        for t in range(1, 5):
            for j in range(2):
                e(f"{MF} {vr(O(j,t),4)}, {vr(vp(j,t-1),4)}, {vr(pfr(t),4)}, 0")
                if sal: e(sal.pop(0))
                if t > 2: e(f"v_rcp_f32 v{Dn(2*t+j-5)}, v{Dn(2*t+j-5)}")
        for t in range(1, 5):
            for j in range(2):
                for h in range(2): e(f"v_pk_mul_f32 {vr(O(j,t)+2*h,2)}, {vr(O(j,t)+2*h,2)}, {vr(Dn(t),2)} op_sel:[0,0] op_sel_hi:[1,0]")
            for j in range(2):
                for h in range(2): e(f"v_cvt_pk_bf16_f32 v{Sp(t)+2*j+h}, v{O(j,t)+2*h}, v{O(j,t)+2*h+1}")
            e.vm(f"buffer_store_dwordx4 {vr(Sp(t),4)}, v{vB}, {R(sWS)}, s{46+t-1} offen sc1", 'OUT')
        e('Lmk_p1end:')
        g.stamp()
        g.signal('OUT', 77, p2.pre)
        p2.window(nxt)
```

```python
from mg import *
from p1 import RES, vRo
sM0, sRot, sT, sX, sSt = 89, 88, 57, 58, 60
vW, vOT, vR, vS = 40, 48, 52, 72
acc = lambda n, tt: (n*2 + tt)*4
aW = lambda u, kk, n: 128 + (u & 1)*32 + kk*16 + n*4
class P2:
    def __init__(self, g): self.g = g; self.c = g.cfg.get('p2', {}); self.LT = self.c.get('LT', 6); self.RB = self.c.get('RB', 0); self.P = 8 if self.LT <= 6 else 16
    def aT(self, j, tt): return (j % self.P)*8 + tt*4
    def prefetch_setup(self):
        return [f"s_lshl_b32 s92, s{sNj2}, 7", f"s_lshl_b32 s93, s{sWave}, 14", "s_add_u32 s92, s92, s93", f"s_lshl_b32 s{sM0}, s{sWave}, 10", f"v_add_u32 v186, s92, v{vOW2}",
                f"s_bfe_u32 s{sRot}, s2, {hex(self.RB*0x10000 + 5)}", f"s_lshl_b32 s{sRot}, s{sRot}, {21 - self.RB}"]
    def prefetch_ops(self):
        e = self.g.e
        return [[lambda j=j: e(f"s_add_u32 m0, s{sM0}, {j*4096}"), lambda j=j: e(f"s_xor_b32 s92, s{sRot}, {j*65536}"),
                 lambda j=j: e.vm(f"buffer_load_dwordx4 v186, {R(sWo)}, s92 offen lds", ('W2', j))] for j in range(32)]
    def t_ops(self, j):
        r = Rec(self.g.e)
        if j < 32:
            if j % 4 == 0: r((f"s_add_u32 s{sT}, s{sT}, 4096\t" if j else f"s_lshr_b32 s{sRot}, s{sRot}, 6\t") + f"s_xor_b32 s93, s{sT}, s{sRot}")
            for tt in range(2): r.vm(f"buffer_load_dwordx4 {ar(self.aT(j, tt), 4)}, v{vOT+tt}, {R(sWS)}, s93 offen offset:{1024*(j & 3)} sc1", ('T2', j))
        return r.ops
    def pre(self):
        g = self.g; e = g.e
        e(f"s_lshl_b32 s44, s{sMi2}, 3\ns_lshl_b32 s43, s{sWave}, 1\ns_add_u32 s44, s44, s43\ns_lshl_b32 s45, s44, 15\ns_add_u32 s{sT}, s45, {g.lo('O')}\ns_add_u32 s{sT}, s{sT}, {OB}")
        e(f"s_lshl_b32 s43, s{sNj2}, 11\ns_add_u32 s45, s45, s43\ns_add_u32 s45, s45, {g.lo('X')}\ns_add_u32 s{sX}, s45, {XB}\ns_add_u32 s{sX+1}, s{sX}, 32768")
        e(f"s_lshl_b32 s44, s44, 11\ns_lshl_b32 s43, s{sNj2}, 7\ns_add_u32 s44, s44, s43\ns_add_u32 s44, s44, s{sLo}\ns_add_u32 s{sSt}, s44, {STB}")
        e(f"v_lshlrev_b32 v{vOT}, 4, v{vL}\nv_add_u32 v{vOT+1}, 32768, v{vOT}")
        e(f"s_cmp_eq_u32 s{sLay}, 0\ns_cselect_b32 s44, 32, 8\ns_cselect_b32 s45, 64, 0x400\ns_lshl_b32 s43, s{sWave}, 12\ns_add_u32 s43, s43, {RES}")
        e(f"v_xor_b32 v3, s44, v{vRo}\nv_xor_b32 v4, s45, v{vRo}\nv_xor_b32 v5, s45, v3\nv_add_u32 v2, s43, v{vRo}\nv_add_u32 v3, s43, v3\nv_add_u32 v4, s43, v4\nv_add_u32 v5, s43, v5")
        e.wait(vm='R')
        for tt in range(2):
            for q in range(4): e.ds(f"ds_read_b64 {vr(vR + tt*8 + 2*q, 2)}, v{2+q} offset:{2048*tt}", 'RR')
        e(f"v_lshrrev_b32 v2, 2, v{vL}\nv_bfe_u32 v3, v{vL}, 3, 2\nv_and_b32 v4, 3, v{vL}\nv_lshlrev_b32 v4, 3, v4\nv_lshl_add_u32 v4, v2, 7, v4")
        for t in range(4): e(f"v_xor_b32 v5, {t}, v3\nv_lshl_add_u32 v{vW+t}, v5, 5, v4")
        self.side.acc(); e.wait(ds='RR')
    def window(self, nxt):
        g = self.g; e = g.e
        self.LA = LA = self.c.get('late', 0); assert LA <= 6
        nxt, self.lateops = nxt[:len(nxt) - LA], nxt[len(nxt) - LA:]
        n0 = 8 if g.cfg.get('win', 0) else len(nxt)
        for op in nxt[:n0]:
            for f in op: f()
        for tt in range(2):
            for n in range(4):
                for h in range(2):
                    src = vR + (tt*2 + (n >> 1))*4 + (n & 1)*2 + h
                    e(f"v_lshlrev_b32 v{acc(n,tt)+2*h}, 16, v{src}\nv_and_b32 v{acc(n,tt)+2*h+1}, 0xffff0000, v{src}")
        stats_pre(e, vL, vS, 64)
        self.side.publish()
        e(f"s_lshl_b32 s77, s{sMi2}, 8\ns_add_u32 s77, s77, {FL + H1*128}\nv_lshlrev_b32 v249, 7, v{vL}\ns_add_u32 s77, s77, s{sLo}")
        for op in nxt[n0:]:
            for f in op: f()
        if LA: g.not0(self.late)
    def late(self):
        for op in self.lateops:
            for f in op: f()
    def main(self, nx):
        g = self.g; e = g.e
        g.poll(77, 8, voff=249, late=self.late if self.LA else None, keep=self.LA)
        L0 = self.c.get('L0', self.LT)
        for j in range(L0):
            for f in self.t_ops(j): f()
        self.side.final()
        def reads(u):
            r = Rec(e)
            for n in range(4 if u < 16 else 0):
                for kk in range(2):
                    for j in range(2): r.ds(f"ds_read_b64_tr_b16 {ar(aW(u, kk, n) + 2*j, 2)}, v{vW+n} offset:{((2*u+kk) % 8)*4096 + j*2048}", ('F2', u, n))
            return r.ops
        for f in reads(0): f()
        for j in range(L0, self.LT):
            for f in self.t_ops(j): f()
        e(f"s_and_b32 s43, s{sNj2}, {g.SH-1}\ns_mul_i32 s77, s{sMi2}, {g.SH}\ns_add_u32 s77, s77, s43\ns_lshl_b32 s77, s77, 7\ns_add_u32 s77, s77, s{sLo}\ns_add_u32 s77, s77, {FL + H2*128}")
        g.stamp()
        Pk = lambda tt, p: vR + (tt*2 + p)*4
        def out(r, tt, p):
            for q in range(4):
                a = acc(2*p + (q >> 1), tt) + 2*(q & 1)
                r(f"v_cvt_pk_bf16_f32 v{Pk(tt,p)+q}, v{a}, v{a+1}")
            r.vm(f"buffer_store_dwordx4 {vr(Pk(tt,p),4)}, v{vOT}, {R(sWS)}, s{sX+tt} offen offset:{1024*p} sc1", 'OUT2')
        for u in range(16):
            if u % 4 == 0: e.mark(f"p2b{u//4}")
            S = Slots(16)
            RP = self.c.get('rp', (0, 1, 2, 3))
            for k, f in enumerate(reads(u+1)): S.ve[(k & 12) + RP[k & 3]].append(f)
            if u == 13 and nx.c.get('wpre'): S.sc[0].append(lambda: e("s_barrier"))
            if u == 12 and self.LA: S.sc[0].append(lambda: e("s_barrier"))
            if u % 4 == 2:
                for n in range(4): S.ve[4*n+3].append(lambda n=n: e(f"v_add_u32 v{vW+n}, 32768, v{vW+n}"))
            k = self.c.get('first', 1)
            for f in self.t_ops(2*u + self.LT) + self.t_ops(2*u + self.LT + 1):
                if getattr(f, 'sc', False): S.sc[k].append(f)
                else: S.ve[k].append(f); k += 4
            if u == 15:
                r = Rec(e); out(r, 1, 0); out(r, 0, 0); S.pour(r.ops, 11, 16, partial=True); S.ve[15] += r.ops
                for k in (8, 9, 10): S.sc[k].append(lambda: e("s_nop 0"))
            seq = []; kk = 0
            for n in range(4):
                for tt in ((1, 0) if n & 1 else (0, 1)): seq += [(n, tt, kk), (n, tt, 1-kk)]; kk = 1 - kk
            for k, (n, tt, kk) in enumerate(seq):
                e.wait(vm=('T2', 2*u+1) if k == 0 else None, ds=('F2', u, n | 1))
                a = vr(acc(n, tt), 4)
                e(f"{MF} {a}, {ar(aW(u, kk, n), 4)}, {ar(self.aT(2*u+kk, tt), 4)}, {a}")
                S.emit(k)
        if self.P == 8: e.fold([f"p2b{k}" for k in range(4)], "Lp2_loop", f"s{sCnt}")
        g.stamp()
        stats_mfma(e, Pk, 0, vS); out(e, 1, 1); out(e, 0, 1); e("s_nop 0"); stats_mfma(e, Pk, 1, vS)
        stats_post(e, vS, 64, sSt, 'OUT2')
        g.stamp()
        g.signal('OUT2', 77, nx.pre)
        self.side.arrive()
        nx.window()
```
